```python
import torch

def _softmax(x, axis=-1):
    return torch.softmax(x, dim=axis)
def _gelu(x):
    return torch.nn.functional.gelu(x, approximate="tanh")
def _silu(x):
    return torch.nn.functional.silu(x)
def _sigmoid(x):
    return torch.sigmoid(x)
def _layernorm(x, axis=-1, eps=1e-5):
    m = x.mean(dim=axis, keepdim=True)
    v = x.var(dim=axis, keepdim=True, unbiased=False)
    return (x - m) / torch.sqrt(v + eps)
def _scatter_add(tgt, idx, src, axis=0):
    return tgt.clone().index_add_(axis, idx, src)
def _segment_sum(src, seg, n):
    out = torch.zeros((n,) + src.shape[1:], dtype=src.dtype)
    return out.index_add_(0, seg, src)
def _pad(x, pw):
    flat = tuple(v for pair in reversed(pw) for v in pair)
    return torch.nn.functional.pad(x, flat)

kernel_name = 'standalone__depthwise_separable__vision'

def setup_inputs():

    _w = (lambda a: (lambda t: t.to(torch.bfloat16) if t.is_floating_point() else t)(torch.as_tensor(a)))
    H = W = 384
    C = 384
    k = 1
    return {
        "x": _w((lambda *s: torch.randn(*s, dtype=torch.bfloat16) * 0.05)(1, H, W, C)),
        "dw": _w((lambda *s: torch.randn(*s, dtype=torch.bfloat16) * 0.05)(k, k, C)),
        "pw": _w((lambda *s: torch.randn(*s, dtype=torch.bfloat16) * 0.05)(C, C)),
    }

def reference(x, dw, pw):
    B, H, W, C = x.shape
    k = dw.shape[0]
    pad = k // 2
    xp = _pad(x, ((0,0),(pad,pad),(pad,pad),(0,0)))
    out = torch.zeros_like(x)
    for i in range(k):
        for j in range(k):
            out = out + xp[:, i:i+H, j:j+W, :] * dw[i, j][None, None, None, :]
    return torch.einsum('bhwc,cd->bhwd', out, pw)
```

```python
import sys

HDR = open('standalone__depthwise_separable__vision.s.ref').read().split('; Override launch')[0]

class G:
    def __init__(self):
        self.sites = {}
        self.reset('collect')
    def reset(self, mode):
        self.mode = mode
        self.L = []
        self.vm = []
        self.lg = []
    def e(self, s):
        self.L.append(s)
    def vmop(self, s, tag=None):
        self.L.append(s); self.vm.append(tag)
    def lgop(self, s, tag=None):
        self.L.append(s); self.lg.append(tag)
    def _cnt(self, lst, tag):
        for i in range(len(lst)-1, -1, -1):
            if lst[i] == tag:
                return len(lst) - 1 - i
        raise KeyError(tag)
    def wait(self, key, vm=None, lg=None):
        if self.mode == 'collect':
            cur = self.sites.get(key, (63, 15))
            v = min(cur[0], self._cnt(self.vm, vm)) if vm is not None else cur[0]
            l = min(cur[1], self._cnt(self.lg, lg)) if lg is not None else cur[1]
            self.sites[key] = (v, l)
        v, l = self.sites[key]
        s = '  s_waitcnt'
        if vm is not None: s += f' vmcnt({v})'
        if lg is not None: s += f' lgkmcnt({l})'
        self.L.append(s)

def gen(opts):
    g = G()
    build(g, opts, unroll=True)
    g.reset('emit')
    build(g, opts, unroll=False)
    return '\n'.join(g.L) + '\n'

def build(g, opts, unroll):
    NT_LD = opts.get('nt_ld', '')
    NT_ST = opts.get('nt_st', '')
    DBG = int(opts.get('dbg', 0))
    PD = int(opts.get('pdbg', 0))
    R = int(opts.get('R', 4))
    P = R - 1
    e = g.e
    TM = 32
    TILE_B = TM * 768
    NTILE = 18
    STRIDE = 256 * TILE_B
    LDS_O = 0
    LDS_X = 2 * TILE_B
    LDS_TOTAL = LDS_X + R * TILE_B
    OOB = 113246208
    vLoad, vLdsW = 1, 2
    vLdsR = [3, 4, 5, 6]
    vOW4, vOW2, vOR = 7, 8, 9
    DW = 12
    S = [36, 48]
    XF = [60, 64, 68, 72]
    ACC = [76, 88]
    TMP = [100, 101, 102, 103]
    OB = [104, 108]
    vBW, vTr0, vTr2 = 76, 77, 78
    sX, sO, sP, sD = 4, 8, 12, 16
    sW, sLd, sStCur, sStIdx, sCnt, sMask, sT0 = 20, 21, 22, 23, 32, 33, 34
    sRdI, sWrI, sDelta, sOOB, sBase = 47, 48, 49, 50, 53

    stamp_n = [0]
    def stamp(force=False):
        if DBG and (force or not PD or stamp_n[0] == 0):
            e(f'  s_memrealtime s[{64+2*stamp_n[0]}:{65+2*stamp_n[0]}]')
            stamp_n[0] += 1
    def pstamp():
        if PD: stamp(True)

    e(HDR.rstrip('\n'))
    e(f'; @launch grid=(256,1,1) block=(512,1,1) lds={LDS_TOTAL}')
    e('.amdgcn_target "amdgcn-amd-amdhsa--gfx950"')
    e('.text')
    e('.globl standalone__depthwise_separable__vision_kernel')
    e('.p2align 8')
    e('.type standalone__depthwise_separable__vision_kernel,@function')
    e('standalone__depthwise_separable__vision_kernel:')
    e('  s_cmp_ge_u32 s2, 256')
    e('  s_cbranch_scc1 L_done')
    stamp()
    if DBG: e('  s_memtime s[96:97]')
    e('  s_load_dwordx4 s[24:27], s[0:1], 0')
    e('  s_load_dwordx4 s[28:31], s[0:1], 16')
    e('  v_lshrrev_b32 v11, 6, v0')
    e('  v_and_b32 v85, 63, v0')
    e(f'  v_readfirstlane_b32 s{sW}, v11')
    e('  v_and_b32 v104, 15, v85')
    e('  v_lshrrev_b32 v105, 4, v85')
    e(f'  s_mov_b32 s{sMask}, 0xffff0000')
    e(f'  s_lshl_b32 s{sT0}, s{sW}, 2')
    e(f'  v_add_u32 v106, s{sT0}, v105')
    e('  v_mul_u32_u24 v107, 0x300, v106')
    e(f'  v_lshl_add_u32 v{vLoad}, v104, 4, v107')
    ROT = int(opts.get('rot', 0))
    vLQ = [0, 10, 11]
    e('  s_lshr_b32 s36, s2, 3')
    e('  s_mul_i32 s37, s36, 0x5556')
    e('  s_lshr_b32 s37, s37, 16')
    e('  s_mul_i32 s38, s37, 3')
    e('  s_sub_u32 s38, s36, s38')
    e('  s_and_b32 s37, s37, 3')
    if not ROT:
        e('  s_mov_b32 s38, 0')
        e('  s_mov_b32 s37, 0')
    e('  s_lshl_b32 s39, s37, 2')
    e('  v_xor_b32 v84, s39, v104')
    e('  v_lshlrev_b32 v84, 4, v84')
    for q in range(3):
        e(f'  s_add_u32 s40, s38, {q}')
        e('  s_cmp_ge_u32 s40, 3')
        e('  s_cselect_b32 s41, 3, 0')
        e('  s_sub_u32 s40, s40, s41')
        e(f'  s_lshl_b32 s{60+q}, s40, 8')
        e(f'  v_add_u32 v{86+q}, s{60+q}, v84')
        e(f'  v_add_u32 v{vLQ[q]}, v{86+q}, v107')
    e('  s_mov_b32 s43, s37')
    e(f'  s_mul_i32 s{sLd}, s2, {TILE_B}')
    e(f'  s_mov_b32 s{sBase}, s{sLd}')
    e(f'  s_mov_b32 s{sOOB}, {OOB}')
    e(f'  s_lshr_b32 s{sStIdx}, s{sW}, 2')
    e(f'  s_sub_u32 s{sStIdx}, -1, s{sStIdx}')
    e('  s_waitcnt lgkmcnt(0)')
    for (sd, lo, nbytes) in ((sX, 24, 113246208), (sD, 26, 768), (sP, 28, 294912), (sO, 30, 113246208)):
        e(f'  s_mov_b32 s{sd}, s{lo}')
        e(f'  s_and_b32 s{sd+1}, s{lo+1}, 0xffff')
        e(f'  s_mov_b32 s{sd+2}, {nbytes}')
        e(f'  s_mov_b32 s{sd+3}, 0x00020000')

    def xload1(t, q):
        p = t & 1
        g.vmop(f'  buffer_load_dwordx4 v[{S[p]+4*q}:{S[p]+4*q+3}], v{vLQ[q]}, s[{sX}:{sX+3}], s{sOOB if opts.get("nold") else sLd} offen{NT_LD}', ('L', t, q))
        if q == 2:
            e(f'  s_add_u32 s{sLd}, s{sLd}, {STRIDE}')
    def xload(t):
        for q in range(3): xload1(t, q)
    def bload(ks):
        e(f'  s_xor_b32 s46, s43, {ks & 3}')
        e('  s_mul_i32 s46, s46, 24576')
        e(f'  s_mul_i32 s44, s{60 + ks // 4}, 384')
        e('  s_add_u32 s46, s46, s44')
        for i in range(3):
            g.vmop(f'  buffer_load_dwordx4 a[{12*ks+4*i}:{12*ks+4*i+3}], v{vLoad}, s[{sP}:{sP+3}], s46 offen offset:{i*256}', ('B', ks, i))

    xload(0)
    if opts.get('lat'):
        e('  s_waitcnt vmcnt(2)')
        pstamp()
        e('  s_waitcnt vmcnt(0)')
        pstamp()
    for q in range(3):
        g.vmop(f'  buffer_load_dwordx4 v[{88+4*q}:{88+4*q+3}], v84, s[{sD}:{sD+3}], s{60+q} offen', ('W', q))
    if opts.get('lat'):
        e('  s_waitcnt vmcnt(0)')
        pstamp()
    xload(1)
    if opts.get('lat'):
        e('  s_waitcnt vmcnt(0)')
        pstamp()
    for ks in range(4):
        bload(ks)
        if opts.get('lat') and ks < 2:
            e('  s_waitcnt vmcnt(0)')
            pstamp()
    e('  v_and_b32 v108, 15, v106')
    e('  v_xor_b32 v108, v108, v104')
    e(f'  v_lshl_add_u32 v{vLdsW}, v108, 4, v107')
    e(f'  v_add_u32 v{vLdsW}, {LDS_X}, v{vLdsW}')
    e('  v_and_b32 v108, 7, v106')
    e('  v_xor_b32 v108, v108, v104')
    e(f'  v_lshl_add_u32 v{vOR}, v108, 4, v107')
    e('  v_mul_u32_u24 v107, 0x300, v104')
    e('  v_xor_b32 v108, v105, v104')
    e(f'  v_lshl_add_u32 v{vLdsR[0]}, v108, 4, v107')
    e(f'  v_add_u32 v{vLdsR[0]}, {LDS_X}, v{vLdsR[0]}')
    for s in range(1, 4):
        e(f'  v_xor_b32 v{vLdsR[s]}, {s*64}, v{vLdsR[0]}')
    e(f'  s_and_b32 s37, s{sW}, 1')
    e('  s_lshl_b32 s39, s37, 1')
    e('  s_lshl_b32 s38, s37, 2')
    e('  s_sub_u32 s40, 4, s38')
    e(f'  s_mul_i32 s41, s{sW}, 6')
    e('  s_add_u32 s42, s41, s40')
    e('  s_add_u32 s41, s41, s39')
    e('  v_and_b32 v108, 7, v104')
    e('  v_add_u32 v109, s41, v105')
    e('  v_xor_b32 v109, v109, v108')
    e(f'  v_lshl_add_u32 v{vOW4}, v109, 4, v107')
    e('  v_lshrrev_b32 v109, 1, v105')
    e('  v_add_u32 v109, s42, v109')
    e('  v_xor_b32 v109, v109, v108')
    e(f'  v_lshl_add_u32 v{vOW2}, v109, 4, v107')
    e('  v_and_b32 v109, 1, v105')
    e(f'  v_lshl_add_u32 v{vOW2}, v109, 3, v{vOW2}')
    e(f'  s_mul_i32 s45, s{sW}, 3072')
    e('  v_lshlrev_b32 v108, 2, v105')
    e('  v_xor_b32 v108, v108, v104')
    e('  v_lshlrev_b32 v108, 4, v108')
    e('  v_lshl_add_u32 v108, v105, 8, v108')
    e(f'  v_add_u32 v{vBW}, s45, v108')
    e('  v_bfe_u32 v110, v85, 2, 2')
    e('  v_and_b32 v111, 3, v85')
    e('  v_mul_u32_u24 v79, 0x1800, v105')
    e('  v_lshl_add_u32 v79, v110, 8, v79')
    e('  v_lshlrev_b32 v80, 2, v110')
    e('  v_add_u32 v81, s41, v111')
    e('  v_lshrrev_b32 v82, 4, v81')
    e('  v_and_b32 v81, 15, v81')
    e('  v_xor_b32 v81, v81, v80')
    e(f'  v_lshl_add_u32 v{vTr0}, v82, 10, v79')
    e(f'  v_lshl_add_u32 v{vTr0}, v81, 4, v{vTr0}')
    e('  v_lshrrev_b32 v81, 1, v111')
    e('  v_add_u32 v81, s42, v81')
    e('  v_lshrrev_b32 v82, 4, v81')
    e('  v_and_b32 v81, 15, v81')
    e('  v_xor_b32 v81, v81, v80')
    e(f'  v_lshl_add_u32 v{vTr2}, v82, 10, v79')
    e(f'  v_lshl_add_u32 v{vTr2}, v81, 4, v{vTr2}')
    e('  v_and_b32 v81, 1, v111')
    e(f'  v_lshl_add_u32 v{vTr2}, v81, 3, v{vTr2}')
    e(f'  s_mov_b32 s{sRdI}, 0')
    e(f'  s_mov_b32 s{sWrI}, 0')
    e(f'  s_mov_b32 s51, {-(R-1)*TILE_B & 0xffffffff}')
    e(f'  s_mov_b32 s52, {TILE_B}')

    def ring_adv(sI, regs):
        out = [f'  s_add_u32 s{sI}, s{sI}, 1',
               f'  s_cmp_eq_u32 s{sI}, {R}',
               f'  s_cselect_b32 s{sDelta}, s51, s52',
               f'  s_cselect_b32 s{sI}, 0, s{sI}']
        for r in regs:
            out.append(f'  v_add_u32 v{r}, s{sDelta}, v{r}')
        for o in out: e(o)

    def scale_d(t, d):
        p = t & 1
        q, dd = d // 4, d % 4
        r = S[p] + d
        t0, t1 = (TMP[0], TMP[1]) if d % 2 == 0 else (TMP[2], TMP[3])
        return [f'  v_lshlrev_b32 v{t0}, 16, v{r}',
                f'  v_and_b32 v{t1}, s{sMask}, v{r}',
                f'  v_mul_f32 v{t0}, v{t0}, v{DW + 2*d}',
                f'  v_mul_f32 v{t1}, v{t1}, v{DW + 2*d + 1}',
                f'  v_cvt_pk_bf16_f32 v{r}, v{t0}, v{t1}']
    def ring_write(t, q):
        p = t & 1
        g.lgop(f'  ds_write_b128 v{vLdsW}, v[{S[p]+4*q}:{S[p]+4*q+3}] offset:{q*256}', ('RW', t, q))

    def scale_tile(t, key, nxt=True):
        for q in range(3):
            g.wait((key, q), vm=('L', t, q))
            for d in range(4*q, 4*q+4):
                for s in scale_d(t, d): e(s)
            ring_write(t, q)
            if nxt: xload1(t + 2, q)
        ring_adv(sWrI, [vLdsW])

    def dummy_st():
        for q in range(3):
            g.vmop(f'  buffer_store_dwordx4 v[{XF[0]}:{XF[0]+3}], v{vLoad}, s[{sO}:{sO+3}], s{sOOB} offen', None)

    g.wait('w', vm=('W', 2))
    pstamp()
    for i in range(12):
        e(f'  v_lshlrev_b32 v{DW+2*i}, 16, v{88+i}')
        e(f'  v_and_b32 v{DW+2*i+1}, s{sMask}, v{88+i}')
    scale_tile(0, 'p0')
    for ks in range(4, 8): bload(ks)
    scale_tile(1, 'p1')
    pstamp()
    if P == 2: dummy_st()
    for ks in range(8, 12): bload(ks)
    for ks in range(12):
        g.wait(('b', ks), vm=('B', ks, 2))
        if ks in (0, 3, 6, 9, 11): pstamp()
        so = LDS_O + (ks & 1) * 24576
        for i in range(3):
            g.lgop(f'  ds_write_b128 v{vBW}, a[{12*ks+4*i}:{12*ks+4*i+3}] offset:{so + i*1024}', ('BW', ks, i))
        e('  s_waitcnt lgkmcnt(0)')
        e('  s_barrier')
        for h in range(2):
            g.lgop(f'  ds_read_b64_tr_b16 a[{(ks*3+0)*4+2*h}:{(ks*3+0)*4+2*h+1}], v{vTr0} offset:{so + h*3072}')
            g.lgop(f'  ds_read_b64_tr_b16 a[{(ks*3+1)*4+2*h}:{(ks*3+1)*4+2*h+1}], v{vTr0} offset:{so + h*3072 + 8}')
            g.lgop(f'  ds_read_b64_tr_b16 a[{(ks*3+2)*4+2*h}:{(ks*3+2)*4+2*h+1}], v{vTr2} offset:{so + h*3072}')
        if ks == 5 and P >= 3:
            if P == 3: dummy_st()
            scale_tile(2, 'p2')
            if P == 3: dummy_st()
        if ks == 9 and P >= 4:
            dummy_st()
            scale_tile(3, 'p3')
    stamp()

    def rd(t, i):
        mt, ks = i // 12, i % 12
        x = XF[i % 4]
        g.lgop(f'  ds_read_b128 v[{x}:{x+3}], v{vLdsR[ks & 3]} offset:{mt*12288 + (ks >> 2)*256}', ('X', t, i))

    e('  s_waitcnt lgkmcnt(0)')
    e('  s_barrier')
    for i in range(3): rd(0, i)
    stamp()
    pstamp()

    def epi_cvt(mt):
        a = ACC[mt]
        return [f'  v_cvt_pk_bf16_f32 v{a + (i if i < 4 else i + 4)}, v{a+2*i}, v{a+2*i+1}' for i in range(6)]
    def epi_wr(mt, po):
        a = ACC[mt]
        g.lgop(f'  ds_write_b128 v{vOW4}, v[{a}:{a+3}] offset:{LDS_O + po*TILE_B + mt*12288}')
        g.lgop(f'  ds_write_b64 v{vOW2}, v[{a+8}:{a+9}] offset:{LDS_O + po*TILE_B + mt*12288}')
    def out_read(t, q):
        o = OB[q & 1]
        g.lgop(f'  ds_read_b128 v[{o}:{o+3}], v{vOR} offset:{LDS_O + ((t^1)&1)*TILE_B + q*256}', ('O', t, q))
    def st_off():
        e(f'  s_mul_i32 s{sStCur}, s{sStIdx}, {STRIDE}')
        e(f'  s_add_u32 s{sStCur}, s{sStCur}, s{sBase}')
        e(f'  s_cmp_lt_i32 s{sStIdx}, 0')
        e(f'  s_cselect_b32 s{sStCur}, s{sOOB}, s{sStCur}')
        e(f'  s_add_u32 s{sStIdx}, s{sStIdx}, 1')
    def out_store(t, q, key):
        o = OB[q & 1]
        g.wait((key, 'o', q), lg=('O', t, q))
        g.vmop(f'  buffer_store_dwordx4 v[{o}:{o+3}], v{vLoad}, s[{sO}:{sO+3}], s{sOOB if opts.get("nost") else sStCur} offen offset:{q*256}{NT_ST}', None)

    SCHED = opts.get('sched', 'A')
    def plan(hi):
        if SCHED == 'A':
            return dict(rd=[0, 0, 3], st=[2, 2, 4], sc=list(range(5, 13)) + list(range(15, 19)), e1=(1, 2), e0=(13, 14))
        if SCHED == 'B':
            return dict(rd=[0, 7, 15], st=[3, 10, 18], sc=[4, 5, 6, 8, 9, 11, 12, 16, 17, 19, 20, 21], e1=(1, 2), e0=(13, 14))
        if SCHED == 'C':
            if not hi:
                return dict(rd=[0, 3, 6], st=[3, 6, 9], sc=[10, 11, 12, 15, 16, 17, 18, 19, 20, 21, 22, 23], e1=(1, 2), e0=(13, 14))
            return dict(rd=[12, 15, 18], st=[15, 18, 21], sc=[0, 3, 4, 5, 6, 7, 8, 9, 10, 11, 12, 16], e1=(1, 2), e0=(13, 14))
        if SCHED == 'D':
            if not hi:
                return dict(rd=[0, 7, 15], st=[2, 10, 18], sc=[3, 4, 5, 6, 8, 9, 11, 12, 19, 20, 21, 22], e1=(1, 2), e0=(13, 14))
            return dict(rd=[3, 11, 19], st=[6, 14, 22], sc=[0, 4, 7, 8, 9, 10, 12, 15, 16, 17, 18, 20], e1=(1, 2), e0=(13, 14))

    def iteration(t, hi, st=False):
        p = t & 1
        kp = (p, hi)
        ts = t + P
        pl = plan(hi)
        F = {i: [] for i in range(24)}
        F[0] += [st_off]
        F[pl['e1'][0]] += epi_cvt(1)
        F[pl['e1'][1]] += [lambda: epi_wr(1, p)]
        for q in range(3):
            F[pl['st'][q]] += [lambda q=q: out_store(t, q, kp)]
        for q in range(3):
            F[pl['rd'][q]] += [lambda q=q: out_read(t, q)]
        steps = pl['sc']
        for d in range(12):
            s = steps[d]
            if d % 4 == 0:
                F[s].append(lambda d=d: g.wait((kp, 's', d), vm=('L', ts, d // 4)))
            F[s] += scale_d(ts, d)
            if d % 4 == 3:
                F[s].append(lambda d=d: ring_write(ts, d // 4))
                F[s].append(lambda d=d: xload1(ts + 2, d // 4))
        F[pl['e0'][0]] += epi_cvt(0)
        F[pl['e0'][1]] += [lambda: epi_wr(0, p)]
        F[steps[11]] += [lambda: ring_adv(sWrI, [vLdsW])]
        F[20] += [lambda: ring_adv(sRdI, vLdsR)]
        for i in range(24):
            mt, ks = i // 12, i % 12
            if i + 3 < 24: rd(t, i + 3)
            else: rd(t + 1, i + 3 - 24)
            g.wait((kp, 'x', i), lg=('X', t, i))
            x = XF[i % 4]
            a = ACC[mt]
            f = F[i]
            n = len(f)
            cuts = [0, (n + 2) // 3, (2 * n + 2) // 3, n]
            for tt in range(3):
                c = '0' if ks == 0 else f'v[{a+4*tt}:{a+4*tt+3}]'
                b = (ks*3 + tt)*4
                if not opts.get('nomfma'): e(f'  v_mfma_f32_16x16x32_bf16 v[{a+4*tt}:{a+4*tt+3}], a[{b}:{b+3}], v[{x}:{x+3}], {c}')
                for it in f[cuts[tt]:cuts[tt+1]]:
                    if callable(it): it()
                    else: e(it)
        g.wait((kp, 'end'), lg=('RW', ts, 2))
        if st and DBG:
            lab[0] += 1
            e(f'  s_cmp_lg_u32 s62, 1')
            e(f'  s_cbranch_scc1 L_nd{lab[0]}')
            e('  s_sub_u32 s26, s60, s64')
            e('  v_mov_b32 v101, s26')
            e('  v_mov_b32 v100, s63')
            e('  buffer_store_dword v101, v100, s[56:59], 0 offen')
            e('  s_add_u32 s63, s63, 4')
            e('  s_memrealtime s[60:61]')
            e(f'L_nd{lab[0]}:')
        e('  s_barrier')

    lab = [0]
    SPLIT = SCHED in ('C', 'D')
    if DBG:
        e('  s_load_dwordx2 s[24:25], s[0:1], 32')
        e('  s_memrealtime s[60:61]')
        e('  s_waitcnt lgkmcnt(0)')
        e('  s_mov_b32 s56, s24')
        e('  s_and_b32 s57, s25, 0xffff')
        e('  s_mov_b32 s58, 256')
        e('  s_mov_b32 s59, 0x00020000')
        e(f'  s_mov_b32 s63, {4*stamp_n[0]}')
        e(f'  s_cmp_eq_u32 s2, {DBG-1}')
        e('  s_cselect_b32 s62, 1, 0')
        e(f'  s_cmp_eq_u32 s{sW}, {int(opts.get("dbgw", 0))}')
        e('  s_cselect_b32 s62, s62, 0')
    if unroll:
        vm0, lg0 = list(g.vm), list(g.lg)
        for hi in ((0, 1) if SPLIT else (0,)):
            g.vm, g.lg = list(vm0), list(lg0)
            for t in range(NTILE):
                iteration(t, hi, st=(t & 1) == 1)
    else:
        e(f'  s_mov_b32 s{sCnt}, 9')
        if SPLIT:
            e(f'  s_cmp_ge_u32 s{sW}, 4')
            e('  s_cbranch_scc1 L_loop1')
        for hi in ((0, 1) if SPLIT else (0,)):
            e(f'L_loop{hi}:')
            iteration(0, hi)
            iteration(1, hi, True)
            e(f'  s_sub_u32 s{sCnt}, s{sCnt}, 1')
            e(f'  s_cmp_lg_u32 s{sCnt}, 0')
            e(f'  s_cbranch_scc1 L_loop{hi}')
            if SPLIT and hi == 0:
                e('  s_branch L_tail')
        e('L_tail:')
    t = NTILE
    out_read(t, 0); out_read(t, 1); st_off()
    e('  s_nop 1')
    for s in epi_cvt(1): e(s)
    epi_wr(1, 0)
    out_store(t, 0, 'T'); out_store(t, 1, 'T')
    out_read(t, 2)
    out_store(t, 2, 'T')
    e('  s_waitcnt lgkmcnt(0)')
    e('  s_barrier')
    t = NTILE + 1
    out_read(t, 0); out_read(t, 1); st_off()
    out_store(t, 0, 'U'); out_store(t, 1, 'U')
    out_read(t, 2)
    out_store(t, 2, 'U')
    if DBG:
        e('  s_waitcnt vmcnt(0)')
        e('  s_memrealtime s[54:55]')
        e('  s_memtime s[98:99]')
        e('  s_waitcnt lgkmcnt(0)')
        e('  s_cmp_lg_u32 s62, 1')
        e('  s_cbranch_scc1 L_done')
        e('  v_mov_b32 v100, 0')
        for i in range(stamp_n[0]):
            e(f'  s_sub_u32 s26, s{64+2*i}, s64')
            e('  v_mov_b32 v101, s26')
            e(f'  buffer_store_dword v101, v100, s[56:59], 0 offen offset:{4*i}')
        e('  s_sub_u32 s26, s60, s64')
        e('  v_mov_b32 v101, s26')
        e('  buffer_store_dword v101, v100, s[56:59], 0 offen offset:52')
        e('  s_sub_u32 s26, s54, s64')
        e('  v_mov_b32 v101, s26')
        e('  buffer_store_dword v101, v100, s[56:59], 0 offen offset:56')
        e('  s_sub_u32 s26, s98, s96')
        e('  v_mov_b32 v101, s26')
        e('  buffer_store_dword v101, v100, s[56:59], 0 offen offset:60')
    e('L_done:')
    e('  s_endpgm')
    e('.section .rodata,"a"')
    e('.p2align 6')
    e('.amdhsa_kernel standalone__depthwise_separable__vision_kernel')
    e('  .amdhsa_next_free_vgpr 256')
    e('  .amdhsa_next_free_sgpr 100')
    e('  .amdhsa_accum_offset 112')
    e('  .amdhsa_group_segment_fixed_size 0')
    e('  .amdhsa_kernarg_size 48')
    e('  .amdhsa_user_sgpr_count 2')
    e('  .amdhsa_user_sgpr_kernarg_segment_ptr 1')
    e('  .amdhsa_system_sgpr_workgroup_id_x 1')
    e('  .amdhsa_float_denorm_mode_32 3')
    e('.end_amdhsa_kernel')

if __name__ == '__main__':
    out = sys.argv[1]
    opts = dict(a.split('=', 1) for a in sys.argv[2:])
    for k in ('nt_ld', 'nt_st'):
        if k in opts:
            opts[k] = ' ' + opts[k].replace('+', ' ')
    open(out, 'w').write(gen(opts))
```

```python
import sys, re
from gen3 import G, HDR

def regs_of(tok):
    m = re.fullmatch(r'([va])\[(\d+):(\d+)\]', tok)
    if m: return {(m.group(1), i) for i in range(int(m.group(2)), int(m.group(3)) + 1)}
    m = re.fullmatch(r'([va])(\d+)', tok)
    if m: return {(m.group(1), int(m.group(2)))}
    return set()

def hazard_check(L):
    ins = [l.strip() for l in L if l.startswith('  ') and not l.strip().startswith(';')]
    hist = []
    st = 0
    last_valu = []
    for l in ins:
        op = l.split()[0]
        toks = [t.strip(',') for t in l.split()[1:]]
        allr = set()
        for t in toks: allr |= regs_of(t)
        if op.startswith('v_mfma'):
            d = regs_of(toks[0]); a = regs_of(toks[1]); b = regs_of(toks[2]); c = regs_of(toks[3])
            for (s0, r) in last_valu:
                if st - s0 - 1 < 2 and (r & (a | b | c)):
                    raise Exception(f'VALU->MFMA hazard: {l}')
            for (s0, dd, cc) in hist:
                if st - s0 - 1 < 12 and (dd & (a | b)):
                    raise Exception(f'MFMA D->A/B hazard: {l}')
                if st - s0 - 1 < 10 and (dd & c) and dd != c:
                    raise Exception(f'MFMA D->C overlap hazard: {l}')
            hist.append((st, d, c))
        elif op.startswith('v_') or op.startswith('ds_') or op.startswith('buffer_'):
            for (s0, dd, cc) in hist:
                if st - s0 - 1 < 12 and (dd & allr):
                    raise Exception(f'MFMA D->use hazard dist {st-s0-1}: {l}')
            if op.startswith('v_'):
                w = regs_of(toks[0])
                for (s0, dd, cc) in hist:
                    if st - s0 - 1 < 7 and (cc & w):
                        raise Exception(f'MFMA C WAR hazard: {l}')
                last_valu.append((st, w))
                last_valu = last_valu[-4:]
        hist = [h for h in hist if st - h[0] < 24]
        if op == 's_nop': st += int(toks[0]) + 1
        else: st += 1

def gen(opts):
    g = G()
    nv = 2 if int(opts.get('var', 1)) else 1
    for v in range(nv):
        g.reset('collect')
        build(g, opts, unroll=True, only=v)
        hazard_check(g.L)
    g.reset('emit')
    build(g, opts, unroll=False)
    L = g.L
    abl = opts.get('pabl', '')
    if abl:
        i0 = [i for i, l in enumerate(L) if 's_cbranch_scc1 L_ex1' in l][0]; i1 = L.index('L_exd:')
        def keep(l):
            s = l.strip()
            if 'M' in abl and s.startswith('v_mfma'): return False
            if 'T' in abl and s.startswith('ds_read_b64_tr'): return False
            if 'W' in abl and s.startswith('ds_write') and 'v12,' in s: return False
            if 'V' in abl and s.startswith('s_waitcnt vmcnt'): return False
            if 'L' in abl and s.startswith('buffer_load') and 's46' in s: return False
            if 'B' in abl and s.startswith('s_barrier'): return False
            return True
        L = L[:i0] + [l for l in L[i0:i1] if keep(l)] + L[i1:]
    return '\n'.join(L) + '\n'

def build(g, opts, unroll, only=None):
    NT_LD = opts.get('nt_ld', '')
    NT_ST = opts.get('nt_st', '')
    DBG = int(opts.get('dbg', 0))
    PD = int(opts.get('pdbg', 0))
    R = int(opts.get('R', 4))
    P = int(opts.get('P', 3))
    VAR = int(opts.get('var', 1))
    e = g.e
    TILE_B = 32 * 768
    NTILE = 18
    STRIDE = 256 * TILE_B
    LDS_O = 0
    LDS_X = 2 * TILE_B
    LDS_TOTAL = LDS_X + R * TILE_B
    OOB = 113246208
    vLoad = 1
    vLdsW = [2, 3]
    vLdsR = list(range(4, 12))
    vOW = [12, 13, 14, 15]
    vOR = [16, 17]
    TMP = [18, 19, 20, 21]
    DW = 24
    S = [48, 72]
    XF = [96, 100, 104, 108]
    ACC = [112, 160]
    OB = [208, 212]
    vBW = 12; vTr = 13
    XF2 = [208, 212, 216, 220]
    BV = 224
    T = list(range(176, 200))
    sX, sO, sP, sD = 4, 8, 12, 16
    sW, sLd, sSt, sCnt, sMask, sT0 = 20, 21, 22, 32, 33, 34
    sRdI, sWrI, sDR, sDWr, sOOB = 47, 48, 49, 55, 50

    def breg(i, n=4):
        if i < 256: return f'a[{i}:{i+n-1}]'
        return f'v[{BV+i-256}:{BV+i-256+n-1}]'

    stamp_n = [0]
    def stamp(force=False):
        if DBG and (force or not PD or stamp_n[0] == 0):
            e(f'  s_memrealtime s[{64+2*stamp_n[0]}:{65+2*stamp_n[0]}]')
            stamp_n[0] += 1
    def pstamp():
        if PD: stamp(True)

    e(HDR.rstrip('\n'))
    e(f'; @launch grid=(256,1,1) block=(256,1,1) lds={LDS_TOTAL}')
    e('.amdgcn_target "amdgcn-amd-amdhsa--gfx950"')
    e('.text')
    e('.globl standalone__depthwise_separable__vision_kernel')
    e('.p2align 8')
    e('.type standalone__depthwise_separable__vision_kernel,@function')
    e('standalone__depthwise_separable__vision_kernel:')
    e('  s_cmp_ge_u32 s2, 256')
    e('  s_cbranch_scc1 L_done')
    stamp()
    if DBG: e('  s_memtime s[96:97]')
    e('  s_load_dwordx4 s[24:27], s[0:1], 0')
    e('  s_load_dwordx4 s[28:31], s[0:1], 16')
    lane, lo4, hi2, row, rowb = T[0], T[1], T[2], T[3], T[4]
    e(f'  v_lshrrev_b32 v{T[5]}, 6, v0')
    e(f'  v_and_b32 v{lane}, 63, v0')
    e(f'  v_readfirstlane_b32 s{sW}, v{T[5]}')
    e(f'  v_and_b32 v{lo4}, 15, v{lane}')
    e(f'  v_lshrrev_b32 v{hi2}, 4, v{lane}')
    e(f'  s_mov_b32 s{sMask}, 0xffff0000')
    e(f'  s_lshl_b32 s{sT0}, s{sW}, 3')
    e(f'  v_add_u32 v{row}, s{sT0}, v{hi2}')
    e(f'  v_mul_u32_u24 v{rowb}, 0x300, v{row}')
    e(f'  v_lshl_add_u32 v{vLoad}, v{lo4}, 4, v{rowb}')
    e(f'  v_lshlrev_b32 v{T[6]}, 4, v{lo4}')
    e(f'  s_mul_i32 s{sLd}, s2, {TILE_B}')
    e(f'  s_mov_b32 s{sSt}, s{sLd}')
    e(f'  s_mov_b32 s{sOOB}, {OOB}')
    e('  s_lshr_b32 s36, s2, 3')
    e('  s_mul_i32 s36, s36, 9216')
    e(f'  s_mul_i32 s37, s{sW}, 2304')
    e('  s_add_u32 s36, s36, s37')
    e(f'  v_lshlrev_b32 v{T[7]}, 4, v{lane}')
    e('  s_waitcnt lgkmcnt(0)')
    for (sd, lo, nbytes) in ((sX, 24, 113246208), (sD, 26, 768), (sP, 28, 294912), (sO, 30, 113246208)):
        e(f'  s_mov_b32 s{sd}, s{lo}')
        e(f'  s_and_b32 s{sd+1}, s{lo+1}, 0xffff')
        e(f'  s_mov_b32 s{sd+2}, {nbytes}')
        e(f'  s_mov_b32 s{sd+3}, 0x00020000')

    def xload1(t, u):
        p = t & 1
        rg, q = u // 3, u % 3
        g.vmop(f'  buffer_load_dwordx4 v[{S[p]+4*u}:{S[p]+4*u+3}], v{vLoad}, s[{sX}:{sX+3}], s{sOOB if opts.get("nold") else sLd} offen offset:{rg*3072+q*256}{NT_LD}', ('L', t, u))
        if u == 5:
            e(f'  s_add_u32 s{sLd}, s{sLd}, {STRIDE}')
    def xload(t):
        for u in range(6): xload1(t, u)
    def bload(c, u0=0, u1=6):
        e(f'  s_mov_b32 s46, {c*24576}')
        for u in range(u0, u1):
            rg, q = u // 3, u % 3
            g.vmop(f'  buffer_load_dwordx4 {breg(24*c+4*u)}, v{vLoad}, s[{sP}:{sP+3}], s46 offen offset:{rg*3072+q*256}', ('B', c, u))

    g.vmop(f'  buffer_load_dwordx4 v[{XF[0]}:{XF[0]+3}], v{T[7]}, s[{sP}:{sP+3}], s36 offen')
    g.vmop(f'  buffer_load_dwordx4 v[{XF[1]}:{XF[1]+3}], v{T[7]}, s[{sP}:{sP+3}], s36 offen offset:1024')
    g.vmop(f'  buffer_load_dwordx4 v[{XF[2]}:{XF[2]+3}], v{T[6]}, s[{sP}:{sP+3}], s36 offen offset:2048')
    for q in range(3):
        g.vmop(f'  buffer_load_dwordx4 v[{160+4*q}:{160+4*q+3}], v{T[6]}, s[{sD}:{sD+3}], 0 offen offset:{q*256}', ('W', q))
    xload(0); xload(1)
    NB0 = int(opts.get('nb0', 1))
    NB1 = int(opts.get('nb1', 2))
    NB2 = int(opts.get('nb2', 3))
    for c in range(NB0): bload(c)

    for rg in range(2):
        e(f'  v_add_u32 v{T[8]}, {4*rg}, v{row}')
        e(f'  v_and_b32 v{T[9]}, 15, v{T[8]}')
        e(f'  v_xor_b32 v{T[9]}, v{T[9]}, v{lo4}')
        e(f'  v_mul_u32_u24 v{T[10]}, 0x300, v{T[8]}')
        e(f'  v_lshl_add_u32 v{vLdsW[rg]}, v{T[9]}, 4, v{T[10]}')
        e(f'  v_add_u32 v{vLdsW[rg]}, {LDS_X}, v{vLdsW[rg]}')
        e(f'  v_and_b32 v{T[9]}, 7, v{T[8]}')
        e(f'  v_xor_b32 v{T[9]}, v{T[9]}, v{lo4}')
        e(f'  v_lshl_add_u32 v{vOR[rg]}, v{T[9]}, 4, v{T[10]}')
    j, h = T[8], T[9]
    e(f'  v_and_b32 v{j}, 31, v{lane}')
    e(f'  v_lshrrev_b32 v{h}, 5, v{lane}')
    e(f'  v_mul_u32_u24 v{T[10]}, 0x300, v{j}')
    e(f'  v_xor_b32 v{T[11]}, v{h}, v{lo4}')
    e(f'  v_lshl_add_u32 v{vLdsR[0]}, v{T[11]}, 4, v{T[10]}')
    e(f'  v_add_u32 v{vLdsR[0]}, {LDS_X}, v{vLdsR[0]}')
    for s in range(1, 8):
        e(f'  v_xor_b32 v{vLdsR[s]}, {s*32}, v{vLdsR[0]}')
    e(f'  s_mul_i32 s41, s{sW}, 12')
    e(f'  s_mul_i32 s45, s{sW}, 6144')
    e(f'  v_lshlrev_b32 v{T[12]}, 2, v{hi2}')
    e(f'  v_xor_b32 v{T[12]}, v{T[12]}, v{lo4}')
    e(f'  v_lshlrev_b32 v{T[12]}, 4, v{T[12]}')
    e(f'  v_lshl_add_u32 v{T[12]}, v{hi2}, 8, v{T[12]}')
    e(f'  v_add_u32 v{vBW}, s45, v{T[12]}')
    r_, c_ = T[12], T[13]
    e(f'  v_bfe_u32 v{r_}, v{lane}, 2, 2')
    e(f'  v_and_b32 v{c_}, 3, v{lane}')
    e(f'  v_lshrrev_b32 v{T[14]}, 1, v{hi2}')
    e(f'  v_mul_u32_u24 v{T[14]}, 0x1800, v{T[14]}')
    e(f'  v_lshl_add_u32 v{T[14]}, v{r_}, 8, v{T[14]}')
    e(f'  v_lshrrev_b32 v{T[15]}, 1, v{c_}')
    e(f'  v_lshl_add_u32 v{T[14]}, v{T[15]}, 3, v{T[14]}')
    e(f'  v_and_b32 v{T[15]}, 1, v{hi2}')
    e(f'  v_lshlrev_b32 v{T[15]}, 1, v{T[15]}')
    e(f'  v_and_b32 v{T[16]}, 1, v{c_}')
    e(f'  v_add_u32 v{T[15]}, v{T[15]}, v{T[16]}')
    e(f'  v_add_u32 v{T[15]}, s41, v{T[15]}')
    e(f'  v_lshlrev_b32 v{T[16]}, 2, v{r_}')
    for t in range(3):
        e(f'  v_add_u32 v{T[17]}, {4*t}, v{T[15]}')
        e(f'  v_lshrrev_b32 v{T[18]}, 4, v{T[17]}')
        e(f'  v_and_b32 v{T[17]}, 15, v{T[17]}')
        e(f'  v_xor_b32 v{T[17]}, v{T[17]}, v{T[16]}')
        e(f'  v_lshl_add_u32 v{vTr+t}, v{T[18]}, 10, v{T[14]}')
        e(f'  v_lshl_add_u32 v{vTr+t}, v{T[17]}, 4, v{vTr+t}')
    e(f'  s_mov_b32 s{sRdI}, 2')
    e(f'  s_mov_b32 s{sWrI}, 0')
    e(f'  s_mov_b32 s51, {-(R-1)*TILE_B & 0xffffffff}')
    e(f'  s_mov_b32 s52, {TILE_B}')
    for c in range(NB0, NB1): bload(c)

    def ring_adv_s(sI, sDl):
        return [f'  s_add_u32 s{sI}, s{sI}, 1',
                f'  s_cmp_eq_u32 s{sI}, {R}',
                f'  s_cselect_b32 s{sDl}, s51, s52',
                f'  s_cselect_b32 s{sI}, 0, s{sI}']
    def ring_adv_v(sDl, regs):
        return [f'  v_add_u32 v{r}, s{sDl}, v{r}' for r in regs]

    def scale_d(t, d):
        p = t & 1
        r = S[p] + d
        dd = d % 12
        t0, t1 = (TMP[0], TMP[1]) if d % 2 == 0 else (TMP[2], TMP[3])
        return [f'  v_lshlrev_b32 v{t0}, 16, v{r}',
                f'  v_and_b32 v{t1}, s{sMask}, v{r}',
                f'  v_mul_f32 v{t0}, v{t0}, v{DW + 2*dd}',
                f'  v_mul_f32 v{t1}, v{t1}, v{DW + 2*dd + 1}',
                f'  v_cvt_pk_bf16_f32 v{r}, v{t0}, v{t1}']
    def ring_write(t, u):
        p = t & 1
        rg, q = u // 3, u % 3
        g.lgop(f'  ds_write_b128 v{vLdsW[rg]}, v[{S[p]+4*u}:{S[p]+4*u+3}] offset:{q*256}', ('RW', t, u))

    def scale_tile(t, key, dummy=False):
        for u in range(6):
            g.wait((key, u), vm=('L', t, u))
            for d in range(4*u, 4*u+4):
                for s in scale_d(t, d): e(s)
            ring_write(t, u)
            xload1(t + 2, u)
            if dummy: dummy_st(1)
        for s in ring_adv_s(sWrI, sDWr) + ring_adv_v(sDWr, vLdsW): e(s)

    def dummy_st(n=6):
        for q in range(n):
            g.vmop(f'  buffer_store_dwordx4 v[{OB[0]}:{OB[0]+3}], v{vLoad}, s[{sO}:{sO+3}], s{sOOB} offen', None)

    g.wait('w', vm=('W', 2))
    pstamp()
    for i in range(12):
        e(f'  v_lshlrev_b32 v{DW+2*i}, 16, v{160+i}')
        e(f'  v_and_b32 v{DW+2*i+1}, s{sMask}, v{160+i}')
    scale_tile(0, 'p0')
    for c in range(NB1, NB2): bload(c)
    scale_tile(1, 'p1')
    pstamp()
    XS = [XF, XF2]
    def bwrite(c, u):
        so = LDS_O + (c & 1) * 24576
        rg, q = u // 3, u % 3
        g.lgop(f'  ds_write_b128 v{vBW}, {breg(24*c+4*u)} offset:{so + rg*3072 + q*1024}')
    def trread(c, k):
        so = LDS_O + (c & 1) * 24576
        sl, t, hh = k // 6, (k // 2) % 3, k % 2
        b = ((2*c+sl)*3 + t)*4 + 2*hh
        g.lgop(f'  ds_read_b64_tr_b16 {breg(b, 2)}, v{vTr+t} offset:{so + (4*sl+hh)*3072}')
    def xread(c, k):
        sl, tl = k // 2, k % 2
        s = 2*c + sl
        x = XS[c & 1][2*tl + sl]
        g.lgop(f'  ds_read_b128 v[{x}:{x+3}], v{vLdsR[s & 7]} offset:{tl*TILE_B + (s >> 3)*256}')
    SC2 = int(opts.get('sc2', 4)); SC3 = int(opts.get('sc3', 8))
    last_scale = 2 + P - 1
    g.wait(('b', 0), vm=('B', 0, 5))
    for u in range(6): bwrite(0, u)
    e('  s_waitcnt lgkmcnt(0)')
    e('  s_barrier')
    def exchange(var):
      for c in range(13):
        if c in (1, 4, 8, 11): pstamp()
        GP = [[] for _ in range(12)]
        rg_ = [1, 3, 5, 7, 9, 11] if var == 0 else [0, 2, 4, 6, 8, 10]
        wg_ = [0, 2, 4, 6, 8, 10] if var == 0 else [1, 3, 5, 7, 9, 11]
        if c < 12:
            for k in range(12): GP[rg_[k // 4]].append(lambda k=k: trread(c, k))
            for k in range(4): GP[rg_[3]].append(lambda k=k: xread(c, k))
        if NB2 + c < 12:
            GP[rg_[4]].append(lambda: bload(NB2 + c, 0, 3))
            GP[rg_[5]].append(lambda: bload(NB2 + c, 3, 6))
        if c + 1 < 12:
            for u in range(6):
                GP[wg_[u]].append(lambda u=u: g.wait(('b', var, c + 1, u), vm=('B', c + 1, u)))
                GP[wg_[u]].append(lambda u=u: bwrite(c + 1, u))
        k = 0
        for sl in range(2):
            for tl in range(2):
                for tt in range(3):
                    if c > 0:
                        x = XS[(c - 1) & 1][2*tl + sl]
                        a = ACC[tl]
                        s = 2*(c - 1) + sl
                        cc = '0' if s == 0 else f'v[{a+16*tt}:{a+16*tt+15}]'
                        e(f'  v_mfma_f32_32x32x16_bf16 v[{a+16*tt}:{a+16*tt+15}], {breg((s*3+tt)*4)}, v[{x}:{x+3}], {cc}')
                    for it in GP[k]: it()
                    k += 1
        if c == SC2: scale_tile(2, ('p2', var), dummy=(last_scale - 2 <= 1))
        if c == SC3: scale_tile(3, ('p3', var), dummy=(last_scale - 3 <= 1))
        if c < 12:
            e('  s_waitcnt lgkmcnt(0)')
            e('  s_barrier')
    if unroll:
        exchange(only)
    elif VAR:
        sn = stamp_n[0]
        e(f'  s_cmp_ge_u32 s{sW}, 2')
        e('  s_cbranch_scc1 L_ex1')
        exchange(0)
        e('  s_branch L_exd')
        e('L_ex1:')
        stamp_n[0] = sn
        exchange(1)
        e('L_exd:')
    else:
        exchange(0)
    pstamp()
    e(f'  v_and_b32 v22, 31, v0')
    e(f'  v_bfe_u32 v23, v0, 5, 1')
    e(f'  v_mul_u32_u24 v{TMP[0]}, 0x300, v22')
    e(f'  v_and_b32 v22, 7, v22')
    e(f'  v_add_u32 v23, s41, v23')
    for m in range(4):
        e(f'  v_add_u32 v{TMP[1]}, {2*m}, v23')
        e(f'  v_xor_b32 v{TMP[1]}, v{TMP[1]}, v22')
        e(f'  v_lshl_add_u32 v{vOW[m]}, v{TMP[1]}, 4, v{TMP[0]}')
    for r in vLdsR: e(f'  v_add_u32 v{r}, {2*TILE_B}, v{r}')

    def rd(t, i):
        x = XF[i % 4]
        g.lgop(f'  ds_read_b128 v[{x}:{x+3}], v{vLdsR[i & 7]} offset:{(i >> 3)*256}', ('X', t, i))
    def epi_cvt(pa, m):
        a = ACC[pa] + 8*m
        return [f'  v_cvt_pk_bf16_f32 v{a+i}, v{a+2*i}, v{a+2*i+1}' for i in range(4)]
    def epi_wr(pa, m, po):
        a = ACC[pa] + 8*m
        g.lgop(f'  ds_write_b128 v{vOW[m & 3]}, v[{a}:{a+3}] offset:{LDS_O + po*TILE_B + (128 if m >= 4 else 0)}', ('OW', m))
    def out_read(t, u):
        o = OB[u & 1]
        rg, q = u // 3, u % 3
        g.lgop(f'  ds_read_b128 v[{o}:{o+3}], v{vOR[rg]} offset:{LDS_O + ((t^1)&1)*TILE_B + q*256}', ('O', t, u))
    def out_store(t, u, key):
        o = OB[u & 1]
        rg, q = u // 3, u % 3
        g.wait((key, 'o', u), lg=('O', t, u))
        g.vmop(f'  buffer_store_dwordx4 v[{o}:{o+3}], v{vLoad}, s[{sO}:{sO+3}], s{sOOB if opts.get("nost") else sSt} offen offset:{rg*3072+q*256}{NT_ST}', None)
        if u == 5: e(f'  s_add_u32 s{sSt}, s{sSt}, {STRIDE}')

    for m in range(6):
        for s in epi_cvt(0, m): e(s)
        epi_wr(0, m, 1)
    if P == 3:
        scale_tile(4, 'p4', dummy=True)
    e('  s_waitcnt lgkmcnt(0)')
    e('  s_barrier')
    for i in range(3): rd(2, i)
    stamp()
    pstamp()

    lab = [0]
    def iteration(t, var, st=False):
        p = t & 1
        kp = (p, var)
        ts = t + P
        GP = [[] for _ in range(72)]
        for u in range(6):
            b = 12 * u
            sc = [scale_d(ts, 4*u + k) for k in range(4)]
            cv = epi_cvt(p ^ 1, u)
            vw = lambda u=u: g.wait((kp, 's', u), vm=('L', ts, u))
            rw = lambda u=u: ring_write(ts, u)
            xl = lambda u=u: xload1(ts + 2, u)
            ew = lambda u=u: epi_wr(p ^ 1, u, p)
            orr = lambda u=u: out_read(t, u)
            ost = lambda u=u: out_store(t, u, kp)
            if var == 0:
                GP[b+0] += [vw] + sc[0]
                GP[b+1] += sc[1]
                GP[b+2] += [orr] + cv[:2]
                GP[b+3] += sc[2]
                GP[b+4] += sc[3]
                GP[b+5] += cv[2:]
                GP[b+6] += [rw, xl]
                GP[b+7] += [ew]
                GP[b+9] += [ost]
            else:
                GP[b+0] += [orr]
                GP[b+1] += cv
                GP[b+2] += []
                GP[b+3] += [ew]
                GP[b+4] += [ost]
                GP[b+5] += [vw] + sc[0][:2]
                GP[b+6] += sc[0][2:] + sc[1][:2]
                GP[b+7] += sc[1][2:] + sc[2][:2]
                GP[b+8] += sc[2][2:]
                GP[b+9] += sc[3]
                GP[b+10] += [rw, xl]
        a_s = 46 if var == 0 else 50
        GP[a_s] += ring_adv_s(sRdI, sDR)
        GP[56] += ring_adv_s(sWrI, sDWr) if var == 0 else []
        GP[59] += ring_adv_s(sWrI, sDWr) if var == 1 else []
        GP[58] += ring_adv_v(sDR, vLdsR[0:3])
        GP[62] += ring_adv_v(sDR, vLdsR[3:5]) if var == 1 else []
        GP[68] += ring_adv_v(sDR, vLdsR[3:6]) if var == 0 else []
        GP[70] += ring_adv_v(sDR, vLdsR[6:8]) + ring_adv_v(sDWr, vLdsW) if var == 0 else []
        GP[71] += ring_adv_v(sDR, vLdsR[5:8]) + ring_adv_v(sDWr, vLdsW) if var == 1 else []
        for i in range(24):
            if i + 3 < 24: rd(t, i + 3)
            else: rd(t + 1, i + 3 - 24)
            g.wait((kp, 'x', i), lg=('X', t, i))
            x = XF[i % 4]
            a = ACC[p]
            for tt in range(3):
                c = '0' if i == 0 else f'v[{a+16*tt}:{a+16*tt+15}]'
                if not opts.get('nomfma'): e(f'  v_mfma_f32_32x32x16_bf16 v[{a+16*tt}:{a+16*tt+15}], {breg((i*3+tt)*4)}, v[{x}:{x+3}], {c}')
                for it in GP[3*i + tt]:
                    if callable(it): it()
                    else: e(it)
        g.wait((kp, 'end'), lg=('RW', ts, 5) if var == 1 else ('OW', 5))
        if st and DBG:
            lab[0] += 1
            e(f'  s_cmp_lg_u32 s62, 1')
            e(f'  s_cbranch_scc1 L_nd{lab[0]}')
            e('  s_sub_u32 s26, s60, s64')
            e(f'  v_mov_b32 v{TMP[0]}, s26')
            e(f'  v_mov_b32 v{TMP[1]}, s63')
            e(f'  buffer_store_dword v{TMP[0]}, v{TMP[1]}, s[56:59], 0 offen')
            e('  s_add_u32 s63, s63, 4')
            e('  s_memrealtime s[60:61]')
            e(f'L_nd{lab[0]}:')
        e('  s_barrier')

    if DBG:
        e('  s_load_dwordx2 s[24:25], s[0:1], 32')
        e('  s_memrealtime s[60:61]')
        e('  s_waitcnt lgkmcnt(0)')
        e('  s_mov_b32 s56, s24')
        e('  s_and_b32 s57, s25, 0xffff')
        e('  s_mov_b32 s58, 256')
        e('  s_mov_b32 s59, 0x00020000')
        e(f'  s_mov_b32 s63, {4*stamp_n[0]}')
        e(f'  s_cmp_eq_u32 s2, {DBG-1}')
        e('  s_cselect_b32 s62, 1, 0')
        e(f'  s_cmp_eq_u32 s{sW}, {int(opts.get("dbgw", 0))}')
        e('  s_cselect_b32 s62, s62, 0')
    if unroll:
        for t in range(2, NTILE):
            iteration(t, only)
    else:
        e(f'  s_mov_b32 s{sCnt}, 8')
        if VAR:
            e(f'  s_cmp_ge_u32 s{sW}, 2')
            e('  s_cbranch_scc1 L_loop1')
        for var in range(2 if VAR else 1):
            e(f'L_loop{var}:')
            iteration(0, var)
            iteration(1, var, True)
            e(f'  s_sub_u32 s{sCnt}, s{sCnt}, 1')
            e(f'  s_cmp_lg_u32 s{sCnt}, 0')
            e(f'  s_cbranch_scc1 L_loop{var}')
            if VAR and var == 0: e('  s_branch L_tail')
        e('L_tail:')
    t = NTILE
    out_read(t, 0); out_read(t, 1)
    e('  s_nop 7')
    for m in range(6):
        for s in epi_cvt(1, m): e(s)
        epi_wr(1, m, 0)
    for u in range(6):
        out_store(t, u, 'T')
        if u + 2 < 6: out_read(t, u + 2)
    e('  s_waitcnt lgkmcnt(0)')
    e('  s_barrier')
    regs = [XF[0], XF[1], XF[2], XF[3], OB[0], OB[1]]
    for u in range(6):
        rg, q = u // 3, u % 3
        e(f'  ds_read_b128 v[{regs[u]}:{regs[u]+3}], v{vOR[rg]} offset:{LDS_O + q*256}')
    for u in range(6):
        rg, q = u // 3, u % 3
        e(f'  s_waitcnt lgkmcnt({5-u})')
        e(f'  buffer_store_dwordx4 v[{regs[u]}:{regs[u]+3}], v{vLoad}, s[{sO}:{sO+3}], s{sOOB if opts.get("nost") else sSt} offen offset:{rg*3072+q*256}{NT_ST}')
    if DBG:
        e('  s_waitcnt vmcnt(0)')
        e('  s_memrealtime s[54:55]')
        e('  s_memtime s[98:99]')
        e('  s_waitcnt lgkmcnt(0)')
        e('  s_cmp_lg_u32 s62, 1')
        e('  s_cbranch_scc1 L_done')
        e(f'  v_mov_b32 v{TMP[0]}, 0')
        for i in range(stamp_n[0]):
            e(f'  s_sub_u32 s26, s{64+2*i}, s64')
            e(f'  v_mov_b32 v{TMP[1]}, s26')
            e(f'  buffer_store_dword v{TMP[1]}, v{TMP[0]}, s[56:59], 0 offen offset:{4*i}')
        for (sr, off) in (('s60, s64', 52), ('s54, s64', 56), ('s98, s96', 60)):
            e(f'  s_sub_u32 s26, {sr}')
            e(f'  v_mov_b32 v{TMP[1]}, s26')
            e(f'  buffer_store_dword v{TMP[1]}, v{TMP[0]}, s[56:59], 0 offen offset:{off}')
    e('L_done:')
    e('  s_endpgm')
    e('.section .rodata,"a"')
    e('.p2align 6')
    e('.amdhsa_kernel standalone__depthwise_separable__vision_kernel')
    e('  .amdhsa_next_free_vgpr 512')
    e('  .amdhsa_next_free_sgpr 100')
    e('  .amdhsa_accum_offset 256')
    e('  .amdhsa_group_segment_fixed_size 0')
    e('  .amdhsa_kernarg_size 48')
    e('  .amdhsa_user_sgpr_count 2')
    e('  .amdhsa_user_sgpr_kernarg_segment_ptr 1')
    e('  .amdhsa_system_sgpr_workgroup_id_x 1')
    e('  .amdhsa_float_denorm_mode_32 3')
    e('.end_amdhsa_kernel')

if __name__ == '__main__':
    out = sys.argv[1]
    opts = dict(a.split('=', 1) for a in sys.argv[2:])
    for k in ('nt_ld', 'nt_st'):
        if k in opts:
            opts[k] = ' ' + opts[k].replace('+', ' ')
    open(out, 'w').write(gen(opts))
```

```python
import sys, re
from gen3 import G, HDR
from gen5 import regs_of

def hazard_check(L):
    ins = [l.strip() for l in L if l.startswith('  ') and not l.strip().startswith(';')]
    hist = []; st = 0; last_valu = []
    for l in ins:
        op = l.split()[0]
        toks = [t.strip(',') for t in l.split()[1:]]
        allr = set()
        for t in toks: allr |= regs_of(t)
        if op.startswith('v_mfma'):
            d = regs_of(toks[0]); a = regs_of(toks[1]); b = regs_of(toks[2]); c = regs_of(toks[3])
            for (s0, r) in last_valu:
                if st - s0 - 1 < 2 and (r & (a | b | c)): raise Exception(f'VALU->MFMA hazard: {l}')
            for (s0, dd, cc) in hist:
                if st - s0 - 1 < 8 and (dd & (a | b)): raise Exception(f'MFMA D->A/B hazard: {l}')
                if st - s0 - 1 < 6 and (dd & c) and dd != c: raise Exception(f'MFMA D->C overlap hazard: {l}')
            hist.append((st, d, c))
        elif op.startswith('v_') or op.startswith('ds_') or op.startswith('buffer_'):
            for (s0, dd, cc) in hist:
                if st - s0 - 1 < 8 and (dd & allr): raise Exception(f'MFMA D->use hazard dist {st-s0-1}: {l}')
            if op.startswith('v_'):
                w = regs_of(toks[0])
                for (s0, dd, cc) in hist:
                    if st - s0 - 1 < 3 and (cc & w): raise Exception(f'MFMA C WAR hazard: {l}')
                last_valu.append((st, w)); last_valu = last_valu[-4:]
        hist = [h for h in hist if st - h[0] < 24]
        st += int(toks[0]) + 1 if op == 's_nop' else 1

def gen(opts):
    g = G()
    for v in range(2):
        g.reset('collect')
        build(g, opts, unroll=True, only=v)
        hazard_check(g.L)
    g.reset('emit')
    build(g, opts, unroll=False)
    L = g.L
    abl = opts.get('abl', '')
    if abl:
        i0 = L.index('L_loop0:'); i1 = L.index('L_tail:')
        def keep(l):
            s = l.strip()
            if 'S' in abl and (s.startswith('v_lshlrev_b32 v18') or s.startswith('v_lshlrev_b32 v20') or s.startswith('v_and_b32') or s.startswith('v_mul_f32') or re.match(r'v_cvt_pk_bf16_f32 v(4[89]|[5-8]\d|9[0-5]),', s)): return False
            if 'O' in abl and (s.startswith('ds_write_b128 v8') or s.startswith('ds_write_b128 v9') or s.startswith('ds_read_b128 v[208') or s.startswith('ds_read_b128 v[212')): return False
            if 'T' in abl and s.startswith('buffer_store') and 's[56:59]' not in s: return False
            if 'L' in abl and s.startswith('buffer_load'): return False
            if 'H' in abl and s.startswith('v_mfma') and int(re.search(r'v\[(\d+):', s).group(1)) % 8 == 4: return False
            return True
        L = L[:i0] + [l for l in L[i0:i1] if keep(l)] + L[i1:]
    return '\n'.join(L) + '\n'

def build(g, opts, unroll, only=None):
    NT_LD = opts.get('nt_ld', ' nt')
    NT_ST = opts.get('nt_st', '')
    DBG = int(opts.get('dbg', 0)); PD = int(opts.get('pdbg', 0)); AMP = opts.get('amp')
    R = int(opts.get('R', 4)); P = int(opts.get('P', 2))
    e = g.e
    TILE_B = 32 * 768; NTILE = 18; STRIDE = 256 * TILE_B
    LDS_X = 0; LDS_O = R * TILE_B; LDS_TOTAL = LDS_O + 2 * TILE_B + 12288
    NS = 4
    OOB = 113246208
    vGL = [1, 2]; vLdsW = [3, 4, 5, 6, 7, 8]; vLdsR = [9, 10, 11, 12]; vOW = [13, 14]
    vBL = [15, 16, 17]; vTr = 22; vOR = [15, 16, 17, 22, 216, 0]
    vGL = [1, 2, 23]; vLoad = vGL[0]; sLd1 = 53; sSt1 = 23
    TMP = [18, 19, 20, 21]
    DW = 24; S = [48, 72]; XF = [96, 100, 104, 108]; ACC = [112, 160]
    OB = [208, 212]; XF2 = [208, 212, 216, 220]; BV = 224
    T = list(range(176, 200))
    sX, sO, sP, sD = 4, 8, 12, 16
    sW, sLd, sSt, sCnt, sMask, sT0 = 20, 21, 22, 32, 33, 34
    sRdI, sWrI, sDR, sDWr, sOOB = 47, 48, 49, 55, 50

    def breg(i, n=4):
        return f'a[{i}:{i+n-1}]' if i < 256 else f'v[{BV+i-256}:{BV+i-256+n-1}]'
    stamp_n = [0]; pn = [0]
    def stamp(force=False):
        if DBG and (force or not PD or stamp_n[0] == 0):
            e(f'  s_memrealtime s[{64+2*stamp_n[0]}:{65+2*stamp_n[0]}]'); stamp_n[0] += 1
    def pstamp():
        if PD: stamp(True)
        pn[0] += 1
        if AMP == f'p{pn[0]}': e('  s_memrealtime s[60:61]')
    def run(items):
        for it in items:
            if callable(it): it()
            else: e(it)

    e(HDR.rstrip('\n'))
    e(f'; @launch grid=(256,1,1) block=(256,1,1) lds={LDS_TOTAL}')
    e('.amdgcn_target "amdgcn-amd-amdhsa--gfx950"')
    e('.text')
    e('.globl standalone__depthwise_separable__vision_kernel')
    e('.p2align 8')
    e('.type standalone__depthwise_separable__vision_kernel,@function')
    e('standalone__depthwise_separable__vision_kernel:')
    e('  s_cmp_ge_u32 s2, 256')
    e('  s_cbranch_scc1 L_done')
    stamp()
    if AMP: e('  s_memrealtime s[64:65]')
    if DBG or AMP == 'c': e('  s_memtime s[96:97]')
    if opts.get('icn'):
        for rep in range(int(opts.get('icr', 1))):
            pass
        e('  s_mov_b32 s30, 0')
        e('L_ic:')
        for i in range(int(opts['icn'])):
            e(f'  v_lshl_add_u32 v{40 + i % 8}, v2, 1, v3')
        e('  s_add_u32 s30, s30, 1')
        e(f'  s_cmp_lt_u32 s30, {int(opts.get("icr", 1))}')
        e('  s_cbranch_scc1 L_ic')
        e('  s_memrealtime s[60:61]')
    e('  s_load_dwordx4 s[24:27], s[0:1], 0')
    e('  s_load_dwordx4 s[28:31], s[0:1], 16')
    if int(opts.get('cw', 0)):
        e('  s_getpc_b64 s[40:41]')
        e('L_pc:')
        e('  s_lshr_b32 s42, s2, 3')
        e('  s_lshl_b32 s42, s42, 10')
        e('  v_lshlrev_b32 v4, 2, v0')
        e('  v_add_u32 v4, s42, v4')
        e('  v_min_u32 v4, L_done-L_pc, v4')
        e('  v_mov_b32 v5, s41')
        e('  v_add_co_u32 v4, vcc, s40, v4')
        e('  v_addc_co_u32 v5, vcc, 0, v5, vcc')
        g.vmop('  global_load_dword v6, v[4:5], off')
    lane, lo4, hi2, row, rowb = T[0], T[1], T[2], T[3], T[4]
    e(f'  v_lshrrev_b32 v{T[5]}, 6, v0')
    e(f'  v_and_b32 v{lane}, 63, v0')
    e(f'  v_readfirstlane_b32 s{sW}, v{T[5]}')
    e(f'  v_and_b32 v{lo4}, 15, v{lane}')
    e(f'  v_lshrrev_b32 v{hi2}, 4, v{lane}')
    e(f'  s_mov_b32 s{sMask}, 0xffff0000')
    e(f'  s_lshl_b32 s{sT0}, s{sW}, 3')
    e(f'  v_add_u32 v{row}, s{sT0}, v{hi2}')
    e(f'  v_mul_u32_u24 v{rowb}, 0x300, v{row}')
    e(f'  v_lshlrev_b32 v{T[6]}, 4, v{lo4}')
    e(f'  v_lshlrev_b32 v{vGL[0]}, 4, v0')
    e(f'  v_add_u32 v{vGL[1]}, 4096, v{vGL[0]}')
    e(f'  v_add_u32 v{vGL[2]}, 8192, v{vGL[0]}')
    if opts.get('map') == 'x':
        e('  s_and_b32 s38, s2, 7')
        e('  s_lshl_b32 s38, s38, 5')
        e('  s_lshr_b32 s39, s2, 3')
        e('  s_add_u32 s38, s38, s39')
        e(f'  s_mul_i32 s{sLd}, s38, {TILE_B}')
    else:
        e(f'  s_mul_i32 s{sLd}, s2, {TILE_B}')
    e(f'  s_mov_b32 s{sSt}, s{sLd}')
    e(f'  s_mov_b32 s{sOOB}, {OOB}')
    e('  s_lshr_b32 s36, s2, 3')
    e('  s_mul_i32 s36, s36, 9216')
    e(f'  s_mul_i32 s37, s{sW}, 2304')
    e('  s_add_u32 s36, s36, s37')
    e(f'  v_lshlrev_b32 v{T[7]}, 4, v{lane}')
    e('  s_waitcnt lgkmcnt(0)')
    for (sd, lo, nbytes) in ((sX, 24, 113246208), (sD, 26, 768), (sP, 28, 294912), (sO, 30, 113246208)):
        e(f'  s_mov_b32 s{sd}, s{lo}')
        e(f'  s_and_b32 s{sd+1}, s{lo+1}, 0xffff')
        e(f'  s_mov_b32 s{sd+2}, {nbytes}')
        e(f'  s_mov_b32 s{sd+3}, 0x00020000')

    def xload1(t, u):
        p = t & 1; rg, q = u // 3, u % 3
        g.vmop(f'  buffer_load_dwordx4 v[{S[p]+4*u}:{S[p]+4*u+3}], v{vGL[u % 3]}, s[{sX}:{sX+3}], s{sOOB if opts.get("nold") else sLd} offen{NT_LD}', ('L', t, u))
        if u == 2: e(f'  s_add_u32 s{sLd}, s{sLd}, 12288')
        if u == 5: e(f'  s_add_u32 s{sLd}, s{sLd}, {STRIDE - 12288}')
    def xload(t):
        for u in range(6): xload1(t, u)
    def bload(h):
        e(f'  s_add_u32 m0, s45, {((h // 2) % NS) * 6144 + (h & 1) * 3072}')
        e(f'  s_mov_b32 s46, {h*12288}')
        for i in range(3):
            g.vmop(f'  buffer_load_dwordx4 v{vBL[i]}, s[{sP}:{sP+3}], s46 offen offset:{i*1024} lds', ('B', h, i))

    g.vmop(f'  buffer_load_dwordx4 v[{XF[0]}:{XF[0]+3}], v{T[7]}, s[{sP}:{sP+3}], s36 offen')
    g.vmop(f'  buffer_load_dwordx4 v[{XF[1]}:{XF[1]+3}], v{T[7]}, s[{sP}:{sP+3}], s36 offen offset:1024')
    g.vmop(f'  buffer_load_dwordx4 v[{XF[2]}:{XF[2]+3}], v{T[6]}, s[{sP}:{sP+3}], s36 offen offset:2048')
    e(f'  s_mul_i32 s44, s{sW}, 192')
    for i in range(3):
        e(f'  v_add_u32 v{T[8]}, {64*i}, v{lane}')
        e(f'  v_mul_u32_u24 v{T[9]}, 0xaaab, v{T[8]}')
        e(f'  v_lshrrev_b32 v{T[9]}, 19, v{T[9]}')
        e(f'  v_mul_u32_u24 v{T[10]}, 12, v{T[9]}')
        e(f'  v_sub_u32 v{T[10]}, v{T[8]}, v{T[10]}')
        e(f'  v_mul_u32_u24 v{T[9]}, 0x300, v{T[9]}')
        e(f'  v_lshl_add_u32 v{T[9]}, v{T[10]}, 4, v{T[9]}')
        e(f'  v_add_u32 v{vBL[i]}, s44, v{T[9]}')
        if i: e(f'  v_subrev_u32 v{vBL[i]}, {1024*i}, v{vBL[i]}')
    e(f'  s_mul_i32 s45, s{sW}, {NS*6144}')
    e(f'  s_add_u32 s45, s45, {2*TILE_B}')
    PA = 0
    PB0 = int(opts.get('pb0', 8)); PB = 8; PA2 = 1
    PA = 0
    for h in range(2*PA): bload(h)
    for q in range(3):
        e(f'  v_add_u32 v{T[8]}, {256*q}, v0')
        e(f'  v_mul_u32_u24 v{T[9]}, 0xaaab, v{T[8]}')
        e(f'  v_lshrrev_b32 v{T[9]}, 21, v{T[9]}')
        e(f'  v_mul_u32_u24 v{T[9]}, 48, v{T[9]}')
        e(f'  v_sub_u32 v{T[8]}, v{T[8]}, v{T[9]}')
        e(f'  v_lshlrev_b32 v{T[8]}, 4, v{T[8]}')
        g.vmop(f'  buffer_load_dwordx4 v[{160+4*q}:{160+4*q+3}], v{T[8]}, s[{sD}:{sD+3}], 0 offen', ('W', q))
    xload(0); xload(1)
    for h in range(2*PA, 8): bload(h)
    def lin_addr(dst, u, lanereg, t0, t1, t2, mask, base):
        e(f'  v_add_u32 v{t0}, {256*u}, v{lanereg}')
        e(f'  v_mul_u32_u24 v{t1}, 0xaaab, v{t0}')
        e(f'  v_lshrrev_b32 v{t1}, 21, v{t1}')
        e(f'  v_mul_u32_u24 v{t2}, 48, v{t1}')
        e(f'  v_sub_u32 v{t0}, v{t0}, v{t2}')
        e(f'  v_and_b32 v{t2}, {mask}, v{t1}')
        e(f'  v_xor_b32 v{t0}, v{t0}, v{t2}')
        e(f'  v_mul_u32_u24 v{t1}, 0x300, v{t1}')
        e(f'  v_lshl_add_u32 v{t0}, v{t0}, 4, v{t1}')
        e(f'  v_add_u32 v{dst}, {base}, v{t0}')
    for u in range(6): lin_addr(vLdsW[u], u, 0, T[8], T[9], T[10], 15, LDS_X)
    e(f'  v_mul_u32_u24 v{T[10]}, 0x300, v{lo4}')
    e(f'  v_xor_b32 v{T[11]}, v{hi2}, v{lo4}')
    e(f'  v_lshl_add_u32 v{vLdsR[0]}, v{T[11]}, 4, v{T[10]}')
    e(f'  v_add_u32 v{vLdsR[0]}, {LDS_X}, v{vLdsR[0]}')
    for s in range(1, 4): e(f'  v_xor_b32 v{vLdsR[s]}, {s*64}, v{vLdsR[0]}')
    e(f'  s_mul_i32 s41, s{sW}, 12')
    e(f'  v_and_b32 v{T[11]}, 7, v{lo4}')
    for u in range(2):
        e(f'  v_add_u32 v{T[12]}, s41, v{hi2}')
        e(f'  v_add_u32 v{T[12]}, {4*u}, v{T[12]}')
        e(f'  v_xor_b32 v{T[12]}, v{T[12]}, v{T[11]}')
        e(f'  v_lshl_add_u32 v{vOW[u]}, v{T[12]}, 4, v{T[10]}')
        e(f'  v_add_u32 v{vOW[u]}, {LDS_O}, v{vOW[u]}')
    e(f'  v_bfe_u32 v{T[12]}, v{lane}, 2, 2')
    e(f'  v_and_b32 v{T[13]}, 3, v{lane}')
    e(f'  v_lshl_add_u32 v{T[14]}, v{hi2}, 3, v{T[12]}')
    e(f'  v_mul_u32_u24 v{T[14]}, 192, v{T[14]}')
    e(f'  v_lshl_add_u32 v{T[14]}, v{T[13]}, 4, v{T[14]}')
    e(f'  v_add_u32 v{vTr}, s45, v{T[14]}')
    e(f'  s_mov_b32 s{sRdI}, 2')
    e(f'  s_mov_b32 s{sWrI}, 0')
    e(f'  s_mov_b32 s51, {-(R-1)*TILE_B & 0xffffffff}')
    e(f'  s_mov_b32 s52, {TILE_B}')

    def ring_adv_s(sI, sDl):
        return [f'  s_add_u32 s{sI}, s{sI}, 1', f'  s_cmp_eq_u32 s{sI}, {R}',
                f'  s_cselect_b32 s{sDl}, s51, s52', f'  s_cselect_b32 s{sI}, 0, s{sI}']
    def ring_adv_v(sDl, regs):
        return [f'  v_add_u32 v{r}, s{sDl}, v{r}' for r in regs]
    def scale_d(t, d):
        r = S[t & 1] + d; dd = d % 12
        t0, t1 = (TMP[0], TMP[1]) if d % 2 == 0 else (TMP[2], TMP[3])
        SM = opts.get('sm', '')
        if SM == 'dot':
            return [f'  v_dot2_f32_bf16 v{t0}, v{r}, v{DW + 2*dd}, 0', f'  v_dot2_f32_bf16 v{t1}, v{r}, v{DW + 2*dd + 1}, 0',
                    '  s_nop 0', '  s_nop 0', f'  v_cvt_pk_bf16_f32 v{r}, v{t0}, v{t1}']
        if SM == 'pk':
            return [f'  v_lshlrev_b32 v{t0}, 16, v{r}', f'  v_and_b32 v{t1}, s{sMask}, v{r}',
                    f'  v_pk_mul_f32 v[{t0}:{t1}], v[{t0}:{t1}], v[{DW + 2*dd}:{DW + 2*dd + 1}]',
                    f'  v_cvt_pk_bf16_f32 v{r}, v{t0}, v{t1}']
        return [f'  v_lshlrev_b32 v{t0}, 16, v{r}', f'  v_and_b32 v{t1}, s{sMask}, v{r}',
                f'  v_mul_f32 v{t0}, v{t0}, v{DW + 2*dd}', f'  v_mul_f32 v{t1}, v{t1}, v{DW + 2*dd + 1}',
                f'  v_cvt_pk_bf16_f32 v{r}, v{t0}, v{t1}']
    def ring_write(t, u):
        p = t & 1; rg, q = u // 3, u % 3
        g.lgop(f'  ds_write_b128 v{vLdsW[u]}, v[{S[p]+4*u}:{S[p]+4*u+3}]', ('RW', t, u))
    def dummy_st():
        g.vmop(f'  buffer_store_dwordx4 v[{TMP[0]}:{TMP[0]+3}], v{vLoad}, s[{sO}:{sO+3}], s{sOOB} offen', None)
    def scale_items(t, key, dummy=False, noload=False):
        Q = []
        for u in range(6):
            Q.append(lambda u=u: g.wait((key, u), vm=('L', t, u)))
            for d in range(4*u, 4*u+4): Q += scale_d(t, d)
            Q.append(lambda u=u: ring_write(t, u))
            if not noload: Q.append(lambda u=u: xload1(t + 2, u))
            if dummy: Q.append(dummy_st)
        return Q + ring_adv_s(sWrI, sDWr) + ring_adv_v(sDWr, vLdsW)
    def bitems(ks):
        so = (ks % NS) * 6144
        it = [lambda: g.wait(('b', ks), vm=('B', 2*ks + 1, 2))]
        for nt in range(6):
            for hh in range(2):
                it.append(lambda nt=nt, hh=hh: g.lgop(f'  ds_read_b64_tr_b16 {breg((ks*6+nt)*4 + 2*hh, 2)}, v{vTr} offset:{so + hh*768 + (nt >> 1)*64 + (nt & 1)*8}', ('TR', ks)))
        return it

    A0, A1 = ACC[0], ACC[0] + 24
    def bunit(ks):
        run(bitems(ks))
        if ks >= 1 and ks + 3 < 12:
            g.wait(('bf', ks), lg=('TR', ks - 1))
            bload(2*(ks + 3)); bload(2*(ks + 3) + 1)
    g.wait('w', vm=('W', 2))
    pstamp()
    for i in range(12):
        e(f'  v_and_b32 v{DW+2*i}, 0xffff, v{160+i}' if opts.get('sm') == 'dot' else f'  v_lshlrev_b32 v{DW+2*i}, 16, v{160+i}')
        e(f'  v_and_b32 v{DW+2*i+1}, s{sMask}, v{160+i}')
    run(scale_items(0, 'p0', noload=True))
    LA = int(opts.get('la', 2))
    for ks in range(LA): bunit(ks)
    run(scale_items(1, 'p1', noload=True))
    pstamp()
    e('  s_waitcnt lgkmcnt(0)')
    e('  s_barrier')
    PACC = [ACC[1], ACC[0]]
    XR = [XF, XF2]
    def xrd(ks):
        for k in range(4):
            tl, mt = k // 2, k % 2
            x = XR[ks & 1][k]
            g.lgop(f'  ds_read_b128 v[{x}:{x+3}], v{vLdsR[ks & 3]} offset:{tl*TILE_B + mt*12288 + (ks >> 2)*256}', ('PX', ks))
    xrd(0)
    XL = int(opts.get('xl', 9 - LA))
    MB = int(opts.get('mb', 13 - LA))
    SCQ = scale_items(2, 'p2', True) + scale_items(3, 'p3', True)
    per = -(-len(SCQ) // (12 - MB))
    for m in range(12):
        if m in (0, 4, 8, 11): pstamp()
        Q = []
        if m + 1 < 12: Q.append(lambda: xrd(m + 1))
        ks = m + LA
        if ks < 12:
            Q += bitems(ks)
            if ks + 3 < 12:
                Q.append(lambda ks=ks: g.wait(('bf', ks), lg=('TR', ks - 1)))
                Q.append(lambda ks=ks: bload(2*(ks + 3)))
                Q.append(lambda ks=ks: bload(2*(ks + 3) + 1))
        if m == XL: Q += [lambda u=u: xload1(2, u) for u in range(6)]
        if m == XL + 1: Q += [lambda u=u: xload1(3, u) for u in range(6)]
        if m >= MB:
            Q += SCQ[:per]; SCQ = SCQ[per:]
        g.wait(('pm', m), lg=('PX', m))
        if m >= LA and m < MB: g.wait(('pt', m), lg=('TR', m))
        if m == MB:
            g.wait(('ptb', m), lg=('TR', 11))
            e('  s_barrier')
        n = len(Q); k = 0
        for kk in range(4):
            tl, mt = kk // 2, kk % 2
            x = XR[m & 1][kk]
            for nt in range(6):
                a = PACC[tl] + 24*mt + 4*nt
                cc = '0' if m == 0 else f'v[{a}:{a+3}]'
                e(f'  v_mfma_f32_16x16x32_bf16 v[{a}:{a+3}], {breg((m*6+nt)*4)}, v[{x}:{x+3}], {cc}')
                run(Q[(k*n)//24:((k+1)*n)//24]); k += 1
    assert not SCQ
    pstamp()
    for r in vLdsR: e(f'  v_add_u32 v{r}, {2*TILE_B}, v{r}')
    for u in range(6): lin_addr(vOR[u], u, 0, TMP[0], TMP[1], TMP[2], 7, LDS_O)

    def rd(t, i):
        x = XF[i % 4]; mt, ks = i // 12, i % 12
        g.lgop(f'  ds_read_b128 v[{x}:{x+3}], v{vLdsR[ks & 3]} offset:{mt*12288 + (ks >> 2)*256}', ('X', t, i))
    sStN = 23
    def epi_cvt(mt, u):
        a = (A1 if mt else A0) + 8*u
        return [f'  v_cvt_pk_bf16_f32 v{a+i}, v{a+2*i}, v{a+2*i+1}' for i in range(4)]
    def epi_wr(mt, u, po):
        a = (A1 if mt else A0) + 8*u
        g.lgop(f'  ds_write_b128 v{vOW[u & 1]}, v[{a}:{a+3}] offset:{po*TILE_B + mt*12288 + (u >> 1)*128}', ('OW', mt, u))
    BST = int(opts.get('bst', 0)); BLD = int(opts.get('bld', 0))
    def ob(u): return 160 + 4*u if BST else OB[u & 1]
    def out_read(t, u):
        o = ob(u); rg, q = u // 3, u % 3
        g.lgop(f'  ds_read_b128 v[{o}:{o+3}], v{vOR[u]} offset:{((t^1)&1)*TILE_B}', ('O', t, u))
    MIX = opts.get('mix')
    def stfl(t, u):
        if MIX == 't': return ' nt' if (t & 1) else NT_ST
        if MIX == 'u': return ' nt' if (u >= 3) else NT_ST
        if MIX == '3': return ' nt' if (u % 3 == 2) else NT_ST
        if MIX == '23': return ' nt' if (u % 3 != 2) else NT_ST
        return NT_ST
    def out_store(t, u, key):
        o = ob(u); rg, q = u // 3, u % 3
        g.wait((key, 'o', u), lg=('O', t, u))
        g.vmop(f'  buffer_store_dwordx4 v[{o}:{o+3}], v{vGL[u % 3]}, s[{sO}:{sO+3}], s{sSt if u < 3 else sSt1} offen{stfl(t, u)}', None)
        if u == 5:
            e(f'  s_add_u32 s{sSt1}, s{sSt}, 12288')
            e(f'  s_add_u32 s{sSt}, s{sSt}, {STRIDE}')

    def pcv(a, u, off):
        a = a + 8*u
        run([f'  v_cvt_pk_bf16_f32 v{a+i}, v{a+2*i}, v{a+2*i+1}' for i in range(4)])
        g.lgop(f'  ds_write_b128 v{vOW[u & 1]}, v[{a}:{a+3}] offset:{off + (u >> 1)*128}')
    for u in range(3): pcv(ACC[1], u, 2*TILE_B)
    for u in range(3): pcv(ACC[1] + 24, u, TILE_B + 12288)
    for u in range(3): pcv(A0, u, TILE_B)
    e('  s_waitcnt lgkmcnt(0)')
    e('  s_barrier')
    for i in range(3): rd(2, i)
    for u in range(3):
        e(f'  ds_read_b128 v[{160+4*u}:{163+4*u}], v{vOR[u]} offset:{2*TILE_B}')
    for u in range(3):
        e(f'  s_waitcnt lgkmcnt({2-u})')
        e(f'  buffer_store_dwordx4 v[{160+4*u}:{163+4*u}], v{vGL[u]}, s[{sO}:{sO+3}], s{sSt} offen{NT_ST}')
    e(f'  s_add_u32 s{sSt1}, s{sSt}, 12288')
    e(f'  s_add_u32 s{sSt}, s{sSt}, {STRIDE}')
    stamp(); pstamp()

    lab = [0]
    WGAP = int(opts.get('wgap', 1))
    def iteration(t, var, st=False):
        p = t & 1; kp = (p, var); ts = t + P
        GP = [[] for _ in range(144)]
        for u in range(6):
            sc = sum((scale_d(ts, 4*u + k) for k in range(4)), [])
            emt, eu = (1, u) if u < 3 else (0, u - 3)
            cv = epi_cvt(emt, eu)
            vw = lambda u=u: g.wait((kp, 's', u), vm=('L', ts, u))
            rw = ('W', lambda u=u: ring_write(ts, u))
            xl = lambda u=u: xload1(ts + 2, u)
            ew = ('W', lambda emt=emt, eu=eu: epi_wr(emt, eu, p))
            orr = lambda u=u: out_read(t, u)
            ost = lambda u=u: out_store(t, u, kp)
            extra = []
            if u == 3: extra = ring_adv_s(sRdI, sDR)
            if u == 0: extra = ring_adv_s(sWrI, sDWr)
            if BST or BLD:
                orl = [orr]; osl = [ost]; xll = [xl]
                if BST:
                    g0 = BST - 1
                    orl = [lambda k=k: out_read(t, k) for k in range(6)] if u == g0 else []
                    osl = [('F', lambda k=k: out_store(t, k, kp)) for k in range(6)] if u == g0 else []
                if BLD:
                    xll = [('F', lambda k=k: xload1(ts + 2, k)) for k in range(6)] if u == 5 else []
                seq = [('F', vw)] + orl + sc + [rw] + xll + cv + [ew] + osl + [('F', x) for x in extra]
            elif var == 0:
                seq = [('F', vw)] + sc[:10] + [orr] + sc[10:] + [rw, xl] + cv + [ew, ost] + [('F', x) for x in extra]
            else:
                seq = [orr] + [('F', x) for x in extra] + [('F', vw)] + sc[:7] + cv + [ew, ost] + sc[7:] + [rw, xl]
            gi = 24 * u; cnt = 0
            def nextgap(gi):
                gi += 1
                while gi % 6 == 5: gi += 1
                return gi
            for it in seq:
                if isinstance(it, tuple) and it[0] == 'F':
                    GP[min(gi, 24*u + 22)].append(it[1]); continue
                if isinstance(it, tuple) and it[0] == 'W':
                    if cnt: gi = nextgap(gi)
                    GP[gi].append(it[1])
                    gi = nextgap(gi)
                    for _ in range(WGAP):
                        if gi % 6 != 0: gi = nextgap(gi)
                    cnt = 0; continue
                GP[gi].append(it); cnt += 1
                if cnt == 2: gi = nextgap(gi); cnt = 0
            assert gi <= 24 * u + 24, (var, u, gi)
        GP[6*20 + 5] += ring_adv_v(sDR, vLdsR[0:1])
        GP[6*21 + 5] += ring_adv_v(sDR, vLdsR[1:2])
        GP[6*22 + 5] += ring_adv_v(sDR, vLdsR[2:3])
        GP[143] += ring_adv_v(sDR, vLdsR[3:4]) + ring_adv_v(sDWr, vLdsW[5:6])
        for u in range(5): GP[24*u + 24 + 5] += ring_adv_v(sDWr, vLdsW[u:u+1])
        for i in range(24):
            mt, ks = i // 12, i % 12
            if i + 3 < 24: rd(t, i + 3)
            else: rd(t + 1, i + 3 - 24)
            g.wait((kp, 'x', i), lg=('X', t, i))
            x = XF[i % 4]
            for nt in range(6):
                a = (A1 if mt else A0) + 4*nt
                c = '0' if ks == 0 else f'v[{a}:{a+3}]'
                e(f'  v_mfma_f32_16x16x32_bf16 v[{a}:{a+3}], {breg((ks*6+nt)*4)}, v[{x}:{x+3}], {c}')
                run(GP[6*i + nt])
        g.wait((kp, 'end'), lg=('RW', ts, 5) if var == 1 else ('OW', 0, 2))
        if st and DBG:
            lab[0] += 1
            e(f'  s_cmp_lg_u32 s62, 1')
            e(f'  s_cbranch_scc1 L_nd{lab[0]}')
            e('  s_sub_u32 s26, s60, s64')
            e(f'  v_mov_b32 v{TMP[0]}, s26')
            e(f'  v_mov_b32 v{TMP[1]}, s63')
            e(f'  buffer_store_dword v{TMP[0]}, v{TMP[1]}, s[56:59], 0 offen')
            e('  s_add_u32 s63, s63, 4')
            e('  s_memrealtime s[60:61]')
            e(f'L_nd{lab[0]}:')
        e('  s_barrier')

    if DBG:
        e('  s_load_dwordx2 s[24:25], s[0:1], 32')
        e('  s_memrealtime s[60:61]')
        e('  s_waitcnt lgkmcnt(0)')
        e('  s_mov_b32 s56, s24'); e('  s_and_b32 s57, s25, 0xffff'); e('  s_mov_b32 s58, 256'); e('  s_mov_b32 s59, 0x00020000')
        e(f'  s_mov_b32 s63, {4*stamp_n[0]}')
        e(f'  s_cmp_eq_u32 s2, {DBG-1}')
        e('  s_cselect_b32 s62, 1, 0')
        e(f'  s_cmp_eq_u32 s{sW}, {int(opts.get("dbgw", 0))}')
        e('  s_cselect_b32 s62, s62, 0')
    if unroll:
        for t in range(2, NTILE): iteration(t, only)
    else:
        e(f'  s_mov_b32 s{sCnt}, 8')
        if AMP == '99': e('  s_memrealtime s[60:61]')
        NV = 1 if opts.get('novar') else 2
        if NV == 2:
            e(f'  s_cmp_ge_u32 s{sW}, 2')
            e('  s_cbranch_scc1 L_loop1')
        for var in range(NV):
            e(f'L_loop{var}:')
            iteration(0, var)
            e(f'L_mid{var}:')
            iteration(1, var, True)
            if AMP and AMP.isdigit():
                e(f'  s_cmp_lg_u32 s{sCnt}, {AMP}')
                e(f'  s_cbranch_scc1 L_amp{var}')
                e('  s_memrealtime s[60:61]')
                e(f'L_amp{var}:')
            e(f'  s_sub_u32 s{sCnt}, s{sCnt}, 1')
            e(f'  s_cmp_lg_u32 s{sCnt}, 0')
            e(f'  s_cbranch_scc1 L_loop{var}')
            if var == 0 and NV == 2: e('  s_branch L_tail')
        e('L_tail:')
    if int(opts.get('tail2', 0)):
        R9 = [160 + 4*k for k in range(9)]
        for u in range(6):
            e(f'  ds_read_b128 v[{R9[u]}:{R9[u]+3}], v{vOR[u]} offset:{TILE_B}')
        e('  s_nop 1')
        for u in range(3):
            run(epi_cvt(1, u)); epi_wr(1, u, 0)
        e('  s_waitcnt lgkmcnt(0)')
        e('  s_barrier')
        for u in range(3):
            e(f'  ds_read_b128 v[{R9[6+u]}:{R9[6+u]+3}], v{vOR[3+u]}')
        for u in range(6):
            e(f'  buffer_store_dwordx4 v[{R9[u]}:{R9[u]+3}], v{vGL[u % 3]}, s[{sO}:{sO+3}], s{sSt if u < 3 else sSt1} offen{NT_ST}')
        e(f'  s_add_u32 s{sSt1}, s{sSt}, 12288')
        for u in range(3):
            e(f'  s_waitcnt lgkmcnt({2-u})')
            e(f'  buffer_store_dwordx4 v[{R9[6+u]}:{R9[6+u]+3}], v{vGL[u]}, s[{sO}:{sO+3}], s{sSt1} offen{NT_ST}')
    else:
        t = NTILE
        out_read(t, 0); out_read(t, 1)
        e('  s_nop 5')
        for u in range(3):
            run(epi_cvt(1, u)); epi_wr(1, u, 0)
        for u in range(6):
            out_store(t, u, 'T')
            if u + 2 < 6: out_read(t, u + 2)
        e('  s_waitcnt lgkmcnt(0)')
        e('  s_barrier')
        for u in range(3):
            e(f'  ds_read_b128 v[{XF[u]}:{XF[u]+3}], v{vOR[3+u]}')
        for u in range(3):
            e(f'  s_waitcnt lgkmcnt({2-u})')
            e(f'  buffer_store_dwordx4 v[{XF[u]}:{XF[u]+3}], v{vGL[u]}, s[{sO}:{sO+3}], s{sSt1} offen{NT_ST}')
    if DBG:
        e('  s_waitcnt vmcnt(0)')
        e('  s_memrealtime s[54:55]')
        e('  s_memtime s[98:99]')
        e('  s_waitcnt lgkmcnt(0)')
        e('  s_cmp_lg_u32 s62, 1')
        e('  s_cbranch_scc1 L_done')
        e(f'  v_mov_b32 v{TMP[0]}, 0')
        for i in range(stamp_n[0]):
            e(f'  s_sub_u32 s26, s{64+2*i}, s64')
            e(f'  v_mov_b32 v{TMP[1]}, s26')
            e(f'  buffer_store_dword v{TMP[1]}, v{TMP[0]}, s[56:59], 0 offen offset:{4*i}')
        for (sr, off) in (('s60, s64', 52), ('s54, s64', 56), ('s98, s96', 60)):
            e(f'  s_sub_u32 s26, {sr}')
            e(f'  v_mov_b32 v{TMP[1]}, s26')
            e(f'  buffer_store_dword v{TMP[1]}, v{TMP[0]}, s[56:59], 0 offen offset:{off}')
    if AMP:
        e('  s_waitcnt vmcnt(0)')
        e('  s_memrealtime s[54:55]')
        e('  s_memtime s[98:99]')
        e('  s_waitcnt lgkmcnt(0)')
        if AMP == '0': e('  s_mov_b32 s60, s54')
        e('  s_cmp_lg_u32 s2, 100')
        e('  s_cbranch_scc1 L_done')
        e('  s_sub_u32 s27, s60, s64')
        e('  s_mul_i32 s27, s27, 10')
        if AMP == 'c':
            e('  s_sub_u32 s27, s98, s96')
            e('  s_lshr_b32 s27, s27, 1')
        e('L_spin:')
        e('  s_sleep 8')
        e('  s_memrealtime s[56:57]')
        e('  s_waitcnt lgkmcnt(0)')
        e('  s_sub_u32 s26, s56, s54')
        e('  s_cmp_lt_u32 s26, s27')
        e('  s_cbranch_scc1 L_spin')
    e('L_done:')
    e('  s_endpgm')
    e('.section .rodata,"a"')
    e('.p2align 6')
    e('.amdhsa_kernel standalone__depthwise_separable__vision_kernel')
    e('  .amdhsa_next_free_vgpr 512')
    e('  .amdhsa_next_free_sgpr 100')
    e('  .amdhsa_accum_offset 256')
    e('  .amdhsa_group_segment_fixed_size 0')
    e('  .amdhsa_kernarg_size 48')
    e('  .amdhsa_user_sgpr_count 2')
    e('  .amdhsa_user_sgpr_kernarg_segment_ptr 1')
    e('  .amdhsa_system_sgpr_workgroup_id_x 1')
    e('  .amdhsa_float_denorm_mode_32 3')
    e('.end_amdhsa_kernel')

if __name__ == '__main__':
    out = sys.argv[1]
    opts = dict(a.split('=', 1) for a in sys.argv[2:])
    for k in ('nt_ld', 'nt_st'):
        if k in opts: opts[k] = (' ' + opts[k].replace('+', ' ')) if opts[k] != 'none' else ''
    open(out, 'w').write(gen(opts))
```

```python
import sys, re
from gen3 import G, HDR
from gen5 import regs_of

def hazard_check(L):
    ins = [l.strip() for l in L if l.startswith('  ') and not l.strip().startswith(';')]
    hist = []; st = 0; last_valu = []; last_st = []; last_m0 = -9; last_sg = []
    for l in ins:
        op = l.split()[0]
        toks = [t.strip(',') for t in l.split()[1:]]
        allr = set()
        for t in toks: allr |= regs_of(t)
        if op.startswith('v_mfma'):
            d = regs_of(toks[0]); a = regs_of(toks[1]); b = regs_of(toks[2]); c = regs_of(toks[3])
            for (s0, r) in last_valu:
                if st - s0 - 1 < 2 and (r & (a | b | c)): raise Exception(f'VALU->MFMA hazard: {l}')
            for (s0, dd, cc) in hist:
                if st - s0 - 1 < 8 and (dd & (a | b)): raise Exception(f'MFMA D->A/B hazard: {l}')
                if st - s0 - 1 < 6 and (dd & c) and dd != c: raise Exception(f'MFMA D->C overlap hazard: {l}')
                if st - s0 - 1 < 6 and (dd & d) and dd != c: raise Exception(f'MFMA D->D WAW: {l}')
            for (s0, r) in last_st:
                if st - s0 - 1 < 8 and (r & d): raise Exception(f'store data WAR (mfma): {l}')
            hist.append((st, d, c))
        elif op.startswith('v_') or op.startswith('ds_') or op.startswith('buffer_'):
            for (s0, dd, cc) in hist:
                if st - s0 - 1 < 8 and (dd & allr): raise Exception(f'MFMA D->use hazard dist {st-s0-1}: {l}')
            if op.startswith('v_'):
                w = regs_of(toks[0])
                for (s0, dd, cc) in hist:
                    if st - s0 - 1 < 3 and (cc & w): raise Exception(f'MFMA C WAR hazard: {l}')
                for (s0, r) in last_st:
                    if st - s0 - 1 < 2 and (r & w): raise Exception(f'store data WAR: {l}')
                if op in ('v_readfirstlane_b32', 'v_readlane_b32'):
                    for (s0, r) in last_valu:
                        if st - s0 - 1 < 1 and (r & regs_of(toks[1])): raise Exception(f'readlane hazard: {l}')
                    last_sg.append((st, toks[0]))
                else:
                    for (s0, sg) in last_sg:
                        if st - s0 - 1 < 2 and sg in toks[1:]: raise Exception(f'VALU sgpr->VALU hazard: {l}')
                last_valu.append((st, w)); last_valu = last_valu[-4:]
            if op.startswith('buffer_store') or op.startswith('ds_write'):
                last_st.append((st, regs_of(toks[0] if op.startswith('buffer') else toks[1]))); last_st = last_st[-4:]
            if op.startswith('buffer_') and l.endswith('lds') and st - last_m0 - 1 < 1: raise Exception(f'm0 hazard: {l}')
            if op.startswith('buffer_'):
                for (s0, sg) in last_sg:
                    if st - s0 - 1 < 5 and sg in toks: raise Exception(f'VALU sgpr->VMEM hazard: {l}')
        elif op.startswith('s_') and toks and toks[0] == 'm0': last_m0 = st
        hist = [h for h in hist if st - h[0] < 24]
        st += int(toks[0]) + 1 if op == 's_nop' else 1

def gen(opts):
    g = G()
    g.reset('collect')
    build(g, opts, unroll=True)
    hazard_check(g.L)
    g.reset('emit')
    build(g, opts, unroll=False)
    L = g.L
    abl = opts.get('abl', '')
    if abl:
        i0 = L.index('L_loop:'); i1 = L.index('L_tail:')
        def keep(l):
            s = l.strip()
            if 'O' in abl and (s.startswith('ds_write_b128') or re.match(r'ds_read_b128 a\[(14[4-9]|1[5-6]\d)', s)): return False
            if 'T' in abl and s.startswith('buffer_store'): return False
            if 'L' in abl and s.startswith('buffer_load'): return False
            if 'H' in abl and s.startswith('v_mfma') and int(re.search(r'v\[(\d+):', s).group(1)) % 8 == 4: return False
            return True
        L = L[:i0] + [l for l in L[i0:i1] if keep(l)] + L[i1:]
    return '\n'.join(L) + '\n'

def build(g, opts, unroll):
    NT_LD = opts.get('nt_ld', ''); NT_ST = opts.get('nt_st', ' sc1'); NT_B = opts.get('nt_b', '')
    DBG = int(opts.get('dbg', 0))
    PD = int(opts.get('pd', 2))
    e = g.e
    TILE_B = 32 * 768; NTILE = 18; STRIDE = 256 * TILE_B
    LDS_O = 4 * TILE_B; LDS_DW = 6 * TILE_B; LDS_TOTAL = LDS_DW + 4096
    AREA = [2 * TILE_B, 3 * TILE_B, 4 * TILE_B, 5 * TILE_B]
    OOB = 113246208
    vLdsR = [1, 2, 3, 4]; vOW = [5, 6]; vOR = [7, 8, 9]; vXS = [10, 11, 12]; vST = [13, 14, 15]
    ACC = 16
    PT = 64
    vBL = [PT, PT+1, PT+2]; vTr = PT+3; vDW = PT+4; vM = [PT+5, PT+6]; vLane = PT+7
    DWR = [PT+8, PT+12]
    T = [PT+16+i for i in range(8)]
    BV = 88
    NA = 5
    ASLOTS = [int(c, 16) for c in opts.get('aslots', '13579')]
    assert len(ASLOTS) == NA
    VSLOTS = [s for s in range(12) if s not in ASLOTS]
    XF = 120
    OB = 144
    RAW = [168, 192]
    sX, sO, sP, sD = 4, 8, 12, 16
    sW, sCnt = 20, 21
    sA, sB, sAc, sBc, sXa, sXb, sXl, sRing, sOOB, sBase = 32, 33, 34, 35, 36, 37, 38, 39, 40, 41
    sG = [42, 43, 44]; sQ = [45, 46, 47, 48]; sBW = 49; sT = [50, 51, 52, 53]; sR1, sR2 = 54, 55

    def breg(s, nt, n=4, o=0):
        if s in ASLOTS:
            i = ASLOTS.index(s) * 24 + nt * 4 + o
            return f'a[{i}:{i+n-1}]' if n > 1 else f'a{i}'
        i = BV + VSLOTS.index(s) * 24 + nt * 4 + o
        return f'v[{i}:{i+n-1}]' if n > 1 else f'v{i}'
    sn = [0]
    def stamp():
        if DBG:
            e(f'  s_memrealtime s[{64+2*sn[0]}:{65+2*sn[0]}]'); sn[0] += 1
    def run(items):
        for it in items:
            if callable(it): it()
            else: e(it)

    e(HDR.rstrip('\n'))
    e(f'; @launch grid=(256,1,1) block=(256,1,1) lds={LDS_TOTAL}')
    e('.amdgcn_target "amdgcn-amd-amdhsa--gfx950"')
    e('.text')
    e('.globl standalone__depthwise_separable__vision_kernel')
    e('.p2align 8')
    e('.type standalone__depthwise_separable__vision_kernel,@function')
    e('standalone__depthwise_separable__vision_kernel:')
    e('  s_load_dwordx8 s[24:31], s[0:1], 0')
    e('  s_cmp_ge_u32 s2, 256')
    e('  s_cbranch_scc1 L_done')
    stamp()
    if DBG: e('  s_memtime s[96:97]')
    e(f'  v_lshrrev_b32 v{T[0]}, 6, v0')
    e(f'  v_and_b32 v{vLane}, 63, v0')
    e(f'  v_readfirstlane_b32 s{sW}, v{T[0]}')
    e(f'  s_lshr_b32 s{sT[0]}, s2, 3')
    e(f'  s_and_b32 s{sR2}, s{sT[0]}, 3')
    e(f'  s_lshr_b32 s{sR1}, s{sT[0]}, 2')
    e(f'  s_mul_i32 s{sT[1]}, s{sR1}, 11')
    e(f'  s_lshr_b32 s{sT[1]}, s{sT[1]}, 5')
    e(f'  s_mul_i32 s{sT[1]}, s{sT[1]}, 3')
    e(f'  s_sub_u32 s{sR1}, s{sR1}, s{sT[1]}')
    if opts.get('norot'):
        e(f'  s_mov_b32 s{sR1}, 0'); e(f'  s_mov_b32 s{sR2}, 0')
    e(f'  s_mul_i32 s{sT[2]}, s{sW}, 192')
    for i in range(3):
        if i: e(f'  v_add_u32 v{T[1]}, {64*i}, v{vLane}')
        q = T[1] if i else vLane
        e(f'  v_mul_u32_u24 v{T[2]}, 0xaaab, v{q}')
        e(f'  v_lshrrev_b32 v{T[2]}, 19, v{T[2]}')
        e(f'  v_mul_u32_u24 v{T[3]}, 576, v{T[2]}')
        e(f'  v_lshl_add_u32 v{T[3]}, v{vLane}, 4, v{T[3]}')
        e(f'  v_add_u32 v{vBL[i]}, s{sT[2]}, v{T[3]}')
    e(f'  s_mul_i32 s{sG[0]}, s{sR1}, 98304')
    e(f'  s_add_u32 s{sG[1]}, s{sG[0]}, 98304')
    e(f'  s_cmp_eq_u32 s{sR1}, 2')
    e(f'  s_cselect_b32 s{sG[1]}, 0, s{sG[1]}')
    e(f'  s_add_u32 s{sG[2]}, s{sG[1]}, 98304')
    e(f'  s_cmp_eq_u32 s{sR1}, 1')
    e(f'  s_cselect_b32 s{sG[2]}, 0, s{sG[2]}')
    for q in range(4):
        e(f'  s_xor_b32 s{sQ[q]}, s{sR2}, {q}')
        e(f'  s_mul_i32 s{sQ[q]}, s{sQ[q]}, {TILE_B}')
    e(f'  s_mul_i32 s{sBW}, s{sW}, 6144')
    e(f'  s_lshl_b32 s{sT[3]}, s{sR2}, 2')
    e(f'  v_lshrrev_b32 v{T[1]}, 4, v{vLane}')
    e(f'  v_add_u32 v{T[2]}, s{sR1}, v{T[1]}')
    e(f'  v_subrev_u32 v{T[3]}, 3, v{T[2]}')
    e(f'  v_min_u32 v{T[2]}, v{T[2]}, v{T[3]}')
    e(f'  v_and_b32 v{T[4]}, 15, v{vLane}')
    e(f'  v_xor_b32 v{T[3]}, s{sT[3]}, v{T[4]}')
    e(f'  v_lshlrev_b32 v{T[3]}, 4, v{T[3]}')
    e(f'  v_lshl_add_u32 v{T[3]}, v{T[2]}, 8, v{T[3]}')
    e(f'  v_cmp_lt_u32 vcc, 47, v{vLane}')
    e(f'  s_lshl_b32 s{sT[0]}, s{sW}, 10')
    e(f'  s_add_u32 m0, s{sT[0]}, {LDS_DW}')
    e(f'  v_cndmask_b32 v{T[3]}, v{T[3]}, v{vBL[2]}, vcc')
    e('  s_waitcnt lgkmcnt(0)')
    def srd(sd, lo, nbytes):
        e(f'  s_mov_b32 s{sd}, s{lo}')
        e(f'  s_and_b32 s{sd+1}, s{lo+1}, 0xffff')
        e(f'  s_mov_b32 s{sd+2}, {nbytes}')
        e(f'  s_mov_b32 s{sd+3}, 0x00020000')
    srd(sD, 26, 768); srd(sP, 28, 294912)
    g.vmop(f'  buffer_load_dwordx4 v{T[3]}, s[{sD}:{sD+3}], 0 offen lds', ('W',))
    def bload(s):
        it = []
        for h in range(2):
            it.append(f'  s_add_u32 m0, s{sBW}, {AREA[s % 4] + h*3072}')
            it.append(f'  s_add_u32 s{sT[0]}, s{sG[s >> 2]}, s{sQ[s & 3]}' if h == 0 else f'  s_add_u32 s{sT[0]}, s{sT[0]}, 12288')
            for i in range(3):
                it.append(lambda h=h, i=i: g.vmop(f'  buffer_load_dwordx4 v{vBL[i]}, s[{sP}:{sP+3}], s{sT[0]} offen offset:{i*1024}{NT_B} lds', ('B', s, 3*h + i)))
        return it
    NB0 = int(opts.get('nb0', 2))
    for s in range(NB0): run(bload(s))
    srd(sX, 24, 113246208); srd(sO, 30, 113246208)
    hi2, lo4 = T[1], T[4]
    if opts.get('map', 'x') == 'x':
        e(f'  s_and_b32 s{sT[1]}, s2, 7')
        e(f'  s_lshl_b32 s{sT[1]}, s{sT[1]}, 5')
        e(f'  s_lshr_b32 s{sT[2]}, s2, 3')
        e(f'  s_add_u32 s{sT[1]}, s{sT[1]}, s{sT[2]}')
        e(f'  s_mul_i32 s{sBase}, s{sT[1]}, {TILE_B}')
    else:
        e(f'  s_mul_i32 s{sBase}, s2, {TILE_B}')
    e(f'  s_mov_b32 s{sOOB}, {OOB}')
    e(f'  s_lshl_b32 s{sRing}, s{sW}, 10')
    for u in range(3):
        e(f'  v_lshrrev_b32 v{T[0]}, 4, v0')
        if u: e(f'  v_add_u32 v{T[0]}, {16*u}, v{T[0]}')
        e(f'  v_mul_u32_u24 v{T[2]}, 43, v{T[0]}')
        e(f'  v_lshrrev_b32 v{T[2]}, 7, v{T[2]}')
        e(f'  v_mul_u32_u24 v{T[3]}, 3, v{T[2]}')
        e(f'  v_sub_u32 v{T[3]}, v{T[0]}, v{T[3]}')
        e(f'  v_and_b32 v{T[5]}, 7, v{T[2]}')
        e(f'  v_xor_b32 v{T[5]}, v{T[5]}, v{lo4}')
        e(f'  v_lshlrev_b32 v{T[5]}, 4, v{T[5]}')
        e(f'  v_lshl_add_u32 v{T[5]}, v{T[0]}, 8, v{T[5]}')
        e(f'  v_add_u32 v{vOR[u]}, {LDS_O}, v{T[5]}')
        e(f'  v_add_u32 v{T[3]}, s{sR1}, v{T[3]}')
        e(f'  v_subrev_u32 v{T[5]}, 3, v{T[3]}')
        e(f'  v_min_u32 v{T[3]}, v{T[3]}, v{T[5]}')
        e(f'  v_xor_b32 v{T[5]}, v{T[2]}, v{lo4}')
        e(f'  v_xor_b32 v{T[5]}, s{sT[3]}, v{T[5]}')
        e(f'  v_lshlrev_b32 v{T[5]}, 4, v{T[5]}')
        e(f'  v_lshl_add_u32 v{T[5]}, v{T[3]}, 8, v{T[5]}')
        e(f'  v_mul_u32_u24 v{T[2]}, 0x300, v{T[2]}')
        e(f'  v_add_u32 v{vXS[u]}, v{T[2]}, v{T[5]}')
    for s in range(NB0, 4): run(bload(s))
    e(f'  v_lshlrev_b32 v{vST[0]}, 4, v0')
    e(f'  v_add_u32 v{vST[1]}, 4096, v{vST[0]}')
    e(f'  v_add_u32 v{vST[2]}, 8192, v{vST[0]}')
    e(f'  v_mul_u32_u24 v{T[0]}, 0x300, v{lo4}')
    e(f'  v_xor_b32 v{T[2]}, v{hi2}, v{lo4}')
    e(f'  v_lshl_add_u32 v{vLdsR[0]}, v{T[2]}, 4, v{T[0]}')
    for s in range(1, 4): e(f'  v_xor_b32 v{vLdsR[s]}, {s*64}, v{vLdsR[0]}')
    e(f'  s_mul_i32 s{sT[1]}, s{sW}, 12')
    e(f'  v_and_b32 v{T[2]}, 7, v{lo4}')
    for u in range(2):
        e(f'  v_add_u32 v{T[3]}, s{sT[1]}, v{hi2}')
        if u: e(f'  v_add_u32 v{T[3]}, {4*u}, v{T[3]}')
        e(f'  v_xor_b32 v{T[3]}, v{T[3]}, v{T[2]}')
        e(f'  v_lshl_add_u32 v{vOW[u]}, v{T[3]}, 4, v{T[0]}')
        e(f'  v_add_u32 v{vOW[u]}, {LDS_O}, v{vOW[u]}')
    e(f'  v_bfe_u32 v{T[2]}, v{vLane}, 2, 2')
    e(f'  v_and_b32 v{T[3]}, 3, v{vLane}')
    e(f'  v_lshl_add_u32 v{T[5]}, v{hi2}, 3, v{T[2]}')
    e(f'  v_mul_u32_u24 v{T[5]}, 192, v{T[5]}')
    e(f'  v_lshl_add_u32 v{T[5]}, v{T[3]}, 4, v{T[5]}')
    e(f'  s_add_u32 s{sT[1]}, s{sBW}, {AREA[0]}')
    e(f'  v_add_u32 v{vTr}, s{sT[1]}, v{T[5]}')
    e(f'  v_add_u32 v{T[6]}, {2*TILE_B}, v{vTr}')
    vTr2 = T[6]
    e(f'  s_add_u32 s{sT[1]}, s{sRing}, {LDS_DW}')
    e(f'  v_lshl_add_u32 v{vDW}, v{hi2}, 4, s{sT[1]}')
    e(f'  v_and_b32 v{T[5]}, 1, v{vLane}')
    e(f'  v_lshlrev_b32 v{T[5]}, 4, v{T[5]}')
    e(f'  v_mov_b32 v{T[7]}, 0xffff')
    e(f'  v_lshlrev_b32 v{T[5]}, v{T[5]}, v{T[7]}')
    e(f'  v_lshlrev_b32 v{T[0]}, 1, v{hi2}')
    e(f'  v_bfe_u32 v{T[7]}, v{vLane}, 1, 3')
    e(f'  v_cmp_eq_u32 vcc, v{T[0]}, v{T[7]}')
    e(f'  v_add_u32 v{T[0]}, 1, v{T[0]}')
    e(f'  s_nop 0')
    e(f'  v_cndmask_b32 v{vM[0]}, 0, v{T[5]}, vcc')
    e(f'  v_cmp_eq_u32 vcc, v{T[0]}, v{T[7]}')
    e(f'  s_sub_u32 s{sA}, s{sBase}, {STRIDE}')
    e(f'  s_sub_u32 s{sB}, s{sBase}, {2*STRIDE - 12288}')
    e(f'  v_cndmask_b32 v{vM[1]}, 0, v{T[5]}, vcc')
    e(f'  s_mov_b32 s{sXl}, s{sBase}')
    e(f'  s_mov_b32 s{sAc}, s{sOOB}')
    e(f'  s_mov_b32 s{sBc}, s{sOOB}')

    def xdma(t, u):
        it = []
        if u == 0:
            it += [f'  s_min_u32 s{sXa}, s{sXl}, s{sOOB}', f'  s_add_u32 s{sXb}, s{sXa}, 12288', f'  s_min_u32 s{sXb}, s{sXb}, s{sOOB}',
                   f'  s_add_u32 s{sXl}, s{sXl}, {STRIDE}']
        it.append(f'  s_add_u32 m0, s{sRing}, {(t & 1)*TILE_B + u*4096}')
        if u == 5 and (t & 1): it.append(f'  s_xor_b32 s{sRing}, s{sRing}, {2*TILE_B}')
        else: it.append('NOP')
        it.append(lambda: g.vmop(f'  buffer_load_dwordx4 v{vXS[u % 3]}, s[{sX}:{sX+3}], s{sXa if u < 3 else sXb} offen{NT_LD} lds', ('L', t, u)))
        return it
    def xdma_burst(t):
        for u in range(6):
            run(['  s_nop 0' if x == 'NOP' else x for x in xdma(t, u)])

    def trs(s):
        it = [lambda: g.wait(('b', s), vm=('B', s, 5))]
        base = vTr if (s % 4) < 2 else vTr2
        so = (s % 2) * TILE_B
        it.append(lambda: g.lgop(f'  ds_read_b128 v[{DWR[s & 1]}:{DWR[s & 1]+3}], v{vDW} offset:{s*64}', ('TR', s)))
        for nt in range(6):
            for hh in range(2):
                r = RAW[s & 1] + nt*4 + 2*hh
                it.append(lambda r=r, nt=nt, hh=hh: g.lgop(f'  ds_read_b64_tr_b16 a[{r}:{r+1}], v{base} offset:{so + hh*768 + (nt >> 1)*64 + (nt & 1)*8}', ('TR', s)))
        return it
    def cvts(s, j):
        nt, hh = j // 2, j % 2
        q = ACC + 4*j
        if s in ASLOTS:
            return [f'  v_cvt_pk_bf16_f32 v{q}, v{q}, v{q+1}', f'  v_cvt_pk_bf16_f32 v{q+1}, v{q+2}, v{q+3}',
                    f'  v_accvgpr_write_b32 {breg(s, nt, 1, 2*hh)}, v{q}', f'  v_accvgpr_write_b32 {breg(s, nt, 1, 2*hh+1)}, v{q+1}']
        return [f'  v_cvt_pk_bf16_f32 {breg(s, nt, 1, 2*hh)}, v{q}, v{q+1}', f'  v_cvt_pk_bf16_f32 {breg(s, nt, 1, 2*hh+1)}, v{q+2}, v{q+3}']
    run(trs(0))
    stamp()
    pend = []
    LAG = 8
    for s in range(12):
        if s + 1 < 12: run(trs(s + 1))
        g.wait(('tr', s), lg=('TR', s))
        d = DWR[s & 1]
        for i in range(4): e(f'  v_and_b32 v{d+i}, v{vM[i & 1]}, v{d+i}')
        if s + 4 < 12: run(bload(s + 4))
        elif s + 4 - 12 < 2: xdma_burst(s + 4 - 12)
        else: e('  s_nop 1')
        for j in range(12):
            nt, hh = j // 2, j % 2
            r = RAW[s & 1] + nt*4 + 2*hh
            q = ACC + 4*j
            e(f'  v_mfma_f32_16x16x16_bf16 v[{q}:{q+3}], v[{d+2*hh}:{d+2*hh+1}], a[{r}:{r+1}], 0')
            pend.append(cvts(s, j))
            if len(pend) > LAG: run(pend.pop(0))
        if s in (3, 7): stamp()
    def rd(t, i):
        mt, ks = i // 12, i % 12
        x = XF + 8*((i // 2) % 3) + 4*(i & 1)
        g.lgop(f'  ds_read_b128 a[{x}:{x+3}], v{vLdsR[ks & 3]} offset:{(t & 1)*TILE_B + mt*12288 + (ks >> 2)*256}', ('X', t, i))
    for _ in range(4): run(pend.pop(0))
    stamp()
    g.wait('x0', vm=('L', 0, 5))
    e('  s_barrier')
    for i in range(4): rd(0, i)
    while pend: run(pend.pop(0))
    if PD == 3: xdma_burst(2)
    stamp()

    def epi(mt, u, po):
        a = ACC + 24*mt + 8*u
        return [f'  v_cvt_pk_bf16_f32 v{a+i}, v{a+2*i}, v{a+2*i+1}' for i in range(4)] + \
               [lambda: g.lgop(f'  ds_write_b128 v{vOW[u & 1]}, v[{a}:{a+3}] offset:{po*TILE_B + mt*12288 + (u >> 1)*128}', ('OW', mt, u))]
    def out_read(t, u):
        o = OB + 4*u
        g.lgop(f'  ds_read_b128 a[{o}:{o+3}], v{vOR[u % 3]} offset:{((t^1)&1)*TILE_B + (u // 3)*12288}', ('O', t, u))
    def out_store(t, u, key):
        o = OB + 4*u
        g.wait((key, 'o', u), lg=('O', t, u))
        g.vmop(f'  buffer_store_dwordx4 a[{o}:{o+3}], v{vST[u % 3]}, s[{sO}:{sO+3}], s{sAc if u < 3 else sBc} offen{NT_ST}', None)
    def st_adv():
        return [f'  s_add_u32 s{sA}, s{sA}, {STRIDE}', f'  s_add_u32 s{sB}, s{sB}, {STRIDE}',
                f'  s_min_u32 s{sAc}, s{sA}, s{sOOB}', f'  s_min_u32 s{sBc}, s{sB}, s{sOOB}']
    def ints(k, d): return [int(v) for v in opts.get(k, d).split(',')]
    OR_AT = ints('or', '2,26,50,74,98,122'); OS_D = int(opts.get('osd', 9))
    UORD = ints('uord', '3,4,5,0,1,2')
    XD_AT = ints('xd', '30,48,66,84,102,120')
    E1_AT = ints('e1', '27,39,51'); E0_AT = ints('e0', '99,111,123')
    def fillers(t):
        F = [[] for _ in range(144)]
        def put(rho, items, per=1):
            for it in items:
                if it == 'NOP':
                    rho += 1; continue
                while len(F[rho]) >= per + 0 and False: rho += 1
                F[rho].append(it); rho += 1
        kp = t & 1
        for k in range(6):
            u = UORD[k]
            put(OR_AT[k], [lambda u=u: out_read(t, u)])
            put(OR_AT[k] + OS_D, [lambda u=u: out_store(t, u, kp)])
        put(OR_AT[5] + OS_D + 1, st_adv())
        for u in range(6): put(XD_AT[u] - (4 if u == 0 else 0), xdma(t + PD, u))
        for u in range(3):
            put(E1_AT[u], epi(1, u, t & 1))
            put(E0_AT[u], epi(0, u, t & 1))
        return F
    def tile(t):
        kp = t & 1
        F0 = fillers(t); F1 = fillers(t + 1)
        for G_ in range(12):
            mt, kg = G_ // 6, G_ % 6
            if G_ == 10:
                g.wait((kp, 'bar'), vm=('L', t + 1, 5), lg=('X', t, 23) if PD == 3 else ('OW', 0, 2))
                e('  s_barrier')
                if t & 1:
                    for r in vLdsR: e(f'  v_xor_b32 v{r}, {2*TILE_B}, v{r}')
            g.wait((kp, 'x', G_), lg=('X', t, 2*G_ + 1))
            for nt in range(6):
                for k in range(2):
                    ks = 2*kg + k; i = 12*mt + ks
                    x = XF + 8*(G_ % 3) + 4*k
                    a = ACC + 24*mt + 4*nt
                    c = '0' if ks == 0 else f'v[{a}:{a+3}]'
                    e(f'  v_mfma_f32_16x16x32_bf16 v[{a}:{a+3}], {breg(ks, nt)}, a[{x}:{x+3}], {c}')
                    gap = 12*G_ + 2*nt + k
                    if gap % 12 in (0, 1):
                        j = 2*G_ + 4 + (gap % 12)
                        if j < 24: rd(t, j)
                        else: rd(t + 1, j - 24)
                    run(F0[gap + 24] if gap < 120 else F1[gap - 120])
    if DBG:
        e(f'  s_mov_b32 s62, {sn[0]}')
        e('  s_mov_b32 s60, s64')
    if unroll:
        for t in range(NTILE): tile(t)
    else:
        e(f'  s_mov_b32 s{sCnt}, {NTILE // 2}')
        if opts.get('al'): e(f'  .p2align {opts["al"]}')
        e('L_loop:')
        tile(0)
        tile(1)
        if DBG:
            e('  s_mov_b32 m0, s62'); e('  s_nop 0'); e('  v_writelane_b32 v0, s60, m0')
            e('  s_add_u32 s62, s62, 1')
            e('  s_memrealtime s[60:61]')
        e(f'  s_sub_u32 s{sCnt}, s{sCnt}, 1')
        e(f'  s_cmp_lg_u32 s{sCnt}, 0')
        e(f'  s_cbranch_scc1 L_loop')
        e('L_tail:')
    t = NTILE
    done = [UORD[k] for k in range(6) if OR_AT[k] + OS_D < 24]
    rdone = [UORD[k] for k in range(6) if OR_AT[k] < 24]
    for u in UORD:
        if u not in rdone: out_read(t, u)
    e('  s_nop 3')
    for u in range(3): run(epi(1, u, 0))
    for u in UORD:
        if u not in done: out_store(t, u, 'T')
    e(f'  s_add_u32 s{sBc}, s{sAc}, 12288')
    e('  s_waitcnt lgkmcnt(0)')
    e('  s_barrier')
    for u in range(3):
        e(f'  ds_read_b128 a[{XF+4*u}:{XF+4*u+3}], v{vOR[u]} offset:12288')
    for u in range(3):
        e(f'  s_waitcnt lgkmcnt({2-u})')
        e(f'  buffer_store_dwordx4 a[{XF+4*u}:{XF+4*u+3}], v{vST[u]}, s[{sO}:{sO+3}], s{sBc} offen{NT_ST}')
    if DBG:
        e('  s_mov_b32 m0, s62'); e('  s_nop 0'); e('  v_writelane_b32 v0, s60, m0')
        e('  s_add_u32 s62, s62, 1')
        e('  s_load_dwordx2 s[24:25], s[0:1], 40')
        e('  s_waitcnt vmcnt(0)')
        e('  s_memrealtime s[54:55]')
        e('  s_memtime s[98:99]')
        e('  s_waitcnt lgkmcnt(0)')
        e('  s_mov_b32 m0, s62'); e('  s_nop 0'); e('  v_writelane_b32 v0, s54, m0')
        e('  s_sub_u32 s98, s98, s96')
        e('  s_add_u32 s98, s98, s64')
        e('  v_writelane_b32 v0, s98, 31')
        for i in range(sn[0]): e(f'  v_writelane_b32 v0, s{64+2*i}, {i}')
        e('  s_mov_b32 s56, s24'); e('  s_and_b32 s57, s25, 0xffff'); e('  s_mov_b32 s58, 452984832'); e('  s_mov_b32 s59, 0x00020000')
        e('  s_lshl_b32 s26, s2, 9'); e(f'  s_lshl_b32 s27, s{sW}, 7'); e('  s_add_u32 s26, s26, s27')
        e('  v_mbcnt_lo_u32_b32 v1, -1, 0')
        e('  v_lshlrev_b32 v1, 2, v1')
        e('  s_mov_b64 exec, 0xffffffff')
        e('  buffer_store_dword v0, v1, s[56:59], s26 offen')
    e('L_done:')
    e('  s_endpgm')
    e('.section .rodata,"a"')
    e('.p2align 6')
    e('.amdhsa_kernel standalone__depthwise_separable__vision_kernel')
    e('  .amdhsa_next_free_vgpr 512')
    e('  .amdhsa_next_free_sgpr 100')
    e('  .amdhsa_accum_offset 256')
    e('  .amdhsa_group_segment_fixed_size 0')
    e('  .amdhsa_kernarg_size 48')
    e('  .amdhsa_user_sgpr_count 2')
    e('  .amdhsa_user_sgpr_kernarg_segment_ptr 1')
    e('  .amdhsa_system_sgpr_workgroup_id_x 1')
    e('  .amdhsa_float_denorm_mode_32 3')
    e('.end_amdhsa_kernel')

if __name__ == '__main__':
    out = sys.argv[1]
    opts = dict(a.split('=', 1) for a in sys.argv[2:])
    for k in ('nt_ld', 'nt_st', 'nt_b'):
        if k in opts: opts[k] = (' ' + opts[k].replace('+', ' ')) if opts[k] != 'none' else ''
    open(out, 'w').write(gen(opts))
```

```python
import sys, re
from gen3 import G, HDR
from gen5 import regs_of

def hazard_check(L):
    ins = [l.strip() for l in L if l.startswith('  ') and not l.strip().startswith(';')]
    hist = []; st = 0; last_valu = []; last_st = []; last_m0 = -9; last_sg = []; lastscc = ''
    for l in ins:
        op = l.split()[0]
        toks = [t.strip(',') for t in l.split()[1:]]
        allr = set()
        for t in toks: allr |= regs_of(t)
        if op.startswith('v_mfma'):
            d = regs_of(toks[0]); a = regs_of(toks[1]); b = regs_of(toks[2]); c = regs_of(toks[3])
            for (s0, r) in last_valu:
                if st - s0 - 1 < 2 and (r & (a | b | c)): raise Exception(f'VALU->MFMA hazard: {l}')
            for (s0, dd, cc) in hist:
                if st - s0 - 1 < 8 and (dd & (a | b)): raise Exception(f'MFMA D->A/B hazard: {l}')
                if st - s0 - 1 < 6 and (dd & c) and dd != c: raise Exception(f'MFMA D->C overlap hazard: {l}')
                if st - s0 - 1 < 6 and (dd & d) and dd != c: raise Exception(f'MFMA D->D WAW: {l}')
            for (s0, r) in last_st:
                if st - s0 - 1 < 8 and (r & d): raise Exception(f'store data WAR (mfma): {l}')
            hist.append((st, d, c))
        elif op.startswith('v_') or op.startswith('ds_') or op.startswith('buffer_'):
            for (s0, dd, cc) in hist:
                if st - s0 - 1 < 8 and (dd & allr): raise Exception(f'MFMA D->use hazard dist {st-s0-1}: {l}')
            if op.startswith('v_'):
                w = regs_of(toks[0])
                for (s0, dd, cc) in hist:
                    if st - s0 - 1 < 3 and (cc & w): raise Exception(f'MFMA C WAR hazard: {l}')
                for (s0, r) in last_st:
                    if st - s0 - 1 < 2 and (r & w): raise Exception(f'store data WAR: {l}')
                if op in ('v_readfirstlane_b32', 'v_readlane_b32'):
                    for (s0, r) in last_valu:
                        if st - s0 - 1 < 1 and (r & regs_of(toks[1])): raise Exception(f'readlane hazard: {l}')
                    last_sg.append((st, toks[0]))
                else:
                    for (s0, sg) in last_sg:
                        if st - s0 - 1 < 2 and sg in toks[1:]: raise Exception(f'VALU sgpr->VALU hazard: {l}')
                last_valu.append((st, w)); last_valu = last_valu[-4:]
            if op.startswith('buffer_store') or op.startswith('ds_write'):
                last_st.append((st, regs_of(toks[0] if op.startswith('buffer') else toks[1]))); last_st = last_st[-4:]
            if op.startswith('buffer_') and l.endswith('lds') and st - last_m0 - 1 < 1: raise Exception(f'm0 hazard: {l}')
            if op.startswith('buffer_'):
                for (s0, sg) in last_sg:
                    if st - s0 - 1 < 5 and sg in toks: raise Exception(f'VALU sgpr->VMEM hazard: {l}')
        elif op.startswith('s_') and toks and toks[0] == 'm0': last_m0 = st
        if op.startswith('s_cselect') or op.startswith('s_cbranch_scc'):
            if not (lastscc.startswith('s_cmp') or lastscc.startswith('s_bitcmp')): raise Exception(f'SCC clobbered by {lastscc}: {l}')
        elif re.match(r's_(add|sub|and|or|xor|min|max|lshl|lshr|cmp|bitcmp|andn2|ashr|bfe|not)', op): lastscc = op
        hist = [h for h in hist if st - h[0] < 24]
        st += int(toks[0]) + 1 if op == 's_nop' else 1

class G2(G):
    def __init__(self):
        self.need = {}
        super().__init__()
    def reset(self, mode):
        super().reset(mode); self.lgd = 0; self.vmd = 0
    def _cnt(self, lst, tag):
        if tag[:2] == ('O', 0) and tag not in lst: return len(lst)
        return super()._cnt(lst, tag)
    def wait(self, key, vm=None, lg=None, opt=False):
        if self.mode == 'collect2':
            nd = False
            if lg is not None and len(self.lg) - self._cnt(self.lg, lg) > self.lgd: nd = True
            if vm is not None and len(self.vm) - self._cnt(self.vm, vm) > self.vmd: nd = True
            self.need[key] = self.need.get(key, False) or nd or not opt
            v, l = self.sites[key]
            if not opt:
                if lg is not None: self.lgd = max(self.lgd, len(self.lg) - l)
                if vm is not None: self.vmd = max(self.vmd, len(self.vm) - v)
            return
        if self.mode in ('emit', 'check') and not self.need[key]: return
        super().wait(key, vm, lg)

def gen(opts):
    g = G2()
    g.reset('collect')
    build(g, opts, unroll=True)
    g.reset('collect2')
    build(g, opts, unroll=True)
    g.reset('check')
    build(g, opts, unroll=True)
    hazard_check(g.L)
    g.reset('emit')
    build(g, opts, unroll=False)
    L = g.L
    abl = opts.get('abl', '')
    if abl:
        i0 = L.index('L_loop:'); i1 = L.index('L_tail:')
        def keep(l):
            s = l.strip()
            if 'O' in abl and (s.startswith('ds_write_b128') or re.match(r'ds_read_b128 a\[(14[4-9]|1[5-6]\d)', s)): return False
            if 'T' in abl and s.startswith('buffer_store'): return False
            if 'L' in abl and s.startswith('buffer_load'): return False
            if 'B' in abl and s.startswith('s_barrier'): return False
            if 'C' in abl and s.startswith('v_cvt'): return False
            if 'H' in abl and s.startswith('v_mfma') and int(re.search(r'v\[(\d+):', s).group(1)) % 8 == 4: return False
            return True
        L = L[:i0] + [l for l in L[i0:i1] if keep(l)] + L[i1:]
    return '\n'.join(L) + '\n'

def build(g, opts, unroll):
    NT_LD = opts.get('nt_ld', ''); NT_ST = opts.get('nt_st', ' sc1'); NT_B = opts.get('nt_b', '')
    DBG = int(opts.get('dbg', 0))
    PD = int(opts.get('pd', 2))
    e = g.e
    TILE_B = 32 * 768; NTILE = 18; STRIDE = 256 * TILE_B
    LDS_O = 4 * TILE_B; LDS_DW = 6 * TILE_B; LDS_PR = LDS_DW + 4096; LDS_TOTAL = LDS_PR + 64
    AREA = [2 * TILE_B, 3 * TILE_B, 4 * TILE_B, 5 * TILE_B]
    OOB = 113246208
    vLdsR = [1, 2, 3, 4]; vOR = [5, 6, 7]; vXS = [8, 9, 10, 11, 12, 13]; vXS4b = 14; vTX = 15
    ACC = 16
    PT = 64
    vBL = [PT, PT+1, PT+2]; vTr = PT+3; vDW = PT+4; vM = [PT+5, PT+6]; vTr2 = PT+7
    DWR = [PT+8, PT+12]
    vST = [PT+16+i for i in range(6)]; vOW = [PT+22, PT+23]; vST4b = PT; vTS = PT+1
    T = [ACC+i for i in range(12)]; vLane = ACC + 12
    BV = 88
    NA = 5
    ASLOTS = [int(c, 16) for c in opts.get('aslots', '13579')]
    assert len(ASLOTS) == NA
    VSLOTS = [s for s in range(12) if s not in ASLOTS]
    XF = 120
    OB = 144
    RAW = [168, 192]
    sX, sO, sP, sD = 4, 8, 12, 16
    sW, sCnt = 20, 21
    sRing, sOOB = 39, 40
    sF = [76, 78, 80, 82]
    sBase, sVa, sDec, sEnd = 32, 33, 34, 35
    sX4 = 22; sXm = 56
    sSo = [58, 59, 62, 63]; sSm = 90
    sDb = 92
    sDS = 16
    sEo = 36; sPa = 37; sPb = 38; sPr = 23; sPv = 41; sPT = 84
    KSTEP = 16 * 49152
    sG = [42, 43, 44]; sQ = [45, 46, 47, 48]; sBW = 49; sT = [50, 51, 52, 53]; sR1, sR2 = 54, 55

    def breg(s, nt, n=4, o=0):
        if s in ASLOTS:
            i = ASLOTS.index(s) * 24 + nt * 4 + o
            return f'a[{i}:{i+n-1}]' if n > 1 else f'a{i}'
        i = BV + VSLOTS.index(s) * 24 + nt * 4 + o
        return f'v[{i}:{i+n-1}]' if n > 1 else f'v{i}'
    sn = [0]
    def stamp():
        if DBG:
            e(f'  s_memrealtime s[{64+2*sn[0]}:{65+2*sn[0]}]'); sn[0] += 1
    def run(items):
        for it in items:
            if callable(it): it()
            else: e(it)

    e(HDR.rstrip('\n'))
    e(f'; @launch grid=(256,1,1) block=(256,1,1) lds={LDS_TOTAL}')
    e('.amdgcn_target "amdgcn-amd-amdhsa--gfx950"')
    e('.text')
    e('.globl standalone__depthwise_separable__vision_kernel')
    e('.p2align 8')
    e('.type standalone__depthwise_separable__vision_kernel,@function')
    e('standalone__depthwise_separable__vision_kernel:')
    e('  s_load_dwordx8 s[24:31], s[0:1], 0')
    e(f'  s_load_dwordx2 s[{sDb}:{sDb+1}], s[0:1], 32')
    e('  s_cmp_ge_u32 s2, 256')
    e('  s_cbranch_scc1 L_done')
    stamp()
    if DBG: e('  s_memtime s[96:97]'); e('  s_mov_b32 s95, 0'); e(f'  s_mov_b32 s{sPv}, 0')
    e(f'  v_lshrrev_b32 v{T[0]}, 6, v0')
    e(f'  v_and_b32 v{vLane}, 63, v0')
    e(f'  v_readfirstlane_b32 s{sW}, v{T[0]}')
    CW = int(opts.get('cw', 0))
    if CW:
        e(f'  s_getpc_b64 s[{sT[0]}:{sT[1]}]')
        e('L_pc:')
        e(f'  v_mul_u32_u24 v{T[2]}, {CW}, v0')
        e(f'  v_min_u32 v{T[2]}, L_done-L_pc, v{T[2]}')
        e(f'  v_mov_b32 v{T[3]}, s{sT[1]}')
        e(f'  v_add_co_u32 v{T[2]}, vcc, s{sT[0]}, v{T[2]}')
        e(f'  s_nop 1')
        e(f'  v_addc_co_u32 v{T[3]}, vcc, 0, v{T[3]}, vcc')
        g.vmop(f'  global_load_dword v{BV}, v[{T[2]}:{T[3]}], off', ('CW',))
    e(f'  s_lshr_b32 s{sT[0]}, s2, 3')
    e(f'  s_and_b32 s{sR2}, s{sT[0]}, 3')
    e(f'  s_lshr_b32 s{sR1}, s{sT[0]}, 2')
    e(f'  s_mul_i32 s{sT[1]}, s{sR1}, 11')
    e(f'  s_lshr_b32 s{sT[1]}, s{sT[1]}, 5')
    e(f'  s_mul_i32 s{sT[1]}, s{sT[1]}, 3')
    e(f'  s_sub_u32 s{sR1}, s{sR1}, s{sT[1]}')
    if opts.get('norot'):
        e(f'  s_mov_b32 s{sR1}, 0'); e(f'  s_mov_b32 s{sR2}, 0')
    e(f'  s_mul_i32 s{sT[2]}, s{sW}, 192')
    for i in range(3):
        if i: e(f'  v_add_u32 v{T[1]}, {64*i}, v{vLane}')
        q = T[1] if i else vLane
        e(f'  v_mul_u32_u24 v{T[2]}, 0xaaab, v{q}')
        e(f'  v_lshrrev_b32 v{T[2]}, 19, v{T[2]}')
        e(f'  v_mul_u32_u24 v{T[3]}, 576, v{T[2]}')
        e(f'  v_lshl_add_u32 v{T[3]}, v{vLane}, 4, v{T[3]}')
        e(f'  v_add_u32 v{vBL[i]}, s{sT[2]}, v{T[3]}')
    e(f'  s_mul_i32 s{sG[0]}, s{sR1}, 98304')
    e(f'  s_add_u32 s{sG[1]}, s{sG[0]}, 98304')
    e(f'  s_cmp_eq_u32 s{sR1}, 2')
    e(f'  s_cselect_b32 s{sG[1]}, 0, s{sG[1]}')
    e(f'  s_add_u32 s{sG[2]}, s{sG[1]}, 98304')
    e(f'  s_cmp_eq_u32 s{sR1}, 1')
    e(f'  s_cselect_b32 s{sG[2]}, 0, s{sG[2]}')
    for q in range(4):
        e(f'  s_xor_b32 s{sQ[q]}, s{sR2}, {q}')
        e(f'  s_mul_i32 s{sQ[q]}, s{sQ[q]}, {TILE_B}')
    e(f'  s_mul_i32 s{sBW}, s{sW}, 6144')
    e(f'  s_lshl_b32 s{sT[3]}, s{sR2}, 2')
    e(f'  v_lshrrev_b32 v{T[1]}, 4, v{vLane}')
    e(f'  v_add_u32 v{T[2]}, s{sR1}, v{T[1]}')
    e(f'  v_subrev_u32 v{T[3]}, 3, v{T[2]}')
    e(f'  v_min_u32 v{T[2]}, v{T[2]}, v{T[3]}')
    e(f'  v_and_b32 v{T[4]}, 15, v{vLane}')
    e(f'  v_xor_b32 v{T[3]}, s{sT[3]}, v{T[4]}')
    e(f'  v_lshlrev_b32 v{T[3]}, 4, v{T[3]}')
    e(f'  v_lshl_add_u32 v{T[3]}, v{T[2]}, 8, v{T[3]}')
    e(f'  v_cmp_lt_u32 vcc, 47, v{vLane}')
    e(f'  s_lshl_b32 s{sT[0]}, s{sW}, 10')
    e(f'  s_add_u32 m0, s{sT[0]}, {LDS_DW}')
    e(f'  v_cndmask_b32 v{T[3]}, v{T[3]}, v{vBL[2]}, vcc')
    e(f'  s_lshr_b32 s{sT[1]}, s2, 5')
    e(f'  s_and_b32 s{sT[2]}, s2, 3')
    e(f'  s_lshl2_add_u32 s{sEo}, s{sT[1]}, s{sT[2]}')
    e(f'  s_lshl_b32 s{sEo}, s{sEo}, 2')
    e(f'  s_mul_i32 s{sT[1]}, s{sT[1]}, 288')
    e(f'  s_lshl2_add_u32 s{sT[2]}, s{sR2}, s{sT[2]}')
    e(f'  s_add_u32 s{sT[1]}, s{sT[1]}, s{sT[2]}')
    e(f'  s_mul_i32 s{sBase}, s{sT[1]}, 49152')
    e(f'  s_add_u32 s{sEnd}, s{sBase}, {NTILE*KSTEP}')
    NUMA = int(opts.get('numa', 1))
    PRM = int(opts.get('prm', 24))
    if NUMA:
        e(f'  s_lshl_b32 s{sT[1]}, s{sW}, 11')
        e(f'  s_and_b32 s{sT[2]}, s2, 4')
        e(f'  s_lshl_b32 s{sT[2]}, s{sT[2]}, 6')
        e(f'  s_add_u32 s{sT[1]}, s{sT[1]}, s{sT[2]}')
        e(f'  s_add_u32 s{sPa}, s{sBase}, s{sT[1]}')
        e(f'  s_add_u32 s{sPa}, s{sPa}, {9*KSTEP}')
        e(f'  s_add_u32 s{sPb}, s{sPa}, 8192')
        e(f'  s_and_b32 s{sPr}, s2, {PRM}')
        e(f'  s_cmp_lg_u32 s{sPr}, 0')
    e('  s_waitcnt lgkmcnt(0)')
    if NUMA:
        e(f'  s_cbranch_scc1 L_np0')
        e(f'  s_load_dword s{sPT}, s[24:25], s{sPa} glc')
        e(f'  s_load_dword s{sPT+1}, s[24:25], s{sPb} glc')
        e('L_np0:')
    def srd(sd, lo, nbytes):
        e(f'  s_mov_b32 s{sd}, s{lo}')
        e(f'  s_and_b32 s{sd+1}, s{lo+1}, 0xffff')
        e(f'  s_mov_b32 s{sd+2}, {nbytes}')
        e(f'  s_mov_b32 s{sd+3}, 0x00020000')
    srd(sD, 26, 768); srd(sP, 28, 294912)
    g.vmop(f'  buffer_load_dwordx4 v{T[3]}, s[{sD}:{sD+3}], 0 offen lds', ('W',))
    def bload(s):
        it = []
        for h in range(2):
            it.append(f'  s_add_u32 m0, s{sBW}, {AREA[s % 4] + h*3072}')
            it.append(f'  s_add_u32 s{sT[0]}, s{sG[s >> 2]}, s{sQ[s & 3]}' if h == 0 else f'  s_add_u32 s{sT[0]}, s{sT[0]}, 12288')
            for i in range(3):
                it.append(lambda h=h, i=i: g.vmop(f'  buffer_load_dwordx4 v{vBL[i]}, s[{sP}:{sP+3}], s{sT[0]} offen offset:{i*1024}{NT_B} lds', ('B', s, 3*h + i)))
        return it
    NB0 = int(opts.get('nb0', 2))
    for s in range(NB0): run(bload(s))
    srd(sX, 24, 113246208); srd(sO, 30, 113246208)
    hi2, lo4 = T[1], T[4]
    e(f'  s_add_u32 s{sVa}, s24, {TILE_B}')
    e(f'  s_mov_b32 s{sOOB}, {OOB}')
    e(f'  s_lshl_b32 s{sRing}, s{sW}, 10')
    GATH = int(opts.get('gath', 1))
    for u in range(6):
        e(f'  v_lshrrev_b32 v{T[0]}, 4, v0')
        if u: e(f'  v_add_u32 v{T[0]}, {16*u}, v{T[0]}')
        e(f'  v_mul_u32_u24 v{T[2]}, 43, v{T[0]}')
        e(f'  v_lshrrev_b32 v{T[2]}, 7, v{T[2]}')
        e(f'  v_mul_u32_u24 v{T[3]}, 3, v{T[2]}')
        e(f'  v_sub_u32 v{T[3]}, v{T[0]}, v{T[3]}')
        if u < 3:
            e(f'  v_and_b32 v{T[5]}, 7, v{T[2]}')
            e(f'  v_xor_b32 v{T[5]}, v{T[5]}, v{lo4}')
            e(f'  v_lshlrev_b32 v{T[5]}, 4, v{T[5]}')
            e(f'  v_lshl_add_u32 v{T[5]}, v{T[0]}, 8, v{T[5]}')
            e(f'  v_add_u32 v{vOR[u]}, {LDS_O}, v{T[5]}')
        e(f'  v_mul_u32_u24 v{T[7]}, 0x300, v{T[2]}')
        if GATH:
            if u == 2:
                e(f'  v_cmp_lt_u32 vcc, 10, v{T[2]}')
                e(f'  v_add_u32 v{T[8]}, 7680, v{T[7]}')
                e(f'  s_nop 0')
                e(f'  v_cndmask_b32 v{T[7]}, v{T[7]}, v{T[8]}, vcc')
            if u == 3: e(f'  v_add_u32 v{T[7]}, 7680, v{T[7]}')
            if u == 4:
                e(f'  v_cmp_lt_u32 vcc, 21, v{T[2]}')
                e(f'  v_subrev_u32 v{T[8]}, {11*768}, v{T[7]}')
                e(f'  v_add_u32 v{T[9]}, {42*768}, v{T[7]}')
                e(f'  v_cndmask_b32 v{T[8]}, v{T[9]}, v{T[8]}, vcc')
                e(f'  v_add_u32 v{T[9]}, {21*768}, v{T[7]}')
                e(f'  v_add_u32 v{T[7]}, {10*768}, v{T[7]}')
                e(f'  v_cndmask_b32 v{T[7]}, v{T[7]}, v{T[9]}, vcc')
            if u == 5: e(f'  v_subrev_u32 v{T[7]}, {11*768}, v{T[7]}')
        elif u == 4: e(f'  v_add_u32 v{T[8]}, {TILE_B}, v{T[7]}')
        e(f'  v_lshlrev_b32 v{T[5]}, 4, v{lo4}')
        e(f'  v_lshl_add_u32 v{T[5]}, v{T[3]}, 8, v{T[5]}')
        e(f'  v_add_u32 v{vST[u]}, v{T[7]}, v{T[5]}')
        e(f'  v_add_u32 v{T[3]}, s{sR1}, v{T[3]}')
        e(f'  v_subrev_u32 v{T[5]}, 3, v{T[3]}')
        e(f'  v_min_u32 v{T[3]}, v{T[3]}, v{T[5]}')
        e(f'  v_xor_b32 v{T[5]}, v{T[2]}, v{lo4}')
        e(f'  v_xor_b32 v{T[5]}, s{sT[3]}, v{T[5]}')
        e(f'  v_and_b32 v{T[5]}, 15, v{T[5]}')
        e(f'  v_lshlrev_b32 v{T[5]}, 4, v{T[5]}')
        e(f'  v_lshl_add_u32 v{T[5]}, v{T[3]}, 8, v{T[5]}')
        e(f'  v_add_u32 v{vXS[u]}, v{T[7]}, v{T[5]}')
        if u == 4: e(f'  v_add_u32 v{vXS4b}, v{T[8]}, v{T[5]}')
    e(f'  v_mul_u32_u24 v{T[0]}, 0x300, v{lo4}')
    e(f'  v_xor_b32 v{T[2]}, v{hi2}, v{lo4}')
    e(f'  v_lshl_add_u32 v{vLdsR[0]}, v{T[2]}, 4, v{T[0]}')
    for s in range(1, 4): e(f'  v_xor_b32 v{vLdsR[s]}, {s*64}, v{vLdsR[0]}')
    e(f'  s_mul_i32 s{sT[1]}, s{sW}, 12')
    e(f'  v_and_b32 v{T[2]}, 7, v{lo4}')
    for u in range(2):
        e(f'  v_add_u32 v{T[3]}, s{sT[1]}, v{hi2}')
        if u: e(f'  v_add_u32 v{T[3]}, {4*u}, v{T[3]}')
        e(f'  v_xor_b32 v{T[3]}, v{T[3]}, v{T[2]}')
        e(f'  v_lshl_add_u32 v{vOW[u]}, v{T[3]}, 4, v{T[0]}')
        e(f'  v_add_u32 v{vOW[u]}, {LDS_O}, v{vOW[u]}')
    e(f'  v_bfe_u32 v{T[2]}, v{vLane}, 2, 2')
    e(f'  v_and_b32 v{T[3]}, 3, v{vLane}')
    e(f'  v_lshl_add_u32 v{T[5]}, v{hi2}, 3, v{T[2]}')
    e(f'  v_mul_u32_u24 v{T[5]}, 192, v{T[5]}')
    e(f'  v_lshl_add_u32 v{T[5]}, v{T[3]}, 4, v{T[5]}')
    e(f'  s_add_u32 s{sT[1]}, s{sBW}, {AREA[0]}')
    e(f'  v_add_u32 v{vTr}, s{sT[1]}, v{T[5]}')
    e(f'  v_add_u32 v{vTr2}, {2*TILE_B}, v{vTr}')
    e(f'  s_add_u32 s{sT[1]}, s{sRing}, {LDS_DW}')
    e(f'  v_lshl_add_u32 v{vDW}, v{hi2}, 4, s{sT[1]}')
    e(f'  v_and_b32 v{T[5]}, 1, v{vLane}')
    e(f'  v_lshlrev_b32 v{T[5]}, 4, v{T[5]}')
    e(f'  v_mov_b32 v{T[7]}, 0xffff')
    e(f'  v_lshlrev_b32 v{T[5]}, v{T[5]}, v{T[7]}')
    e(f'  v_lshlrev_b32 v{T[0]}, 1, v{hi2}')
    e(f'  v_bfe_u32 v{T[7]}, v{vLane}, 1, 3')
    e(f'  v_cmp_eq_u32 vcc, v{T[0]}, v{T[7]}')
    e(f'  v_add_u32 v{T[0]}, 1, v{T[0]}')
    e(f'  s_nop 0')
    e(f'  v_cndmask_b32 v{vM[0]}, 0, v{T[5]}, vcc')
    e(f'  v_cmp_eq_u32 vcc, v{T[0]}, v{T[7]}')
    for r in sSo + [sF[0], sF[0]+1, sF[1], sF[1]+1]: e(f'  s_mov_b32 s{r}, s{sOOB}')
    e(f'  v_cndmask_b32 v{vM[1]}, 0, v{T[5]}, vcc')
    e(f'  s_mov_b64 s[{sSm}:{sSm+1}], 0')
    srd(sDS, sDb, 256)
    def probe_round(i):
        e(f'  s_cmp_lg_u32 s{sPr}, 0')
        e(f'  s_cbranch_scc1 L_npr{i}')
        if i == 0: e('  s_waitcnt lgkmcnt(0)')
        e(f'  s_memtime s[{sPT}:{sPT+1}]')
        e(f'  s_load_dword s{sT[2]}, s[24:25], s{sPb if i else sPa} glc')
        e('  s_waitcnt lgkmcnt(0)')
        e(f'  s_memtime s[{sPT+2}:{sPT+3}]')
        if i:
            e(f'  s_lshl_b32 s{sT[2]}, s{sW}, 2')
            e(f'  s_add_u32 s{sT[2]}, s{sT[2]}, {LDS_PR}')
            e(f'  v_mov_b32 v{T[0]}, s{sT[2]}')
        e('  s_waitcnt lgkmcnt(0)')
        e(f'  s_sub_u32 s{sPT}, s{sPT+2}, s{sPT}')
        e(f'  s_min_u32 s{sPT}, s{sPT}, 0xffff')
        if i == 0: e(f'  s_lshl_b32 s{sPv}, s{sPT}, 16')
        else:
            e(f'  s_or_b32 s{sPv}, s{sPv}, s{sPT}')
            e(f'  v_mov_b32 v{T[2]}, s{sPv}')
            e(f'  ds_write_b32 v{T[0]}, v{T[2]}')
        e(f'L_npr{i}:')
    PQ = BV + 160
    def publish():
        e(f'  s_cmp_lg_u32 s{sPr}, 0')
        e(f'  s_cbranch_scc1 L_np1')
        e('  s_barrier')
        e(f'  s_cmp_lg_u32 s{sW}, 0')
        e(f'  s_cbranch_scc1 L_np1')
        e(f'  v_mov_b32 v{PQ+4}, {LDS_PR}')
        e(f'  ds_read_b128 v[{PQ}:{PQ+3}], v{PQ+4}')
        e(f'  s_add_u32 s{sT[1]}, s{sVa}, s{sPa}')
        e(f'  s_lshr_b32 s{sT[1]}, s{sT[1]}, 21')
        e(f'  s_lshr_b32 s{sT[2]}, s2, 2')
        e(f'  s_xor_b32 s{sT[1]}, s{sT[1]}, s{sT[2]}')
        e(f'  s_and_b32 s{sT[1]}, s{sT[1]}, 1')
        e(f'  s_add_u32 s{sT[2]}, s{sT[1]}, 1')
        e(f'  s_sub_u32 s{sT[1]}, 2, s{sT[1]}')
        e(f'  v_mov_b32 v{PQ+6}, s{sT[2]}')
        e(f'  v_mov_b32 v{PQ+5}, s{sT[1]}')
        e(f'  v_mov_b32 v{PQ+7}, 0')
        e(f'  v_mov_b32 v{PQ+4}, s{sEo}')
        e('  s_waitcnt lgkmcnt(0)')
        e(f'  v_pk_min_u16 v{PQ}, v{PQ}, v{PQ+1}')
        e(f'  v_pk_min_u16 v{PQ+2}, v{PQ+2}, v{PQ+3}')
        e(f'  v_pk_min_u16 v{PQ}, v{PQ}, v{PQ+2}')
        e(f'  v_lshrrev_b32 v{PQ+1}, 16, v{PQ}')
        e(f'  v_and_b32 v{PQ}, 0xffff, v{PQ}')
        e(f'  v_cmp_gt_u32 vcc, v{PQ+1}, v{PQ}')
        e('  s_mov_b64 exec, 1')
        e('  s_nop 0')
        e(f'  v_cndmask_b32 v{PQ+6}, v{PQ+6}, v{PQ+5}, vcc')
        e(f'  buffer_atomic_cmpswap v[{PQ+6}:{PQ+7}], v{PQ+4}, s[{sDS}:{sDS+3}], 0 offen sc1')
        e('  s_mov_b64 exec, -1')
        e('L_np1:')
    assert NB0 == 2
    POS = opts.get('ppos', 'a')
    if NUMA: probe_round(0)
    if NUMA and POS == 'b': probe_round(1)
    run(bload(2))
    if NUMA and POS == 'a': probe_round(1)
    run(bload(3))
    def xdma(t, u):
        it = []
        if u == 0:
            a, b = sF[0], sF[0] + 1
            it += [f'  s_mov_b64 s[{sF[k]}:{sF[k]+1}], s[{sF[k-1]}:{sF[k-1]+1}]' for k in range(len(sF) - 1, 0, -1)]
            it += [f'  s_add_u32 s{a}, s{sVa}, s{sBase}', f'  s_xor_b32 s{a}, s{a}, s{sDec}',
                   f'  s_add_u32 s{b}, s{sBase}, {TILE_B}', f'  s_cmp_lt_u32 s{sBase}, s{sEnd}',
                   f'  s_cselect_b32 s{sX4}, s{sBase}, s{sOOB}', f'  s_cselect_b32 s{b}, s{b}, s{sOOB}',
                   f'  s_bitcmp1_b32 s{a}, 21', f'  s_cselect_b32 s{a}, s{b}, s{sX4}', f'  s_cselect_b32 s{b}, s{sX4}, s{b}',
                   f'  s_cselect_b64 s[{sXm}:{sXm+1}], -1, 0', f'  s_add_u32 s{sBase}, s{sBase}, {KSTEP}']
        if u == 4: it.append(f'  v_cndmask_b32 v{vTX}, v{vXS[4]}, v{vXS4b}, s[{sXm}:{sXm+1}]')
        it.append(f'  s_add_u32 m0, s{sRing}, {(t & 1)*TILE_B + u*4096}')
        if u == 5 and (t & 1): it.append(f'  s_xor_b32 s{sRing}, s{sRing}, {2*TILE_B}')
        else: it.append('NOP')
        it.append(lambda: g.vmop(f'  buffer_load_dwordx4 v{vTX if u == 4 else vXS[u]}, s[{sX}:{sX+3}], s{[sF[0], sX4, sF[0]+1][max(0, u - 3)]} offen{NT_LD} lds', ('L', t, u)))
        return it
    def xdma_burst(t, w=True):
        for u in range(6):
            run(['  s_nop 0' if x == 'NOP' else x for x in xdma(t, u)])

    def trs(s):
        it = [lambda: g.wait(('b', s), vm=('B', s, 5))]
        base = vTr if (s % 4) < 2 else vTr2
        so = (s % 2) * TILE_B
        it.append(lambda: g.lgop(f'  ds_read_b128 v[{DWR[s & 1]}:{DWR[s & 1]+3}], v{vDW} offset:{s*64}', ('TR', s)))
        for nt in range(6):
            for hh in range(2):
                r = RAW[s & 1] + nt*4 + 2*hh
                it.append(lambda r=r, nt=nt, hh=hh: g.lgop(f'  ds_read_b64_tr_b16 a[{r}:{r+1}], v{base} offset:{so + hh*768 + (nt >> 1)*64 + (nt & 1)*8}', ('TR', s)))
        return it
    def cvts(s, j):
        nt, hh = j // 2, j % 2
        q = ACC + 4*j
        if s in ASLOTS:
            return [f'  v_cvt_pk_bf16_f32 v{q}, v{q}, v{q+1}', f'  v_cvt_pk_bf16_f32 v{q+1}, v{q+2}, v{q+3}',
                    f'  v_accvgpr_write_b32 {breg(s, nt, 1, 2*hh)}, v{q}', f'  v_accvgpr_write_b32 {breg(s, nt, 1, 2*hh+1)}, v{q+1}']
        return [f'  v_cvt_pk_bf16_f32 {breg(s, nt, 1, 2*hh)}, v{q}, v{q+1}', f'  v_cvt_pk_bf16_f32 {breg(s, nt, 1, 2*hh+1)}, v{q+2}, v{q+3}']
    run(trs(0))
    stamp()
    pend = []
    LAG = 8
    XA = int(opts.get('xa', 8)); XB = int(opts.get('xb', 13))
    for s in range(12):
        if s == XA and NUMA:
            e('  s_waitcnt lgkmcnt(0)')
            e(f'  s_cmp_eq_u32 s{sDec}, 0')
            e('  s_cbranch_scc1 L_slow')
            e('L_back:')
        if s == XA:
            if not NUMA: e(f'  s_lshr_b32 s{sDec}, s2, 2')
            e(f'  s_lshr_b32 s{sT[1]}, s2, 1')
            e(f'  s_xor_b32 s{sDec}, s{sDec}, s{sT[1]}')
            e(f'  s_and_b32 s{sDec}, s{sDec}, 2')
            e(f'  s_lshl_b32 s{sDec}, s{sDec}, 20')
        if s + 1 < 12: run(trs(s + 1))
        if s == XA - int(opts.get('rs', 1)) and NUMA: e(f'  s_load_dword s{sDec}, s[{sDb}:{sDb+1}], s{sEo}')
        g.wait(('tr', s), lg=('TR', s))
        d = DWR[s & 1]
        for i in range(4): e(f'  v_and_b32 v{d+i}, v{vM[i & 1]}, v{d+i}')
        if s == XA: xdma_burst(0)
        if s == XB: xdma_burst(1)
        if s + 4 < 12: run(bload(s + 4))
        elif s not in (XA, XB): e('  s_nop 1')
        for j in range(12):
            nt, hh = j // 2, j % 2
            r = RAW[s & 1] + nt*4 + 2*hh
            q = ACC + 4*j
            e(f'  v_mfma_f32_16x16x16_bf16 v[{q}:{q+3}], v[{d+2*hh}:{d+2*hh+1}], a[{r}:{r+1}], 0')
            pend.append(cvts(s, j))
            if len(pend) > LAG: run(pend.pop(0))
        if s in (3, 7): stamp()
        if s == int(opts.get('pubs', 0)) and NUMA: publish()
    def rd(t, i):
        mt, ks = i // 12, i % 12
        x = XF + 8*((i // 2) % 3) + 4*(i & 1)
        g.lgop(f'  ds_read_b128 a[{x}:{x+3}], v{vLdsR[ks & 3]} offset:{(t & 1)*TILE_B + mt*12288 + (ks >> 2)*256}', ('X', t, i))
    for _ in range(4): run(pend.pop(0))
    stamp()
    if XB == 12: xdma_burst(1)
    g.wait('x0', vm=('L', 0, 5))
    e('  s_barrier')
    for i in range(4): rd(0, i)
    if XB == 13: xdma_burst(1, False)
    while pend: run(pend.pop(0))
    e(f'  v_sub_u32 v{vST4b}, v{vXS4b}, v{vXS[4]}')
    e(f'  v_add_u32 v{vST4b}, v{vST4b}, v{vST[4]}')
    if PD == 3: xdma_burst(2)
    stamp()

    def epi(mt, u, po):
        a = ACC + 24*mt + 8*u
        cv = [f'  v_cvt_pk_bf16_f32 v{a+i}, v{a+2*i}, v{a+2*i+1}' for i in range(4)]
        off = po*TILE_B + mt*12288 + (u >> 1)*128
        if opts.get('w64'):
            return cv[:2] + [lambda: g.lgop(f'  ds_write_b64 v{vOW[u & 1]}, v[{a}:{a+1}] offset:{off}', ('OWa', mt, u))] + cv[2:] + \
                   [lambda: g.lgop(f'  ds_write_b64 v{vOW[u & 1]}, v[{a+2}:{a+3}] offset:{off+8}', ('OW', mt, u))]
        return cv + [lambda: g.lgop(f'  ds_write_b128 v{vOW[u & 1]}, v[{a}:{a+3}] offset:{off}', ('OW', mt, u))]
    def out_read(t, u):
        o = OB + 4*u
        g.lgop(f'  ds_read_b128 a[{o}:{o+3}], v{vOR[u % 3]} offset:{((t^1)&1)*TILE_B + (u // 3)*12288}', ('O', t, u))
    def out_store(t, u, key):
        o = OB + 4*u
        g.wait((key, 'o', u), lg=('O', t, u), opt=True)
        g.vmop(f'  buffer_store_dwordx4 a[{o}:{o+3}], v{vTS if u == 4 else vST[u]}, s[{sO}:{sO+3}], s{sSo[max(0, u - 2)]} offen{NT_ST}', None)
    def st_adv(d=0):
        p, q = sF[2 - d], sF[3 - d]
        return [f'  s_mov_b32 s{sSo[0]}, s{p}', f'  s_mov_b32 s{sSo[1]}, s{q}', f'  s_mov_b32 s{sSo[3]}, s{q+1}', f'  s_min_u32 s{sSo[2]}, s{q}, s{q+1}',
                f'  s_cmp_gt_u32 s{q}, s{q+1}', f'  s_cselect_b64 s[{sSm}:{sSm+1}], -1, 0',
                'NOP', f'  v_cndmask_b32 v{vTS}, v{vST[4]}, v{vST4b}, s[{sSm}:{sSm+1}]']
    def ints(k, d): return [int(v) for v in opts.get(k, d).split(',')]
    OR_AT = ints('or', '2,3,4,5,6,7'); OS_AT = ints('os', '14,20,30,40,52,64')
    UORD = ints('uord', '3,4,5,0,1,2')
    XD_AT = ints('xd', '76,88,100,112,124,136')
    E1_AT = ints('e1', '27,39,61'); E0_AT = ints('e0', '99,106,123')
    SH_AT = int(opts.get('sh', 26)); CAP = int(opts.get('cap', 1)); HG = int(opts.get('hg', 0))
    def fillers(t):
        F = [[] for _ in range(144)]
        use = [0] * 150
        for r in range(144):
            if r % 12 in (0, 1, 11): use[r] = 1
        def heavy(rho, it):
            while use[rho]: rho += 1
            F[rho].append(it); use[rho] = 9
            for k in range(1, HG + 1): use[rho + k] = max(use[rho + k], 8)
            return rho
        def light(rho, items, cap=CAP, back=False):
            if back:
                for it in reversed(items):
                    while use[rho] >= cap: rho -= 1
                    F[rho].insert(0, it); use[rho] += 1
                return rho
            for it in items:
                while use[rho] >= cap: rho += 1
                F[rho].append(it); use[rho] += 1
            return rho
        kp = t & 1
        post = []
        vpos = []
        for k in range(6):
            u = UORD[k]
            lastst = heavy(OS_AT[k], lambda u=u: out_store(t, u, kp))
            vpos.append(lastst)
        xpos = []
        for u in range(6):
            it = [x for x in xdma(t + PD, u) if x != 'NOP']
            xpos.append((heavy(XD_AT[u], it[-1]), it[:-1]))
        for mt, AT in ((1, E1_AT), (0, E0_AT)):
            for u in range(3):
                r = AT[u]
                for it in epi(mt, u, t & 1):
                    r = (heavy(r, it) if callable(it) else light(r, [it], 1)) + 1
        for k in range(6):
            light(OR_AT[k], [lambda u=UORD[k]: out_read(t, u)], 1)
        for (r, it) in xpos:
            r0 = light(r - 1, it, 2 if len(it) > 6 else CAP, back=True)
            assert r0 >= 24
        if opts.get('lim'):
            for r in vpos + [x[0] for x in xpos]:
                light(r - 1, [f'  s_waitcnt vmcnt({opts["lim"]})'], 2, back=True)
        for a, b in zip(xpos, xpos[1:]): assert b[0] - a[0] >= 5
        r1 = light(max(lastst, xpos[0][0]) + 1, [x for x in st_adv() if x != 'NOP'], 2)
        assert r1 < 144
        return F
    def tile(t):
        kp = t & 1
        F0 = fillers(t); F1 = fillers(t + 1)
        for G_ in range(12):
            mt, kg = G_ // 6, G_ % 6
            if G_ == 10:
                g.wait((kp, 'bar'), vm=('L', t + 1, 5), lg=('OW', 0, 2))
                e('  s_barrier')
                if t & 1:
                    for r in vLdsR: e(f'  v_xor_b32 v{r}, {2*TILE_B}, v{r}')
            g.wait((kp, 'x', G_), lg=('X', t, 2*G_ + 1))
            for nt in range(6):
                for k in range(2):
                    ks = 2*kg + k; i = 12*mt + ks
                    x = XF + 8*(G_ % 3) + 4*k
                    a = ACC + 24*mt + 4*nt
                    c = '0' if ks == 0 else f'v[{a}:{a+3}]'
                    e(f'  v_mfma_f32_16x16x32_bf16 v[{a}:{a+3}], {breg(ks, nt)}, a[{x}:{x+3}], {c}')
                    gap = 12*G_ + 2*nt + k
                    if gap % 12 in (0, 1):
                        j = 2*G_ + 4 + (gap % 12)
                        if j < 24: rd(t, j)
                        else: rd(t + 1, j - 24)
                    run(F0[gap + 24] if gap < 120 else F1[gap - 120])
    if DBG:
        e(f'  s_mov_b32 s94, {sn[0]}')
        e('  s_mov_b32 s60, s64')
        e('  s_memtime s[38:39]') if 0 else e('  s_memtime s[86:87]')
    def tail(t):
        done = [UORD[k] for k in range(6) if OS_AT[k] < 24]
        rdone = [UORD[k] for k in range(6) if OR_AT[k] < 24]
        for u in UORD:
            if u not in rdone: out_read(t, u)
        e('  s_nop 3')
        for u in range(3): run(epi(1, u, t & 1))
        for u in UORD:
            if u not in done: out_store(t, u, 'T')
        run([x if x != 'NOP' else '  s_nop 0' for x in st_adv(1)])
        e('  s_waitcnt lgkmcnt(0)')
        e('  s_barrier')
        for u in range(3):
            e(f'  ds_read_b128 a[{XF+4*u}:{XF+4*u+3}], v{vOR[u]} offset:{(t & 1)*TILE_B + 12288}')
        for u in range(3):
            e(f'  s_waitcnt lgkmcnt({2-u})')
            e(f'  buffer_store_dwordx4 a[{XF+4*u}:{XF+4*u+3}], v{vTS if u == 1 else vST[u+3]}, s[{sO}:{sO+3}], s{sSo[u+1]} offen{NT_ST}')
    if unroll:
        for t in range(NTILE): tile(t)
        tail(NTILE)
    else:
        if opts.get('al'): e(f'  .p2align {opts["al"]}')
        e('L_loop:')
        tile(0)
        tile(1)
        if DBG:
            e('  s_mov_b32 m0, s94'); e('  s_nop 0'); e('  v_writelane_b32 v0, s60, m0')
            e('  s_add_u32 s94, s94, 1')
            e('  s_min_u32 s94, s94, 15')
            e('  s_memrealtime s[60:61]')
        e(f'  s_cmp_lt_u32 s{sF[1]}, s{sOOB}')
        e(f'  s_cbranch_scc1 L_loop')
        e('L_tail:')
        if DBG: e('  s_memtime s[88:89]')
        tail(0)
        if DBG: e('  s_mov_b32 s94, 15')
    if DBG:
        e('  s_mov_b32 m0, s94'); e('  s_nop 0'); e('  v_writelane_b32 v0, s60, m0')
        e('  s_add_u32 s94, s94, 1')
        e('  s_load_dwordx2 s[24:25], s[0:1], 40')
        e('  s_waitcnt vmcnt(0)')
        e('  s_memrealtime s[54:55]')
        e('  s_memtime s[98:99]')
        e('  s_waitcnt lgkmcnt(0)')
        e('  s_mov_b32 m0, s94'); e('  s_nop 0'); e('  v_writelane_b32 v0, s54, m0')
        e('  s_sub_u32 s98, s98, s96')
        e('  s_add_u32 s98, s98, s64')
        e('  v_writelane_b32 v0, s98, 31')
        e('  s_sub_u32 s88, s88, s86')
        e('  v_writelane_b32 v0, s88, 30')
        e(f'  v_writelane_b32 v0, s{sPv}, 29')
        e(f'  v_writelane_b32 v0, s{sDec}, 28')
        e(f'  v_writelane_b32 v0, s95, 27')
        for i in range(sn[0]): e(f'  v_writelane_b32 v0, s{64+2*i}, {i}')
        e('  s_mov_b32 s56, s24'); e('  s_and_b32 s57, s25, 0xffff'); e('  s_mov_b32 s58, 452984832'); e('  s_mov_b32 s59, 0x00020000')
        e('  s_lshl_b32 s26, s2, 9'); e(f'  s_lshl_b32 s27, s{sW}, 7'); e('  s_add_u32 s26, s26, s27')
        e('  v_mbcnt_lo_u32_b32 v1, -1, 0')
        e('  v_lshlrev_b32 v1, 2, v1')
        e('  s_mov_b64 exec, 0xffffffff')
        e('  buffer_store_dword v0, v1, s[56:59], s26 offen')
    if NUMA:
        e('  s_endpgm')
        e('L_slow:')
        e(f'  v_mov_b32 v{vTX}, s{sEo}')
        e(f'  v_mov_b32 v{BV+166}, 1')
        e(f'  v_mov_b32 v{BV+167}, 0')
        e('  s_mov_b64 exec, 1')
        e(f'  buffer_atomic_cmpswap v[{BV+166}:{BV+167}], v{vTX}, s[{sDS}:{sDS+3}], 0 offen sc0 sc1')
        e('  s_waitcnt vmcnt(0)')
        e(f'  v_readfirstlane_b32 s{sDec}, v{BV+166}')
        e('  s_mov_b64 exec, -1')
        if DBG: e('  s_mov_b32 s95, 1')
        e('  s_branch L_back')
    e('L_done:')
    e('  s_endpgm')
    e('.section .rodata,"a"')
    e('.p2align 6')
    e('.amdhsa_kernel standalone__depthwise_separable__vision_kernel')
    e('  .amdhsa_next_free_vgpr 512')
    e('  .amdhsa_next_free_sgpr 100')
    e('  .amdhsa_accum_offset 256')
    e('  .amdhsa_group_segment_fixed_size 0')
    e('  .amdhsa_kernarg_size 48')
    e('  .amdhsa_user_sgpr_count 2')
    e('  .amdhsa_user_sgpr_kernarg_segment_ptr 1')
    e('  .amdhsa_system_sgpr_workgroup_id_x 1')
    e('  .amdhsa_float_denorm_mode_32 3')
    e('.end_amdhsa_kernel')

if __name__ == '__main__':
    out = sys.argv[1]
    opts = dict(a.split('=', 1) for a in sys.argv[2:])
    for k in ('nt_ld', 'nt_st', 'nt_b'):
        if k in opts: opts[k] = (' ' + opts[k].replace('+', ' ')) if opts[k] != 'none' else ''
    open(out, 'w').write(gen(opts))
```

```python
import sys, re
from gen3 import G, HDR
from gen5 import regs_of

def hazard_check(L):
    ins = [l.strip() for l in L if l.startswith('  ') and not l.strip().startswith(';')]
    hist = []; st = 0; last_valu = []; last_st = []; last_m0 = -9; last_sg = []; lastscc = ''
    for l in ins:
        op = l.split()[0]
        toks = [t.strip(',') for t in l.split()[1:]]
        allr = set()
        for t in toks: allr |= regs_of(t)
        if op.startswith('v_mfma'):
            d = regs_of(toks[0]); a = regs_of(toks[1]); b = regs_of(toks[2]); c = regs_of(toks[3])
            for (s0, r) in last_valu:
                if st - s0 - 1 < 2 and (r & (a | b | c)): raise Exception(f'VALU->MFMA hazard: {l}')
            for (s0, dd, cc) in hist:
                if st - s0 - 1 < 8 and (dd & (a | b)): raise Exception(f'MFMA D->A/B hazard: {l}')
                if st - s0 - 1 < 6 and (dd & c) and dd != c: raise Exception(f'MFMA D->C overlap hazard: {l}')
                if st - s0 - 1 < 6 and (dd & d) and dd != c: raise Exception(f'MFMA D->D WAW: {l}')
            for (s0, r) in last_st:
                if st - s0 - 1 < 8 and (r & d): raise Exception(f'store data WAR (mfma): {l}')
            hist.append((st, d, c))
        elif op.startswith('v_') or op.startswith('ds_') or op.startswith('buffer_'):
            for (s0, dd, cc) in hist:
                if st - s0 - 1 < 8 and (dd & allr): raise Exception(f'MFMA D->use hazard dist {st-s0-1}: {l}')
            if op.startswith('v_'):
                w = regs_of(toks[0])
                for (s0, dd, cc) in hist:
                    if st - s0 - 1 < 3 and (cc & w): raise Exception(f'MFMA C WAR hazard: {l}')
                for (s0, r) in last_st:
                    if st - s0 - 1 < 2 and (r & w): raise Exception(f'store data WAR: {l}')
                if op in ('v_readfirstlane_b32', 'v_readlane_b32'):
                    for (s0, r) in last_valu:
                        if st - s0 - 1 < 1 and (r & regs_of(toks[1])): raise Exception(f'readlane hazard: {l}')
                    last_sg.append((st, toks[0]))
                else:
                    for (s0, sg) in last_sg:
                        if st - s0 - 1 < 2 and sg in toks[1:]: raise Exception(f'VALU sgpr->VALU hazard: {l}')
                last_valu.append((st, w)); last_valu = last_valu[-4:]
            if op.startswith('buffer_store') or op.startswith('ds_write'):
                last_st.append((st, regs_of(toks[0] if op.startswith('buffer') else toks[1]))); last_st = last_st[-4:]
            if op.startswith('buffer_') and l.endswith('lds') and st - last_m0 - 1 < 1: raise Exception(f'm0 hazard: {l}')
            if op.startswith('buffer_'):
                for (s0, sg) in last_sg:
                    if st - s0 - 1 < 5 and sg in toks: raise Exception(f'VALU sgpr->VMEM hazard: {l}')
        elif op.startswith('s_') and toks and toks[0] == 'm0': last_m0 = st
        if op.startswith('s_cselect') or op.startswith('s_cbranch_scc'):
            if not (lastscc.startswith('s_cmp') or lastscc.startswith('s_bitcmp')): raise Exception(f'SCC clobbered by {lastscc}: {l}')
        elif re.match(r's_(add|sub|and|or|xor|min|max|lshl|lshr|cmp|bitcmp|andn2|ashr|bfe|not)', op): lastscc = op
        hist = [h for h in hist if st - h[0] < 24]
        st += int(toks[0]) + 1 if op == 's_nop' else 1

class G2(G):
    def __init__(self):
        self.need = {}
        super().__init__()
    def reset(self, mode):
        super().reset(mode); self.lgd = 0; self.vmd = 0
    def _cnt(self, lst, tag):
        if tag[:2] == ('O', 0) and tag not in lst: return len(lst)
        return super()._cnt(lst, tag)
    def wait(self, key, vm=None, lg=None, opt=False):
        if self.mode == 'collect2':
            nd = False
            if lg is not None and len(self.lg) - self._cnt(self.lg, lg) > self.lgd: nd = True
            if vm is not None and len(self.vm) - self._cnt(self.vm, vm) > self.vmd: nd = True
            self.need[key] = self.need.get(key, False) or nd or not opt
            v, l = self.sites[key]
            if not opt:
                if lg is not None: self.lgd = max(self.lgd, len(self.lg) - l)
                if vm is not None: self.vmd = max(self.vmd, len(self.vm) - v)
            return
        if self.mode in ('emit', 'check') and not self.need[key]: return
        super().wait(key, vm, lg)

def gen(opts):
    g = G2()
    g.reset('collect')
    build(g, opts, unroll=True)
    g.reset('collect2')
    build(g, opts, unroll=True)
    g.reset('check')
    build(g, opts, unroll=True)
    hazard_check(g.L)
    g.reset('emit')
    build(g, opts, unroll=False)
    L = g.L
    abl = opts.get('abl', '')
    if abl:
        i0 = L.index('L_loop:'); i1 = L.index('L_tail:')
        def keep(l):
            s = l.strip()
            if 'O' in abl and (s.startswith('ds_write_b128') or re.match(r'ds_read_b128 a\[(14[4-9]|1[5-6]\d)', s)): return False
            if 'T' in abl and s.startswith('buffer_store'): return False
            if 'L' in abl and s.startswith('buffer_load'): return False
            if 'B' in abl and s.startswith('s_barrier'): return False
            if 'C' in abl and s.startswith('v_cvt'): return False
            if 'H' in abl and s.startswith('v_mfma') and int(re.search(r'v\[(\d+):', s).group(1)) % 8 == 4: return False
            return True
        L = L[:i0] + [l for l in L[i0:i1] if keep(l)] + L[i1:]
    return '\n'.join(L) + '\n'

def build(g, opts, unroll):
    NT_LD = opts.get('nt_ld', ''); NT_ST = opts.get('nt_st', ' sc1'); NT_B = opts.get('nt_b', '')
    DBG = int(opts.get('dbg', 0)); AMP = opts.get('amp')
    PD = int(opts.get('pd', 2))
    e = g.e
    TILE_B = 32 * 768; NTILE = 18; STRIDE = 256 * TILE_B
    LDS_O = 4 * TILE_B; LDS_DW = 6 * TILE_B; LDS_PR = LDS_DW + 4096; LDS_TOTAL = LDS_PR + 64
    AREA = [2 * TILE_B, 3 * TILE_B, 4 * TILE_B, 5 * TILE_B]
    OOB = 113246208
    vLdsR = [1, 2, 3, 4]; vOR = [5, 6, 7]; vXS = [8, 9, 10, 11, 12, 13]; vXS4b = 14; vTX = 15
    ACC = 16
    PT = 64
    vBL = [PT, PT+1, PT+2]; vTr = PT+3; vDW = PT+4; vM = [PT+5, PT+6]; vTr2 = PT+7
    DWR = [PT+8, PT+12]
    vST = [PT+16+i for i in range(6)]; vOW = [PT+22, PT+23]; vST4b = PT; vTS = PT+1
    T = [ACC+i for i in range(12)]; vLane = ACC + 12
    BV = 88
    NA = 5
    ASLOTS = [int(c, 16) for c in opts.get('aslots', '13579')]
    assert len(ASLOTS) == NA
    VSLOTS = [s for s in range(12) if s not in ASLOTS]
    XF = 120
    OB = 144
    RAW = [168, 192]
    sX, sO, sP, sD = 4, 8, 12, 16
    sW, sCnt = 20, 21
    sRing, sOOB = 39, 40
    sF = [76, 78, 80, 82]
    sBase, sVa, sDec, sEnd = 32, 33, 34, 35
    sX4 = 22; sXm = 56
    sSo = [58, 59, 62, 63]; sSm = 90
    sDb = 92
    sDS = 16
    sEo = 36; sPa = 37; sPb = 38; sPr = 23; sPv = 41; sPT = 84
    KSTEP = 16 * 49152
    sG = [42, 43, 44]; sQ = [45, 46, 47, 48]; sBW = 49; sT = [50, 51, 52, 53]; sR1, sR2 = 54, 55

    def breg(s, nt, n=4, o=0):
        if s in ASLOTS:
            i = ASLOTS.index(s) * 24 + nt * 4 + o
            return f'a[{i}:{i+n-1}]' if n > 1 else f'a{i}'
        i = BV + VSLOTS.index(s) * 24 + nt * 4 + o
        return f'v[{i}:{i+n-1}]' if n > 1 else f'v{i}'
    sn = [0]
    def stamp():
        if DBG or AMP:
            e(f'  s_memrealtime s[{64+2*sn[0]}:{65+2*sn[0]}]'); sn[0] += 1
    def run(items):
        for it in items:
            if callable(it): it()
            else: e(it)

    e(HDR.rstrip('\n'))
    e(f'; @launch grid=(256,1,1) block=(256,1,1) lds={LDS_TOTAL}')
    e('.amdgcn_target "amdgcn-amd-amdhsa--gfx950"')
    e('.text')
    e('.globl standalone__depthwise_separable__vision_kernel')
    e('.p2align 8')
    e('.type standalone__depthwise_separable__vision_kernel,@function')
    e('standalone__depthwise_separable__vision_kernel:')
    e('  s_load_dwordx8 s[24:31], s[0:1], 0')
    e(f'  s_load_dwordx2 s[{sDb}:{sDb+1}], s[0:1], 32')
    e('  s_cmp_ge_u32 s2, 256')
    e('  s_cbranch_scc1 L_done')
    stamp()
    if DBG: e('  s_memtime s[96:97]'); e('  s_mov_b32 s95, 0'); e(f'  s_mov_b32 s{sPv}, 0')
    e(f'  v_lshrrev_b32 v{T[0]}, 6, v0')
    e(f'  v_and_b32 v{vLane}, 63, v0')
    e(f'  v_readfirstlane_b32 s{sW}, v{T[0]}')
    CW = int(opts.get('cw', 0))
    if CW:
        e(f'  s_getpc_b64 s[{sT[0]}:{sT[1]}]')
        e('L_pc:')
        e(f'  v_mul_u32_u24 v{T[2]}, {CW}, v0')
        e(f'  v_min_u32 v{T[2]}, L_done-L_pc, v{T[2]}')
        e(f'  v_mov_b32 v{T[3]}, s{sT[1]}')
        e(f'  v_add_co_u32 v{T[2]}, vcc, s{sT[0]}, v{T[2]}')
        e(f'  s_nop 1')
        e(f'  v_addc_co_u32 v{T[3]}, vcc, 0, v{T[3]}, vcc')
        g.vmop(f'  global_load_dword v{BV}, v[{T[2]}:{T[3]}], off', ('CW',))
    e(f'  s_lshr_b32 s{sT[0]}, s2, 3')
    e(f'  s_and_b32 s{sR2}, s{sT[0]}, 3')
    e(f'  s_lshr_b32 s{sR1}, s{sT[0]}, 2')
    e(f'  s_mul_i32 s{sT[1]}, s{sR1}, 11')
    e(f'  s_lshr_b32 s{sT[1]}, s{sT[1]}, 5')
    e(f'  s_mul_i32 s{sT[1]}, s{sT[1]}, 3')
    e(f'  s_sub_u32 s{sR1}, s{sR1}, s{sT[1]}')
    if opts.get('norot'):
        e(f'  s_mov_b32 s{sR1}, 0'); e(f'  s_mov_b32 s{sR2}, 0')
    e(f'  s_mul_i32 s{sT[2]}, s{sW}, 192')
    for i in range(3):
        if i: e(f'  v_add_u32 v{T[1]}, {64*i}, v{vLane}')
        q = T[1] if i else vLane
        e(f'  v_mul_u32_u24 v{T[2]}, 0xaaab, v{q}')
        e(f'  v_lshrrev_b32 v{T[2]}, 19, v{T[2]}')
        e(f'  v_mul_u32_u24 v{T[3]}, 576, v{T[2]}')
        e(f'  v_lshl_add_u32 v{T[3]}, v{vLane}, 4, v{T[3]}')
        e(f'  v_add_u32 v{vBL[i]}, s{sT[2]}, v{T[3]}')
    e(f'  s_mul_i32 s{sG[0]}, s{sR1}, 98304')
    e(f'  s_add_u32 s{sG[1]}, s{sG[0]}, 98304')
    e(f'  s_cmp_eq_u32 s{sR1}, 2')
    e(f'  s_cselect_b32 s{sG[1]}, 0, s{sG[1]}')
    e(f'  s_add_u32 s{sG[2]}, s{sG[1]}, 98304')
    e(f'  s_cmp_eq_u32 s{sR1}, 1')
    e(f'  s_cselect_b32 s{sG[2]}, 0, s{sG[2]}')
    for q in range(4):
        e(f'  s_xor_b32 s{sQ[q]}, s{sR2}, {q}')
        e(f'  s_mul_i32 s{sQ[q]}, s{sQ[q]}, {TILE_B}')
    e(f'  s_mul_i32 s{sBW}, s{sW}, 6144')
    e(f'  s_lshl_b32 s{sT[3]}, s{sR2}, 2')
    e(f'  v_lshrrev_b32 v{T[1]}, 4, v{vLane}')
    e(f'  v_add_u32 v{T[2]}, s{sR1}, v{T[1]}')
    e(f'  v_subrev_u32 v{T[3]}, 3, v{T[2]}')
    e(f'  v_min_u32 v{T[2]}, v{T[2]}, v{T[3]}')
    e(f'  v_and_b32 v{T[4]}, 15, v{vLane}')
    e(f'  v_xor_b32 v{T[3]}, s{sT[3]}, v{T[4]}')
    e(f'  v_lshlrev_b32 v{T[3]}, 4, v{T[3]}')
    e(f'  v_lshl_add_u32 v{T[3]}, v{T[2]}, 8, v{T[3]}')
    e(f'  v_cmp_lt_u32 vcc, 47, v{vLane}')
    e(f'  s_lshl_b32 s{sT[0]}, s{sW}, 10')
    e(f'  s_add_u32 m0, s{sT[0]}, {LDS_DW}')
    e(f'  v_cndmask_b32 v{T[3]}, v{T[3]}, v{vBL[2]}, vcc')
    e(f'  s_lshr_b32 s{sT[1]}, s2, 5')
    e(f'  s_and_b32 s{sT[2]}, s2, 3')
    e(f'  s_lshl2_add_u32 s{sEo}, s{sT[1]}, s{sT[2]}')
    e(f'  s_lshl_b32 s{sEo}, s{sEo}, 2')
    e(f'  s_mul_i32 s{sT[1]}, s{sT[1]}, 288')
    e(f'  s_lshl2_add_u32 s{sT[2]}, s{sR2}, s{sT[2]}')
    e(f'  s_add_u32 s{sT[1]}, s{sT[1]}, s{sT[2]}')
    e(f'  s_mul_i32 s{sBase}, s{sT[1]}, 49152')
    e(f'  s_add_u32 s{sEnd}, s{sBase}, {NTILE*KSTEP}')
    NUMA = int(opts.get('numa', 1))
    PRM = int(opts.get('prm', 24))
    if NUMA:
        e(f'  s_lshl_b32 s{sT[1]}, s{sW}, 11')
        e(f'  s_and_b32 s{sT[2]}, s2, 4')
        e(f'  s_lshl_b32 s{sT[2]}, s{sT[2]}, 6')
        e(f'  s_add_u32 s{sT[1]}, s{sT[1]}, s{sT[2]}')
        e(f'  s_add_u32 s{sPa}, s{sBase}, s{sT[1]}')
        e(f'  s_add_u32 s{sPa}, s{sPa}, {9*KSTEP}')
        e(f'  s_add_u32 s{sPb}, s{sPa}, 8192')
        e(f'  s_and_b32 s{sPr}, s2, {PRM}')
        e(f'  s_cmp_lg_u32 s{sPr}, 0')
    e('  s_waitcnt lgkmcnt(0)')
    if NUMA:
        e(f'  s_cbranch_scc1 L_np0')
        e(f'  s_load_dword s{sPT}, s[24:25], s{sPa} glc')
        e(f'  s_load_dword s{sPT+1}, s[24:25], s{sPb} glc')
        e('L_np0:')
    def srd(sd, lo, nbytes):
        e(f'  s_mov_b32 s{sd}, s{lo}')
        e(f'  s_and_b32 s{sd+1}, s{lo+1}, 0xffff')
        e(f'  s_mov_b32 s{sd+2}, {nbytes}')
        e(f'  s_mov_b32 s{sd+3}, 0x00020000')
    srd(sD, 26, 768); srd(sP, 28, 294912)
    g.vmop(f'  buffer_load_dwordx4 v{T[3]}, s[{sD}:{sD+3}], 0 offen lds', ('W',))
    def bload(s):
        it = []
        for h in range(2):
            it.append(f'  s_add_u32 m0, s{sBW}, {AREA[s % 4] + h*3072}')
            it.append(f'  s_add_u32 s{sT[0]}, s{sG[s >> 2]}, s{sQ[s & 3]}' if h == 0 else f'  s_add_u32 s{sT[0]}, s{sT[0]}, 12288')
            for i in range(3):
                it.append(lambda h=h, i=i: g.vmop(f'  buffer_load_dwordx4 v{vBL[i]}, s[{sP}:{sP+3}], s{sT[0]} offen offset:{i*1024}{NT_B} lds', ('B', s, 3*h + i)))
        return it
    NB0 = int(opts.get('nb0', 2))
    for s in range(NB0): run(bload(s))
    srd(sX, 24, 113246208); srd(sO, 30, 113246208)
    hi2, lo4 = T[1], T[4]
    e(f'  s_add_u32 s{sVa}, s24, {TILE_B}')
    e(f'  s_mov_b32 s{sOOB}, {OOB}')
    e(f'  s_lshl_b32 s{sRing}, s{sW}, 10')
    GATH = int(opts.get('gath', 1))
    for u in range(6):
        e(f'  v_lshrrev_b32 v{T[0]}, 4, v0')
        if u: e(f'  v_add_u32 v{T[0]}, {16*u}, v{T[0]}')
        e(f'  v_mul_u32_u24 v{T[2]}, 43, v{T[0]}')
        e(f'  v_lshrrev_b32 v{T[2]}, 7, v{T[2]}')
        e(f'  v_mul_u32_u24 v{T[3]}, 3, v{T[2]}')
        e(f'  v_sub_u32 v{T[3]}, v{T[0]}, v{T[3]}')
        if u < 3:
            e(f'  v_and_b32 v{T[5]}, 7, v{T[2]}')
            e(f'  v_xor_b32 v{T[5]}, v{T[5]}, v{lo4}')
            e(f'  v_lshlrev_b32 v{T[5]}, 4, v{T[5]}')
            e(f'  v_lshl_add_u32 v{T[5]}, v{T[0]}, 8, v{T[5]}')
            e(f'  v_add_u32 v{vOR[u]}, {LDS_O}, v{T[5]}')
        e(f'  v_mul_u32_u24 v{T[7]}, 0x300, v{T[2]}')
        if GATH:
            if u == 2:
                e(f'  v_cmp_lt_u32 vcc, 10, v{T[2]}')
                e(f'  v_add_u32 v{T[8]}, 7680, v{T[7]}')
                e(f'  s_nop 0')
                e(f'  v_cndmask_b32 v{T[7]}, v{T[7]}, v{T[8]}, vcc')
            if u == 3: e(f'  v_add_u32 v{T[7]}, 7680, v{T[7]}')
            if u == 4:
                e(f'  v_cmp_lt_u32 vcc, 21, v{T[2]}')
                e(f'  v_subrev_u32 v{T[8]}, {11*768}, v{T[7]}')
                e(f'  v_add_u32 v{T[9]}, {42*768}, v{T[7]}')
                e(f'  v_cndmask_b32 v{T[8]}, v{T[9]}, v{T[8]}, vcc')
                e(f'  v_add_u32 v{T[9]}, {21*768}, v{T[7]}')
                e(f'  v_add_u32 v{T[7]}, {10*768}, v{T[7]}')
                e(f'  v_cndmask_b32 v{T[7]}, v{T[7]}, v{T[9]}, vcc')
            if u == 5: e(f'  v_subrev_u32 v{T[7]}, {11*768}, v{T[7]}')
        elif u == 4: e(f'  v_add_u32 v{T[8]}, {TILE_B}, v{T[7]}')
        e(f'  v_lshlrev_b32 v{T[5]}, 4, v{lo4}')
        e(f'  v_lshl_add_u32 v{T[5]}, v{T[3]}, 8, v{T[5]}')
        e(f'  v_add_u32 v{vST[u]}, v{T[7]}, v{T[5]}')
        e(f'  v_add_u32 v{T[3]}, s{sR1}, v{T[3]}')
        e(f'  v_subrev_u32 v{T[5]}, 3, v{T[3]}')
        e(f'  v_min_u32 v{T[3]}, v{T[3]}, v{T[5]}')
        e(f'  v_xor_b32 v{T[5]}, v{T[2]}, v{lo4}')
        e(f'  v_xor_b32 v{T[5]}, s{sT[3]}, v{T[5]}')
        e(f'  v_and_b32 v{T[5]}, 15, v{T[5]}')
        e(f'  v_lshlrev_b32 v{T[5]}, 4, v{T[5]}')
        e(f'  v_lshl_add_u32 v{T[5]}, v{T[3]}, 8, v{T[5]}')
        e(f'  v_add_u32 v{vXS[u]}, v{T[7]}, v{T[5]}')
        if u == 4: e(f'  v_add_u32 v{vXS4b}, v{T[8]}, v{T[5]}')
    e(f'  v_mul_u32_u24 v{T[0]}, 0x300, v{lo4}')
    e(f'  v_xor_b32 v{T[2]}, v{hi2}, v{lo4}')
    e(f'  v_lshl_add_u32 v{vLdsR[0]}, v{T[2]}, 4, v{T[0]}')
    for s in range(1, 4): e(f'  v_xor_b32 v{vLdsR[s]}, {s*64}, v{vLdsR[0]}')
    e(f'  s_mul_i32 s{sT[1]}, s{sW}, 12')
    e(f'  v_and_b32 v{T[2]}, 7, v{lo4}')
    for u in range(2):
        e(f'  v_add_u32 v{T[3]}, s{sT[1]}, v{hi2}')
        if u: e(f'  v_add_u32 v{T[3]}, {4*u}, v{T[3]}')
        e(f'  v_xor_b32 v{T[3]}, v{T[3]}, v{T[2]}')
        e(f'  v_lshl_add_u32 v{vOW[u]}, v{T[3]}, 4, v{T[0]}')
        e(f'  v_add_u32 v{vOW[u]}, {LDS_O}, v{vOW[u]}')
    e(f'  v_bfe_u32 v{T[2]}, v{vLane}, 2, 2')
    e(f'  v_and_b32 v{T[3]}, 3, v{vLane}')
    e(f'  v_lshl_add_u32 v{T[5]}, v{hi2}, 3, v{T[2]}')
    e(f'  v_mul_u32_u24 v{T[5]}, 192, v{T[5]}')
    e(f'  v_lshl_add_u32 v{T[5]}, v{T[3]}, 4, v{T[5]}')
    e(f'  s_add_u32 s{sT[1]}, s{sBW}, {AREA[0]}')
    e(f'  v_add_u32 v{vTr}, s{sT[1]}, v{T[5]}')
    e(f'  v_add_u32 v{vTr2}, {2*TILE_B}, v{vTr}')
    e(f'  s_add_u32 s{sT[1]}, s{sRing}, {LDS_DW}')
    e(f'  v_lshl_add_u32 v{vDW}, v{hi2}, 4, s{sT[1]}')
    e(f'  v_and_b32 v{T[5]}, 1, v{vLane}')
    e(f'  v_lshlrev_b32 v{T[5]}, 4, v{T[5]}')
    e(f'  v_mov_b32 v{T[7]}, 0xffff')
    e(f'  v_lshlrev_b32 v{T[5]}, v{T[5]}, v{T[7]}')
    e(f'  v_lshlrev_b32 v{T[0]}, 1, v{hi2}')
    e(f'  v_bfe_u32 v{T[7]}, v{vLane}, 1, 3')
    e(f'  v_cmp_eq_u32 vcc, v{T[0]}, v{T[7]}')
    e(f'  v_add_u32 v{T[0]}, 1, v{T[0]}')
    e(f'  s_nop 0')
    e(f'  v_cndmask_b32 v{vM[0]}, 0, v{T[5]}, vcc')
    e(f'  v_cmp_eq_u32 vcc, v{T[0]}, v{T[7]}')
    for r in sSo + [sF[0], sF[0]+1, sF[1], sF[1]+1]: e(f'  s_mov_b32 s{r}, s{sOOB}')
    e(f'  v_cndmask_b32 v{vM[1]}, 0, v{T[5]}, vcc')
    e(f'  s_mov_b64 s[{sSm}:{sSm+1}], 0')
    srd(sDS, sDb, 256)
    def probe_round(i):
        e(f'  s_cmp_lg_u32 s{sPr}, 0')
        e(f'  s_cbranch_scc1 L_npr{i}')
        if i == 0: e('  s_waitcnt lgkmcnt(0)')
        e(f'  s_memtime s[{sPT}:{sPT+1}]')
        e(f'  s_load_dword s{sT[2]}, s[24:25], s{sPb if i else sPa} glc')
        e('  s_waitcnt lgkmcnt(0)')
        e(f'  s_memtime s[{sPT+2}:{sPT+3}]')
        if i:
            e(f'  s_lshl_b32 s{sT[2]}, s{sW}, 2')
            e(f'  s_add_u32 s{sT[2]}, s{sT[2]}, {LDS_PR}')
            e(f'  v_mov_b32 v{T[0]}, s{sT[2]}')
        e('  s_waitcnt lgkmcnt(0)')
        e(f'  s_sub_u32 s{sPT}, s{sPT+2}, s{sPT}')
        e(f'  s_min_u32 s{sPT}, s{sPT}, 0xffff')
        if i == 0: e(f'  s_lshl_b32 s{sPv}, s{sPT}, 16')
        else:
            e(f'  s_or_b32 s{sPv}, s{sPv}, s{sPT}')
            e(f'  v_mov_b32 v{T[2]}, s{sPv}')
            e(f'  ds_write_b32 v{T[0]}, v{T[2]}')
        e(f'L_npr{i}:')
    PQ = BV + 160
    def publish():
        e(f'  s_cmp_lg_u32 s{sPr}, 0')
        e(f'  s_cbranch_scc1 L_np1')
        e('  s_barrier')
        e(f'  s_cmp_lg_u32 s{sW}, 0')
        e(f'  s_cbranch_scc1 L_np1')
        e(f'  v_mov_b32 v{PQ+4}, {LDS_PR}')
        e(f'  ds_read_b128 v[{PQ}:{PQ+3}], v{PQ+4}')
        e(f'  s_add_u32 s{sT[1]}, s{sVa}, s{sPa}')
        e(f'  s_lshr_b32 s{sT[1]}, s{sT[1]}, 21')
        e(f'  s_lshr_b32 s{sT[2]}, s2, 2')
        e(f'  s_xor_b32 s{sT[1]}, s{sT[1]}, s{sT[2]}')
        e(f'  s_and_b32 s{sT[1]}, s{sT[1]}, 1')
        e(f'  s_add_u32 s{sT[2]}, s{sT[1]}, 1')
        e(f'  s_sub_u32 s{sT[1]}, 2, s{sT[1]}')
        e(f'  v_mov_b32 v{PQ+6}, s{sT[2]}')
        e(f'  v_mov_b32 v{PQ+5}, s{sT[1]}')
        e(f'  v_mov_b32 v{PQ+7}, 0')
        e(f'  v_mov_b32 v{PQ+4}, s{sEo}')
        e('  s_waitcnt lgkmcnt(0)')
        e(f'  v_pk_min_u16 v{PQ}, v{PQ}, v{PQ+1}')
        e(f'  v_pk_min_u16 v{PQ+2}, v{PQ+2}, v{PQ+3}')
        e(f'  v_pk_min_u16 v{PQ}, v{PQ}, v{PQ+2}')
        e(f'  v_lshrrev_b32 v{PQ+1}, 16, v{PQ}')
        e(f'  v_and_b32 v{PQ}, 0xffff, v{PQ}')
        e(f'  v_cmp_gt_u32 vcc, v{PQ+1}, v{PQ}')
        e('  s_mov_b64 exec, 1')
        e('  s_nop 0')
        e(f'  v_cndmask_b32 v{PQ+6}, v{PQ+6}, v{PQ+5}, vcc')
        e(f'  buffer_atomic_cmpswap v[{PQ+6}:{PQ+7}], v{PQ+4}, s[{sDS}:{sDS+3}], 0 offen sc1')
        e('  s_mov_b64 exec, -1')
        e('L_np1:')
    assert NB0 == 2
    POS = opts.get('ppos', 'a')
    if NUMA: probe_round(0)
    if NUMA and POS == 'b': probe_round(1)
    run(bload(2))
    if NUMA and POS == 'a': probe_round(1)
    run(bload(3))
    def xdma(t, u):
        it = []
        if u == 0:
            a, b = sF[0], sF[0] + 1
            it += [f'  s_mov_b64 s[{sF[k]}:{sF[k]+1}], s[{sF[k-1]}:{sF[k-1]+1}]' for k in range(len(sF) - 1, 0, -1)]
            it += [f'  s_add_u32 s{a}, s{sVa}, s{sBase}', f'  s_xor_b32 s{a}, s{a}, s{sDec}',
                   f'  s_add_u32 s{b}, s{sBase}, {TILE_B}', f'  s_cmp_lt_u32 s{sBase}, s{sEnd}',
                   f'  s_cselect_b32 s{sX4}, s{sBase}, s{sOOB}', f'  s_cselect_b32 s{b}, s{b}, s{sOOB}',
                   f'  s_bitcmp1_b32 s{a}, 21', f'  s_cselect_b32 s{a}, s{b}, s{sX4}', f'  s_cselect_b32 s{b}, s{sX4}, s{b}',
                   f'  s_cselect_b64 s[{sXm}:{sXm+1}], -1, 0', f'  s_add_u32 s{sBase}, s{sBase}, {KSTEP}']
        if u == 4: it.append(f'  v_cndmask_b32 v{vTX}, v{vXS[4]}, v{vXS4b}, s[{sXm}:{sXm+1}]')
        it.append(f'  s_add_u32 m0, s{sRing}, {(t & 1)*TILE_B + u*4096}')
        if u == 5 and (t & 1): it.append(f'  s_xor_b32 s{sRing}, s{sRing}, {2*TILE_B}')
        else: it.append('NOP')
        it.append(lambda: g.vmop(f'  buffer_load_dwordx4 v{vTX if u == 4 else vXS[u]}, s[{sX}:{sX+3}], s{[sF[0], sX4, sF[0]+1][max(0, u - 3)]} offen{NT_LD} lds', ('L', t, u)))
        return it
    def xdma_burst(t, w=True):
        for u in range(6):
            run(['  s_nop 0' if x == 'NOP' else x for x in xdma(t, u)])

    def trs(s):
        it = [lambda: g.wait(('b', s), vm=('B', s, 5))]
        base = vTr if (s % 4) < 2 else vTr2
        so = (s % 2) * TILE_B
        it.append(lambda: g.lgop(f'  ds_read_b128 v[{DWR[s & 1]}:{DWR[s & 1]+3}], v{vDW} offset:{s*64}', ('TR', s)))
        for nt in range(6):
            for hh in range(2):
                r = RAW[s & 1] + nt*4 + 2*hh
                it.append(lambda r=r, nt=nt, hh=hh: g.lgop(f'  ds_read_b64_tr_b16 a[{r}:{r+1}], v{base} offset:{so + hh*768 + (nt >> 1)*64 + (nt & 1)*8}', ('TR', s)))
        return it
    def cvts(s, j):
        nt, hh = j // 2, j % 2
        q = ACC + 4*j
        if s in ASLOTS:
            return [f'  v_cvt_pk_bf16_f32 v{q}, v{q}, v{q+1}', f'  v_cvt_pk_bf16_f32 v{q+1}, v{q+2}, v{q+3}',
                    f'  v_accvgpr_write_b32 {breg(s, nt, 1, 2*hh)}, v{q}', f'  v_accvgpr_write_b32 {breg(s, nt, 1, 2*hh+1)}, v{q+1}']
        return [f'  v_cvt_pk_bf16_f32 {breg(s, nt, 1, 2*hh)}, v{q}, v{q+1}', f'  v_cvt_pk_bf16_f32 {breg(s, nt, 1, 2*hh+1)}, v{q+2}, v{q+3}']
    run(trs(0))
    stamp()
    pend = []
    LAG = 8
    XA = int(opts.get('xa', 8)); XB = int(opts.get('xb', 13))
    for s in range(12):
        if s == XA and NUMA:
            e('  s_waitcnt lgkmcnt(0)')
            e(f'  s_cmp_eq_u32 s{sDec}, 0')
            e('  s_cbranch_scc1 L_slow')
            e('L_back:')
        if s == XA:
            if not NUMA: e(f'  s_lshr_b32 s{sDec}, s2, 2')
            e(f'  s_lshr_b32 s{sT[1]}, s2, 1')
            e(f'  s_xor_b32 s{sDec}, s{sDec}, s{sT[1]}')
            e(f'  s_and_b32 s{sDec}, s{sDec}, 2')
            e(f'  s_lshl_b32 s{sDec}, s{sDec}, 20')
        if s + 1 < 12: run(trs(s + 1))
        if s == XA - int(opts.get('rs', 1)) and NUMA: e(f'  s_load_dword s{sDec}, s[{sDb}:{sDb+1}], s{sEo}')
        g.wait(('tr', s), lg=('TR', s))
        d = DWR[s & 1]
        for i in range(4): e(f'  v_and_b32 v{d+i}, v{vM[i & 1]}, v{d+i}')
        if s == XA: xdma_burst(0)
        if s == XB: xdma_burst(1)
        if s + 4 < 12: run(bload(s + 4))
        elif s not in (XA, XB): e('  s_nop 1')
        for j in range(12):
            nt, hh = j // 2, j % 2
            r = RAW[s & 1] + nt*4 + 2*hh
            q = ACC + 4*j
            e(f'  v_mfma_f32_16x16x16_bf16 v[{q}:{q+3}], v[{d+2*hh}:{d+2*hh+1}], a[{r}:{r+1}], 0')
            pend.append(cvts(s, j))
            if len(pend) > LAG: run(pend.pop(0))
        if s in (3, 7): stamp()
        if s == int(opts.get('pubs', 0)) and NUMA: publish()
    def rd(t, i):
        mt, ks = i // 12, i % 12
        x = XF + 8*((i // 2) % 3) + 4*(i & 1)
        g.lgop(f'  ds_read_b128 a[{x}:{x+3}], v{vLdsR[ks & 3]} offset:{(t & 1)*TILE_B + mt*12288 + (ks >> 2)*256}', ('X', t, i))
    for _ in range(4): run(pend.pop(0))
    stamp()
    if XB == 12: xdma_burst(1)
    g.wait('x0', vm=('L', 0, 5))
    e('  s_barrier')
    for i in range(4): rd(0, i)
    if XB == 13: xdma_burst(1, False)
    while pend: run(pend.pop(0))
    e(f'  v_sub_u32 v{vST4b}, v{vXS4b}, v{vXS[4]}')
    e(f'  v_add_u32 v{vST4b}, v{vST4b}, v{vST[4]}')
    if PD == 3: xdma_burst(2)
    stamp()

    def epi(mt, u, po):
        a = ACC + 24*mt + 8*u
        cv = [f'  v_cvt_pk_bf16_f32 v{a+i}, v{a+2*i}, v{a+2*i+1}' for i in range(4)]
        off = po*TILE_B + mt*12288 + (u >> 1)*128
        if opts.get('w64'):
            return cv[:2] + [lambda: g.lgop(f'  ds_write_b64 v{vOW[u & 1]}, v[{a}:{a+1}] offset:{off}', ('OWa', mt, u))] + cv[2:] + \
                   [lambda: g.lgop(f'  ds_write_b64 v{vOW[u & 1]}, v[{a+2}:{a+3}] offset:{off+8}', ('OW', mt, u))]
        return cv + [lambda: g.lgop(f'  ds_write_b128 v{vOW[u & 1]}, v[{a}:{a+3}] offset:{off}', ('OW', mt, u))]
    def out_read(t, u):
        o = OB + 4*u
        g.lgop(f'  ds_read_b128 a[{o}:{o+3}], v{vOR[u % 3]} offset:{((t^1)&1)*TILE_B + (u // 3)*12288}', ('O', t, u))
    def out_store(t, u, key):
        o = OB + 4*u
        g.wait((key, 'o', u), lg=('O', t, u), opt=True)
        g.vmop(f'  buffer_store_dwordx4 a[{o}:{o+3}], v{vTS if u == 4 else vST[u]}, s[{sO}:{sO+3}], s{sSo[max(0, u - 2)]} offen{NT_ST}', None)
    def st_adv(d=0):
        p, q = sF[2 - d], sF[3 - d]
        return [f'  s_mov_b32 s{sSo[0]}, s{p}', f'  s_mov_b32 s{sSo[1]}, s{q}', f'  s_mov_b32 s{sSo[3]}, s{q+1}', f'  s_min_u32 s{sSo[2]}, s{q}, s{q+1}',
                f'  s_cmp_gt_u32 s{q}, s{q+1}', f'  s_cselect_b64 s[{sSm}:{sSm+1}], -1, 0',
                'NOP', f'  v_cndmask_b32 v{vTS}, v{vST[4]}, v{vST4b}, s[{sSm}:{sSm+1}]']
    def ints(k, d): return [int(v) for v in opts.get(k, d).split(',')]
    OR_AT = ints('or', '2,3,4,5,6,7'); OS_AT = ints('os', '14,20,30,40,52,64')
    UORD = ints('uord', '3,4,5,0,1,2')
    XD_AT = ints('xd', '76,88,100,112,124,136')
    E1_AT = ints('e1', '27,39,61'); E0_AT = ints('e0', '99,106,123')
    SH_AT = int(opts.get('sh', 26)); CAP = int(opts.get('cap', 1)); HG = int(opts.get('hg', 0))
    def fillers(t):
        F = [[] for _ in range(144)]
        use = [0] * 150
        for r in range(144):
            if r % 12 in (0, 1, 11): use[r] = 1
        def heavy(rho, it):
            while use[rho]: rho += 1
            F[rho].append(it); use[rho] = 9
            for k in range(1, HG + 1): use[rho + k] = max(use[rho + k], 8)
            return rho
        def light(rho, items, cap=CAP, back=False):
            if back:
                for it in reversed(items):
                    while use[rho] >= cap: rho -= 1
                    F[rho].insert(0, it); use[rho] += 1
                return rho
            for it in items:
                while use[rho] >= cap: rho += 1
                F[rho].append(it); use[rho] += 1
            return rho
        kp = t & 1
        post = []
        vpos = []
        for k in range(6):
            u = UORD[k]
            lastst = heavy(OS_AT[k], lambda u=u: out_store(t, u, kp))
            vpos.append(lastst)
        xpos = []
        for u in range(6):
            it = [x for x in xdma(t + PD, u) if x != 'NOP']
            xpos.append((heavy(XD_AT[u], it[-1]), it[:-1]))
        for mt, AT in ((1, E1_AT), (0, E0_AT)):
            for u in range(3):
                r = AT[u]
                for it in epi(mt, u, t & 1):
                    r = (heavy(r, it) if callable(it) else light(r, [it], 1)) + 1
        for k in range(6):
            light(OR_AT[k], [lambda u=UORD[k]: out_read(t, u)], 1)
        for (r, it) in xpos:
            r0 = light(r - 1, it, 2 if len(it) > 6 else CAP, back=True)
            assert r0 >= 24
        if opts.get('lim'):
            for r in vpos + [x[0] for x in xpos]:
                light(r - 1, [f'  s_waitcnt vmcnt({opts["lim"]})'], 2, back=True)
        for a, b in zip(xpos, xpos[1:]): assert b[0] - a[0] >= 5
        r1 = light(max(lastst, xpos[0][0]) + 1, [x for x in st_adv() if x != 'NOP'], 2)
        assert r1 < 144
        return F
    def tile(t):
        kp = t & 1
        F0 = fillers(t); F1 = fillers(t + 1)
        for G_ in range(12):
            mt, kg = G_ // 6, G_ % 6
            if G_ == 10:
                g.wait((kp, 'bar'), vm=('L', t + 1, 5), lg=('OW', 0, 2))
                e('  s_barrier')
                if t & 1:
                    for r in vLdsR: e(f'  v_xor_b32 v{r}, {2*TILE_B}, v{r}')
            g.wait((kp, 'x', G_), lg=('X', t, 2*G_ + 1))
            for nt in range(6):
                for k in range(2):
                    ks = 2*kg + k; i = 12*mt + ks
                    x = XF + 8*(G_ % 3) + 4*k
                    a = ACC + 24*mt + 4*nt
                    c = '0' if ks == 0 else f'v[{a}:{a+3}]'
                    e(f'  v_mfma_f32_16x16x32_bf16 v[{a}:{a+3}], {breg(ks, nt)}, a[{x}:{x+3}], {c}')
                    gap = 12*G_ + 2*nt + k
                    if gap % 12 in (0, 1):
                        j = 2*G_ + 4 + (gap % 12)
                        if j < 24: rd(t, j)
                        else: rd(t + 1, j - 24)
                    run(F0[gap + 24] if gap < 120 else F1[gap - 120])
    if DBG:
        e(f'  s_mov_b32 s94, {sn[0]}')
        e('  s_mov_b32 s60, s64')
        e('  s_memtime s[38:39]') if 0 else e('  s_memtime s[86:87]')
    def tail(t):
        done = [UORD[k] for k in range(6) if OS_AT[k] < 24]
        rdone = [UORD[k] for k in range(6) if OR_AT[k] < 24]
        for u in UORD:
            if u not in rdone: out_read(t, u)
        e('  s_nop 3')
        for u in range(3): run(epi(1, u, t & 1))
        for u in UORD:
            if u not in done: out_store(t, u, 'T')
        run([x if x != 'NOP' else '  s_nop 0' for x in st_adv(1)])
        e('  s_waitcnt lgkmcnt(0)')
        e('  s_barrier')
        for u in range(3):
            e(f'  ds_read_b128 a[{XF+4*u}:{XF+4*u+3}], v{vOR[u]} offset:{(t & 1)*TILE_B + 12288}')
        for u in range(3):
            e(f'  s_waitcnt lgkmcnt({2-u})')
            e(f'  buffer_store_dwordx4 a[{XF+4*u}:{XF+4*u+3}], v{vTS if u == 1 else vST[u+3]}, s[{sO}:{sO+3}], s{sSo[u+1]} offen{NT_ST}')
    if unroll:
        for t in range(NTILE): tile(t)
        tail(NTILE)
    else:
        if opts.get('al'): e(f'  .p2align {opts["al"]}')
        e('L_loop:')
        tile(0)
        tile(1)
        if DBG:
            e('  s_mov_b32 m0, s94'); e('  s_nop 0'); e('  v_writelane_b32 v0, s60, m0')
            e('  s_add_u32 s94, s94, 1')
            e('  s_min_u32 s94, s94, 15')
            e('  s_memrealtime s[60:61]')
        e(f'  s_cmp_lt_u32 s{sF[1]}, s{sOOB}')
        e(f'  s_cbranch_scc1 L_loop')
        e('L_tail:')
        if DBG: e('  s_memtime s[88:89]')
        tail(0)
        if DBG: e('  s_mov_b32 s94, 15')
    if DBG:
        e('  s_mov_b32 m0, s94'); e('  s_nop 0'); e('  v_writelane_b32 v0, s60, m0')
        e('  s_add_u32 s94, s94, 1')
        e('  s_load_dwordx2 s[24:25], s[0:1], 40')
        e('  s_waitcnt vmcnt(0)')
        e('  s_memrealtime s[54:55]')
        e('  s_memtime s[98:99]')
        e('  s_waitcnt lgkmcnt(0)')
        e('  s_mov_b32 m0, s94'); e('  s_nop 0'); e('  v_writelane_b32 v0, s54, m0')
        e('  s_sub_u32 s98, s98, s96')
        e('  s_add_u32 s98, s98, s64')
        e('  v_writelane_b32 v0, s98, 31')
        e('  s_sub_u32 s88, s88, s86')
        e('  v_writelane_b32 v0, s88, 30')
        e(f'  v_writelane_b32 v0, s{sPv}, 29')
        e(f'  v_writelane_b32 v0, s{sDec}, 28')
        e(f'  v_writelane_b32 v0, s95, 27')
        for i in range(sn[0]): e(f'  v_writelane_b32 v0, s{64+2*i}, {i}')
        e('  s_mov_b32 s56, s24'); e('  s_and_b32 s57, s25, 0xffff'); e('  s_mov_b32 s58, 452984832'); e('  s_mov_b32 s59, 0x00020000')
        e('  s_lshl_b32 s26, s2, 9'); e(f'  s_lshl_b32 s27, s{sW}, 7'); e('  s_add_u32 s26, s26, s27')
        e('  v_mbcnt_lo_u32_b32 v1, -1, 0')
        e('  v_lshlrev_b32 v1, 2, v1')
        e('  s_mov_b64 exec, 0xffffffff')
        e('  buffer_store_dword v0, v1, s[56:59], s26 offen')
    if AMP:
        e('  s_waitcnt vmcnt(0)')
        e('  s_memrealtime s[54:55]')
        e('  s_waitcnt lgkmcnt(0)')
        e(f'  s_cmp_lg_u32 s2, {int(opts.get("ampwg", 100))}')
        e('  s_cbranch_scc1 L_done')
        e(f'  s_sub_u32 s27, s{54 if AMP == "e" else 64 + 2*int(AMP)}, s64')
        e('  s_mul_i32 s27, s27, 10')
        e('L_spin:')
        e('  s_sleep 8')
        e('  s_memrealtime s[56:57]')
        e('  s_waitcnt lgkmcnt(0)')
        e('  s_sub_u32 s26, s56, s54')
        e('  s_cmp_lt_u32 s26, s27')
        e('  s_cbranch_scc1 L_spin')
    if NUMA:
        e('  s_endpgm')
        e('L_slow:')
        e(f'  v_mov_b32 v{vTX}, s{sEo}')
        e(f'  v_mov_b32 v{BV+166}, 1')
        e(f'  v_mov_b32 v{BV+167}, 0')
        e('  s_mov_b64 exec, 1')
        e(f'  buffer_atomic_cmpswap v[{BV+166}:{BV+167}], v{vTX}, s[{sDS}:{sDS+3}], 0 offen sc0 sc1')
        e('  s_waitcnt vmcnt(0)')
        e(f'  v_readfirstlane_b32 s{sDec}, v{BV+166}')
        e('  s_mov_b64 exec, -1')
        if DBG: e('  s_mov_b32 s95, 1')
        e('  s_branch L_back')
    e('L_done:')
    e('  s_endpgm')
    e('.section .rodata,"a"')
    e('.p2align 6')
    e('.amdhsa_kernel standalone__depthwise_separable__vision_kernel')
    e('  .amdhsa_next_free_vgpr 512')
    e('  .amdhsa_next_free_sgpr 100')
    e('  .amdhsa_accum_offset 256')
    e('  .amdhsa_group_segment_fixed_size 0')
    e('  .amdhsa_kernarg_size 48')
    e('  .amdhsa_user_sgpr_count 2')
    e('  .amdhsa_user_sgpr_kernarg_segment_ptr 1')
    e('  .amdhsa_system_sgpr_workgroup_id_x 1')
    e('  .amdhsa_float_denorm_mode_32 3')
    e('.end_amdhsa_kernel')

if __name__ == '__main__':
    out = sys.argv[1]
    opts = dict(a.split('=', 1) for a in sys.argv[2:])
    for k in ('nt_ld', 'nt_st', 'nt_b'):
        if k in opts: opts[k] = (' ' + opts[k].replace('+', ' ')) if opts[k] != 'none' else ''
    open(out, 'w').write(gen(opts))
```

```python
import sys, re
from gen3 import G, HDR
from gen5 import regs_of

def hazard_check(L):
    ins = [l.strip() for l in L if l.startswith('  ') and not l.strip().startswith(';')]
    hist = []; st = 0; last_valu = []; last_st = []; last_m0 = -9; last_sg = []; lastscc = ''
    for l in ins:
        op = l.split()[0]
        toks = [t.strip(',') for t in l.split()[1:]]
        allr = set()
        for t in toks: allr |= regs_of(t)
        if op.startswith('v_mfma'):
            d = regs_of(toks[0]); a = regs_of(toks[1]); b = regs_of(toks[2]); c = regs_of(toks[3])
            for (s0, r) in last_valu:
                if st - s0 - 1 < 2 and (r & (a | b | c)): raise Exception(f'VALU->MFMA hazard: {l}')
            for (s0, dd, cc) in hist:
                if st - s0 - 1 < 8 and (dd & (a | b)): raise Exception(f'MFMA D->A/B hazard: {l}')
                if st - s0 - 1 < 6 and (dd & c) and dd != c: raise Exception(f'MFMA D->C overlap hazard: {l}')
                if st - s0 - 1 < 6 and (dd & d) and dd != c: raise Exception(f'MFMA D->D WAW: {l}')
            for (s0, r) in last_st:
                if st - s0 - 1 < 8 and (r & d): raise Exception(f'store data WAR (mfma): {l}')
            hist.append((st, d, c))
        elif op.startswith('v_') or op.startswith('ds_') or op.startswith('buffer_'):
            for (s0, dd, cc) in hist:
                if st - s0 - 1 < 8 and (dd & allr): raise Exception(f'MFMA D->use hazard dist {st-s0-1}: {l}')
            if op.startswith('v_'):
                w = regs_of(toks[0])
                for (s0, dd, cc) in hist:
                    if st - s0 - 1 < 3 and (cc & w): raise Exception(f'MFMA C WAR hazard: {l}')
                for (s0, r) in last_st:
                    if st - s0 - 1 < 2 and (r & w): raise Exception(f'store data WAR: {l}')
                if op in ('v_readfirstlane_b32', 'v_readlane_b32'):
                    for (s0, r) in last_valu:
                        if st - s0 - 1 < 1 and (r & regs_of(toks[1])): raise Exception(f'readlane hazard: {l}')
                    last_sg.append((st, toks[0]))
                else:
                    for (s0, sg) in last_sg:
                        if st - s0 - 1 < 2 and sg in toks[1:]: raise Exception(f'VALU sgpr->VALU hazard: {l}')
                last_valu.append((st, w)); last_valu = last_valu[-4:]
            if op.startswith('buffer_store') or op.startswith('ds_write'):
                last_st.append((st, regs_of(toks[0] if op.startswith('buffer') else toks[1]))); last_st = last_st[-4:]
            if op.startswith('buffer_') and l.endswith('lds') and st - last_m0 - 1 < 1: raise Exception(f'm0 hazard: {l}')
            if op.startswith('buffer_'):
                for (s0, sg) in last_sg:
                    if st - s0 - 1 < 5 and sg in toks: raise Exception(f'VALU sgpr->VMEM hazard: {l}')
        elif op.startswith('s_') and toks and toks[0] == 'm0': last_m0 = st
        if op.startswith('s_cselect') or op.startswith('s_cbranch_scc'):
            if not (lastscc.startswith('s_cmp') or lastscc.startswith('s_bitcmp')): raise Exception(f'SCC clobbered by {lastscc}: {l}')
        elif re.match(r's_(add|sub|and|or|xor|min|max|lshl|lshr|cmp|bitcmp|andn2|ashr|bfe|not)', op): lastscc = op
        hist = [h for h in hist if st - h[0] < 24]
        st += int(toks[0]) + 1 if op == 's_nop' else 1

class G2(G):
    def __init__(self):
        self.need = {}
        super().__init__()
    def reset(self, mode):
        super().reset(mode); self.lgd = 0; self.vmd = 0
    def _cnt(self, lst, tag):
        if tag[:2] == ('O', 0) and tag not in lst: return len(lst)
        return super()._cnt(lst, tag)
    def wait(self, key, vm=None, lg=None, opt=False):
        if self.mode == 'collect2':
            nd = False
            if lg is not None and len(self.lg) - self._cnt(self.lg, lg) > self.lgd: nd = True
            if vm is not None and len(self.vm) - self._cnt(self.vm, vm) > self.vmd: nd = True
            self.need[key] = self.need.get(key, False) or nd or not opt
            v, l = self.sites[key]
            if not opt:
                if lg is not None: self.lgd = max(self.lgd, len(self.lg) - l)
                if vm is not None: self.vmd = max(self.vmd, len(self.vm) - v)
            return
        if self.mode in ('emit', 'check') and not self.need[key]: return
        super().wait(key, vm, lg)

def gen(opts):
    g = G2()
    g.reset('collect')
    build(g, opts, unroll=True)
    g.reset('collect2')
    build(g, opts, unroll=True)
    g.reset('check')
    build(g, opts, unroll=True)
    hazard_check(g.L)
    L2 = []; skip = None
    for l in g.L:
        if skip:
            if l == skip + ':': skip = None
            continue
        L2.append(l)
        m = re.match(r'  s_cbranch_scc1 (L_np\w*)', l)
        if m: skip = m.group(1)
    hazard_check(L2)
    g.reset('emit')
    build(g, opts, unroll=False)
    L = g.L
    abl = opts.get('abl', '')
    if abl:
        i0 = L.index('L_loop:'); i1 = L.index('L_tail:')
        def keep(l):
            s = l.strip()
            if 'O' in abl and (s.startswith('ds_write_b128') or re.match(r'ds_read_b128 a\[(16[89]|17\d|18\d)', s)): return False
            if 'T' in abl and s.startswith('buffer_store'): return False
            if 'L' in abl and s.startswith('buffer_load'): return False
            if 'B' in abl and s.startswith('s_barrier'): return False
            if 'C' in abl and s.startswith('v_cvt'): return False
            if 'H' in abl and s.startswith('v_mfma') and int(re.search(r'v\[(\d+):', s).group(1)) % 8 == 4: return False
            return True
        L = L[:i0] + [l for l in L[i0:i1] if keep(l)] + L[i1:]
    return '\n'.join(L) + '\n'

def build(g, opts, unroll):
    NT_LD = opts.get('nt_ld', ' nt'); NT_ST = opts.get('nt_st', ' sc1'); NT_B = opts.get('nt_b', '')
    DBG = int(opts.get('dbg', 0)); AMP = opts.get('amp')
    DIR = int(opts.get('dir', 0))
    PD = int(opts.get('pd', 2))
    e = g.e
    TILE_B = 32 * 768; NTILE = 18; STRIDE = 256 * TILE_B
    LDS_O = 4 * TILE_B + 256; LDS_DW = 6 * TILE_B + 512; LDS_PR = LDS_DW + 4096; LDS_TOTAL = LDS_PR + 64
    AREA = [LDS_O, LDS_O + TILE_B + 64, 2 * TILE_B, 3 * TILE_B + 64]
    OOB = 113246208
    vLdsR = [1, 2, 3, 4]; vOR = [5, 6, 7]; vXS = [8, 9, 10, 11, 12, 13]; vXS4b = 14; vTX = 15
    ACC = 16
    PT = 64
    vBL = [PT, PT+1, PT+2]; vTr = PT+3; vDW = PT+4; vM = [PT+5, PT+6]; vTr2 = PT+7
    DWR = [PT+8, PT+12]
    vST = [PT+16+i for i in range(6)]; vOW = [PT+22, PT+23]; vST4b = PT; vTS = PT+1
    T = [ACC+i for i in range(12)]; vLane = ACC + 12
    FUSE = int(opts.get('fuse', 0))
    FT = 88 if FUSE else ACC; NFT = 6 if FUSE else 12
    BV = 112 if FUSE else 88
    NA = 6 if FUSE else 5
    ASLOTS = [int(c, 16) for c in opts.get('aslots', '012346' if FUSE else '13579')]
    NAR = 4 if FUSE else int(opts.get('nar', 4))
    if NAR == 5: AREA = [TILE_B + k * (TILE_B + 64) for k in range(5)]
    assert len(ASLOTS) == NA
    VSLOTS = [s for s in range(12) if s not in ASLOTS]
    XF = 144
    OB = 168
    RAW = [192, 216]
    sX, sO, sP, sD = 4, 8, 12, 16
    sW, sCnt = 20, 21
    sRing, sOOB = 39, 40
    sF = [76, 78, 80, 82]
    sBase, sVa, sDec, sEnd = 32, 33, 34, 35
    sX4 = 22; sXm = 56
    sSo = [58, 59, 62, 63]; sSm = 90
    sDb = 92
    sDS = 16
    sRd = 95; sEo = 36; sPa = 37; sPb = 38; sPr = 23; sPv = 41; sPT = 84
    KSTEP = 16 * 49152
    sG = [42, 43, 44]; sQ = [45, 46, 47, 48]; sBW = 49; sT = [50, 51, 52, 53]; sR1, sR2 = 54, 55

    def breg(s, nt, n=4, o=0):
        if s in ASLOTS:
            i = ASLOTS.index(s) * 24 + nt * 4 + o
            return f'a[{i}:{i+n-1}]' if n > 1 else f'a{i}'
        i = BV + VSLOTS.index(s) * 24 + nt * 4 + o
        return f'v[{i}:{i+n-1}]' if n > 1 else f'v{i}'
    sn = [0]
    def stamp():
        if DBG or AMP:
            e(f'  s_memrealtime s[{64+2*sn[0]}:{65+2*sn[0]}]'); sn[0] += 1
    def run(items):
        for it in items:
            if callable(it): it()
            else: e(it)

    e(HDR.rstrip('\n'))
    e(f'; @launch grid=(256,1,1) block=(256,1,1) lds={LDS_TOTAL}')
    e('.amdgcn_target "amdgcn-amd-amdhsa--gfx950"')
    e('.text')
    e('.globl standalone__depthwise_separable__vision_kernel')
    e('.p2align 8')
    e('.type standalone__depthwise_separable__vision_kernel,@function')
    e('standalone__depthwise_separable__vision_kernel:')
    e('  s_load_dwordx8 s[24:31], s[0:1], 0')
    e(f'  s_load_dwordx2 s[{sDb}:{sDb+1}], s[0:1], 32')
    e('  s_cmp_ge_u32 s2, 256')
    e('  s_cbranch_scc1 L_done')
    stamp()
    if DBG: e('  s_memtime s[96:97]'); e('  s_mov_b32 s3, 0'); e(f'  s_mov_b32 s{sPv}, 0')
    e(f'  v_lshrrev_b32 v{T[0]}, 6, v0')
    e(f'  v_and_b32 v{vLane}, 63, v0')
    e(f'  v_readfirstlane_b32 s{sW}, v{T[0]}')
    KICK = int(opts.get('kick', 0))
    def kick_a():
        e(f'  s_lshr_b32 s{sT[2]}, s2, 3')
        e(f'  s_mul_i32 s{sT[2]}, s{sT[2]}, 9216')
        if KICK == 2: e(f'  v_and_b32 v{T[5]}, 127, v0')
        e(f'  v_lshl_add_u32 v{T[5]}, v{T[5] if KICK == 2 else 0}, 7, s{sT[2]}')
        e(f'  v_min_u32 v{T[5]}, 294784, v{T[5]}')
    def kick_b():
        e('  s_waitcnt lgkmcnt(0)')
        g.vmop(f'  global_load_dword v{BV+1}, v{T[5]}, s[28:29]', ('K',))
    if KICK: kick_a()
    if KICK and opts.get('kf'): kick_b()
    CW = int(opts.get('cw', 128))
    if CW:
        e(f'  s_getpc_b64 s[{sT[0]}:{sT[1]}]')
        e('L_pc:')
        e(f'  v_mul_u32_u24 v{T[2]}, {CW}, v0')
        e(f'  v_min_u32 v{T[2]}, L_done-L_pc, v{T[2]}')
        e(f'  v_mov_b32 v{T[3]}, s{sT[1]}')
        e(f'  v_add_co_u32 v{T[2]}, vcc, s{sT[0]}, v{T[2]}')
        e(f'  s_nop 1')
        e(f'  v_addc_co_u32 v{T[3]}, vcc, 0, v{T[3]}, vcc')
        g.vmop(f'  global_load_dword v{BV}, v[{T[2]}:{T[3]}], off', ('CW',))
    if KICK and not opts.get('kf'): kick_b()
    e(f'  s_lshr_b32 s{sT[0]}, s2, 3')
    e(f'  s_and_b32 s{sR2}, s{sT[0]}, 3')
    e(f'  s_lshr_b32 s{sR1}, s{sT[0]}, 2')
    e(f'  s_mul_i32 s{sT[1]}, s{sR1}, 11')
    e(f'  s_lshr_b32 s{sT[1]}, s{sT[1]}, 5')
    e(f'  s_mul_i32 s{sT[1]}, s{sT[1]}, 3')
    e(f'  s_sub_u32 s{sR1}, s{sR1}, s{sT[1]}')
    if opts.get('norot'):
        e(f'  s_mov_b32 s{sR1}, 0'); e(f'  s_mov_b32 s{sR2}, 0')
    e(f'  s_mul_i32 s{sT[2]}, s{sW}, 192')
    for i in range(3):
        if i: e(f'  v_add_u32 v{T[1]}, {64*i}, v{vLane}')
        q = T[1] if i else vLane
        e(f'  v_mul_u32_u24 v{T[2]}, 0xaaab, v{q}')
        e(f'  v_lshrrev_b32 v{T[2]}, 19, v{T[2]}')
        e(f'  v_mul_u32_u24 v{T[3]}, 576, v{T[2]}')
        e(f'  v_lshl_add_u32 v{T[3]}, v{vLane}, 4, v{T[3]}')
        if i == 1:
            e(f'  v_lshrrev_b32 v{T[2]}, 3, v{T[2]}')
            e(f'  v_mul_u32_u24 v{T[2]}, 6144, v{T[2]}')
            e(f'  v_add_u32 v{T[3]}, v{T[3]}, v{T[2]}')
        if i == 2: e(f'  v_add_u32 v{T[3]}, 6144, v{T[3]}')
        e(f'  v_add_u32 v{vBL[i]}, s{sT[2]}, v{T[3]}')
    NUMA = int(opts.get('numa', 1))
    PRM = int(opts.get('prm', 28))
    def srd(sd, lo, nbytes):
        e(f'  s_mov_b32 s{sd}, s{lo}')
        e(f'  s_and_b32 s{sd+1}, s{lo+1}, 0xffff')
        e(f'  s_mov_b32 s{sd+2}, {nbytes}')
        e(f'  s_mov_b32 s{sd+3}, 0x00020000')
    def p_gb1():
        e(f'  s_add_u32 s{sG[1]}, s{sG[0]}, 98304')
        e(f'  s_cmp_eq_u32 s{sR1}, 2')
        e(f'  s_cselect_b32 s{sG[1]}, 0, s{sG[1]}')
        e(f'  s_add_u32 s{sG[2]}, s{sG[1]}, 98304')
        e(f'  s_cmp_eq_u32 s{sR1}, 1')
        e(f'  s_cselect_b32 s{sG[2]}, 0, s{sG[2]}')
        for q in range(1, 4):
            e(f'  s_xor_b32 s{sQ[q]}, s{sR2}, {q}')
            e(f'  s_mul_i32 s{sQ[q]}, s{sQ[q]}, {TILE_B}')
    def p_dws():
        e(f'  s_lshl_b32 s{sT[3]}, s{sR2}, 2')
        e(f'  v_lshrrev_b32 v{T[1]}, 4, v{vLane}')
        e(f'  v_add_u32 v{T[2]}, s{sR1}, v{T[1]}')
        e(f'  v_subrev_u32 v{T[3]}, 3, v{T[2]}')
        e(f'  v_min_u32 v{T[2]}, v{T[2]}, v{T[3]}')
        e(f'  v_and_b32 v{T[4]}, 15, v{vLane}')
        e(f'  v_xor_b32 v{T[3]}, s{sT[3]}, v{T[4]}')
        e(f'  v_lshlrev_b32 v{T[3]}, 4, v{T[3]}')
        e(f'  v_lshl_add_u32 v{T[3]}, v{T[2]}, 8, v{T[3]}')
        e(f'  v_cmp_lt_u32 vcc, 47, v{vLane}')
        e(f'  s_lshl_b32 s{sT[0]}, s{sW}, 10')
        e(f'  s_add_u32 m0, s{sT[0]}, {LDS_DW}')
        e(f'  v_cndmask_b32 v{T[3]}, v{T[3]}, v{vBL[2]}, vcc')
    def p_tl():
        e(f'  s_lshr_b32 s{sT[1]}, s2, 5')
        e(f'  s_and_b32 s{sT[2]}, s2, 3')
        e(f'  s_lshl2_add_u32 s{sEo}, s{sT[1]}, s{sT[2]}')
        e(f'  s_lshl_b32 s{sEo}, s{sEo}, 2')
        e(f'  s_mul_i32 s{sT[1]}, s{sT[1]}, 288')
        e(f'  s_lshl2_add_u32 s{sT[2]}, s{sR2}, s{sT[2]}')
        e(f'  s_add_u32 s{sT[1]}, s{sT[1]}, s{sT[2]}')
        e(f'  s_mul_i32 s{sBase}, s{sT[1]}, 49152')
        e(f'  s_add_u32 s{sEnd}, s{sBase}, {NTILE*KSTEP}')
        if NUMA:
            e(f'  s_lshl_b32 s{sT[1]}, s{sW}, 11')
            e(f'  s_and_b32 s{sT[2]}, s2, 4')
            e(f'  s_lshl_b32 s{sT[2]}, s{sT[2]}, 6')
            e(f'  s_add_u32 s{sT[1]}, s{sT[1]}, s{sT[2]}')
            e(f'  s_add_u32 s{sPa}, s{sBase}, s{sT[1]}')
            e(f'  s_add_u32 s{sPa}, s{sPa}, {9*KSTEP}')
            e(f'  s_add_u32 s{sPb}, s{sPa}, 8192')
            e(f'  s_and_b32 s{sPr}, s2, {PRM}')
            e(f'  s_cmp_lg_u32 s{sPr}, 0')
    def p_warm():
        if NUMA:
            e(f'  s_cbranch_scc1 L_np0')
            e(f'  s_load_dword s{sPT}, s[24:25], s{sPa} glc')
            e(f'  s_load_dword s{sPT+1}, s[24:25], s{sPb} glc')
            e('L_np0:')
    def p_dwl():
        srd(sD, 26, 768)
        g.vmop(f'  buffer_load_dwordx4 v{T[3]}, s[{sD}:{sD+3}], 0 offen lds', ('W',))
    e(f'  s_mul_i32 s{sG[0]}, s{sR1}, 98304')
    e(f'  s_mul_i32 s{sQ[0]}, s{sR2}, {TILE_B}')
    e(f'  s_mul_i32 s{sBW}, s{sW}, 6160')
    LEAN = int(opts.get('lean', 2))
    if LEAN == 0: p_gb1(); p_dws()
    if LEAN <= 1: p_tl()
    e('  s_waitcnt lgkmcnt(0)')
    if LEAN <= 1: p_warm()
    if LEAN == 0: p_dwl()
    srd(sP, 28, 294912)
    def bload(s):
        it = []
        for h in range(2):
            it.append(f'  s_add_u32 m0, s{sBW}, {AREA[s % NAR] + h*3080}')
            it.append(f'  s_add_u32 s{sT[0]}, s{sG[s >> 2]}, s{sQ[s & 3]}' if h == 0 else f'  s_add_u32 s{sT[0]}, s{sT[0]}, 6144')
            for i in range(3):
                it.append(lambda h=h, i=i: g.vmop(f'  buffer_load_dwordx4 v{vBL[i]}, s[{sP}:{sP+3}], s{sT[0]} offen offset:{i*1024}{NT_B} lds', ('B', s, 3*h + i)))
        return it
    def xdma(t, u):
        it = []
        if u == 0:
            a, b = sF[0], sF[0] + 1
            it += [f'  s_mov_b64 s[{sF[k]}:{sF[k]+1}], s[{sF[k-1]}:{sF[k-1]+1}]' for k in range(len(sF) - 1, 0, -1)]
            it += [f'  s_add_u32 s{a}, s{sVa}, s{sBase}', f'  s_xor_b32 s{a}, s{a}, s{sDec}',
                   f'  s_add_u32 s{b}, s{sBase}, {TILE_B}', f'  s_cmp_lt_u32 s{sBase}, s{sEnd}',
                   f'  s_cselect_b32 s{sX4}, s{sBase}, s{sOOB}', f'  s_cselect_b32 s{b}, s{b}, s{sOOB}',
                   f'  s_bitcmp1_b32 s{a}, 21', f'  s_cselect_b32 s{a}, s{b}, s{sX4}', f'  s_cselect_b32 s{b}, s{sX4}, s{b}',
                   f'  s_cselect_b64 s[{sXm}:{sXm+1}], -1, 0', f'  s_add_u32 s{sBase}, s{sBase}, {KSTEP}']
        if u == 4: it.append(f'  v_cndmask_b32 v{vTX}, v{vXS[4]}, v{vXS4b}, s[{sXm}:{sXm+1}]')
        it.append(f'  s_add_u32 m0, s{sRing}, {(t & 1)*TILE_B + u*4096}')
        if u == 5 and (t & 1): it.append(f'  s_xor_b32 s{sRing}, s{sRing}, {2*TILE_B}')
        else: it.append('NOP')
        it.append(lambda: g.vmop(f'  buffer_load_dwordx4 v{vTX if u == 4 else vXS[u]}, s[{sX}:{sX+3}], s{[sF[0], sX4, sF[0]+1][max(0, u - 3)]} offen{NT_LD} lds', ('L', t, u)))
        return it
    def xdma_items(t):
        return ['  s_nop 0' if x == 'NOP' else x for u in range(6) for x in xdma(t, u)]
    NB0 = int(opts.get('nb0', 1)) if FUSE else 99
    NI = int(opts.get('ni', 1))
    run(bload(0))
    if LEAN == 2: p_tl(); p_warm()
    if LEAN: p_dws(); p_dwl(); p_gb1()
    for s in range(1, min(NB0, NI)): run(bload(s))
    if opts.get('tw'):
        e(f'  v_mov_b32 v{T[5]}, s{sBase}')
        g.vmop(f'  global_load_dword v{BV+2}, v{T[5]}, s[24:25]', ('K',))
        g.vmop(f'  global_load_dword v{BV+3}, v{T[5]}, s[30:31]', ('K',))
    if opts.get('st2') == '2': stamp()
    srd(sX, 24, 113246208)
    hi2, lo4 = T[1], T[4]
    e(f'  s_add_u32 s{sVa}, s24, {TILE_B}')
    e(f'  s_mov_b32 s{sOOB}, {OOB}')
    e(f'  s_lshl_b32 s{sRing}, s{sW}, 10')
    for r in [x + k for x in sF[:3] for k in range(2)]: e(f'  s_mov_b32 s{r}, s{sOOB}')
    e(f'  s_lshr_b32 s{sDec}, s2, 1')
    e(f'  s_xor_b32 s{sDec}, s{sDec}, s2')
    e(f'  s_and_b32 s{sDec}, s{sDec}, 4')
    e(f'  s_lshl_b32 s{sDec}, s{sDec}, 19')
    ROW = [ACC+16, ACC+17, ACC+18]; GG = [ACC+19, ACC+20, ACC+21]
    def rowmap(dst, dst4b, base, u):
        if u == 0:
            e(f'  v_add_u32 v{dst[3]}, {26*768}, v{base}')
            if base != dst[0]: e(f'  v_mov_b32 v{dst[0]}, v{base}')
        if u == 1:
            e(f'  v_cmp_lt_u32 vcc, 5, v{ROW[1]}')
            e(f'  v_add_u32 v{T[8]}, {26*768}, v{base}')
            e(f'  v_add_u32 v{T[9]}, {37*768}, v{base}')
            e(f'  v_cndmask_b32 v{dst[4]}, v{T[8]}, v{T[9]}, vcc')
            if dst4b is not None:
                e(f'  v_add_u32 v{T[8]}, {58*768}, v{base}')
                e(f'  v_add_u32 v{T[9]}, {5*768}, v{base}')
                e(f'  v_cndmask_b32 v{dst4b}, v{T[8]}, v{T[9]}, vcc')
            if base != dst[1]: e(f'  v_mov_b32 v{dst[1]}, v{base}')
        if u == 2:
            e(f'  v_cmp_lt_u32 vcc, 10, v{ROW[2]}')
            e(f'  v_add_u32 v{T[8]}, 7680, v{base}')
            e(f'  v_add_u32 v{dst[5]}, {5*768}, v{base}')
            e(f'  v_cndmask_b32 v{dst[2]}, v{base}, v{T[8]}, vcc')
    e(f'  v_lshrrev_b32 v{GG[0]}, 4, v0')
    e(f'  v_xor_b32 v{T[6]}, s{sT[3]}, v{lo4}')
    for u in range(3):
        if u: e(f'  v_add_u32 v{GG[u]}, {16*u}, v{GG[0]}')
        e(f'  v_mul_u32_u24 v{ROW[u]}, 43, v{GG[u]}')
        e(f'  v_lshrrev_b32 v{ROW[u]}, 7, v{ROW[u]}')
        e(f'  v_mul_u32_u24 v{T[2]}, 3, v{ROW[u]}')
        e(f'  v_sub_u32 v{T[3]}, v{GG[u]}, v{T[2]}')
        e(f'  v_add_u32 v{T[3]}, s{sR1}, v{T[3]}')
        e(f'  v_subrev_u32 v{T[5]}, 3, v{T[3]}')
        e(f'  v_min_u32 v{T[3]}, v{T[3]}, v{T[5]}')
        e(f'  v_add_u32 v{T[3]}, v{T[3]}, v{T[2]}')
        e(f'  v_xor_b32 v{T[5]}, v{ROW[u]}, v{T[6]}')
        e(f'  v_lshlrev_b32 v{T[5]}, 4, v{T[5]}')
        e(f'  v_lshl_add_u32 v{vXS[u]}, v{T[3]}, 8, v{T[5]}')
        rowmap(vXS, vXS4b, vXS[u], u)
    if NB0 <= 2: run(xdma_items(0))
    for s in range(NB0, 2): run(bload(s))
    srd(sO, 30, 113246208)
    e(f'  v_lshlrev_b32 v{vST[0]}, 4, v0')
    for u in range(3):
        if u: e(f'  v_add_u32 v{vST[u]}, {4096*u}, v{vST[0]}')
        e(f'  v_and_b32 v{T[5]}, 7, v{ROW[u]}')
        e(f'  v_xor_b32 v{T[5]}, v{T[5]}, v{lo4}')
        e(f'  v_lshlrev_b32 v{T[5]}, 4, v{T[5]}')
        e(f'  v_lshl_add_u32 v{T[5]}, v{GG[u]}, 8, v{T[5]}')
        e(f'  v_add_u32 v{vOR[u]}, {LDS_O}, v{T[5]}')
    for u in range(3): rowmap(vST, None, vST[u], u)
    e(f'  v_mul_u32_u24 v{T[0]}, 0x300, v{lo4}')
    e(f'  v_xor_b32 v{T[2]}, v{hi2}, v{lo4}')
    e(f'  v_lshl_add_u32 v{vLdsR[0]}, v{T[2]}, 4, v{T[0]}')
    for s in range(1, 4): e(f'  v_xor_b32 v{vLdsR[s]}, {s*64}, v{vLdsR[0]}')
    e(f'  s_mul_i32 s{sT[1]}, s{sW}, 12')
    e(f'  v_and_b32 v{T[2]}, 7, v{lo4}')
    for u in range(2):
        e(f'  v_add_u32 v{T[3]}, s{sT[1]}, v{hi2}')
        if u: e(f'  v_add_u32 v{T[3]}, {4*u}, v{T[3]}')
        e(f'  v_xor_b32 v{T[3]}, v{T[3]}, v{T[2]}')
        e(f'  v_lshl_add_u32 v{vOW[u]}, v{T[3]}, 4, v{T[0]}')
        e(f'  v_add_u32 v{vOW[u]}, {LDS_O}, v{vOW[u]}')
    e(f'  v_bfe_u32 v{T[2]}, v{vLane}, 2, 2')
    e(f'  v_and_b32 v{T[3]}, 3, v{vLane}')
    e(f'  v_lshrrev_b32 v{T[5]}, 1, v{hi2}')
    e(f'  v_lshl_add_u32 v{T[5]}, v{T[5]}, 3, v{T[2]}')
    e(f'  v_mul_u32_u24 v{T[5]}, 192, v{T[5]}')
    e(f'  v_and_b32 v{T[7]}, 1, v{hi2}')
    e(f'  v_mul_u32_u24 v{T[7]}, 3080, v{T[7]}')
    e(f'  v_add_u32 v{T[5]}, v{T[5]}, v{T[7]}')
    e(f'  v_lshl_add_u32 v{T[5]}, v{T[3]}, 4, v{T[5]}')
    e(f'  s_add_u32 s{sT[1]}, s{sBW}, {AREA[2]}')
    e(f'  v_add_u32 v{vTr2}, s{sT[1]}, v{T[5]}')
    e(f'  v_add_u32 v{vTr}, {(AREA[0] - AREA[2]) & 0xffffffff}, v{vTr2}')
    e(f'  s_add_u32 s{sT[1]}, s{sRing}, {LDS_DW}')
    e(f'  v_lshl_add_u32 v{vDW}, v{hi2}, 4, s{sT[1]}')
    e(f'  v_and_b32 v{T[5]}, 1, v{vLane}')
    e(f'  v_lshlrev_b32 v{T[5]}, 4, v{T[5]}')
    e(f'  v_mov_b32 v{T[7]}, 0xffff')
    e(f'  v_lshlrev_b32 v{T[5]}, v{T[5]}, v{T[7]}')
    e(f'  v_lshlrev_b32 v{T[0]}, 1, v{hi2}')
    e(f'  v_bfe_u32 v{T[7]}, v{vLane}, 1, 3')
    e(f'  v_cmp_eq_u32 vcc, v{T[0]}, v{T[7]}')
    e(f'  v_add_u32 v{T[0]}, 1, v{T[0]}')
    e(f'  s_nop 0')
    e(f'  v_cndmask_b32 v{vM[0]}, 0, v{T[5]}, vcc')
    e(f'  v_cmp_eq_u32 vcc, v{T[0]}, v{T[7]}')
    srd(sDS, sDb, 256)
    e(f'  v_cndmask_b32 v{vM[1]}, 0, v{T[5]}, vcc')
    NR = int(opts.get('nr', 2))
    def probe():
        e(f'  s_cmp_lg_u32 s{sPr}, 0')
        e(f'  s_cbranch_scc1 L_npr')
        e(f'  s_mov_b32 s{sPv}, 0xffff')
        e(f'  s_mov_b32 s{sRd}, 0xffff')
        e(f'  s_lshl_b32 s{sT[2]}, s{sW}, 2')
        e(f'  s_add_u32 s{sT[2]}, s{sT[2]}, {LDS_PR}')
        e(f'  v_mov_b32 v{T[0]}, s{sT[2]}')
        e('  s_waitcnt lgkmcnt(0)')
        e(f'  s_memtime s[{sPT}:{sPT+1}]')
        for i in range(NR):
            a, b = (sPT, sPT + 2) if i % 2 == 0 else (sPT + 2, sPT)
            e(f'  s_load_dword s{sT[2]}, s[24:25], s{sPb if i & 1 else sPa} glc')
            e('  s_waitcnt lgkmcnt(0)')
            if i:
                e(f'  s_sub_u32 s{sT[1]}, s{a}, s{b}')
            e(f'  s_memtime s[{b}:{b+1}]')
            if i: e(f'  s_min_u32 s{sRd if (i - 1) & 1 else sPv}, s{sRd if (i - 1) & 1 else sPv}, s{sT[1]}')
        e('  s_waitcnt lgkmcnt(0)')
        e(f'  s_sub_u32 s{sT[1]}, s{sPT}, s{sPT+2}')
        e(f'  s_min_u32 s{sRd}, s{sRd}, s{sT[1]}')
        e(f'  s_lshl_b32 s{sPv}, s{sPv}, 16')
        e(f'  s_or_b32 s{sPv}, s{sPv}, s{sRd}')
        e(f'  v_mov_b32 v{T[2]}, s{sPv}')
        e(f'  ds_write_b32 v{T[0]}, v{T[2]}')
        e('  s_waitcnt lgkmcnt(0)')
        e(f'L_npr:')
    PQ = 248
    assert 11 not in ASLOTS
    def publish():
        if NB0 >= 2:
            e(f'  s_cmp_lg_u32 s{sPr}, 0')
            e(f'  s_cbranch_scc1 L_np1')
            e('  s_barrier')
        e(f'  s_or_b32 s{sT[1]}, s{sPr}, s{sW}')
        e(f'  s_cmp_lg_u32 s{sT[1]}, 0')
        e(f'  s_cbranch_scc1 L_np1')
        e(f'  v_mov_b32 v{PQ+4}, {LDS_PR}')
        e(f'  ds_read_b128 v[{PQ}:{PQ+3}], v{PQ+4}')
        e(f'  s_add_u32 s{sT[1]}, s{sVa}, s{sPa}')
        e(f'  s_lshr_b32 s{sT[1]}, s{sT[1]}, 21')
        e(f'  s_lshr_b32 s{sT[2]}, s2, 2')
        e(f'  s_xor_b32 s{sT[1]}, s{sT[1]}, s{sT[2]}')
        e(f'  s_and_b32 s{sT[1]}, s{sT[1]}, 1')
        e(f'  s_add_u32 s{sT[2]}, s{sT[1]}, 1')
        e(f'  s_sub_u32 s{sT[1]}, 2, s{sT[1]}')
        e(f'  v_mov_b32 v{PQ+6}, s{sT[2]}')
        e(f'  v_mov_b32 v{PQ+5}, s{sT[1]}')
        e(f'  v_mov_b32 v{PQ+7}, 0')
        e(f'  v_mov_b32 v{PQ+4}, s{sEo}')
        e('  s_waitcnt lgkmcnt(0)')
        e(f'  v_pk_min_u16 v{PQ}, v{PQ}, v{PQ+1}')
        e(f'  v_pk_min_u16 v{PQ+2}, v{PQ+2}, v{PQ+3}')
        e(f'  v_pk_min_u16 v{PQ}, v{PQ}, v{PQ+2}')
        e(f'  v_lshrrev_b32 v{PQ+1}, 16, v{PQ}')
        e(f'  v_and_b32 v{PQ}, 0xffff, v{PQ}')
        e(f'  v_cmp_gt_u32 vcc, v{PQ+1}, v{PQ}')
        e('  s_mov_b64 exec, 1')
        e('  s_nop 0')
        e(f'  v_cndmask_b32 v{PQ+6}, v{PQ+6}, v{PQ+5}, vcc')
        e(f'  buffer_atomic_cmpswap v[{PQ+6}:{PQ+7}], v{PQ+4}, s[{sDS}:{sDS+3}], 0 offen sc1')
        e('  s_mov_b64 exec, -1')
        e('L_np1:')
    if opts.get('st2') == '2': stamp()
    for s in range(NI, 2): run(bload(s))
    PP = int(opts.get('pp', 0))
    if NUMA and PP == 0: probe()
    LA = int(opts.get('la', NAR))
    assert LA <= NAR
    if LA > 2: run(bload(2))
    if NUMA and PP == 1: probe()
    if NB0 == 3: run(xdma_items(0))
    if LA > 3: run(bload(3))
    if LA > 4: run(bload(4))
    if NUMA and PP == 2: probe()

    def trs(s):
        it = [lambda: g.wait(('b', s), vm=('W',) if (s == 0 and LEAN) else ('B', s, 5))]
        base = vTr if (s % NAR) < 2 else vTr2
        so = AREA[s % NAR] - AREA[0 if (s % NAR) < 2 else 2]
        it.append(lambda: g.lgop(f'  ds_read_b128 v[{DWR[s & 1]}:{DWR[s & 1]+3}], v{vDW} offset:{s*64}', ('TR', s)))
        for nt in range(6):
            for hh in range(2):
                r = RAW[s & 1] + nt*4 + 2*hh
                it.append(lambda r=r, nt=nt, hh=hh: g.lgop(f'  ds_read_b64_tr_b16 a[{r}:{r+1}], v{base} offset:{so + hh*768 + (nt >> 1)*64 + (nt & 1)*8}', ('TR', s)))
        return it
    def cvts(s, j):
        nt, hh = j // 2, j % 2
        q = FT + 4*(j % NFT)
        if s in ASLOTS:
            return [f'  v_cvt_pk_bf16_f32 v{q}, v{q}, v{q+1}', f'  v_cvt_pk_bf16_f32 v{q+1}, v{q+2}, v{q+3}',
                    f'  v_accvgpr_write_b32 {breg(s, nt, 1, 2*hh)}, v{q}', f'  v_accvgpr_write_b32 {breg(s, nt, 1, 2*hh+1)}, v{q+1}']
        return [f'  v_cvt_pk_bf16_f32 {breg(s, nt, 1, 2*hh)}, v{q}, v{q+1}', f'  v_cvt_pk_bf16_f32 {breg(s, nt, 1, 2*hh+1)}, v{q+2}, v{q+3}']
    def rd(t, i):
        mt, ks = i // 12, i % 12
        x = XF + 8*((i // 2) % 3) + 4*(i & 1)
        g.lgop(f'  ds_read_b128 a[{x}:{x+3}], v{vLdsR[ks & 3]} offset:{(t & 1)*TILE_B + mt*12288 + (ks >> 2)*256}', ('X', t, i))
    TS = NB0 if FUSE else 13
    units = sorted([(0, k) for k in range(12)] + [(1, k) for k in range(8)], key=lambda u: (u[1] + 4*u[0], -u[0]))
    UPS = int(opts.get('ups', 2 if NB0 <= 2 else 3))
    SCH = {s: [] for s in range(13)}
    rem = list(units) if FUSE else []
    for s in range(12, TS - 1, -1):
        n = 2 if s == 12 else UPS
        take = [u for u in reversed(rem) if u[1] < s][:n]
        SCH[s] = sorted(take, key=lambda u: (u[1], u[0]))
        rem = [u for u in rem if u not in take]
    assert not rem, rem
    for mt in range(2 if FUSE else 0):
        seq = [u[1] for s in range(13) for u in SCH[s] if u[0] == mt]
        assert seq[0] == 0 and sorted(seq) == list(range(len(seq)))
    def tl(s): return SCH[s]
    def fx(s, mt, ks): return OB + 12*(s % 2) + 4*SCH[s].index((mt, ks))
    def prd(s):
        return [lambda mt=mt, ks=ks: g.lgop(f'  ds_read_b128 a[{fx(s, mt, ks)}:{fx(s, mt, ks)+3}], v{vLdsR[ks & 3]} offset:{mt*12288 + (ks >> 2)*256}', ('TR', s)) for (mt, ks) in tl(s)]
    def tm(s, mt, ks, nt):
        a = ACC + 24*mt + 4*nt; x = fx(s, mt, ks)
        return f'  v_mfma_f32_16x16x32_bf16 v[{a}:{a+3}], {breg(ks, nt)}, a[{x}:{x+3}], {"0" if ks == 0 else f"v[{a}:{a+3}]"}'
    run(trs(0))
    stamp()
    LAG = int(opts.get('lag', 3))
    XA = int(opts.get('xa', 8)); XB = int(opts.get('xb', 12)); DS = int(opts.get('ds', XA)); BQ = 10
    X0 = int(opts.get('x0', 11 - LA)); X1 = int(opts.get('x1', 11))
    if not FUSE: XA = XB = BQ = 99; DS = int(opts.get('ds', 10)); LAG = int(opts.get('lag', 4))
    assert XB >= BQ
    pend = []
    def decide():
        if NUMA:
            e(f'  s_cmp_eq_u32 s{sRd}, 0')
            e('  s_cbranch_scc1 L_slow')
            e('L_back:')
            e(f'  s_lshr_b32 s{sT[1]}, s2, 1')
            e(f'  s_xor_b32 s{sDec}, s{sRd}, s{sT[1]}')
            e(f'  s_and_b32 s{sDec}, s{sDec}, 2')
            e(f'  s_lshl_b32 s{sDec}, s{sDec}, 20')
    for s in range(12):
        if s == DS and NUMA: e('  s_waitcnt lgkmcnt(0)')
        else: g.wait(('tr', s), lg=('TR', s))
        if s == BQ: e('  s_barrier')
        d = DWR[s & 1]
        for i in range(4): e(f'  v_and_b32 v{d+i}, v{vM[i & 1]}, v{d+i}')
        if s == DS: decide()
        Q = []
        if s + 4 == NB0: Q += xdma_items(0)
        if s + LA < 12: Q += bload(s + LA)
        nx = trs(s + 1) if s + 1 < 12 else []
        if s == NB0 - 1:
            nx = nx[:1] + ['  s_barrier'] + nx[1:]
        nx += prd(s + 1)
        Q = (Q + nx) if opts.get('qo', '1') == '0' else (nx + Q)
        if s == DS - 1 and NUMA: Q.append(f'  s_load_dword s{sRd}, s[{sDb}:{sDb+1}], s{sEo}')
        if s == X0 and not FUSE: Q += xdma_items(0)
        if s == X1 and not FUSE: Q += xdma_items(1)
        if s == XA: Q += xdma_items(1)
        if s == XB: Q += xdma_items(2)
        if s == 11 and FUSE: Q += [lambda i=i: rd(0, i) for i in range(20, 24)]
        while len(Q) < 2: Q.append('  s_nop 0')
        M = []
        TL = [tm(s, mt, ks, nt) for nt in range(6) for (mt, ks) in tl(s)]
        for j in range(12):
            nt, hh = j // 2, j % 2
            r = RAW[s & 1] + nt*4 + 2*hh
            q = FT + 4*(j % NFT)
            M.append((f'  v_mfma_f32_16x16x16_bf16 v[{q}:{q+3}], v[{d+2*hh}:{d+2*hh+1}], a[{r}:{r+1}], 0', j))
            k0, k1 = (j*len(TL))//12, ((j+1)*len(TL))//12
            M += [(x, None) for x in TL[k0:k1]]
        run(Q[:2]); Q = Q[2:]
        front = int(opts.get('front', 2))
        cq = []
        for mi, (m, j) in enumerate(M):
            if j is not None:
                run(cq); cq = []
            e(m)
            if j is not None:
                pend.append(cvts(s, j))
                if len(pend) > LAG: cq = pend.pop(0)
            QE = (len(M) * int(opts.get('qe', 4))) // 4
            nq = -(-len(Q) // max(1, QE - mi)) if mi < QE else len(Q)
            run(Q[:nq]); Q = Q[nq:]
            nc = 2 if (mi + 1 < len(M) and M[mi + 1][1] is None) else len(cq)
            run(cq[:nc]); cq = cq[nc:]
        assert not Q and not cq
        if s in (3, 7) and not opts.get('st2'): stamp()
        if s == (0 if NB0 >= 2 else NB0 - 1) and NUMA: publish()
    if FUSE:
        g.wait(('tr', 12), lg=('TR', 12))
        T0 = [tm(12, 0, 11, nt) for nt in range(6)]
        T1 = [tm(12, 1, ks, nt) for (mt, ks) in tl(12) if mt == 1 for nt in range(6)]
        for nt in range(4):
            e(T0[nt])
            if pend: run(pend.pop(0))
        if DS == 12:
            e('  s_waitcnt lgkmcnt(0)'); decide()
        e(f'  v_sub_u32 v{vST4b}, v{vXS4b}, v{vXS[4]}')
        e(f'  v_add_u32 v{vST4b}, v{vST4b}, v{vST[4]}')
        e(T0[4]); e(T0[5])
        stamp()
        FIN = (T1, XB)
    else:
        run(pend.pop(0)); run(pend.pop(0))
        stamp()
        e(f'  v_sub_u32 v{vST4b}, v{vXS4b}, v{vXS[4]}')
        e(f'  v_add_u32 v{vST4b}, v{vST4b}, v{vST[4]}')
        for r in sSo: e(f'  s_mov_b32 s{r}, s{sOOB}')
        g.wait('x0', vm=('L', 0, 5))
        e('  s_barrier')
        for i in range(4): rd(0, i)
        while pend: run(pend.pop(0))
        if X1 == 13: run(xdma_items(1))
        else: assert NAR == 4 and X1 >= DS

    def epi(mt, u, po):
        a = ACC + 24*mt + 8*u
        cv = [f'  v_cvt_pk_bf16_f32 v{a+i}, v{a+2*i}, v{a+2*i+1}' for i in range(4)]
        off = po*TILE_B + mt*12288 + (u >> 1)*128
        if DIR:
            return cv + [lambda: g.vmop(f'  buffer_store_dwordx4 v[{a}:{a+3}], v{vTS if mt else vST[0]}, s[{sO}:{sO+3}], s{sSo[2] if mt else sSo[0]} offen offset:{64*u}{NT_ST}', None)]
        if opts.get('w64'):
            return cv[:2] + [lambda: g.lgop(f'  ds_write_b64 v{vOW[u & 1]}, v[{a}:{a+1}] offset:{off}', ('OWa', mt, u))] + cv[2:] + \
                   [lambda: g.lgop(f'  ds_write_b64 v{vOW[u & 1]}, v[{a+2}:{a+3}] offset:{off+8}', ('OW', mt, u))]
        return cv + [lambda: g.lgop(f'  ds_write_b128 v{vOW[u & 1]}, v[{a}:{a+3}] offset:{off}', ('OW', mt, u))]
    OBT = 'a'
    def out_read(t, u):
        o = OB + 4*u
        g.lgop(f'  ds_read_b128 {OBT}[{o}:{o+3}], v{vOR[u % 3]} offset:{((t^1)&1)*TILE_B + (u // 3)*12288}', ('O', t, u))
    def out_store(t, u, key):
        o = OB + 4*u
        g.wait((key, 'o', u), lg=('O', t, u), opt=True)
        g.vmop(f'  buffer_store_dwordx4 {OBT}[{o}:{o+3}], v{vTS if u == 4 else vST[u]}, s[{sO}:{sO+3}], s{sSo[max(0, u - 2)]} offen{NT_ST}', None)
    def st_adv(d=0):
        p, q = sF[2 - d], sF[3 - d]
        if DIR:
            return [f'  s_mov_b32 s{sSo[0]}, s{p}', f'  s_min_u32 s{sSo[2]}, s{p}, s{p+1}', f'  s_cmp_gt_u32 s{p}, s{p+1}',
                    f'  s_cselect_b64 s[{sSm}:{sSm+1}], -1, 0', 'NOP', f'  v_cndmask_b32 v{vTS}, v{vST[1]}, v{vST[2]}, s[{sSm}:{sSm+1}]']
        return [f'  s_mov_b32 s{sSo[0]}, s{p}', f'  s_mov_b32 s{sSo[1]}, s{q}', f'  s_mov_b32 s{sSo[3]}, s{q+1}', f'  s_min_u32 s{sSo[2]}, s{q}, s{q+1}',
                f'  s_cmp_gt_u32 s{q}, s{q+1}', f'  s_cselect_b64 s[{sSm}:{sSm+1}], -1, 0',
                'NOP', f'  v_cndmask_b32 v{vTS}, v{vST[4]}, v{vST4b}, s[{sSm}:{sSm+1}]']
    def ints(k, d): return [int(v) for v in opts.get(k, d).split(',')]
    OR_AT = ints('or', '2,3,4,5,6,7'); OS_AT = ints('os', '14,20,30,40,52,64')
    UORD = ints('uord', '3,4,5,0,1,2')
    XD_AT = ints('xd', '76,88,100,112,124,136')
    E1_AT = ints('e1', '27,39,61'); E0_AT = ints('e0', '99,106,123')
    SH_AT = int(opts.get('sh', 26)); CAP = int(opts.get('cap', 1)); HG = int(opts.get('hg', 0))
    def fillers(t):
        F = [[] for _ in range(144)]
        use = [0] * 150
        for r in range(144):
            if r % 12 in (0, 1, 11): use[r] = 1
        HP = opts.get('hp')
        def heavy(rho, it):
            while use[rho] or (HP and rho % 2 != int(HP)): rho += 1
            F[rho].append(it); use[rho] = 9
            for k in range(1, HG + 1): use[rho + k] = max(use[rho + k], 8)
            return rho
        def light(rho, items, cap=CAP, back=False):
            if back:
                for it in reversed(items):
                    while use[rho] >= cap: rho -= 1
                    F[rho].insert(0, it); use[rho] += 1
                return rho
            for it in items:
                while use[rho] >= cap: rho += 1
                F[rho].append(it); use[rho] += 1
            return rho
        kp = t & 1
        post = []
        vpos = []
        for k in range(0 if DIR else 6):
            u = UORD[k]
            lastst = heavy(OS_AT[k], lambda u=u: out_store(t, u, kp))
            vpos.append(lastst)
        xpos = []
        for u in range(6):
            it = [x for x in xdma(t + PD, u) if x != 'NOP']
            xpos.append((heavy(XD_AT[u], it[-1]), it[:-1]))
        for mt, AT in ((1, E1_AT), (0, E0_AT)):
            for u in range(3):
                r = AT[u]
                for it in epi(mt, u, t & 1):
                    r = (heavy(r, it) if callable(it) else light(r, [it], 1)) + 1
                if DIR:
                    vpos.append(r - 1)
                    if mt == 1: lastst = r - 1
        for k in range(0 if DIR else 6):
            light(OR_AT[k], [lambda u=UORD[k]: out_read(t, u)], 1)
        prevx = 0
        for (r, it) in xpos:
            r0 = light(r - 1, it, 2 if len(it) > 6 else CAP, back=True)
            assert r0 >= 24 and r0 > prevx, (r0, prevx)
            prevx = r
        if opts.get('lim'):
            for r in vpos + [x[0] for x in xpos]:
                light(r - 1, [f'  s_waitcnt vmcnt({opts["lim"]})'], 2, back=True)
        for a, b in zip(xpos, xpos[1:]): assert b[0] - a[0] >= 5
        r1 = light(max(lastst, xpos[0][0]) + 1, [x for x in st_adv() if x != 'NOP'], 2)
        assert r1 < (E0_AT[0] + 4 if DIR else 144)
        return F
    def tile(t, G0=0):
        kp = t & 1
        F0 = fillers(t); F1 = fillers(t + 1)
        for G_ in range(G0, 12):
            mt, kg = G_ // 6, G_ % 6
            if G_ == 10:
                if G0 == 0 and kp == 1 and opts.get('skv'):
                    e(f'  s_cmp_ge_u32 s{sF[1]}, s{sOOB}')
                    e(f'  s_cbranch_scc1 L_npv{t}')
                    g.wait((kp, 'barv'), vm=('L', t + 1, 5))
                    e(f'L_npv{t}:')
                    g.wait((kp, 'bar'), lg=('OW', 0, 2))
                elif G0 == 0: g.wait((kp, 'bar'), vm=('L', t + 1, 5), lg=('OW', 0, 2))
                if kp == 0 and not unroll: e('L_ent:')
                e('  s_barrier')
                if t & 1:
                    for r in vLdsR: e(f'  v_xor_b32 v{r}, {2*TILE_B}, v{r}')
            g.wait((kp, 'x', G_), lg=('X', t, 2*G_ + 1))
            if opts.get('pad'): e(f'  s_nop {opts["pad"]}')
            for nt in range(6):
                for k in range(2):
                    kk = k ^ (nt & 1) if opts.get('snake') else k
                    ks = 2*kg + kk; i = 12*mt + ks
                    x = XF + 8*(G_ % 3) + 4*kk
                    a = ACC + 24*mt + 4*nt
                    c = '0' if kg == 0 and k == 0 else f'v[{a}:{a+3}]'
                    e(f'  v_mfma_f32_16x16x32_bf16 v[{a}:{a+3}], {breg(ks, nt)}, a[{x}:{x+3}], {c}')
                    gap = 12*G_ + 2*nt + k
                    if gap % 12 in (0, 1):
                        j = 2*G_ + 4 + (gap % 12)
                        if j < 24: rd(t, j)
                        else: rd(t + 1, j - 24)
                    run(F0[gap + 24] if gap < 120 else F1[gap - 120])
    if FUSE:
        Q = (xdma_items(2) if XB == 12 else []) + [x if x != 'NOP' else '  s_nop 0' for x in st_adv()]
        E = epi(0, 0, 0) + epi(0, 1, 0) + epi(0, 2, 0)
        T1 = list(FIN[0])
        run(Q[:4]); Q = Q[4:]
        while T1 or E:
            if T1: e(T1.pop(0))
            run(E[:3]); E = E[3:]
        run(Q)
    stamp()
    if DBG:
        e(f'  s_mov_b32 s94, {sn[0]}')
        e('  s_mov_b32 s60, s64')
        e('  s_memtime s[38:39]') if 0 else e('  s_memtime s[86:87]')
    def tail(t):
        if DIR:
            e('  s_nop 3')
            for u in range(3): run(epi(1, u, t & 1))
            return
        done = [UORD[k] for k in range(6) if OS_AT[k] < 24]
        rdone = [UORD[k] for k in range(6) if OR_AT[k] < 24]
        for u in UORD:
            if u not in rdone: out_read(t, u)
        e('  s_nop 3')
        for u in range(3): run(epi(1, u, t & 1))
        for u in UORD:
            if u not in done: out_store(t, u, 'T')
        run([x if x != 'NOP' else '  s_nop 0' for x in st_adv(1)])
        e('  s_waitcnt lgkmcnt(0)')
        e('  s_barrier')
        for u in range(3):
            e(f'  ds_read_b128 a[{XF+4*u}:{XF+4*u+3}], v{vOR[u]} offset:{(t & 1)*TILE_B + 12288}')
        for u in range(3):
            e(f'  s_waitcnt lgkmcnt({2-u})')
            e(f'  buffer_store_dwordx4 a[{XF+4*u}:{XF+4*u+3}], v{vTS if u == 1 else vST[u+3]}, s[{sO}:{sO+3}], s{sSo[u+1]} offen{NT_ST}')
    if FUSE: g.wait('ent', vm=('L', 1, 5), lg=('OW', 0, 2))
    if unroll:
        tile(0, 10 if FUSE else 0)
        for t in range(1, NTILE): tile(t)
        tail(NTILE)
    else:
        if FUSE: e('  s_branch L_ent')
        if opts.get('al'): e(f'  .p2align {opts["al"]}')
        e('L_loop:')
        tile(0)
        tile(1)
        if DBG:
            e('  s_mov_b32 m0, s94'); e('  s_nop 0'); e('  v_writelane_b32 v0, s60, m0')
            e('  s_add_u32 s94, s94, 1')
            e('  s_min_u32 s94, s94, 15')
            e('  s_memrealtime s[60:61]')
        e(f'  s_cmp_lt_u32 s{sF[1]}, s{sOOB}')
        e(f'  s_cbranch_scc1 L_loop')
        e('L_tail:')
        if DBG: e('  s_memtime s[88:89]')
        tail(0)
        if DBG: e('  s_mov_b32 s94, 15')
    if DBG:
        e('  s_mov_b32 m0, s94'); e('  s_nop 0'); e('  v_writelane_b32 v0, s60, m0')
        e('  s_add_u32 s94, s94, 1')
        e('  s_load_dwordx2 s[24:25], s[0:1], 40')
        e('  s_waitcnt vmcnt(0)')
        e('  s_memrealtime s[54:55]')
        e('  s_memtime s[98:99]')
        e('  s_waitcnt lgkmcnt(0)')
        e('  s_mov_b32 m0, s94'); e('  s_nop 0'); e('  v_writelane_b32 v0, s54, m0')
        e('  s_sub_u32 s98, s98, s96')
        e('  s_add_u32 s98, s98, s64')
        e('  v_writelane_b32 v0, s98, 31')
        e('  s_sub_u32 s88, s88, s86')
        e('  v_writelane_b32 v0, s88, 30')
        e(f'  v_writelane_b32 v0, s{sPv}, 29')
        e(f'  v_writelane_b32 v0, s{sDec}, 28')
        e(f'  v_writelane_b32 v0, s3, 27')
        for i in range(sn[0]): e(f'  v_writelane_b32 v0, s{64+2*i}, {i}')
        e('  s_mov_b32 s56, s24'); e('  s_and_b32 s57, s25, 0xffff'); e('  s_mov_b32 s58, 452984832'); e('  s_mov_b32 s59, 0x00020000')
        e('  s_lshl_b32 s26, s2, 9'); e(f'  s_lshl_b32 s27, s{sW}, 7'); e('  s_add_u32 s26, s26, s27')
        e('  v_mbcnt_lo_u32_b32 v1, -1, 0')
        e('  v_lshlrev_b32 v1, 2, v1')
        e('  s_mov_b64 exec, 0xffffffff')
        e('  buffer_store_dword v0, v1, s[56:59], s26 offen')
    if AMP:
        e('  s_waitcnt vmcnt(0)')
        e('  s_memrealtime s[54:55]')
        e('  s_waitcnt lgkmcnt(0)')
        e(f'  s_cmp_lg_u32 s2, {int(opts.get("ampwg", 100))}')
        e('  s_cbranch_scc1 L_done')
        e(f'  s_sub_u32 s27, s{54 if AMP == "e" else 64 + 2*int(AMP)}, s64')
        e('  s_mul_i32 s27, s27, 10')
        e('L_spin:')
        e('  s_sleep 8')
        e('  s_memrealtime s[56:57]')
        e('  s_waitcnt lgkmcnt(0)')
        e('  s_sub_u32 s26, s56, s54')
        e('  s_cmp_lt_u32 s26, s27')
        e('  s_cbranch_scc1 L_spin')
    if NUMA:
        e('  s_endpgm')
        e('L_slow:')
        e(f'  v_mov_b32 v{vTX}, s{sEo}')
        SP = 254 if DS <= 10 else FT
        assert DS != 11
        e(f'  v_mov_b32 v{SP}, 1')
        e(f'  v_mov_b32 v{SP+1}, 0')
        e('  s_mov_b64 exec, 1')
        e(f'  buffer_atomic_cmpswap v[{SP}:{SP+1}], v{vTX}, s[{sDS}:{sDS+3}], 0 offen sc0 sc1')
        e('  s_waitcnt vmcnt(0)')
        e(f'  v_readfirstlane_b32 s{sRd}, v{SP}')
        e('  s_mov_b64 exec, -1')
        if DBG: e('  s_mov_b32 s3, 1')
        e('  s_branch L_back')
    e('L_done:')
    e('  s_endpgm')
    e('.section .rodata,"a"')
    e('.p2align 6')
    e('.amdhsa_kernel standalone__depthwise_separable__vision_kernel')
    e('  .amdhsa_next_free_vgpr 512')
    e('  .amdhsa_next_free_sgpr 100')
    e('  .amdhsa_accum_offset 256')
    e('  .amdhsa_group_segment_fixed_size 0')
    e('  .amdhsa_kernarg_size 48')
    e('  .amdhsa_user_sgpr_count 2')
    e('  .amdhsa_user_sgpr_kernarg_segment_ptr 1')
    e('  .amdhsa_system_sgpr_workgroup_id_x 1')
    e('  .amdhsa_float_denorm_mode_32 3')
    e('.end_amdhsa_kernel')

if __name__ == '__main__':
    out = sys.argv[1]
    opts = dict(a.split('=', 1) for a in sys.argv[2:])
    for k in ('nt_ld', 'nt_st', 'nt_b'):
        if k in opts: opts[k] = (' ' + opts[k].replace('+', ' ')) if opts[k] != 'none' else ''
    open(out, 'w').write(gen(opts))
```

```python
import sys, re
from gen3 import G, HDR
from gen5 import regs_of

def hazard_check(L):
    ins = [l.strip() for l in L if l.startswith('  ') and not l.strip().startswith(';')]
    hist = []; st = 0; last_valu = []; last_st = []; last_m0 = -9; last_sg = []; lastscc = ''
    for l in ins:
        op = l.split()[0]
        toks = [t.strip(',') for t in l.split()[1:]]
        allr = set()
        for t in toks: allr |= regs_of(t)
        if op.startswith('v_mfma'):
            d = regs_of(toks[0]); a = regs_of(toks[1]); b = regs_of(toks[2]); c = regs_of(toks[3])
            for (s0, r) in last_valu:
                if st - s0 - 1 < 2 and (r & (a | b | c)): raise Exception(f'VALU->MFMA hazard: {l}')
            for (s0, dd, cc) in hist:
                if st - s0 - 1 < 8 and (dd & (a | b)): raise Exception(f'MFMA D->A/B hazard: {l}')
                if st - s0 - 1 < 6 and (dd & c) and dd != c: raise Exception(f'MFMA D->C overlap hazard: {l}')
                if st - s0 - 1 < 6 and (dd & d) and dd != c: raise Exception(f'MFMA D->D WAW: {l}')
            for (s0, r) in last_st:
                if st - s0 - 1 < 8 and (r & d): raise Exception(f'store data WAR (mfma): {l}')
            hist.append((st, d, c))
        elif op.startswith('v_') or op.startswith('ds_') or op.startswith('buffer_'):
            for (s0, dd, cc) in hist:
                if st - s0 - 1 < 8 and (dd & allr): raise Exception(f'MFMA D->use hazard dist {st-s0-1}: {l}')
            if op.startswith('v_'):
                w = regs_of(toks[0])
                for (s0, dd, cc) in hist:
                    if st - s0 - 1 < 3 and (cc & w): raise Exception(f'MFMA C WAR hazard: {l}')
                for (s0, r) in last_st:
                    if st - s0 - 1 < 2 and (r & w): raise Exception(f'store data WAR: {l}')
                if op in ('v_readfirstlane_b32', 'v_readlane_b32'):
                    for (s0, r) in last_valu:
                        if st - s0 - 1 < 1 and (r & regs_of(toks[1])): raise Exception(f'readlane hazard: {l}')
                    last_sg.append((st, toks[0]))
                else:
                    for (s0, sg) in last_sg:
                        if st - s0 - 1 < 2 and sg in toks[1:]: raise Exception(f'VALU sgpr->VALU hazard: {l}')
                last_valu.append((st, w)); last_valu = last_valu[-4:]
            if op.startswith('buffer_store') or op.startswith('ds_write'):
                last_st.append((st, regs_of(toks[0] if op.startswith('buffer') else toks[1]))); last_st = last_st[-4:]
            if op.startswith('buffer_') and l.endswith('lds') and st - last_m0 - 1 < 1: raise Exception(f'm0 hazard: {l}')
            if op.startswith('buffer_'):
                for (s0, sg) in last_sg:
                    if st - s0 - 1 < 5 and sg in toks: raise Exception(f'VALU sgpr->VMEM hazard: {l}')
        elif op.startswith('s_') and toks and toks[0] == 'm0': last_m0 = st
        if op.startswith('s_cselect') or op.startswith('s_cbranch_scc'):
            if not (lastscc.startswith('s_cmp') or lastscc.startswith('s_bitcmp')): raise Exception(f'SCC clobbered by {lastscc}: {l}')
        elif re.match(r's_(add|sub|and|or|xor|min|max|lshl|lshr|cmp|bitcmp|andn2|ashr|bfe|not)', op): lastscc = op
        hist = [h for h in hist if st - h[0] < 24]
        st += int(toks[0]) + 1 if op == 's_nop' else 1

class G2(G):
    def __init__(self):
        self.need = {}
        super().__init__()
    def reset(self, mode):
        super().reset(mode); self.lgd = 0; self.vmd = 0
    def _cnt(self, lst, tag):
        if tag[:2] == ('O', 0) and tag not in lst: return len(lst)
        return super()._cnt(lst, tag)
    def wait(self, key, vm=None, lg=None, opt=False):
        if self.mode == 'collect2':
            nd = False
            if lg is not None and len(self.lg) - self._cnt(self.lg, lg) > self.lgd: nd = True
            if vm is not None and len(self.vm) - self._cnt(self.vm, vm) > self.vmd: nd = True
            self.need[key] = self.need.get(key, False) or nd or not opt
            v, l = self.sites[key]
            if not opt:
                if lg is not None: self.lgd = max(self.lgd, len(self.lg) - l)
                if vm is not None: self.vmd = max(self.vmd, len(self.vm) - v)
            return
        if self.mode in ('emit', 'check') and not self.need[key]: return
        super().wait(key, vm, lg)

def gen(opts):
    g = G2()
    g.reset('collect')
    build(g, opts, unroll=True)
    g.reset('collect2')
    build(g, opts, unroll=True)
    g.reset('check')
    build(g, opts, unroll=True)
    hazard_check(g.L)
    L2 = []; skip = None
    for l in g.L:
        if skip:
            if l == skip + ':': skip = None
            continue
        L2.append(l)
        m = re.match(r'  s_cbranch_scc1 (L_np\w*)', l)
        if m: skip = m.group(1)
    hazard_check(L2)
    g.reset('emit')
    build(g, opts, unroll=False)
    L = g.L
    abl = opts.get('abl', '')
    if abl:
        i0 = L.index('L_loop:'); i1 = L.index('L_tail:')
        def keep(l):
            s = l.strip()
            if 'O' in abl and (s.startswith('ds_write_b128') or re.match(r'ds_read_b128 a\[(16[89]|17\d|18\d)', s)): return False
            if 'T' in abl and s.startswith('buffer_store'): return False
            if 'L' in abl and s.startswith('buffer_load'): return False
            if 'B' in abl and s.startswith('s_barrier'): return False
            if 'C' in abl and s.startswith('v_cvt'): return False
            if 'H' in abl and s.startswith('v_mfma') and int(re.search(r'v\[(\d+):', s).group(1)) % 8 == 4: return False
            return True
        L = L[:i0] + [l for l in L[i0:i1] if keep(l)] + L[i1:]
    return '\n'.join(L) + '\n'

def build(g, opts, unroll):
    NT_LD = opts.get('nt_ld', ' nt'); NT_ST = opts.get('nt_st', ' sc1'); NT_B = opts.get('nt_b', '')
    DBG = int(opts.get('dbg', 0)); AMP = opts.get('amp')
    DIR = int(opts.get('dir', 0))
    PD = int(opts.get('pd', 2))
    e = g.e
    TILE_B = 32 * 768; NTILE = 18; STRIDE = 256 * TILE_B
    LDS_O = 4 * TILE_B + 256; LDS_DW = 6 * TILE_B + 512; LDS_PR = LDS_DW + 4096; LDS_TOTAL = LDS_PR + 64
    AREA = [LDS_O, LDS_O + TILE_B + 64, 2 * TILE_B, 3 * TILE_B + 64]
    OOB = 113246208
    vLdsR = [1, 2, 3, 4]; vOR = [5, 6, 7]; vXS = [8, 9, 10, 11, 12, 13]; vXS4b = 14; vTX = 15
    ACC = 16
    PT = 64
    vBL = [PT, PT+1, PT+2]; vTr = PT+3; vDW = PT+4; vM = [PT+5, PT+6]; vTr2 = PT+7
    DWR = [PT+8, PT+12]
    vST = [PT+16+i for i in range(6)]; vOW = [PT+22, PT+23]; vST4b = PT; vTS = PT+1
    T = [ACC+i for i in range(12)]; vLane = ACC + 12
    FUSE = int(opts.get('fuse', 0))
    FT = 88 if FUSE else ACC; NFT = 6 if FUSE else 12
    BV = 112 if FUSE else 88
    NA = 6 if FUSE else 5
    ASLOTS = [int(c, 16) for c in opts.get('aslots', '012346' if FUSE else '13579')]
    NAR = 4 if FUSE else int(opts.get('nar', 4))
    if NAR == 5: AREA = [TILE_B + k * (TILE_B + 64) for k in range(5)]
    assert len(ASLOTS) == NA
    VSLOTS = [s for s in range(12) if s not in ASLOTS]
    XF = 144
    OB = 168
    RAW = [192, 216]
    sX, sO, sP, sD = 4, 8, 12, 16
    sW, sCnt = 20, 21
    sRing, sOOB = 39, 40
    sF = [76, 78, 80, 82]
    sBase, sVa, sDec, sEnd = 32, 33, 34, 35
    sX4 = 22; sXm = 56
    sSo = [58, 59, 62, 63]; sSm = 90
    sDb = 92
    sDS = 16
    sRd = 95; sEo = 36; sPa = 37; sPb = 38; sPr = 23; sPv = 41; sPT = 84
    KSTEP = 16 * 49152
    sG = [42, 43, 44]; sQ = [45, 46, 47, 48]; sBW = 49; sT = [50, 51, 52, 53]; sR1, sR2 = 54, 55

    def breg(s, nt, n=4, o=0):
        if s in ASLOTS:
            i = ASLOTS.index(s) * 24 + nt * 4 + o
            return f'a[{i}:{i+n-1}]' if n > 1 else f'a{i}'
        i = BV + VSLOTS.index(s) * 24 + nt * 4 + o
        return f'v[{i}:{i+n-1}]' if n > 1 else f'v{i}'
    sn = [0]
    def stamp():
        if DBG or AMP:
            e(f'  s_memrealtime s[{64+2*sn[0]}:{65+2*sn[0]}]'); sn[0] += 1
    def run(items):
        for it in items:
            if callable(it): it()
            else: e(it)

    e(HDR.rstrip('\n'))
    e(f'; @launch grid=(256,1,1) block=(256,1,1) lds={LDS_TOTAL}')
    e('.amdgcn_target "amdgcn-amd-amdhsa--gfx950"')
    e('.text')
    e('.globl standalone__depthwise_separable__vision_kernel')
    e('.p2align 8')
    e('.type standalone__depthwise_separable__vision_kernel,@function')
    e('standalone__depthwise_separable__vision_kernel:')
    e('  s_load_dwordx8 s[24:31], s[0:1], 0')
    e(f'  s_load_dwordx2 s[{sDb}:{sDb+1}], s[0:1], 32')
    e('  s_cmp_ge_u32 s2, 256')
    e('  s_cbranch_scc1 L_done')
    stamp()
    if AMP == 'c': e('  s_memtime s[96:97]')
    if DBG: e('  s_memtime s[96:97]'); e('  s_mov_b32 s3, 0'); e(f'  s_mov_b32 s{sPv}, 0')
    e(f'  v_lshrrev_b32 v{T[0]}, 6, v0')
    e(f'  v_and_b32 v{vLane}, 63, v0')
    e(f'  v_readfirstlane_b32 s{sW}, v{T[0]}')
    KICK = int(opts.get('kick', 0))
    def kick_a():
        e(f'  s_lshr_b32 s{sT[2]}, s2, 3')
        e(f'  s_mul_i32 s{sT[2]}, s{sT[2]}, 9216')
        if KICK == 2: e(f'  v_and_b32 v{T[5]}, 127, v0')
        e(f'  v_lshl_add_u32 v{T[5]}, v{T[5] if KICK == 2 else 0}, 7, s{sT[2]}')
        e(f'  v_min_u32 v{T[5]}, 294784, v{T[5]}')
    def kick_b():
        e('  s_waitcnt lgkmcnt(0)')
        g.vmop(f'  global_load_dword v{BV+1}, v{T[5]}, s[28:29]', ('K',))
    if KICK: kick_a()
    if KICK and opts.get('kf'): kick_b()
    CW = int(opts.get('cw', 128))
    if CW:
        e(f'  s_getpc_b64 s[{sT[0]}:{sT[1]}]')
        e('L_pc:')
        e(f'  v_mul_u32_u24 v{T[2]}, {CW}, v0')
        e(f'  v_min_u32 v{T[2]}, L_done-L_pc, v{T[2]}')
        e(f'  v_mov_b32 v{T[3]}, s{sT[1]}')
        e(f'  v_add_co_u32 v{T[2]}, vcc, s{sT[0]}, v{T[2]}')
        e(f'  s_nop 1')
        e(f'  v_addc_co_u32 v{T[3]}, vcc, 0, v{T[3]}, vcc')
        g.vmop(f'  global_load_dword v{BV}, v[{T[2]}:{T[3]}], off', ('CW',))
    if KICK and not opts.get('kf'): kick_b()
    e(f'  s_lshr_b32 s{sT[0]}, s2, 3')
    e(f'  s_and_b32 s{sR2}, s{sT[0]}, 3')
    e(f'  s_lshr_b32 s{sR1}, s{sT[0]}, 2')
    e(f'  s_mul_i32 s{sT[1]}, s{sR1}, 11')
    e(f'  s_lshr_b32 s{sT[1]}, s{sT[1]}, 5')
    e(f'  s_mul_i32 s{sT[1]}, s{sT[1]}, 3')
    e(f'  s_sub_u32 s{sR1}, s{sR1}, s{sT[1]}')
    if opts.get('norot'):
        e(f'  s_mov_b32 s{sR1}, 0'); e(f'  s_mov_b32 s{sR2}, 0')
    e(f'  s_mul_i32 s{sT[2]}, s{sW}, 192')
    for i in range(3):
        if i: e(f'  v_add_u32 v{T[1]}, {64*i}, v{vLane}')
        q = T[1] if i else vLane
        e(f'  v_mul_u32_u24 v{T[2]}, 0xaaab, v{q}')
        e(f'  v_lshrrev_b32 v{T[2]}, 19, v{T[2]}')
        e(f'  v_mul_u32_u24 v{T[3]}, 576, v{T[2]}')
        e(f'  v_lshl_add_u32 v{T[3]}, v{vLane}, 4, v{T[3]}')
        if i == 1:
            e(f'  v_lshrrev_b32 v{T[2]}, 3, v{T[2]}')
            e(f'  v_mul_u32_u24 v{T[2]}, 6144, v{T[2]}')
            e(f'  v_add_u32 v{T[3]}, v{T[3]}, v{T[2]}')
        if i == 2: e(f'  v_add_u32 v{T[3]}, 6144, v{T[3]}')
        e(f'  v_add_u32 v{vBL[i]}, s{sT[2]}, v{T[3]}')
    NUMA = int(opts.get('numa', 1))
    PRM = int(opts.get('prm', 28))
    def srd(sd, lo, nbytes):
        e(f'  s_mov_b32 s{sd}, s{lo}')
        e(f'  s_and_b32 s{sd+1}, s{lo+1}, 0xffff')
        e(f'  s_mov_b32 s{sd+2}, {nbytes}')
        e(f'  s_mov_b32 s{sd+3}, 0x00020000')
    def p_gb1():
        e(f'  s_add_u32 s{sG[1]}, s{sG[0]}, 98304')
        e(f'  s_cmp_eq_u32 s{sR1}, 2')
        e(f'  s_cselect_b32 s{sG[1]}, 0, s{sG[1]}')
        e(f'  s_add_u32 s{sG[2]}, s{sG[1]}, 98304')
        e(f'  s_cmp_eq_u32 s{sR1}, 1')
        e(f'  s_cselect_b32 s{sG[2]}, 0, s{sG[2]}')
        for q in range(1, 4):
            e(f'  s_xor_b32 s{sQ[q]}, s{sR2}, {q}')
            e(f'  s_mul_i32 s{sQ[q]}, s{sQ[q]}, {TILE_B}')
    def p_dws():
        e(f'  s_lshl_b32 s{sT[3]}, s{sR2}, 2')
        e(f'  v_lshrrev_b32 v{T[1]}, 4, v{vLane}')
        e(f'  v_add_u32 v{T[2]}, s{sR1}, v{T[1]}')
        e(f'  v_subrev_u32 v{T[3]}, 3, v{T[2]}')
        e(f'  v_min_u32 v{T[2]}, v{T[2]}, v{T[3]}')
        e(f'  v_and_b32 v{T[4]}, 15, v{vLane}')
        e(f'  v_xor_b32 v{T[3]}, s{sT[3]}, v{T[4]}')
        e(f'  v_lshlrev_b32 v{T[3]}, 4, v{T[3]}')
        e(f'  v_lshl_add_u32 v{T[3]}, v{T[2]}, 8, v{T[3]}')
        e(f'  v_cmp_lt_u32 vcc, 47, v{vLane}')
        e(f'  s_lshl_b32 s{sT[0]}, s{sW}, 10')
        e(f'  s_add_u32 m0, s{sT[0]}, {LDS_DW}')
        e(f'  v_cndmask_b32 v{T[3]}, v{T[3]}, v{vBL[2]}, vcc')
    def p_tl():
        e(f'  s_lshr_b32 s{sT[1]}, s2, 5')
        e(f'  s_and_b32 s{sT[2]}, s2, 3')
        e(f'  s_lshl2_add_u32 s{sEo}, s{sT[1]}, s{sT[2]}')
        e(f'  s_lshl_b32 s{sEo}, s{sEo}, 2')
        e(f'  s_mul_i32 s{sT[1]}, s{sT[1]}, 288')
        e(f'  s_lshl2_add_u32 s{sT[2]}, s{sR2}, s{sT[2]}')
        e(f'  s_add_u32 s{sT[1]}, s{sT[1]}, s{sT[2]}')
        e(f'  s_mul_i32 s{sBase}, s{sT[1]}, 49152')
        e(f'  s_add_u32 s{sEnd}, s{sBase}, {NTILE*KSTEP}')
        if NUMA:
            e(f'  s_lshl_b32 s{sT[1]}, s{sW}, 11')
            e(f'  s_and_b32 s{sT[2]}, s2, 4')
            e(f'  s_lshl_b32 s{sT[2]}, s{sT[2]}, 6')
            e(f'  s_add_u32 s{sT[1]}, s{sT[1]}, s{sT[2]}')
            e(f'  s_add_u32 s{sPa}, s{sBase}, s{sT[1]}')
            e(f'  s_add_u32 s{sPa}, s{sPa}, {9*KSTEP}')
            e(f'  s_add_u32 s{sPb}, s{sPa}, 8192')
            e(f'  s_and_b32 s{sPr}, s2, {PRM}')
            e(f'  s_cmp_lg_u32 s{sPr}, 0')
    def p_warm():
        if NUMA:
            e(f'  s_cbranch_scc1 L_np0')
            e(f'  s_load_dword s{sPT}, s[24:25], s{sPa} glc')
            e(f'  s_load_dword s{sPT+1}, s[24:25], s{sPb} glc')
            e('L_np0:')
    def p_dwl():
        srd(sD, 26, 768)
        g.vmop(f'  buffer_load_dwordx4 v{T[3]}, s[{sD}:{sD+3}], 0 offen lds', ('W',))
    e(f'  s_mul_i32 s{sG[0]}, s{sR1}, 98304')
    e(f'  s_mul_i32 s{sQ[0]}, s{sR2}, {TILE_B}')
    e(f'  s_mul_i32 s{sBW}, s{sW}, 6160')
    LEAN = int(opts.get('lean', 2))
    if LEAN == 0: p_gb1(); p_dws()
    if LEAN <= 1: p_tl()
    e('  s_waitcnt lgkmcnt(0)')
    if LEAN <= 1: p_warm()
    if LEAN == 0: p_dwl()
    srd(sP, 28, 294912)
    def bload(s):
        it = []
        for h in range(2):
            it.append(f'  s_add_u32 m0, s{sBW}, {AREA[s % NAR] + h*3080}')
            it.append(f'  s_add_u32 s{sT[0]}, s{sG[s >> 2]}, s{sQ[s & 3]}' if h == 0 else f'  s_add_u32 s{sT[0]}, s{sT[0]}, 6144')
            for i in range(3):
                it.append(lambda h=h, i=i: g.vmop(f'  buffer_load_dwordx4 v{vBL[i]}, s[{sP}:{sP+3}], s{sT[0]} offen offset:{i*1024}{NT_B} lds', ('B', s, 3*h + i)))
        return it
    def xdma(t, u):
        it = []
        if u == 0:
            a, b = sF[0], sF[0] + 1
            it += [f'  s_mov_b64 s[{sF[k]}:{sF[k]+1}], s[{sF[k-1]}:{sF[k-1]+1}]' for k in range(len(sF) - 1, 0, -1)]
            it += [f'  s_add_u32 s{a}, s{sVa}, s{sBase}', f'  s_xor_b32 s{a}, s{a}, s{sDec}',
                   f'  s_add_u32 s{b}, s{sBase}, {TILE_B}', f'  s_cmp_lt_u32 s{sBase}, s{sEnd}',
                   f'  s_cselect_b32 s{sX4}, s{sBase}, s{sOOB}', f'  s_cselect_b32 s{b}, s{b}, s{sOOB}',
                   f'  s_bitcmp1_b32 s{a}, 21', f'  s_cselect_b32 s{a}, s{b}, s{sX4}', f'  s_cselect_b32 s{b}, s{sX4}, s{b}',
                   f'  s_cselect_b64 s[{sXm}:{sXm+1}], -1, 0', f'  s_add_u32 s{sBase}, s{sBase}, {KSTEP}']
        if u == 4: it.append(f'  v_cndmask_b32 v{vTX}, v{vXS[4]}, v{vXS4b}, s[{sXm}:{sXm+1}]')
        it.append(f'  s_add_u32 m0, s{sRing}, {(t & 1)*TILE_B + u*4096}')
        if u == 5 and (t & 1): it.append(f'  s_xor_b32 s{sRing}, s{sRing}, {2*TILE_B}')
        else: it.append('NOP')
        it.append(lambda: g.vmop(f'  buffer_load_dwordx4 v{vTX if u == 4 else vXS[u]}, s[{sX}:{sX+3}], s{[sF[0], sX4, sF[0]+1][max(0, u - 3)]} offen{NT_LD} lds', ('L', t, u)))
        return it
    def xdma_items(t):
        return ['  s_nop 0' if x == 'NOP' else x for u in range(6) for x in xdma(t, u)]
    NB0 = int(opts.get('nb0', 1)) if FUSE else 99
    NI = int(opts.get('ni', 1))
    run(bload(0))
    if LEAN == 2: p_tl(); p_warm()
    if LEAN: p_dws(); p_dwl(); p_gb1()
    for s in range(1, min(NB0, NI)): run(bload(s))
    if opts.get('tw'):
        e(f'  v_mov_b32 v{T[5]}, s{sBase}')
        g.vmop(f'  global_load_dword v{BV+2}, v{T[5]}, s[24:25]', ('K',))
        g.vmop(f'  global_load_dword v{BV+3}, v{T[5]}, s[30:31]', ('K',))
    if opts.get('st2') == '2': stamp()
    srd(sX, 24, 113246208)
    hi2, lo4 = T[1], T[4]
    e(f'  s_add_u32 s{sVa}, s24, {TILE_B}')
    e(f'  s_mov_b32 s{sOOB}, {OOB}')
    e(f'  s_lshl_b32 s{sRing}, s{sW}, 10')
    for r in [x + k for x in sF[:3] for k in range(2)]: e(f'  s_mov_b32 s{r}, s{sOOB}')
    e(f'  s_lshr_b32 s{sDec}, s2, 1')
    e(f'  s_xor_b32 s{sDec}, s{sDec}, s2')
    e(f'  s_and_b32 s{sDec}, s{sDec}, 4')
    e(f'  s_lshl_b32 s{sDec}, s{sDec}, 19')
    ROW = [ACC+16, ACC+17, ACC+18]; GG = [ACC+19, ACC+20, ACC+21]
    def rowmap(dst, dst4b, base, u):
        if u == 0:
            e(f'  v_add_u32 v{dst[3]}, {26*768}, v{base}')
            if base != dst[0]: e(f'  v_mov_b32 v{dst[0]}, v{base}')
        if u == 1:
            e(f'  v_cmp_lt_u32 vcc, 5, v{ROW[1]}')
            e(f'  v_add_u32 v{T[8]}, {26*768}, v{base}')
            e(f'  v_add_u32 v{T[9]}, {37*768}, v{base}')
            e(f'  v_cndmask_b32 v{dst[4]}, v{T[8]}, v{T[9]}, vcc')
            if dst4b is not None:
                e(f'  v_add_u32 v{T[8]}, {58*768}, v{base}')
                e(f'  v_add_u32 v{T[9]}, {5*768}, v{base}')
                e(f'  v_cndmask_b32 v{dst4b}, v{T[8]}, v{T[9]}, vcc')
            if base != dst[1]: e(f'  v_mov_b32 v{dst[1]}, v{base}')
        if u == 2:
            e(f'  v_cmp_lt_u32 vcc, 10, v{ROW[2]}')
            e(f'  v_add_u32 v{T[8]}, 7680, v{base}')
            e(f'  v_add_u32 v{dst[5]}, {5*768}, v{base}')
            e(f'  v_cndmask_b32 v{dst[2]}, v{base}, v{T[8]}, vcc')
    e(f'  v_lshrrev_b32 v{GG[0]}, 4, v0')
    e(f'  v_xor_b32 v{T[6]}, s{sT[3]}, v{lo4}')
    for u in range(3):
        if u: e(f'  v_add_u32 v{GG[u]}, {16*u}, v{GG[0]}')
        e(f'  v_mul_u32_u24 v{ROW[u]}, 43, v{GG[u]}')
        e(f'  v_lshrrev_b32 v{ROW[u]}, 7, v{ROW[u]}')
        e(f'  v_mul_u32_u24 v{T[2]}, 3, v{ROW[u]}')
        e(f'  v_sub_u32 v{T[3]}, v{GG[u]}, v{T[2]}')
        e(f'  v_add_u32 v{T[3]}, s{sR1}, v{T[3]}')
        e(f'  v_subrev_u32 v{T[5]}, 3, v{T[3]}')
        e(f'  v_min_u32 v{T[3]}, v{T[3]}, v{T[5]}')
        e(f'  v_add_u32 v{T[3]}, v{T[3]}, v{T[2]}')
        e(f'  v_xor_b32 v{T[5]}, v{ROW[u]}, v{T[6]}')
        e(f'  v_lshlrev_b32 v{T[5]}, 4, v{T[5]}')
        e(f'  v_lshl_add_u32 v{vXS[u]}, v{T[3]}, 8, v{T[5]}')
        rowmap(vXS, vXS4b, vXS[u], u)
    if NB0 <= 2: run(xdma_items(0))
    for s in range(NB0, 2): run(bload(s))
    srd(sO, 30, 113246208)
    e(f'  v_lshlrev_b32 v{vST[0]}, 4, v0')
    for u in range(3):
        if u: e(f'  v_add_u32 v{vST[u]}, {4096*u}, v{vST[0]}')
        e(f'  v_and_b32 v{T[5]}, 7, v{ROW[u]}')
        e(f'  v_xor_b32 v{T[5]}, v{T[5]}, v{lo4}')
        e(f'  v_lshlrev_b32 v{T[5]}, 4, v{T[5]}')
        e(f'  v_lshl_add_u32 v{T[5]}, v{GG[u]}, 8, v{T[5]}')
        e(f'  v_add_u32 v{vOR[u]}, {LDS_O}, v{T[5]}')
    for u in range(3): rowmap(vST, None, vST[u], u)
    e(f'  v_mul_u32_u24 v{T[0]}, 0x300, v{lo4}')
    e(f'  v_xor_b32 v{T[2]}, v{hi2}, v{lo4}')
    e(f'  v_lshl_add_u32 v{vLdsR[0]}, v{T[2]}, 4, v{T[0]}')
    for s in range(1, 4): e(f'  v_xor_b32 v{vLdsR[s]}, {s*64}, v{vLdsR[0]}')
    e(f'  s_mul_i32 s{sT[1]}, s{sW}, 12')
    e(f'  v_and_b32 v{T[2]}, 7, v{lo4}')
    for u in range(2):
        e(f'  v_add_u32 v{T[3]}, s{sT[1]}, v{hi2}')
        if u: e(f'  v_add_u32 v{T[3]}, {4*u}, v{T[3]}')
        e(f'  v_xor_b32 v{T[3]}, v{T[3]}, v{T[2]}')
        e(f'  v_lshl_add_u32 v{vOW[u]}, v{T[3]}, 4, v{T[0]}')
        e(f'  v_add_u32 v{vOW[u]}, {LDS_O}, v{vOW[u]}')
    e(f'  v_bfe_u32 v{T[2]}, v{vLane}, 2, 2')
    e(f'  v_and_b32 v{T[3]}, 3, v{vLane}')
    e(f'  v_lshrrev_b32 v{T[5]}, 1, v{hi2}')
    e(f'  v_lshl_add_u32 v{T[5]}, v{T[5]}, 3, v{T[2]}')
    e(f'  v_mul_u32_u24 v{T[5]}, 192, v{T[5]}')
    e(f'  v_and_b32 v{T[7]}, 1, v{hi2}')
    e(f'  v_mul_u32_u24 v{T[7]}, 3080, v{T[7]}')
    e(f'  v_add_u32 v{T[5]}, v{T[5]}, v{T[7]}')
    e(f'  v_lshl_add_u32 v{T[5]}, v{T[3]}, 4, v{T[5]}')
    e(f'  s_add_u32 s{sT[1]}, s{sBW}, {AREA[2]}')
    e(f'  v_add_u32 v{vTr2}, s{sT[1]}, v{T[5]}')
    e(f'  v_add_u32 v{vTr}, {(AREA[0] - AREA[2]) & 0xffffffff}, v{vTr2}')
    e(f'  s_add_u32 s{sT[1]}, s{sRing}, {LDS_DW}')
    e(f'  v_lshl_add_u32 v{vDW}, v{hi2}, 4, s{sT[1]}')
    e(f'  v_and_b32 v{T[5]}, 1, v{vLane}')
    e(f'  v_lshlrev_b32 v{T[5]}, 4, v{T[5]}')
    e(f'  v_mov_b32 v{T[7]}, 0xffff')
    e(f'  v_lshlrev_b32 v{T[5]}, v{T[5]}, v{T[7]}')
    e(f'  v_lshlrev_b32 v{T[0]}, 1, v{hi2}')
    e(f'  v_bfe_u32 v{T[7]}, v{vLane}, 1, 3')
    e(f'  v_cmp_eq_u32 vcc, v{T[0]}, v{T[7]}')
    e(f'  v_add_u32 v{T[0]}, 1, v{T[0]}')
    e(f'  s_nop 0')
    e(f'  v_cndmask_b32 v{vM[0]}, 0, v{T[5]}, vcc')
    e(f'  v_cmp_eq_u32 vcc, v{T[0]}, v{T[7]}')
    srd(sDS, sDb, 256)
    e(f'  v_cndmask_b32 v{vM[1]}, 0, v{T[5]}, vcc')
    NR = int(opts.get('nr', 2))
    def probe():
        e(f'  s_cmp_lg_u32 s{sPr}, 0')
        e(f'  s_cbranch_scc1 L_npr')
        e(f'  s_mov_b32 s{sPv}, 0xffff')
        e(f'  s_mov_b32 s{sRd}, 0xffff')
        e(f'  s_lshl_b32 s{sT[2]}, s{sW}, 2')
        e(f'  s_add_u32 s{sT[2]}, s{sT[2]}, {LDS_PR}')
        e(f'  v_mov_b32 v{T[0]}, s{sT[2]}')
        if int(opts.get('pb', 0)):
            e('  s_waitcnt lgkmcnt(0)')
            for i in range(NR):
                e('  s_barrier')
                e(f'  s_memtime s[{sPT}:{sPT+1}]')
                e(f'  s_load_dword s{sT[2]}, s[24:25], s{sPb if i & 1 else sPa} glc')
                e('  s_waitcnt lgkmcnt(0)')
                e(f'  s_memtime s[{sPT+2}:{sPT+3}]')
                e('  s_waitcnt lgkmcnt(0)')
                e(f'  s_sub_u32 s{sT[1]}, s{sPT+2}, s{sPT}')
                e(f'  s_min_u32 s{sRd if i & 1 else sPv}, s{sRd if i & 1 else sPv}, s{sT[1]}')
        else:
            e('  s_waitcnt lgkmcnt(0)')
            e(f'  s_memtime s[{sPT}:{sPT+1}]')
            for i in range(NR):
                a, b = (sPT, sPT + 2) if i % 2 == 0 else (sPT + 2, sPT)
                e(f'  s_load_dword s{sT[2]}, s[24:25], s{sPb if i & 1 else sPa} glc')
                e('  s_waitcnt lgkmcnt(0)')
                if i:
                    e(f'  s_sub_u32 s{sT[1]}, s{a}, s{b}')
                e(f'  s_memtime s[{b}:{b+1}]')
                if i: e(f'  s_min_u32 s{sRd if (i - 1) & 1 else sPv}, s{sRd if (i - 1) & 1 else sPv}, s{sT[1]}')
            e('  s_waitcnt lgkmcnt(0)')
            e(f'  s_sub_u32 s{sT[1]}, s{sPT}, s{sPT+2}')
            e(f'  s_min_u32 s{sRd}, s{sRd}, s{sT[1]}')
        e(f'  s_lshl_b32 s{sPv}, s{sPv}, 16')
        e(f'  s_or_b32 s{sPv}, s{sPv}, s{sRd}')
        e(f'  v_mov_b32 v{T[2]}, s{sPv}')
        e(f'  ds_write_b32 v{T[0]}, v{T[2]}')
        e('  s_waitcnt lgkmcnt(0)')
        e(f'L_npr:')
    PQ = 248
    assert 11 not in ASLOTS
    def publish():
        if NB0 >= 2:
            e(f'  s_cmp_lg_u32 s{sPr}, 0')
            e(f'  s_cbranch_scc1 L_np1')
            e('  s_barrier')
        e(f'  s_or_b32 s{sT[1]}, s{sPr}, s{sW}')
        e(f'  s_cmp_lg_u32 s{sT[1]}, 0')
        e(f'  s_cbranch_scc1 L_np1')
        e(f'  v_mov_b32 v{PQ+4}, {LDS_PR}')
        e(f'  ds_read_b128 v[{PQ}:{PQ+3}], v{PQ+4}')
        e(f'  s_add_u32 s{sT[1]}, s{sVa}, s{sPa}')
        e(f'  s_lshr_b32 s{sT[1]}, s{sT[1]}, 21')
        e(f'  s_lshr_b32 s{sT[2]}, s2, 2')
        e(f'  s_xor_b32 s{sT[1]}, s{sT[1]}, s{sT[2]}')
        e(f'  s_and_b32 s{sT[1]}, s{sT[1]}, 1')
        e(f'  s_add_u32 s{sT[2]}, s{sT[1]}, 1')
        e(f'  s_sub_u32 s{sT[1]}, 2, s{sT[1]}')
        e(f'  v_mov_b32 v{PQ+6}, s{sT[2]}')
        e(f'  v_mov_b32 v{PQ+5}, s{sT[1]}')
        e(f'  v_mov_b32 v{PQ+7}, 0')
        e(f'  v_mov_b32 v{PQ+4}, s{sEo}')
        e('  s_waitcnt lgkmcnt(0)')
        e(f'  v_pk_min_u16 v{PQ}, v{PQ}, v{PQ+1}')
        e(f'  v_pk_min_u16 v{PQ+2}, v{PQ+2}, v{PQ+3}')
        e(f'  v_pk_min_u16 v{PQ}, v{PQ}, v{PQ+2}')
        e(f'  v_lshrrev_b32 v{PQ+1}, 16, v{PQ}')
        e(f'  v_and_b32 v{PQ}, 0xffff, v{PQ}')
        e(f'  v_cmp_gt_u32 vcc, v{PQ+1}, v{PQ}')
        e('  s_mov_b64 exec, 1')
        e('  s_nop 0')
        e(f'  v_cndmask_b32 v{PQ+6}, v{PQ+6}, v{PQ+5}, vcc')
        e(f'  buffer_atomic_cmpswap v[{PQ+6}:{PQ+7}], v{PQ+4}, s[{sDS}:{sDS+3}], 0 offen sc1')
        e('  s_mov_b64 exec, -1')
        e('L_np1:')
    if opts.get('st2') == '2': stamp()
    PP = int(opts.get('pp', 0))
    if NUMA and PP == -1: probe()
    for s in range(NI, 2): run(bload(s))
    if NUMA and PP == 0: probe()
    LA = int(opts.get('la', NAR))
    assert LA <= NAR
    if LA > 2: run(bload(2))
    if NUMA and PP == 1: probe()
    if NB0 == 3: run(xdma_items(0))
    if LA > 3: run(bload(3))
    if LA > 4: run(bload(4))
    if NUMA and PP == 2: probe()

    def trs(s):
        it = [lambda: g.wait(('b', s), vm=('W',) if (s == 0 and LEAN) else ('B', s, 5))]
        base = vTr if (s % NAR) < 2 else vTr2
        so = AREA[s % NAR] - AREA[0 if (s % NAR) < 2 else 2]
        it.append(lambda: g.lgop(f'  ds_read_b128 v[{DWR[s & 1]}:{DWR[s & 1]+3}], v{vDW} offset:{s*64}', ('TR', s)))
        for nt in range(6):
            for hh in range(2):
                r = RAW[s & 1] + nt*4 + 2*hh
                it.append(lambda r=r, nt=nt, hh=hh: g.lgop(f'  ds_read_b64_tr_b16 a[{r}:{r+1}], v{base} offset:{so + hh*768 + (nt >> 1)*64 + (nt & 1)*8}', ('TR', s)))
        return it
    def cvts(s, j):
        nt, hh = j // 2, j % 2
        q = FT + 4*(j % NFT)
        if s in ASLOTS:
            return [f'  v_cvt_pk_bf16_f32 v{q}, v{q}, v{q+1}', f'  v_cvt_pk_bf16_f32 v{q+1}, v{q+2}, v{q+3}',
                    f'  v_accvgpr_write_b32 {breg(s, nt, 1, 2*hh)}, v{q}', f'  v_accvgpr_write_b32 {breg(s, nt, 1, 2*hh+1)}, v{q+1}']
        return [f'  v_cvt_pk_bf16_f32 {breg(s, nt, 1, 2*hh)}, v{q}, v{q+1}', f'  v_cvt_pk_bf16_f32 {breg(s, nt, 1, 2*hh+1)}, v{q+2}, v{q+3}']
    def rd(t, i):
        mt, ks = i // 12, i % 12
        x = XF + 8*((i // 2) % 3) + 4*(i & 1)
        g.lgop(f'  ds_read_b128 a[{x}:{x+3}], v{vLdsR[ks & 3]} offset:{(t & 1)*TILE_B + mt*12288 + (ks >> 2)*256}', ('X', t, i))
    TS = NB0 if FUSE else 13
    units = sorted([(0, k) for k in range(12)] + [(1, k) for k in range(8)], key=lambda u: (u[1] + 4*u[0], -u[0]))
    UPS = int(opts.get('ups', 2 if NB0 <= 2 else 3))
    SCH = {s: [] for s in range(13)}
    rem = list(units) if FUSE else []
    for s in range(12, TS - 1, -1):
        n = 2 if s == 12 else UPS
        take = [u for u in reversed(rem) if u[1] < s][:n]
        SCH[s] = sorted(take, key=lambda u: (u[1], u[0]))
        rem = [u for u in rem if u not in take]
    assert not rem, rem
    for mt in range(2 if FUSE else 0):
        seq = [u[1] for s in range(13) for u in SCH[s] if u[0] == mt]
        assert seq[0] == 0 and sorted(seq) == list(range(len(seq)))
    def tl(s): return SCH[s]
    def fx(s, mt, ks): return OB + 12*(s % 2) + 4*SCH[s].index((mt, ks))
    def prd(s):
        return [lambda mt=mt, ks=ks: g.lgop(f'  ds_read_b128 a[{fx(s, mt, ks)}:{fx(s, mt, ks)+3}], v{vLdsR[ks & 3]} offset:{mt*12288 + (ks >> 2)*256}', ('TR', s)) for (mt, ks) in tl(s)]
    def tm(s, mt, ks, nt):
        a = ACC + 24*mt + 4*nt; x = fx(s, mt, ks)
        return f'  v_mfma_f32_16x16x32_bf16 v[{a}:{a+3}], {breg(ks, nt)}, a[{x}:{x+3}], {"0" if ks == 0 else f"v[{a}:{a+3}]"}'
    run(trs(0))
    stamp()
    LAG = int(opts.get('lag', 3))
    XA = int(opts.get('xa', 8)); XB = int(opts.get('xb', 12)); DS = int(opts.get('ds', XA)); BQ = 10
    X0 = int(opts.get('x0', 11 - LA)); X1 = int(opts.get('x1', 11))
    if not FUSE: XA = XB = BQ = 99; DS = int(opts.get('ds', 10)); LAG = int(opts.get('lag', 4))
    assert XB >= BQ
    pend = []
    def decide():
        if NUMA:
            e(f'  s_cmp_eq_u32 s{sRd}, 0')
            e('  s_cbranch_scc1 L_slow')
            e('L_back:')
            e(f'  s_lshr_b32 s{sT[1]}, s2, 1')
            e(f'  s_xor_b32 s{sDec}, s{sRd}, s{sT[1]}')
            e(f'  s_and_b32 s{sDec}, s{sDec}, 2')
            e(f'  s_lshl_b32 s{sDec}, s{sDec}, 20')
    for s in range(12):
        if s == DS and NUMA: e('  s_waitcnt lgkmcnt(0)')
        else: g.wait(('tr', s), lg=('TR', s))
        if s == BQ: e('  s_barrier')
        d = DWR[s & 1]
        for i in range(4): e(f'  v_and_b32 v{d+i}, v{vM[i & 1]}, v{d+i}')
        if s == DS: decide()
        Q = []
        if s + 4 == NB0: Q += xdma_items(0)
        if s + LA < 12: Q += bload(s + LA)
        nx = trs(s + 1) if s + 1 < 12 else []
        if s == NB0 - 1:
            nx = nx[:1] + ['  s_barrier'] + nx[1:]
        nx += prd(s + 1)
        Q = (Q + nx) if opts.get('qo', '1') == '0' else (nx + Q)
        if s == DS - 1 and NUMA: Q.append(f'  s_load_dword s{sRd}, s[{sDb}:{sDb+1}], s{sEo}')
        if s == X0 and not FUSE: Q += xdma_items(0)
        if s == X1 and not FUSE: Q += xdma_items(1)
        if s == XA: Q += xdma_items(1)
        if s == XB: Q += xdma_items(2)
        if s == 11 and FUSE: Q += [lambda i=i: rd(0, i) for i in range(20, 24)]
        while len(Q) < 2: Q.append('  s_nop 0')
        M = []
        TL = [tm(s, mt, ks, nt) for nt in range(6) for (mt, ks) in tl(s)]
        for j in range(12):
            nt, hh = j // 2, j % 2
            r = RAW[s & 1] + nt*4 + 2*hh
            q = FT + 4*(j % NFT)
            M.append((f'  v_mfma_f32_16x16x16_bf16 v[{q}:{q+3}], v[{d+2*hh}:{d+2*hh+1}], a[{r}:{r+1}], 0', j))
            k0, k1 = (j*len(TL))//12, ((j+1)*len(TL))//12
            M += [(x, None) for x in TL[k0:k1]]
        run(Q[:2]); Q = Q[2:]
        front = int(opts.get('front', 2))
        cq = []
        for mi, (m, j) in enumerate(M):
            if j is not None:
                run(cq); cq = []
            e(m)
            if j is not None:
                pend.append(cvts(s, j))
                if len(pend) > LAG: cq = pend.pop(0)
            QE = (len(M) * int(opts.get('qe', 4))) // 4
            nq = -(-len(Q) // max(1, QE - mi)) if mi < QE else len(Q)
            run(Q[:nq]); Q = Q[nq:]
            nc = 2 if (mi + 1 < len(M) and M[mi + 1][1] is None) else len(cq)
            run(cq[:nc]); cq = cq[nc:]
        assert not Q and not cq
        if s in (3, 7) and not opts.get('st2'): stamp()
        if s == (0 if NB0 >= 2 else NB0 - 1) and NUMA: publish()
    if FUSE:
        g.wait(('tr', 12), lg=('TR', 12))
        T0 = [tm(12, 0, 11, nt) for nt in range(6)]
        T1 = [tm(12, 1, ks, nt) for (mt, ks) in tl(12) if mt == 1 for nt in range(6)]
        for nt in range(4):
            e(T0[nt])
            if pend: run(pend.pop(0))
        if DS == 12:
            e('  s_waitcnt lgkmcnt(0)'); decide()
        e(f'  v_sub_u32 v{vST4b}, v{vXS4b}, v{vXS[4]}')
        e(f'  v_add_u32 v{vST4b}, v{vST4b}, v{vST[4]}')
        e(T0[4]); e(T0[5])
        stamp()
        FIN = (T1, XB)
    else:
        run(pend.pop(0)); run(pend.pop(0))
        stamp()
        e(f'  v_sub_u32 v{vST4b}, v{vXS4b}, v{vXS[4]}')
        e(f'  v_add_u32 v{vST4b}, v{vST4b}, v{vST[4]}')
        for r in sSo: e(f'  s_mov_b32 s{r}, s{sOOB}')
        g.wait('x0', vm=('L', 0, 5))
        e('  s_barrier')
        for i in range(4): rd(0, i)
        while pend: run(pend.pop(0))
        if X1 == 13: run(xdma_items(1))
        else: assert NAR == 4 and X1 >= DS

    def epi(mt, u, po):
        a = ACC + 24*mt + 8*u
        cv = [f'  v_cvt_pk_bf16_f32 v{a+i}, v{a+2*i}, v{a+2*i+1}' for i in range(4)]
        off = po*TILE_B + mt*12288 + (u >> 1)*128
        if DIR:
            return cv + [lambda: g.vmop(f'  buffer_store_dwordx4 v[{a}:{a+3}], v{vTS if mt else vST[0]}, s[{sO}:{sO+3}], s{sSo[2] if mt else sSo[0]} offen offset:{64*u}{NT_ST}', None)]
        if opts.get('w64'):
            return cv[:2] + [lambda: g.lgop(f'  ds_write_b64 v{vOW[u & 1]}, v[{a}:{a+1}] offset:{off}', ('OWa', mt, u))] + cv[2:] + \
                   [lambda: g.lgop(f'  ds_write_b64 v{vOW[u & 1]}, v[{a+2}:{a+3}] offset:{off+8}', ('OW', mt, u))]
        return cv + [lambda: g.lgop(f'  ds_write_b128 v{vOW[u & 1]}, v[{a}:{a+3}] offset:{off}', ('OW', mt, u))]
    OBT = 'a'
    def out_read(t, u):
        o = OB + 4*u
        g.lgop(f'  ds_read_b128 {OBT}[{o}:{o+3}], v{vOR[u % 3]} offset:{((t^1)&1)*TILE_B + (u // 3)*12288}', ('O', t, u))
    def out_store(t, u, key):
        o = OB + 4*u
        g.wait((key, 'o', u), lg=('O', t, u), opt=True)
        g.vmop(f'  buffer_store_dwordx4 {OBT}[{o}:{o+3}], v{vTS if u == 4 else vST[u]}, s[{sO}:{sO+3}], s{sSo[max(0, u - 2)]} offen{NT_ST}', None)
    def st_adv(d=0):
        p, q = sF[2 - d], sF[3 - d]
        if DIR:
            return [f'  s_mov_b32 s{sSo[0]}, s{p}', f'  s_min_u32 s{sSo[2]}, s{p}, s{p+1}', f'  s_cmp_gt_u32 s{p}, s{p+1}',
                    f'  s_cselect_b64 s[{sSm}:{sSm+1}], -1, 0', 'NOP', f'  v_cndmask_b32 v{vTS}, v{vST[1]}, v{vST[2]}, s[{sSm}:{sSm+1}]']
        return [f'  s_mov_b32 s{sSo[0]}, s{p}', f'  s_mov_b32 s{sSo[1]}, s{q}', f'  s_mov_b32 s{sSo[3]}, s{q+1}', f'  s_min_u32 s{sSo[2]}, s{q}, s{q+1}',
                f'  s_cmp_gt_u32 s{q}, s{q+1}', f'  s_cselect_b64 s[{sSm}:{sSm+1}], -1, 0',
                'NOP', f'  v_cndmask_b32 v{vTS}, v{vST[4]}, v{vST4b}, s[{sSm}:{sSm+1}]']
    def ints(k, d): return [int(v) for v in opts.get(k, d).split(',')]
    OR_AT = ints('or', '2,3,4,5,6,7'); OS_AT = ints('os', '14,20,30,40,52,64')
    UORD = ints('uord', '3,4,5,0,1,2')
    XD_AT = ints('xd', '76,88,100,112,124,136')
    E1_AT = ints('e1', '27,39,61'); E0_AT = ints('e0', '99,106,123')
    SH_AT = int(opts.get('sh', 26)); CAP = int(opts.get('cap', 1)); HG = int(opts.get('hg', 0))
    def fillers(t):
        F = [[] for _ in range(144)]
        use = [0] * 150
        for r in range(144):
            if r % 12 in (0, 1, 11): use[r] = 1
        HP = opts.get('hp')
        def heavy(rho, it):
            while use[rho] or (HP and rho % 2 != int(HP)): rho += 1
            F[rho].append(it); use[rho] = 9
            for k in range(1, HG + 1): use[rho + k] = max(use[rho + k], 8)
            return rho
        def light(rho, items, cap=CAP, back=False):
            if back:
                for it in reversed(items):
                    while use[rho] >= cap: rho -= 1
                    F[rho].insert(0, it); use[rho] += 1
                return rho
            for it in items:
                while use[rho] >= cap: rho += 1
                F[rho].append(it); use[rho] += 1
            return rho
        kp = t & 1
        post = []
        vpos = []
        for k in range(0 if DIR else 6):
            u = UORD[k]
            lastst = heavy(OS_AT[k], lambda u=u: out_store(t, u, kp))
            vpos.append(lastst)
        xpos = []
        for u in range(6):
            it = [x for x in xdma(t + PD, u) if x != 'NOP']
            xpos.append((heavy(XD_AT[u], it[-1]), it[:-1]))
        for mt, AT in ((1, E1_AT), (0, E0_AT)):
            for u in range(3):
                r = AT[u]
                for it in epi(mt, u, t & 1):
                    r = (heavy(r, it) if callable(it) else light(r, [it], 1)) + 1
                if DIR:
                    vpos.append(r - 1)
                    if mt == 1: lastst = r - 1
        for k in range(0 if DIR else 6):
            light(OR_AT[k], [lambda u=UORD[k]: out_read(t, u)], 1)
        prevx = 0
        for (r, it) in xpos:
            r0 = light(r - 1, it, 2 if len(it) > 6 else CAP, back=True)
            assert r0 >= 24 and r0 > prevx, (r0, prevx)
            prevx = r
        if opts.get('lim'):
            for r in vpos + [x[0] for x in xpos]:
                light(r - 1, [f'  s_waitcnt vmcnt({opts["lim"]})'], 2, back=True)
        for a, b in zip(xpos, xpos[1:]): assert b[0] - a[0] >= 5
        r1 = light(max(lastst, xpos[0][0]) + 1, [x for x in st_adv() if x != 'NOP'], 2)
        assert r1 < (E0_AT[0] + 4 if DIR else 144)
        return F
    def tile(t, G0=0):
        kp = t & 1
        F0 = fillers(t); F1 = fillers(t + 1)
        for G_ in range(G0, 12):
            mt, kg = G_ // 6, G_ % 6
            if G_ == 10:
                if G0 == 0 and kp == 1 and opts.get('skv'):
                    e(f'  s_cmp_ge_u32 s{sF[1]}, s{sOOB}')
                    e(f'  s_cbranch_scc1 L_npv{t}')
                    g.wait((kp, 'barv'), vm=('L', t + 1, 5))
                    e(f'L_npv{t}:')
                    g.wait((kp, 'bar'), lg=('OW', 0, 2))
                elif G0 == 0: g.wait((kp, 'bar'), vm=('L', t + 1, 5), lg=('OW', 0, 2))
                if kp == 0 and not unroll: e('L_ent:')
                e('  s_barrier')
                if t & 1:
                    for r in vLdsR: e(f'  v_xor_b32 v{r}, {2*TILE_B}, v{r}')
            g.wait((kp, 'x', G_), lg=('X', t, 2*G_ + 1))
            if opts.get('pad'): e(f'  s_nop {opts["pad"]}')
            for nt in range(6):
                for k in range(2):
                    kk = k ^ (nt & 1) if opts.get('snake') else k
                    ks = 2*kg + kk; i = 12*mt + ks
                    x = XF + 8*(G_ % 3) + 4*kk
                    a = ACC + 24*mt + 4*nt
                    c = '0' if kg == 0 and k == 0 else f'v[{a}:{a+3}]'
                    e(f'  v_mfma_f32_16x16x32_bf16 v[{a}:{a+3}], {breg(ks, nt)}, a[{x}:{x+3}], {c}')
                    gap = 12*G_ + 2*nt + k
                    if gap % 12 in (0, 1):
                        j = 2*G_ + 4 + (gap % 12)
                        if j < 24: rd(t, j)
                        else: rd(t + 1, j - 24)
                    run(F0[gap + 24] if gap < 120 else F1[gap - 120])
    if FUSE:
        Q = (xdma_items(2) if XB == 12 else []) + [x if x != 'NOP' else '  s_nop 0' for x in st_adv()]
        E = epi(0, 0, 0) + epi(0, 1, 0) + epi(0, 2, 0)
        T1 = list(FIN[0])
        run(Q[:4]); Q = Q[4:]
        while T1 or E:
            if T1: e(T1.pop(0))
            run(E[:3]); E = E[3:]
        run(Q)
    stamp()
    if DBG:
        e(f'  s_mov_b32 s94, {sn[0]}')
        e('  s_mov_b32 s60, s64')
        e('  s_memtime s[38:39]') if 0 else e('  s_memtime s[86:87]')
    def tail(t):
        if DIR:
            e('  s_nop 3')
            for u in range(3): run(epi(1, u, t & 1))
            return
        done = [UORD[k] for k in range(6) if OS_AT[k] < 24]
        rdone = [UORD[k] for k in range(6) if OR_AT[k] < 24]
        for u in UORD:
            if u not in rdone: out_read(t, u)
        e('  s_nop 3')
        for u in range(3): run(epi(1, u, t & 1))
        for u in UORD:
            if u not in done: out_store(t, u, 'T')
        run([x if x != 'NOP' else '  s_nop 0' for x in st_adv(1)])
        e('  s_waitcnt lgkmcnt(0)')
        e('  s_barrier')
        for u in range(3):
            e(f'  ds_read_b128 a[{XF+4*u}:{XF+4*u+3}], v{vOR[u]} offset:{(t & 1)*TILE_B + 12288}')
        for u in range(3):
            e(f'  s_waitcnt lgkmcnt({2-u})')
            e(f'  buffer_store_dwordx4 a[{XF+4*u}:{XF+4*u+3}], v{vTS if u == 1 else vST[u+3]}, s[{sO}:{sO+3}], s{sSo[u+1]} offen{NT_ST}')
    if FUSE: g.wait('ent', vm=('L', 1, 5), lg=('OW', 0, 2))
    if unroll:
        tile(0, 10 if FUSE else 0)
        for t in range(1, NTILE): tile(t)
        tail(NTILE)
    else:
        if FUSE: e('  s_branch L_ent')
        if opts.get('al'): e(f'  .p2align {opts["al"]}')
        e('L_loop:')
        tile(0)
        tile(1)
        if DBG:
            e('  s_mov_b32 m0, s94'); e('  s_nop 0'); e('  v_writelane_b32 v0, s60, m0')
            e('  s_add_u32 s94, s94, 1')
            e('  s_min_u32 s94, s94, 15')
            e('  s_memrealtime s[60:61]')
        e(f'  s_cmp_lt_u32 s{sF[1]}, s{sOOB}')
        e(f'  s_cbranch_scc1 L_loop')
        e('L_tail:')
        if DBG: e('  s_memtime s[88:89]')
        tail(0)
        if DBG: e('  s_mov_b32 s94, 15')
    if DBG:
        e('  s_mov_b32 m0, s94'); e('  s_nop 0'); e('  v_writelane_b32 v0, s60, m0')
        e('  s_add_u32 s94, s94, 1')
        e('  s_load_dwordx2 s[24:25], s[0:1], 40')
        e('  s_waitcnt vmcnt(0)')
        e('  s_memrealtime s[54:55]')
        e('  s_memtime s[98:99]')
        e('  s_waitcnt lgkmcnt(0)')
        e('  s_mov_b32 m0, s94'); e('  s_nop 0'); e('  v_writelane_b32 v0, s54, m0')
        e('  s_sub_u32 s98, s98, s96')
        e('  s_add_u32 s98, s98, s64')
        e('  v_writelane_b32 v0, s98, 31')
        e('  s_sub_u32 s88, s88, s86')
        e('  v_writelane_b32 v0, s88, 30')
        e(f'  v_writelane_b32 v0, s{sPv}, 29')
        e(f'  v_writelane_b32 v0, s{sDec}, 28')
        e(f'  v_writelane_b32 v0, s3, 27')
        for i in range(sn[0]): e(f'  v_writelane_b32 v0, s{64+2*i}, {i}')
        e('  s_mov_b32 s56, s24'); e('  s_and_b32 s57, s25, 0xffff'); e('  s_mov_b32 s58, 452984832'); e('  s_mov_b32 s59, 0x00020000')
        e('  s_lshl_b32 s26, s2, 9'); e(f'  s_lshl_b32 s27, s{sW}, 7'); e('  s_add_u32 s26, s26, s27')
        e('  v_mbcnt_lo_u32_b32 v1, -1, 0')
        e('  v_lshlrev_b32 v1, 2, v1')
        e('  s_mov_b64 exec, 0xffffffff')
        e('  buffer_store_dword v0, v1, s[56:59], s26 offen')
    if AMP:
        e('  s_waitcnt vmcnt(0)')
        e('  s_memrealtime s[54:55]')
        e('  s_waitcnt lgkmcnt(0)')
        e(f'  s_cmp_lg_u32 s2, {int(opts.get("ampwg", 100))}')
        e('  s_cbranch_scc1 L_done')
        if AMP == 'c':
            e('  s_memtime s[98:99]')
            e('  s_waitcnt lgkmcnt(0)')
            e('  s_sub_u32 s27, s98, s96')
            e('  s_lshr_b32 s27, s27, 1')
        else:
            e(f'  s_sub_u32 s27, s{54 if AMP == "e" else 64 + 2*int(AMP)}, s64')
            e('  s_mul_i32 s27, s27, 10')
        e('L_spin:')
        e('  s_sleep 8')
        e('  s_memrealtime s[56:57]')
        e('  s_waitcnt lgkmcnt(0)')
        e('  s_sub_u32 s26, s56, s54')
        e('  s_cmp_lt_u32 s26, s27')
        e('  s_cbranch_scc1 L_spin')
    if NUMA:
        e('  s_endpgm')
        e('L_slow:')
        e(f'  v_mov_b32 v{vTX}, s{sEo}')
        SP = 254 if DS <= 10 else FT
        assert DS != 11
        e(f'  v_mov_b32 v{SP}, 1')
        e(f'  v_mov_b32 v{SP+1}, 0')
        e('  s_mov_b64 exec, 1')
        e(f'  buffer_atomic_cmpswap v[{SP}:{SP+1}], v{vTX}, s[{sDS}:{sDS+3}], 0 offen sc0 sc1')
        e('  s_waitcnt vmcnt(0)')
        e(f'  v_readfirstlane_b32 s{sRd}, v{SP}')
        e('  s_mov_b64 exec, -1')
        if DBG: e('  s_mov_b32 s3, 1')
        e('  s_branch L_back')
    e('L_done:')
    e('  s_endpgm')
    e('.section .rodata,"a"')
    e('.p2align 6')
    e('.amdhsa_kernel standalone__depthwise_separable__vision_kernel')
    e('  .amdhsa_next_free_vgpr 512')
    e('  .amdhsa_next_free_sgpr 100')
    e('  .amdhsa_accum_offset 256')
    e('  .amdhsa_group_segment_fixed_size 0')
    e('  .amdhsa_kernarg_size 48')
    e('  .amdhsa_user_sgpr_count 2')
    e('  .amdhsa_user_sgpr_kernarg_segment_ptr 1')
    e('  .amdhsa_system_sgpr_workgroup_id_x 1')
    e('  .amdhsa_float_denorm_mode_32 3')
    e('.end_amdhsa_kernel')

if __name__ == '__main__':
    out = sys.argv[1]
    opts = dict(a.split('=', 1) for a in sys.argv[2:])
    for k in ('nt_ld', 'nt_st', 'nt_b'):
        if k in opts: opts[k] = (' ' + opts[k].replace('+', ' ')) if opts[k] != 'none' else ''
    open(out, 'w').write(gen(opts))
```

```python
import sys
src = open('b_0.s').read()
def mk(out, koff, size, lo, hi, n=32):
    step = ((hi - lo) // n) & ~0xffff
    probe = f'''
.text
.globl probe_kernel
.p2align 8
.type probe_kernel,@function
probe_kernel:
  s_cmp_ge_u32 s2, 1
  s_cbranch_scc1 L_pd
  s_load_dwordx2 s[4:5], s[0:1], {koff}
  s_mov_b32 s10, {lo + 0x2300}
  s_mov_b32 s11, 0
  s_mov_b32 s12, 0
  s_waitcnt lgkmcnt(0)
L_pl:
  s_xor_b32 s13, s10, 0x8000
  s_load_dword s14, s[4:5], s13 glc
  s_waitcnt lgkmcnt(0)
  s_memtime s[16:17]
  s_load_dword s14, s[4:5], s10 glc
  s_waitcnt lgkmcnt(0)
  s_memtime s[18:19]
  s_load_dword s14, s[4:5], s10 glc
  s_waitcnt lgkmcnt(0)
  s_memtime s[20:21]
  s_waitcnt lgkmcnt(0)
  s_sub_u32 s22, s18, s16
  s_sub_u32 s23, s20, s18
  s_add_u32 s23, s23, 100
  s_cmp_gt_u32 s22, s23
  s_addc_u32 s12, s12, 0
  s_add_u32 s10, s10, {step}
  s_add_u32 s11, s11, 1
  s_cmp_lt_u32 s11, {n}
  s_cbranch_scc1 L_pl
  s_mul_i32 s12, s12, 1000
  s_memrealtime s[16:17]
L_ps:
  s_sleep 8
  s_memrealtime s[18:19]
  s_waitcnt lgkmcnt(0)
  s_sub_u32 s22, s18, s16
  s_cmp_lt_u32 s22, s12
  s_cbranch_scc1 L_ps
L_pd:
  s_endpgm
.section .rodata,"a"
.p2align 6
.amdhsa_kernel probe_kernel
  .amdhsa_next_free_vgpr 8
  .amdhsa_next_free_sgpr 32
  .amdhsa_accum_offset 8
  .amdhsa_group_segment_fixed_size 0
  .amdhsa_kernarg_size 48
  .amdhsa_user_sgpr_count 2
  .amdhsa_user_sgpr_kernarg_segment_ptr 1
  .amdhsa_system_sgpr_workgroup_id_x 1
.end_amdhsa_kernel
'''
    s = src.replace('; @launch grid=(256,1,1) block=(256,1,1) lds=152128',
        '; @launch kernel=probe_kernel grid=(1,1,1) block=(64,1,1) lds=0\n; @launch kernel=standalone__depthwise_separable__vision_kernel grid=(256,1,1) block=(256,1,1) lds=152128')
    open(out, 'w').write(s + probe)
X = 113246208; W = 452984832
mk('../exp2/st_x.s', 0, X, 0, X)
mk('../exp2/st_o.s', 24, X, 0, X)
mk('../exp2/st_w0.s', 40, W, 0, W // 2)
mk('../exp2/st_w1.s', 40, W, W // 2, W)
mk('../exp2/st_z.s', 0, X, 0, 0)
```

```python
import sys
src = open('b_0.s').read()
def mk(out, koff, size, lo, hi, n=32):
    step = ((hi - lo) // n) & ~0xffff
    probe = f'''
.text
.globl probe_kernel
.p2align 8
.type probe_kernel,@function
probe_kernel:
  s_cmp_ge_u32 s2, 1
  s_cbranch_scc1 L_pd
  s_load_dwordx2 s[4:5], s[0:1], {koff}
  s_mov_b32 s10, {lo + 0x2300}
  s_mov_b32 s11, 0
  s_mov_b32 s12, 0
  s_waitcnt lgkmcnt(0)
L_pl:
  s_xor_b32 s13, s10, 0x8000
  s_memtime s[16:17]
  s_load_dword s14, s[4:5], s13 glc
  s_waitcnt lgkmcnt(0)
  s_memtime s[18:19]
  s_load_dword s14, s[4:5], s10 glc
  s_waitcnt lgkmcnt(0)
  s_memtime s[20:21]
  s_waitcnt lgkmcnt(0)
  s_sub_u32 s22, s18, s16
  s_sub_u32 s23, s20, s18
  s_sub_u32 s22, s22, s23
  s_add_u32 s12, s12, s22
  s_add_u32 s10, s10, {step}
  s_add_u32 s11, s11, 1
  s_cmp_lt_u32 s11, {n}
  s_cbranch_scc1 L_pl
  s_max_i32 s12, s12, 0
  s_memrealtime s[16:17]
L_ps:
  s_sleep 8
  s_memrealtime s[18:19]
  s_waitcnt lgkmcnt(0)
  s_sub_u32 s22, s18, s16
  s_cmp_lt_u32 s22, s12
  s_cbranch_scc1 L_ps
L_pd:
  s_endpgm
.section .rodata,"a"
.p2align 6
.amdhsa_kernel probe_kernel
  .amdhsa_next_free_vgpr 8
  .amdhsa_next_free_sgpr 32
  .amdhsa_accum_offset 8
  .amdhsa_group_segment_fixed_size 0
  .amdhsa_kernarg_size 48
  .amdhsa_user_sgpr_count 2
  .amdhsa_user_sgpr_kernarg_segment_ptr 1
  .amdhsa_system_sgpr_workgroup_id_x 1
.end_amdhsa_kernel
'''
    s = src.replace('; @launch grid=(256,1,1) block=(256,1,1) lds=152128',
        '; @launch kernel=probe_kernel grid=(1,1,1) block=(64,1,1) lds=0\n; @launch kernel=standalone__depthwise_separable__vision_kernel grid=(256,1,1) block=(256,1,1) lds=152128')
    open(out, 'w').write(s + probe)
    open(out.replace('.s', '_solo.s'), 'w').write('; @launch grid=(1,1,1) block=(64,1,1) lds=0\n.amdgcn_target "amdgcn-amd-amdhsa--gfx950"\n' + probe.replace('probe_kernel', 'standalone__depthwise_separable__vision_kernel'))
X = 113246208; W = 452984832
mk('../exp2/tl_x.s', 0, X, 0, X)
mk('../exp2/tl_o.s', 24, X, 0, X)
mk('../exp2/tl_w0.s', 40, W, 0, W // 2)
mk('../exp2/tl_w1.s', 40, W, W // 2, W)
mk('../exp2/tl_z.s', 0, X, 0, 0)
```

```python
import sys, re
from gen3 import G, HDR
from gen5 import regs_of

def hazard_check(L):
    ins = [l.strip() for l in L if l.startswith('  ') and not l.strip().startswith(';')]
    hist = []; st = 0; last_valu = []; last_st = []; last_m0 = -9; last_sg = []; lastscc = ''
    for l in ins:
        op = l.split()[0]
        toks = [t.strip(',') for t in l.split()[1:]]
        allr = set()
        for t in toks: allr |= regs_of(t)
        if op.startswith('v_mfma'):
            d = regs_of(toks[0]); a = regs_of(toks[1]); b = regs_of(toks[2]); c = regs_of(toks[3])
            for (s0, r) in last_valu:
                if st - s0 - 1 < 2 and (r & (a | b | c)): raise Exception(f'VALU->MFMA hazard: {l}')
            for (s0, dd, cc) in hist:
                if st - s0 - 1 < 8 and (dd & (a | b)): raise Exception(f'MFMA D->A/B hazard: {l}')
                if st - s0 - 1 < 6 and (dd & c) and dd != c: raise Exception(f'MFMA D->C overlap hazard: {l}')
                if st - s0 - 1 < 6 and (dd & d) and dd != c: raise Exception(f'MFMA D->D WAW: {l}')
            for (s0, r) in last_st:
                if st - s0 - 1 < 8 and (r & d): raise Exception(f'store data WAR (mfma): {l}')
            hist.append((st, d, c))
        elif op.startswith('v_') or op.startswith('ds_') or op.startswith('buffer_'):
            for (s0, dd, cc) in hist:
                if st - s0 - 1 < 8 and (dd & allr): raise Exception(f'MFMA D->use hazard dist {st-s0-1}: {l}')
            if op.startswith('v_'):
                w = regs_of(toks[0])
                for (s0, dd, cc) in hist:
                    if st - s0 - 1 < 3 and (cc & w): raise Exception(f'MFMA C WAR hazard: {l}')
                for (s0, r) in last_st:
                    if st - s0 - 1 < 2 and (r & w): raise Exception(f'store data WAR: {l}')
                if op in ('v_readfirstlane_b32', 'v_readlane_b32'):
                    for (s0, r) in last_valu:
                        if st - s0 - 1 < 1 and (r & regs_of(toks[1])): raise Exception(f'readlane hazard: {l}')
                    last_sg.append((st, toks[0]))
                else:
                    for (s0, sg) in last_sg:
                        if st - s0 - 1 < 2 and sg in toks[1:]: raise Exception(f'VALU sgpr->VALU hazard: {l}')
                last_valu.append((st, w)); last_valu = last_valu[-4:]
            if op.startswith('buffer_store') or op.startswith('ds_write'):
                last_st.append((st, regs_of(toks[0] if op.startswith('buffer') else toks[1]))); last_st = last_st[-4:]
            if op.startswith('buffer_') and l.endswith('lds') and st - last_m0 - 1 < 1: raise Exception(f'm0 hazard: {l}')
            if op.startswith('buffer_'):
                for (s0, sg) in last_sg:
                    if st - s0 - 1 < 5 and sg in toks: raise Exception(f'VALU sgpr->VMEM hazard: {l}')
        elif op.startswith('s_') and toks and toks[0] == 'm0': last_m0 = st
        if op.startswith('s_cselect') or op.startswith('s_cbranch_scc'):
            if not (lastscc.startswith('s_cmp') or lastscc.startswith('s_bitcmp')): raise Exception(f'SCC clobbered by {lastscc}: {l}')
        elif re.match(r's_(add|sub|and|or|xor|min|max|lshl|lshr|cmp|bitcmp|andn2|ashr|bfe|not)', op): lastscc = op
        hist = [h for h in hist if st - h[0] < 24]
        st += int(toks[0]) + 1 if op == 's_nop' else 1

class G2(G):
    def __init__(self):
        self.need = {}
        super().__init__()
    def reset(self, mode):
        super().reset(mode); self.lgd = 0; self.vmd = 0
    def _cnt(self, lst, tag):
        if tag[:2] == ('O', 0) and tag not in lst: return len(lst)
        return super()._cnt(lst, tag)
    def wait(self, key, vm=None, lg=None, opt=False):
        if self.mode == 'collect2':
            nd = False
            if lg is not None and len(self.lg) - self._cnt(self.lg, lg) > self.lgd: nd = True
            if vm is not None and len(self.vm) - self._cnt(self.vm, vm) > self.vmd: nd = True
            self.need[key] = self.need.get(key, False) or nd or not opt
            v, l = self.sites[key]
            if not opt:
                if lg is not None: self.lgd = max(self.lgd, len(self.lg) - l)
                if vm is not None: self.vmd = max(self.vmd, len(self.vm) - v)
            return
        if self.mode in ('emit', 'check') and not self.need[key]: return
        super().wait(key, vm, lg)

def gen(opts):
    g = G2()
    g.reset('collect')
    build(g, opts, unroll=True)
    g.reset('collect2')
    build(g, opts, unroll=True)
    g.reset('check')
    build(g, opts, unroll=True)
    hazard_check(g.L)
    L2 = []; skip = None
    for l in g.L:
        if skip:
            if l == skip + ':': skip = None
            continue
        L2.append(l)
        m = re.match(r'  s_cbranch_scc1 (L_np\w*)', l)
        if m: skip = m.group(1)
    hazard_check(L2)
    g.reset('emit')
    build(g, opts, unroll=False)
    L = g.L
    abl = opts.get('abl', '')
    if abl:
        i0 = L.index('L_loop:'); i1 = L.index('L_tail:')
        def keep(l):
            s = l.strip()
            if 'O' in abl and (s.startswith('ds_write_b128') or re.match(r'ds_read_b128 a\[(16[89]|17\d|18\d)', s)): return False
            if 'T' in abl and s.startswith('buffer_store'): return False
            if 'L' in abl and s.startswith('buffer_load'): return False
            if 'B' in abl and s.startswith('s_barrier'): return False
            if 'C' in abl and s.startswith('v_cvt'): return False
            if 'H' in abl and s.startswith('v_mfma') and int(re.search(r'v\[(\d+):', s).group(1)) % 8 == 4: return False
            return True
        L = L[:i0] + [l for l in L[i0:i1] if keep(l)] + L[i1:]
    return '\n'.join(L) + '\n'

def build(g, opts, unroll):
    NT_LD = opts.get('nt_ld', ' nt'); NT_ST = opts.get('nt_st', ' sc1'); NT_B = opts.get('nt_b', '')
    DBG = int(opts.get('dbg', 0)); AMP = opts.get('amp')
    DIR = int(opts.get('dir', 0))
    PD = int(opts.get('pd', 2))
    e = g.e
    TILE_B = 32 * 768; NTILE = 18; STRIDE = 256 * TILE_B
    LDS_O = 4 * TILE_B + 256; LDS_DW = 6 * TILE_B + 512; LDS_PR = LDS_DW + 4096; LDS_TOTAL = LDS_PR + 64
    AREA = [LDS_O, LDS_O + TILE_B + 64, 2 * TILE_B, 3 * TILE_B + 64]
    OOB = 113246208
    vLdsR = [1, 2, 3, 4]; vOR = [5, 6, 7]; vXS = [8, 9, 10, 11, 12, 13]; vXS4b = 14; vTX = 15
    ACC = 16
    PT = 64
    vBL = [PT, PT+1, PT+2]; vTr = PT+3; vDW = PT+4; vM = [PT+5, PT+6]; vTr2 = PT+7
    DWR = [PT+8, PT+12]
    vST = [PT+16+i for i in range(6)]; vOW = [PT+22, PT+23]; vST4b = PT; vTS = PT+1
    T = [ACC+i for i in range(12)]; vLane = ACC + 12
    FUSE = int(opts.get('fuse', 0))
    FT = 88 if FUSE else ACC; NFT = 6 if FUSE else (8 if opts.get('dec') else 12)
    BV = 112 if FUSE else 88
    NA = 6 if FUSE else 5
    ASLOTS = [int(c, 16) for c in opts.get('aslots', '012346' if FUSE else '13579')]
    NAR = 4 if FUSE else int(opts.get('nar', 4))
    if NAR == 5: AREA = [TILE_B + k * (TILE_B + 64) for k in range(5)]
    assert len(ASLOTS) == NA
    VSLOTS = [s for s in range(12) if s not in ASLOTS]
    XF = 144
    OB = 168
    RAW = [192, 216]
    sX, sO, sP, sD = 4, 8, 12, 16
    sW, sCnt = 20, 21
    sRing, sOOB = 39, 40
    sF = [76, 78, 80, 82]
    sBase, sVa, sDec, sEnd = 32, 33, 34, 35
    sX4 = 22; sXm = 56
    sSo = [58, 59, 62, 63]; sSm = 90
    sDb = 92
    sDS = 16
    sRd = 95; sEo = 36; sPa = 37; sPb = 38; sPr = 23; sPv = 41; sPT = 84
    KSTEP = 16 * 49152
    sG = [42, 43, 44]; sQ = [45, 46, 47, 48]; sBW = 49; sT = [50, 51, 52, 53]; sR1, sR2 = 54, 55

    def breg(s, nt, n=4, o=0):
        if s in ASLOTS:
            i = ASLOTS.index(s) * 24 + nt * 4 + o
            return f'a[{i}:{i+n-1}]' if n > 1 else f'a{i}'
        i = BV + VSLOTS.index(s) * 24 + nt * 4 + o
        return f'v[{i}:{i+n-1}]' if n > 1 else f'v{i}'
    sn = [0]
    def stamp():
        if DBG or AMP:
            e(f'  s_memrealtime s[{64+2*sn[0]}:{65+2*sn[0]}]'); sn[0] += 1
    def run(items):
        for it in items:
            if callable(it): it()
            else: e(it)

    e(HDR.rstrip('\n'))
    e(f'; @launch grid=(256,1,1) block=(256,1,1) lds={LDS_TOTAL}')
    e('.amdgcn_target "amdgcn-amd-amdhsa--gfx950"')
    e('.text')
    e('.globl standalone__depthwise_separable__vision_kernel')
    e('.p2align 8')
    e('.type standalone__depthwise_separable__vision_kernel,@function')
    e('standalone__depthwise_separable__vision_kernel:')
    e('  s_load_dwordx8 s[24:31], s[0:1], 0')
    e(f'  s_load_dwordx2 s[{sDb}:{sDb+1}], s[0:1], 32')
    e('  s_cmp_ge_u32 s2, 256')
    e('  s_cbranch_scc1 L_done')
    stamp()
    if AMP == 'c': e('  s_memtime s[96:97]')
    if DBG: e('  s_memtime s[96:97]'); e('  s_mov_b32 s3, 0'); e(f'  s_mov_b32 s{sPv}, 0')
    e(f'  v_lshrrev_b32 v{T[0]}, 6, v0')
    e(f'  v_and_b32 v{vLane}, 63, v0')
    e(f'  v_readfirstlane_b32 s{sW}, v{T[0]}')
    KICK = int(opts.get('kick', 0))
    def kick_a():
        e(f'  s_lshr_b32 s{sT[2]}, s2, 3')
        e(f'  s_mul_i32 s{sT[2]}, s{sT[2]}, 9216')
        if KICK == 2: e(f'  v_and_b32 v{T[5]}, 127, v0')
        e(f'  v_lshl_add_u32 v{T[5]}, v{T[5] if KICK == 2 else 0}, 7, s{sT[2]}')
        e(f'  v_min_u32 v{T[5]}, 294784, v{T[5]}')
    def kick_b():
        e('  s_waitcnt lgkmcnt(0)')
        g.vmop(f'  global_load_dword v{BV+1}, v{T[5]}, s[28:29]', ('K',))
    if KICK: kick_a()
    if KICK and opts.get('kf'): kick_b()
    CW = int(opts.get('cw', 128))
    if CW:
        e(f'  s_getpc_b64 s[{sT[0]}:{sT[1]}]')
        e('L_pc:')
        e(f'  v_mul_u32_u24 v{T[2]}, {CW}, v0')
        e(f'  v_min_u32 v{T[2]}, L_done-L_pc, v{T[2]}')
        e(f'  v_mov_b32 v{T[3]}, s{sT[1]}')
        e(f'  v_add_co_u32 v{T[2]}, vcc, s{sT[0]}, v{T[2]}')
        e(f'  s_nop 1')
        e(f'  v_addc_co_u32 v{T[3]}, vcc, 0, v{T[3]}, vcc')
        g.vmop(f'  global_load_dword v{BV}, v[{T[2]}:{T[3]}], off', ('CW',))
    if KICK and not opts.get('kf'): kick_b()
    e(f'  s_lshr_b32 s{sT[0]}, s2, 3')
    e(f'  s_and_b32 s{sR2}, s{sT[0]}, 3')
    e(f'  s_lshr_b32 s{sR1}, s{sT[0]}, 2')
    e(f'  s_mul_i32 s{sT[1]}, s{sR1}, 11')
    e(f'  s_lshr_b32 s{sT[1]}, s{sT[1]}, 5')
    e(f'  s_mul_i32 s{sT[1]}, s{sT[1]}, 3')
    e(f'  s_sub_u32 s{sR1}, s{sR1}, s{sT[1]}')
    if opts.get('norot'):
        e(f'  s_mov_b32 s{sR1}, 0'); e(f'  s_mov_b32 s{sR2}, 0')
    e(f'  s_mul_i32 s{sT[2]}, s{sW}, 192')
    for i in range(3):
        if i: e(f'  v_add_u32 v{T[1]}, {64*i}, v{vLane}')
        q = T[1] if i else vLane
        e(f'  v_mul_u32_u24 v{T[2]}, 0xaaab, v{q}')
        e(f'  v_lshrrev_b32 v{T[2]}, 19, v{T[2]}')
        e(f'  v_mul_u32_u24 v{T[3]}, 576, v{T[2]}')
        e(f'  v_lshl_add_u32 v{T[3]}, v{vLane}, 4, v{T[3]}')
        if i == 1:
            e(f'  v_lshrrev_b32 v{T[2]}, 3, v{T[2]}')
            e(f'  v_mul_u32_u24 v{T[2]}, 6144, v{T[2]}')
            e(f'  v_add_u32 v{T[3]}, v{T[3]}, v{T[2]}')
        if i == 2: e(f'  v_add_u32 v{T[3]}, 6144, v{T[3]}')
        e(f'  v_add_u32 v{vBL[i]}, s{sT[2]}, v{T[3]}')
    NUMA = int(opts.get('numa', 1))
    PRM = int(opts.get('prm', 28))
    def srd(sd, lo, nbytes):
        e(f'  s_mov_b32 s{sd}, s{lo}')
        e(f'  s_and_b32 s{sd+1}, s{lo+1}, 0xffff')
        e(f'  s_mov_b32 s{sd+2}, {nbytes}')
        e(f'  s_mov_b32 s{sd+3}, 0x00020000')
    def p_gb1():
        e(f'  s_add_u32 s{sG[1]}, s{sG[0]}, 98304')
        e(f'  s_cmp_eq_u32 s{sR1}, 2')
        e(f'  s_cselect_b32 s{sG[1]}, 0, s{sG[1]}')
        e(f'  s_add_u32 s{sG[2]}, s{sG[1]}, 98304')
        e(f'  s_cmp_eq_u32 s{sR1}, 1')
        e(f'  s_cselect_b32 s{sG[2]}, 0, s{sG[2]}')
        for q in range(1, 4):
            e(f'  s_xor_b32 s{sQ[q]}, s{sR2}, {q}')
            e(f'  s_mul_i32 s{sQ[q]}, s{sQ[q]}, {TILE_B}')
    def p_dws():
        e(f'  s_lshl_b32 s{sT[3]}, s{sR2}, 2')
        e(f'  v_lshrrev_b32 v{T[1]}, 4, v{vLane}')
        e(f'  v_add_u32 v{T[2]}, s{sR1}, v{T[1]}')
        e(f'  v_subrev_u32 v{T[3]}, 3, v{T[2]}')
        e(f'  v_min_u32 v{T[2]}, v{T[2]}, v{T[3]}')
        e(f'  v_and_b32 v{T[4]}, 15, v{vLane}')
        e(f'  v_xor_b32 v{T[3]}, s{sT[3]}, v{T[4]}')
        e(f'  v_lshlrev_b32 v{T[3]}, 4, v{T[3]}')
        e(f'  v_lshl_add_u32 v{T[3]}, v{T[2]}, 8, v{T[3]}')
        e(f'  v_cmp_lt_u32 vcc, 47, v{vLane}')
        e(f'  s_lshl_b32 s{sT[0]}, s{sW}, 10')
        e(f'  s_add_u32 m0, s{sT[0]}, {LDS_DW}')
        e(f'  v_cndmask_b32 v{T[3]}, v{T[3]}, v{vBL[2]}, vcc')
    def p_tl():
        e(f'  s_lshr_b32 s{sT[1]}, s2, 5')
        e(f'  s_and_b32 s{sT[2]}, s2, 3')
        e(f'  s_lshl2_add_u32 s{sEo}, s{sT[1]}, s{sT[2]}')
        e(f'  s_lshl_b32 s{sEo}, s{sEo}, 2')
        e(f'  s_mul_i32 s{sT[1]}, s{sT[1]}, 288')
        e(f'  s_lshl2_add_u32 s{sT[2]}, s{sR2}, s{sT[2]}')
        e(f'  s_add_u32 s{sT[1]}, s{sT[1]}, s{sT[2]}')
        e(f'  s_mul_i32 s{sBase}, s{sT[1]}, 49152')
        e(f'  s_add_u32 s{sEnd}, s{sBase}, {NTILE*KSTEP}')
        if NUMA:
            e(f'  s_lshl_b32 s{sT[1]}, s{sW}, 11')
            e(f'  s_and_b32 s{sT[2]}, s2, 4')
            e(f'  s_lshl_b32 s{sT[2]}, s{sT[2]}, 6')
            e(f'  s_add_u32 s{sT[1]}, s{sT[1]}, s{sT[2]}')
            e(f'  s_add_u32 s{sPa}, s{sBase}, s{sT[1]}')
            e(f'  s_add_u32 s{sPa}, s{sPa}, {9*KSTEP}')
            e(f'  s_add_u32 s{sPb}, s{sPa}, 8192')
            e(f'  s_and_b32 s{sPr}, s2, {PRM}')
            e(f'  s_cmp_lg_u32 s{sPr}, 0')
    def p_warm():
        if NUMA:
            e(f'  s_cbranch_scc1 L_np0')
            e(f'  s_load_dword s{sPT}, s[24:25], s{sPa} glc')
            e(f'  s_load_dword s{sPT+1}, s[24:25], s{sPb} glc')
            e('L_np0:')
    def p_dwl():
        srd(sD, 26, 768)
        g.vmop(f'  buffer_load_dwordx4 v{T[3]}, s[{sD}:{sD+3}], 0 offen lds', ('W',))
    e(f'  s_mul_i32 s{sG[0]}, s{sR1}, 98304')
    e(f'  s_mul_i32 s{sQ[0]}, s{sR2}, {TILE_B}')
    e(f'  s_mul_i32 s{sBW}, s{sW}, 6160')
    LEAN = int(opts.get('lean', 2))
    if LEAN == 0: p_gb1(); p_dws()
    if LEAN <= 1: p_tl()
    e('  s_waitcnt lgkmcnt(0)')
    if LEAN <= 1: p_warm()
    if LEAN == 0: p_dwl()
    srd(sP, 28, 294912)
    def bload(s):
        it = []
        for h in range(2):
            it.append(f'  s_add_u32 m0, s{sBW}, {AREA[s % NAR] + h*3080}')
            it.append(f'  s_add_u32 s{sT[0]}, s{sG[s >> 2]}, s{sQ[s & 3]}' if h == 0 else f'  s_add_u32 s{sT[0]}, s{sT[0]}, 6144')
            for i in range(3):
                it.append(lambda h=h, i=i: g.vmop(f'  buffer_load_dwordx4 v{vBL[i]}, s[{sP}:{sP+3}], s{sT[0]} offen offset:{i*1024}{NT_B} lds', ('B', s, 3*h + i)))
        return it
    def xdma(t, u):
        it = []
        if u == 0:
            a, b = sF[0], sF[0] + 1
            it += [f'  s_mov_b64 s[{sF[k]}:{sF[k]+1}], s[{sF[k-1]}:{sF[k-1]+1}]' for k in range(len(sF) - 1, 0, -1)]
            it += [f'  s_add_u32 s{a}, s{sVa}, s{sBase}', f'  s_xor_b32 s{a}, s{a}, s{sDec}',
                   f'  s_add_u32 s{b}, s{sBase}, {TILE_B}', f'  s_cmp_lt_u32 s{sBase}, s{sEnd}',
                   f'  s_cselect_b32 s{sX4}, s{sBase}, s{sOOB}', f'  s_cselect_b32 s{b}, s{b}, s{sOOB}',
                   f'  s_bitcmp1_b32 s{a}, 21', f'  s_cselect_b32 s{a}, s{b}, s{sX4}', f'  s_cselect_b32 s{b}, s{sX4}, s{b}',
                   f'  s_cselect_b64 s[{sXm}:{sXm+1}], -1, 0', f'  s_add_u32 s{sBase}, s{sBase}, {KSTEP}']
        if u == 0 and opts.get('de'):
            it += [f'  s_add_u32 s21, s{sBase}, {(int(opts["de"]) - 1)*KSTEP}', f'  s_cmp_lt_u32 s21, s{sEnd}', f'  s_cselect_b32 s{sX+2}, s{sX+2}, 0']
        if u == 4: it.append(f'  v_cndmask_b32 v{vTX}, v{vXS[4]}, v{vXS4b}, s[{sXm}:{sXm+1}]')
        it.append(f'  s_add_u32 m0, s{sRing}, {(t & 1)*TILE_B + u*4096}')
        if u == 5 and (t & 1): it.append(f'  s_xor_b32 s{sRing}, s{sRing}, {2*TILE_B}')
        else: it.append('NOP')
        it.append(lambda: g.vmop(f'  buffer_load_dwordx4 v{vTX if u == 4 else vXS[u]}, s[{sX}:{sX+3}], s{[sF[0], sX4, sF[0]+1][max(0, u - 3)]} offen{NT_LD} lds', ('L', t, u)))
        return it
    PF = opts.get('pf')
    vPF = PT + 2; vPD = PT + 3; sPf0 = 21; sPfo = 37
    def pf_items():
        return [f'  s_add_u32 s{sPfo}, s{sVa}, s{sBase}', f'  s_xor_b32 s{sPfo}, s{sPfo}, s{sDec}', f'  s_lshr_b32 s{sPfo}, s{sPfo}, 8',
                f'  s_and_b32 s{sPfo}, s{sPfo}, 8192', f'  s_add_u32 s{sPfo}, s{sPfo}, s{sBase}',
                f'  s_cmp_lt_u32 s{sBase}, s{sEnd}', f'  s_cselect_b32 s{sPfo}, s{sPfo}, s{sOOB}',
                f'  s_cmp_ge_u32 s{sBase}, s{sPf0}', f'  s_cselect_b32 s{sPfo}, s{sPfo}, s{sOOB}',
                lambda: g.vmop(f'  buffer_load_dword v{vPD}, v{vPF}, s[{sX}:{sX+3}], s{sPfo} offen{opts.get("pfl", "")}', None)]
    def xdma_items(t):
        return ['  s_nop 0' if x == 'NOP' else x for u in range(6) for x in xdma(t, u)]
    NB0 = int(opts.get('nb0', 1)) if FUSE else 99
    NI = int(opts.get('ni', 1))
    run(bload(0))
    if LEAN == 2: p_tl(); p_warm()
    if LEAN: p_dws(); p_dwl(); p_gb1()
    for s in range(1, min(NB0, NI)): run(bload(s))
    if opts.get('tw'):
        e(f'  v_mov_b32 v{T[5]}, s{sBase}')
        g.vmop(f'  global_load_dword v{BV+2}, v{T[5]}, s[24:25]', ('K',))
        g.vmop(f'  global_load_dword v{BV+3}, v{T[5]}, s[30:31]', ('K',))
    if opts.get('st2') == '2': stamp()
    srd(sX, 24, 113246208)
    hi2, lo4 = T[1], T[4]
    e(f'  s_add_u32 s{sVa}, s24, {TILE_B}')
    e(f'  s_mov_b32 s{sOOB}, {OOB}')
    e(f'  s_lshl_b32 s{sRing}, s{sW}, 10')
    for r in [x + k for x in sF[:3] for k in range(2)]: e(f'  s_mov_b32 s{r}, s{sOOB}')
    e(f'  s_lshr_b32 s{sDec}, s2, 1')
    e(f'  s_xor_b32 s{sDec}, s{sDec}, s2')
    e(f'  s_and_b32 s{sDec}, s{sDec}, 4')
    e(f'  s_lshl_b32 s{sDec}, s{sDec}, 19')
    ROW = [ACC+16, ACC+17, ACC+18]; GG = [ACC+19, ACC+20, ACC+21]
    def rowmap(dst, dst4b, base, u):
        if u == 0:
            e(f'  v_add_u32 v{dst[3]}, {26*768}, v{base}')
            if base != dst[0]: e(f'  v_mov_b32 v{dst[0]}, v{base}')
        if u == 1:
            e(f'  v_cmp_lt_u32 vcc, 5, v{ROW[1]}')
            e(f'  v_add_u32 v{T[8]}, {26*768}, v{base}')
            e(f'  v_add_u32 v{T[9]}, {37*768}, v{base}')
            e(f'  v_cndmask_b32 v{dst[4]}, v{T[8]}, v{T[9]}, vcc')
            if dst4b is not None:
                e(f'  v_add_u32 v{T[8]}, {58*768}, v{base}')
                e(f'  v_add_u32 v{T[9]}, {5*768}, v{base}')
                e(f'  v_cndmask_b32 v{dst4b}, v{T[8]}, v{T[9]}, vcc')
            if base != dst[1]: e(f'  v_mov_b32 v{dst[1]}, v{base}')
        if u == 2:
            e(f'  v_cmp_lt_u32 vcc, 10, v{ROW[2]}')
            e(f'  v_add_u32 v{T[8]}, 7680, v{base}')
            e(f'  v_add_u32 v{dst[5]}, {5*768}, v{base}')
            e(f'  v_cndmask_b32 v{dst[2]}, v{base}, v{T[8]}, vcc')
    e(f'  v_lshrrev_b32 v{GG[0]}, 4, v0')
    e(f'  v_xor_b32 v{T[6]}, s{sT[3]}, v{lo4}')
    for u in range(3):
        if u: e(f'  v_add_u32 v{GG[u]}, {16*u}, v{GG[0]}')
        e(f'  v_mul_u32_u24 v{ROW[u]}, 43, v{GG[u]}')
        e(f'  v_lshrrev_b32 v{ROW[u]}, 7, v{ROW[u]}')
        e(f'  v_mul_u32_u24 v{T[2]}, 3, v{ROW[u]}')
        e(f'  v_sub_u32 v{T[3]}, v{GG[u]}, v{T[2]}')
        e(f'  v_add_u32 v{T[3]}, s{sR1}, v{T[3]}')
        e(f'  v_subrev_u32 v{T[5]}, 3, v{T[3]}')
        e(f'  v_min_u32 v{T[3]}, v{T[3]}, v{T[5]}')
        e(f'  v_add_u32 v{T[3]}, v{T[3]}, v{T[2]}')
        e(f'  v_xor_b32 v{T[5]}, v{ROW[u]}, v{T[6]}')
        e(f'  v_lshlrev_b32 v{T[5]}, 4, v{T[5]}')
        e(f'  v_lshl_add_u32 v{vXS[u]}, v{T[3]}, 8, v{T[5]}')
        rowmap(vXS, vXS4b, vXS[u], u)
    if NB0 <= 2: run(xdma_items(0))
    STG = int(opts.get('stg', 0))
    sS3 = [58, 59, 62]; sSR = 63
    def x0_site(early):
        it = []
        if early: it += [x for x in xdma(0, 0)[:-3]]
        it += [f'  s_and_b32 s{sSR}, s2, {STG}', f'  s_cmp_eq_u32 s{sSR}, 0' if early else f'  s_cmp_lg_u32 s{sSR}, 0']
        for r, src in zip(sS3, (sF[0], sX4, sF[0] + 1)): it.append(f'  s_cselect_b32 s{r}, s{src}, s{sOOB}')
        it += [f'  s_cselect_b32 s{sSR}, 0, {TILE_B}', f'  s_add_u32 s{sSR}, s{sSR}, s{sRing}']
        for u in range(6):
            if u == 4: it.append(f'  v_cndmask_b32 v{vTX}, v{vXS[4]}, v{vXS4b}, s[{sXm}:{sXm+1}]')
            it += [f'  s_add_u32 m0, s{sSR}, {u*4096}', '  s_nop 0',
                   lambda u=u: g.vmop(f'  buffer_load_dwordx4 v{vTX if u == 4 else vXS[u]}, s[{sX}:{sX+3}], s{sS3[max(0, u - 3)]} offen{NT_LD} lds', ('L', 0, u))]
        return it
    XE = int(opts.get('xe', -1))
    if STG and XE < 0: run(x0_site(True))
    for s in range(NB0, 2): run(bload(s))
    srd(sO, 30, 113246208)
    e(f'  v_lshlrev_b32 v{vST[0]}, 4, v0')
    for u in range(3):
        if u: e(f'  v_add_u32 v{vST[u]}, {4096*u}, v{vST[0]}')
        e(f'  v_and_b32 v{T[5]}, 7, v{ROW[u]}')
        e(f'  v_xor_b32 v{T[5]}, v{T[5]}, v{lo4}')
        e(f'  v_lshlrev_b32 v{T[5]}, 4, v{T[5]}')
        e(f'  v_lshl_add_u32 v{T[5]}, v{GG[u]}, 8, v{T[5]}')
        e(f'  v_add_u32 v{vOR[u]}, {LDS_O}, v{T[5]}')
    for u in range(3): rowmap(vST, None, vST[u], u)
    e(f'  v_mul_u32_u24 v{T[0]}, 0x300, v{lo4}')
    e(f'  v_xor_b32 v{T[2]}, v{hi2}, v{lo4}')
    e(f'  v_lshl_add_u32 v{vLdsR[0]}, v{T[2]}, 4, v{T[0]}')
    for s in range(1, 4): e(f'  v_xor_b32 v{vLdsR[s]}, {s*64}, v{vLdsR[0]}')
    e(f'  s_mul_i32 s{sT[1]}, s{sW}, 12')
    e(f'  v_and_b32 v{T[2]}, 7, v{lo4}')
    for u in range(2):
        e(f'  v_add_u32 v{T[3]}, s{sT[1]}, v{hi2}')
        if u: e(f'  v_add_u32 v{T[3]}, {4*u}, v{T[3]}')
        e(f'  v_xor_b32 v{T[3]}, v{T[3]}, v{T[2]}')
        e(f'  v_lshl_add_u32 v{vOW[u]}, v{T[3]}, 4, v{T[0]}')
        e(f'  v_add_u32 v{vOW[u]}, {LDS_O}, v{vOW[u]}')
    e(f'  v_bfe_u32 v{T[2]}, v{vLane}, 2, 2')
    e(f'  v_and_b32 v{T[3]}, 3, v{vLane}')
    e(f'  v_lshrrev_b32 v{T[5]}, 1, v{hi2}')
    e(f'  v_lshl_add_u32 v{T[5]}, v{T[5]}, 3, v{T[2]}')
    e(f'  v_mul_u32_u24 v{T[5]}, 192, v{T[5]}')
    e(f'  v_and_b32 v{T[7]}, 1, v{hi2}')
    e(f'  v_mul_u32_u24 v{T[7]}, 3080, v{T[7]}')
    e(f'  v_add_u32 v{T[5]}, v{T[5]}, v{T[7]}')
    e(f'  v_lshl_add_u32 v{T[5]}, v{T[3]}, 4, v{T[5]}')
    e(f'  s_add_u32 s{sT[1]}, s{sBW}, {AREA[2]}')
    e(f'  v_add_u32 v{vTr2}, s{sT[1]}, v{T[5]}')
    e(f'  v_add_u32 v{vTr}, {(AREA[0] - AREA[2]) & 0xffffffff}, v{vTr2}')
    e(f'  s_add_u32 s{sT[1]}, s{sRing}, {LDS_DW}')
    e(f'  v_lshl_add_u32 v{vDW}, v{hi2}, 4, s{sT[1]}')
    e(f'  v_and_b32 v{T[5]}, 1, v{vLane}')
    e(f'  v_lshlrev_b32 v{T[5]}, 4, v{T[5]}')
    e(f'  v_mov_b32 v{T[7]}, 0xffff')
    e(f'  v_lshlrev_b32 v{T[5]}, v{T[5]}, v{T[7]}')
    e(f'  v_lshlrev_b32 v{T[0]}, 1, v{hi2}')
    e(f'  v_bfe_u32 v{T[7]}, v{vLane}, 1, 3')
    e(f'  v_cmp_eq_u32 vcc, v{T[0]}, v{T[7]}')
    e(f'  v_add_u32 v{T[0]}, 1, v{T[0]}')
    e(f'  s_nop 0')
    e(f'  v_cndmask_b32 v{vM[0]}, 0, v{T[5]}, vcc')
    e(f'  v_cmp_eq_u32 vcc, v{T[0]}, v{T[7]}')
    srd(sDS, sDb, 256)
    e(f'  v_cndmask_b32 v{vM[1]}, 0, v{T[5]}, vcc')
    NR = int(opts.get('nr', 2))
    def probe():
        e(f'  s_cmp_lg_u32 s{sPr}, 0')
        e(f'  s_cbranch_scc1 L_npr')
        e(f'  s_mov_b32 s{sPv}, 0xffff')
        e(f'  s_mov_b32 s{sRd}, 0xffff')
        e(f'  s_lshl_b32 s{sT[2]}, s{sW}, 2')
        e(f'  s_add_u32 s{sT[2]}, s{sT[2]}, {LDS_PR}')
        e(f'  v_mov_b32 v{T[0]}, s{sT[2]}')
        if int(opts.get('pb', 0)):
            e('  s_waitcnt lgkmcnt(0)')
            for i in range(NR):
                e('  s_barrier')
                e(f'  s_memtime s[{sPT}:{sPT+1}]')
                e(f'  s_load_dword s{sT[2]}, s[24:25], s{sPb if i & 1 else sPa} glc')
                e('  s_waitcnt lgkmcnt(0)')
                e(f'  s_memtime s[{sPT+2}:{sPT+3}]')
                e('  s_waitcnt lgkmcnt(0)')
                e(f'  s_sub_u32 s{sT[1]}, s{sPT+2}, s{sPT}')
                e(f'  s_min_u32 s{sRd if i & 1 else sPv}, s{sRd if i & 1 else sPv}, s{sT[1]}')
        else:
            e('  s_waitcnt lgkmcnt(0)')
            e(f'  s_memtime s[{sPT}:{sPT+1}]')
            for i in range(NR):
                a, b = (sPT, sPT + 2) if i % 2 == 0 else (sPT + 2, sPT)
                e(f'  s_load_dword s{sT[2]}, s[24:25], s{sPb if i & 1 else sPa} glc')
                e('  s_waitcnt lgkmcnt(0)')
                if i:
                    e(f'  s_sub_u32 s{sT[1]}, s{a}, s{b}')
                e(f'  s_memtime s[{b}:{b+1}]')
                if i: e(f'  s_min_u32 s{sRd if (i - 1) & 1 else sPv}, s{sRd if (i - 1) & 1 else sPv}, s{sT[1]}')
            e('  s_waitcnt lgkmcnt(0)')
            e(f'  s_sub_u32 s{sT[1]}, s{sPT}, s{sPT+2}')
            e(f'  s_min_u32 s{sRd}, s{sRd}, s{sT[1]}')
        e(f'  s_lshl_b32 s{sPv}, s{sPv}, 16')
        e(f'  s_or_b32 s{sPv}, s{sPv}, s{sRd}')
        e(f'  v_mov_b32 v{T[2]}, s{sPv}')
        e(f'  ds_write_b32 v{T[0]}, v{T[2]}')
        e('  s_waitcnt lgkmcnt(0)')
        e(f'L_npr:')
    PQ = 248
    assert 11 not in ASLOTS
    def publish():
        if NB0 >= 2:
            e(f'  s_cmp_lg_u32 s{sPr}, 0')
            e(f'  s_cbranch_scc1 L_np1')
            e('  s_barrier')
        e(f'  s_or_b32 s{sT[1]}, s{sPr}, s{sW}')
        e(f'  s_cmp_lg_u32 s{sT[1]}, 0')
        e(f'  s_cbranch_scc1 L_np1')
        e(f'  v_mov_b32 v{PQ+4}, {LDS_PR}')
        e(f'  ds_read_b128 v[{PQ}:{PQ+3}], v{PQ+4}')
        e(f'  s_add_u32 s{sT[1]}, s{sVa}, s{sPa}')
        e(f'  s_lshr_b32 s{sT[1]}, s{sT[1]}, 21')
        e(f'  s_lshr_b32 s{sT[2]}, s2, 2')
        e(f'  s_xor_b32 s{sT[1]}, s{sT[1]}, s{sT[2]}')
        e(f'  s_and_b32 s{sT[1]}, s{sT[1]}, 1')
        e(f'  s_add_u32 s{sT[2]}, s{sT[1]}, 1')
        e(f'  s_sub_u32 s{sT[1]}, 2, s{sT[1]}')
        e(f'  v_mov_b32 v{PQ+6}, s{sT[2]}')
        e(f'  v_mov_b32 v{PQ+5}, s{sT[1]}')
        e(f'  v_mov_b32 v{PQ+7}, 0')
        e(f'  v_mov_b32 v{PQ+4}, s{sEo}')
        e('  s_waitcnt lgkmcnt(0)')
        e(f'  v_pk_min_u16 v{PQ}, v{PQ}, v{PQ+1}')
        e(f'  v_pk_min_u16 v{PQ+2}, v{PQ+2}, v{PQ+3}')
        e(f'  v_pk_min_u16 v{PQ}, v{PQ}, v{PQ+2}')
        e(f'  v_lshrrev_b32 v{PQ+1}, 16, v{PQ}')
        e(f'  v_and_b32 v{PQ}, 0xffff, v{PQ}')
        e(f'  v_cmp_gt_u32 vcc, v{PQ+1}, v{PQ}')
        e('  s_mov_b64 exec, 1')
        e('  s_nop 0')
        e(f'  v_cndmask_b32 v{PQ+6}, v{PQ+6}, v{PQ+5}, vcc')
        e(f'  buffer_atomic_cmpswap v[{PQ+6}:{PQ+7}], v{PQ+4}, s[{sDS}:{sDS+3}], 0 offen sc1')
        e('  s_mov_b64 exec, -1')
        e('L_np1:')
    if opts.get('st2') == '2': stamp()
    PP = int(opts.get('pp', 0))
    if NUMA and PP == -1: probe()
    for s in range(NI, 2): run(bload(s))
    if NUMA and PP == 0: probe()
    LA = int(opts.get('la', NAR))
    assert LA <= NAR
    if LA > 2: run(bload(2))
    if NUMA and PP == 1: probe()
    if NB0 == 3: run(xdma_items(0))
    if LA > 3: run(bload(3))
    if LA > 4: run(bload(4))
    if NUMA and PP == 2: probe()

    def trs(s):
        it = [lambda: g.wait(('b', s), vm=('W',) if (s == 0 and LEAN) else ('B', s, 5))]
        base = vTr if (s % NAR) < 2 else vTr2
        so = AREA[s % NAR] - AREA[0 if (s % NAR) < 2 else 2]
        it.append(lambda: g.lgop(f'  ds_read_b128 v[{DWR[s & 1]}:{DWR[s & 1]+3}], v{vDW} offset:{s*64}', ('TR', s)))
        for nt in range(6):
            for hh in range(2):
                r = RAW[s & 1] + nt*4 + 2*hh
                it.append(lambda r=r, nt=nt, hh=hh: g.lgop(f'  ds_read_b64_tr_b16 a[{r}:{r+1}], v{base} offset:{so + hh*768 + (nt >> 1)*64 + (nt & 1)*8}', ('TR', s)))
        return it
    def cvts(s, j, q=None):
        nt, hh = j // 2, j % 2
        if q is None: q = FT + 4*(j % NFT)
        if s in ASLOTS:
            return [f'  v_cvt_pk_bf16_f32 v{q}, v{q}, v{q+1}', f'  v_cvt_pk_bf16_f32 v{q+1}, v{q+2}, v{q+3}',
                    f'  v_accvgpr_write_b32 {breg(s, nt, 1, 2*hh)}, v{q}', f'  v_accvgpr_write_b32 {breg(s, nt, 1, 2*hh+1)}, v{q+1}']
        return [f'  v_cvt_pk_bf16_f32 {breg(s, nt, 1, 2*hh)}, v{q}, v{q+1}', f'  v_cvt_pk_bf16_f32 {breg(s, nt, 1, 2*hh+1)}, v{q+2}, v{q+3}']
    def rd(t, i):
        mt, ks = i // 12, i % 12
        x = XF + 8*((i // 2) % 3) + 4*(i & 1)
        g.lgop(f'  ds_read_b128 a[{x}:{x+3}], v{vLdsR[ks & 3]} offset:{(t & 1)*TILE_B + mt*12288 + (ks >> 2)*256}', ('X', t, i))
    TS = NB0 if FUSE else 13
    units = sorted([(0, k) for k in range(12)] + [(1, k) for k in range(8)], key=lambda u: (u[1] + 4*u[0], -u[0]))
    UPS = int(opts.get('ups', 2 if NB0 <= 2 else 3))
    SCH = {s: [] for s in range(13)}
    rem = list(units) if FUSE else []
    for s in range(12, TS - 1, -1):
        n = 2 if s == 12 else UPS
        take = [u for u in reversed(rem) if u[1] < s][:n]
        SCH[s] = sorted(take, key=lambda u: (u[1], u[0]))
        rem = [u for u in rem if u not in take]
    assert not rem, rem
    for mt in range(2 if FUSE else 0):
        seq = [u[1] for s in range(13) for u in SCH[s] if u[0] == mt]
        assert seq[0] == 0 and sorted(seq) == list(range(len(seq)))
    def tl(s): return SCH[s]
    def fx(s, mt, ks): return OB + 12*(s % 2) + 4*SCH[s].index((mt, ks))
    def prd(s):
        return [lambda mt=mt, ks=ks: g.lgop(f'  ds_read_b128 a[{fx(s, mt, ks)}:{fx(s, mt, ks)+3}], v{vLdsR[ks & 3]} offset:{mt*12288 + (ks >> 2)*256}', ('TR', s)) for (mt, ks) in tl(s)]
    def tm(s, mt, ks, nt):
        a = ACC + 24*mt + 4*nt; x = fx(s, mt, ks)
        return f'  v_mfma_f32_16x16x32_bf16 v[{a}:{a+3}], {breg(ks, nt)}, a[{x}:{x+3}], {"0" if ks == 0 else f"v[{a}:{a+3}]"}'
    DEC = int(opts.get('dec', 0))
    def trd(s):
        it = [lambda: g.wait(('b', s), vm=('W',) if (s == 0 and LEAN) else ('B', s, 5))]
        base = vTr if (s % NAR) < 2 else vTr2
        so = AREA[s % NAR] - AREA[0 if (s % NAR) < 2 else 2]
        for nt in range(6):
            for hh in range(2):
                it.append(lambda nt=nt, hh=hh: g.lgop(f'  ds_read_b64_tr_b16 {breg(s, nt, 2, 2*hh)}, v{base} offset:{so + hh*768 + (nt >> 1)*64 + (nt & 1)*8}', ('TR', s)))
        return it
    def dwr(s): g.lgop(f'  ds_read_b128 v[{DWR[s & 1]}:{DWR[s & 1]+3}], v{vDW} offset:{s*64}', ('DW', s))
    if DEC:
        run(trd(0)); dwr(0)
    else: run(trs(0))
    stamp()
    LAG = int(opts.get('lag', 3))
    XA = int(opts.get('xa', 8)); XB = int(opts.get('xb', 12)); DS = int(opts.get('ds', XA)); BQ = 10
    X0 = int(opts.get('x0', 11 - LA)); X1 = int(opts.get('x1', 11))
    if not FUSE: XA = XB = BQ = 99; DS = int(opts.get('ds', 10)); LAG = int(opts.get('lag', 4))
    assert XB >= BQ
    pend = []
    def decide():
        if NUMA:
            e(f'  s_cmp_eq_u32 s{sRd}, 0')
            e('  s_cbranch_scc1 L_slow')
            e('L_back:')
            e(f'  s_lshr_b32 s{sT[1]}, s2, 1')
            e(f'  s_xor_b32 s{sDec}, s{sRd}, s{sT[1]}')
            e(f'  s_and_b32 s{sDec}, s{sDec}, 2')
            e(f'  s_lshl_b32 s{sDec}, s{sDec}, 20')
    if DEC:
        QU = [[] for _ in range(145)]
        def spread(items, n0, n1):
            for i, it in enumerate(items): QU[n0 + (i * (n1 - n0)) // len(items)].append(it)
        for a in range(11):
            it = trd(a + 1)
            if a + LA < 12: it += [lambda a=a: g.wait(('trf', a), lg=('TR', a))] + bload(a + LA)
            if a == X0: it += xdma_items(0)
            spread(it, DEC * a, DEC * (a + 1))
        if NUMA: QU[12*DS - 8].append(f'  s_load_dword s{sRd}, s[{sDb}:{sDb+1}], s{sEo}')
        if X1 < 12: spread(xdma_items(1), 12*X1, 12*X1 + 12)
        assert DEC * (X0 + 1) <= 12*DS
        for n in range(144):
            k, j = n // 12, n % 12
            d = DWR[k & 1]
            if j == 0:
                if k == DS and NUMA: e('  s_waitcnt lgkmcnt(0)')
                else:
                    g.wait(('tr', k), lg=('TR', k)); g.wait(('dw', k), lg=('DW', k), opt=True)
                for i in range(4): e(f'  v_and_b32 v{d+i}, v{vM[i & 1]}, v{d+i}')
                if k == DS: decide()
                if k + 1 < 12: dwr(k + 1)
                else: e('  s_nop 0')
                e('  s_nop 0')
            nt, hh = j // 2, j % 2
            q = FT + 4*(n % NFT)
            e(f'  v_mfma_f32_16x16x16_bf16 v[{q}:{q+3}], v[{d+2*hh}:{d+2*hh+1}], {breg(k, nt, 2, 2*hh)}, 0')
            pend.append(cvts(k, j, q))
            run(QU[n])
            if len(pend) > LAG: run(pend.pop(0))
            if n in (47, 95): stamp()
            if n == 11 and NUMA: publish()
    for s in range(0 if DEC else 12):
        if s == DS and NUMA: e('  s_waitcnt lgkmcnt(0)')
        else: g.wait(('tr', s), lg=('TR', s))
        if s == BQ: e('  s_barrier')
        d = DWR[s & 1]
        for i in range(4): e(f'  v_and_b32 v{d+i}, v{vM[i & 1]}, v{d+i}')
        if s == DS: decide()
        Q = []
        if s + 4 == NB0: Q += xdma_items(0)
        if s + LA < 12: Q += bload(s + LA)
        nx = trs(s + 1) if s + 1 < 12 else []
        if s == NB0 - 1:
            nx = nx[:1] + ['  s_barrier'] + nx[1:]
        nx += prd(s + 1)
        Q = (Q + nx) if opts.get('qo', '1') == '0' else (nx + Q)
        if s == DS - 1 and NUMA: Q.append(f'  s_load_dword s{sRd}, s[{sDb}:{sDb+1}], s{sEo}')
        if STG and s == XE: Q += x0_site(True)
        if s == X0 and not FUSE: Q += (x0_site(False) if STG else xdma_items(0))
        if s == X1 and not FUSE: Q += xdma_items(1)
        if s == XA: Q += xdma_items(1)
        if s == XB: Q += xdma_items(2)
        if s == 11 and FUSE: Q += [lambda i=i: rd(0, i) for i in range(20, 24)]
        while len(Q) < 2: Q.append('  s_nop 0')
        M = []
        TL = [tm(s, mt, ks, nt) for nt in range(6) for (mt, ks) in tl(s)]
        for j in range(12):
            nt, hh = j // 2, j % 2
            r = RAW[s & 1] + nt*4 + 2*hh
            q = FT + 4*(j % NFT)
            M.append((f'  v_mfma_f32_16x16x16_bf16 v[{q}:{q+3}], v[{d+2*hh}:{d+2*hh+1}], a[{r}:{r+1}], 0', j))
            k0, k1 = (j*len(TL))//12, ((j+1)*len(TL))//12
            M += [(x, None) for x in TL[k0:k1]]
        run(Q[:2]); Q = Q[2:]
        front = int(opts.get('front', 2))
        cq = []
        for mi, (m, j) in enumerate(M):
            if j is not None:
                run(cq); cq = []
            e(m)
            if j is not None:
                pend.append(cvts(s, j))
                if len(pend) > LAG: cq = pend.pop(0)
            QE = (len(M) * int(opts.get('qe', 4))) // 4
            nq = -(-len(Q) // max(1, QE - mi)) if mi < QE else len(Q)
            run(Q[:nq]); Q = Q[nq:]
            nc = 2 if (mi + 1 < len(M) and M[mi + 1][1] is None) else len(cq)
            run(cq[:nc]); cq = cq[nc:]
        assert not Q and not cq
        if s in (3, 7) and not opts.get('st2'): stamp()
        if s == (0 if NB0 >= 2 else NB0 - 1) and NUMA: publish()
    if FUSE:
        g.wait(('tr', 12), lg=('TR', 12))
        T0 = [tm(12, 0, 11, nt) for nt in range(6)]
        T1 = [tm(12, 1, ks, nt) for (mt, ks) in tl(12) if mt == 1 for nt in range(6)]
        for nt in range(4):
            e(T0[nt])
            if pend: run(pend.pop(0))
        if DS == 12:
            e('  s_waitcnt lgkmcnt(0)'); decide()
        e(f'  v_sub_u32 v{vST4b}, v{vXS4b}, v{vXS[4]}')
        e(f'  v_add_u32 v{vST4b}, v{vST4b}, v{vST[4]}')
        e(T0[4]); e(T0[5])
        stamp()
        FIN = (T1, XB)
    else:
        run(pend.pop(0)); run(pend.pop(0))
        stamp()
        e(f'  v_sub_u32 v{vST4b}, v{vXS4b}, v{vXS[4]}')
        e(f'  v_add_u32 v{vST4b}, v{vST4b}, v{vST[4]}')
        for r in sSo: e(f'  s_mov_b32 s{r}, s{sOOB}')
        if PF:
            a_, m_ = [int(v) for v in PF.split(',')]
            e(f'  v_mbcnt_lo_u32_b32 v{vPF}, -1, 0')
            e(f'  v_mbcnt_hi_u32_b32 v{vPF}, -1, v{vPF}')
            e(f'  v_min_u32 v{vPF}, 47, v{vPF}')
            e(f'  s_mul_i32 s{sPf0}, s{sW}, 48')
            e(f'  v_add_u32 v{vPF}, s{sPf0}, v{vPF}')
            e(f'  v_lshrrev_b32 v{vPD}, 6, v{vPF}')
            e(f'  v_lshlrev_b32 v{vPD}, 13, v{vPD}')
            e(f'  v_lshl_add_u32 v{vPF}, v{vPF}, 7, v{vPD}')
            e(f'  s_lshr_b32 s{sPf0}, s2, 3')
            e(f'  s_and_b32 s{sPf0}, s{sPf0}, {m_}')
            e(f'  s_add_u32 s{sPf0}, s{sPf0}, {a_ - NTILE & 0xffffffff}')
            e(f'  s_mul_i32 s{sPf0}, s{sPf0}, {KSTEP}')
            e(f'  s_add_u32 s{sPf0}, s{sPf0}, s{sEnd}')
        g.wait('x0', vm=('L', 0, 5))
        e('  s_barrier')
        for i in range(4): rd(0, i)
        while pend: run(pend.pop(0))
        if X1 == 13: run(xdma_items(1))
        else: assert NAR == 4 and X1 >= DS

    def epi(mt, u, po):
        a = ACC + 24*mt + 8*u
        cv = [f'  v_cvt_pk_bf16_f32 v{a+i}, v{a+2*i}, v{a+2*i+1}' for i in range(4)]
        off = po*TILE_B + mt*12288 + (u >> 1)*128
        if DIR:
            return cv + [lambda: g.vmop(f'  buffer_store_dwordx4 v[{a}:{a+3}], v{vTS if mt else vST[0]}, s[{sO}:{sO+3}], s{sSo[2] if mt else sSo[0]} offen offset:{64*u}{NT_ST}', None)]
        if opts.get('w64'):
            return cv[:2] + [lambda: g.lgop(f'  ds_write_b64 v{vOW[u & 1]}, v[{a}:{a+1}] offset:{off}', ('OWa', mt, u))] + cv[2:] + \
                   [lambda: g.lgop(f'  ds_write_b64 v{vOW[u & 1]}, v[{a+2}:{a+3}] offset:{off+8}', ('OW', mt, u))]
        return cv + [lambda: g.lgop(f'  ds_write_b128 v{vOW[u & 1]}, v[{a}:{a+3}] offset:{off}', ('OW', mt, u))]
    OBT = 'a'
    def out_read(t, u):
        o = OB + 4*u
        g.lgop(f'  ds_read_b128 {OBT}[{o}:{o+3}], v{vOR[u % 3]} offset:{((t^1)&1)*TILE_B + (u // 3)*12288}', ('O', t, u))
    def out_store(t, u, key):
        o = OB + 4*u
        g.wait((key, 'o', u), lg=('O', t, u), opt=True)
        g.vmop(f'  buffer_store_dwordx4 {OBT}[{o}:{o+3}], v{vTS if u == 4 else vST[u]}, s[{sO}:{sO+3}], s{sSo[max(0, u - 2)]} offen{NT_ST}', None)
    def st_adv(d=0):
        p, q = sF[2 - d], sF[3 - d]
        if DIR:
            return [f'  s_mov_b32 s{sSo[0]}, s{p}', f'  s_min_u32 s{sSo[2]}, s{p}, s{p+1}', f'  s_cmp_gt_u32 s{p}, s{p+1}',
                    f'  s_cselect_b64 s[{sSm}:{sSm+1}], -1, 0', 'NOP', f'  v_cndmask_b32 v{vTS}, v{vST[1]}, v{vST[2]}, s[{sSm}:{sSm+1}]']
        return [f'  s_mov_b32 s{sSo[0]}, s{p}', f'  s_mov_b32 s{sSo[1]}, s{q}', f'  s_mov_b32 s{sSo[3]}, s{q+1}', f'  s_min_u32 s{sSo[2]}, s{q}, s{q+1}',
                f'  s_cmp_gt_u32 s{q}, s{q+1}', f'  s_cselect_b64 s[{sSm}:{sSm+1}], -1, 0',
                'NOP', f'  v_cndmask_b32 v{vTS}, v{vST[4]}, v{vST4b}, s[{sSm}:{sSm+1}]']
    def ints(k, d): return [int(v) for v in opts.get(k, d).split(',')]
    OR_AT = ints('or', '2,3,4,5,6,7'); OS_AT = ints('os', '14,20,30,40,52,64')
    UORD = ints('uord', '3,4,5,0,1,2')
    XD_AT = ints('xd', '76,88,100,112,124,136')
    E1_AT = ints('e1', '27,39,61'); E0_AT = ints('e0', '99,106,123')
    SH_AT = int(opts.get('sh', 26)); CAP = int(opts.get('cap', 1)); HG = int(opts.get('hg', 0))
    def fillers(t):
        F = [[] for _ in range(144)]
        use = [0] * 150
        for r in range(144):
            if r % 12 in (0, 1, 11): use[r] = 1
        HP = opts.get('hp')
        def heavy(rho, it):
            while use[rho] or (HP and rho % 2 != int(HP)): rho += 1
            F[rho].append(it); use[rho] = 9
            for k in range(1, HG + 1): use[rho + k] = max(use[rho + k], 8)
            return rho
        def light(rho, items, cap=CAP, back=False):
            if back:
                for it in reversed(items):
                    while use[rho] >= cap: rho -= 1
                    F[rho].insert(0, it); use[rho] += 1
                return rho
            for it in items:
                while use[rho] >= cap: rho += 1
                F[rho].append(it); use[rho] += 1
            return rho
        kp = t & 1
        post = []
        vpos = []
        for k in range(0 if DIR else 6):
            u = UORD[k]
            lastst = heavy(OS_AT[k], lambda u=u: out_store(t, u, kp))
            vpos.append(lastst)
        xpos = []
        for u in range(6):
            it = [x for x in xdma(t + PD, u) if x != 'NOP']
            xpos.append((heavy(XD_AT[u], it[-1]), it[:-1]))
        for mt, AT in ((1, E1_AT), (0, E0_AT)):
            for u in range(3):
                r = AT[u]
                for it in epi(mt, u, t & 1):
                    r = (heavy(r, it) if callable(it) else light(r, [it], 1)) + 1
                if DIR:
                    vpos.append(r - 1)
                    if mt == 1: lastst = r - 1
        for k in range(0 if DIR else 6):
            light(OR_AT[k], [lambda u=UORD[k]: out_read(t, u)], 1)
        prevx = 0
        for (r, it) in xpos:
            r0 = light(r - 1, it, 2 if len(it) > 6 else CAP, back=True)
            assert r0 >= 24 and r0 > prevx, (r0, prevx)
            prevx = r
        if PF:
            it = pf_items()
            rp = heavy(int(opts.get('pfa', 140)), it[-1])
            assert light(rp - 1, it[:-1], 2, back=True) > xpos[4][0]
        if opts.get('lim'):
            for r in vpos + [x[0] for x in xpos]:
                light(r - 1, [f'  s_waitcnt vmcnt({opts["lim"]})'], 2, back=True)
        for a, b in zip(xpos, xpos[1:]): assert b[0] - a[0] >= 5
        r1 = light(max(lastst, xpos[0][0]) + 1, [x for x in st_adv() if x != 'NOP'], 2)
        assert r1 < (E0_AT[0] + 4 if DIR else 144)
        return F
    def tile(t, G0=0):
        kp = t & 1
        F0 = fillers(t); F1 = fillers(t + 1)
        for G_ in range(G0, 12):
            mt, kg = G_ // 6, G_ % 6
            if DBG == 2 and G_ in (4, 10): e(f'  s_memrealtime s[{[42, 44, 48, 50][2*kp + (G_ == 10)]}:{[42, 44, 48, 50][2*kp + (G_ == 10)]+1}]')
            if G_ == 10:
                if G0 == 0 and kp == 1 and opts.get('skv'):
                    e(f'  s_cmp_ge_u32 s{sF[1]}, s{sOOB}')
                    e(f'  s_cbranch_scc1 L_npv{t}')
                    g.wait((kp, 'barv'), vm=('L', t + 1, 5))
                    e(f'L_npv{t}:')
                    g.wait((kp, 'bar'), lg=('OW', 0, 2))
                elif G0 == 0: g.wait((kp, 'bar'), vm=('L', t + 1, 5), lg=('OW', 0, 2))
                if kp == 0 and not unroll: e('L_ent:')
                e('  s_barrier')
                if DBG == 2: e(f'  s_memrealtime s[{[46, 52][kp]}:{[46, 52][kp]+1}]')
                if t & 1:
                    for r in vLdsR: e(f'  v_xor_b32 v{r}, {2*TILE_B}, v{r}')
            g.wait((kp, 'x', G_), lg=('X', t, 2*G_ + 1))
            for pd_ in (opts['pad'].split(',') if opts.get('pad') else []): e(f'  s_nop {pd_}')
            for nt in range(6):
                for k in range(2):
                    kk = k ^ (nt & 1) if opts.get('snake') else k
                    ks = 2*kg + kk; i = 12*mt + ks
                    x = XF + 8*(G_ % 3) + 4*kk
                    a = ACC + 24*mt + 4*nt
                    c = '0' if kg == 0 and k == 0 else f'v[{a}:{a+3}]'
                    e(f'  v_mfma_f32_16x16x32_bf16 v[{a}:{a+3}], {breg(ks, nt)}, a[{x}:{x+3}], {c}')
                    gap = 12*G_ + 2*nt + k
                    if gap % 12 in (0, 1):
                        j = 2*G_ + 4 + (gap % 12)
                        if j < 24: rd(t, j)
                        else: rd(t + 1, j - 24)
                    run(F0[gap + 24] if gap < 120 else F1[gap - 120])
    if FUSE:
        Q = (xdma_items(2) if XB == 12 else []) + [x if x != 'NOP' else '  s_nop 0' for x in st_adv()]
        E = epi(0, 0, 0) + epi(0, 1, 0) + epi(0, 2, 0)
        T1 = list(FIN[0])
        run(Q[:4]); Q = Q[4:]
        while T1 or E:
            if T1: e(T1.pop(0))
            run(E[:3]); E = E[3:]
        run(Q)
    stamp()
    if DBG:
        e(f'  s_mov_b32 s94, {sn[0]}')
        e('  s_mov_b32 s60, s64')
        e('  s_memtime s[38:39]') if 0 else e('  s_memtime s[86:87]')
    def tail(t):
        if DIR:
            e('  s_nop 3')
            for u in range(3): run(epi(1, u, t & 1))
            return
        done = [UORD[k] for k in range(6) if OS_AT[k] < 24]
        rdone = [UORD[k] for k in range(6) if OR_AT[k] < 24]
        for u in UORD:
            if u not in rdone: out_read(t, u)
        e('  s_nop 3')
        for u in range(3): run(epi(1, u, t & 1))
        for u in UORD:
            if u not in done: out_store(t, u, 'T')
        run([x if x != 'NOP' else '  s_nop 0' for x in st_adv(1)])
        e('  s_waitcnt lgkmcnt(0)')
        e('  s_barrier')
        for u in range(3):
            e(f'  ds_read_b128 a[{XF+4*u}:{XF+4*u+3}], v{vOR[u]} offset:{(t & 1)*TILE_B + 12288}')
        for u in range(3):
            e(f'  s_waitcnt lgkmcnt({2-u})')
            e(f'  buffer_store_dwordx4 a[{XF+4*u}:{XF+4*u+3}], v{vTS if u == 1 else vST[u+3]}, s[{sO}:{sO+3}], s{sSo[u+1]} offen{NT_ST}')
    PEEL = int(opts.get('peel', 1))
    def last_tile(t):
        F = [[] for _ in range(150)]
        use = [(1 if (r % 12 == 11 or (r % 12 in (0, 1) and r < 120)) else 0) for r in range(150)]
        def put(r, items):
            for it in items:
                if it == 'NOP': continue
                while use[r]: r += 1
                F[r].append(it); use[r] = 1
            return r
        def part(q):
            return [f'  s_mov_b32 s{sSo[1]}, s{q}', f'  s_mov_b32 s{sSo[3]}, s{q+1}', f'  s_min_u32 s{sSo[2]}, s{q}, s{q+1}',
                    f'  s_cmp_gt_u32 s{q}, s{q+1}', f'  s_cselect_b64 s[{sSm}:{sSm+1}], -1, 0', f'  v_cndmask_b32 v{vTS}, v{vST[4]}, v{vST4b}, s[{sSm}:{sSm+1}]']
        assert all(o < 24 for o in OR_AT) and UORD[:3] == [3, 4, 5]
        L1 = ints('l1', '6,16,28,40'); L2 = ints('l2', '62,74,88'); L3 = ints('l3', '120,128,136')
        BX, BY = int(opts.get('bx', 4)), int(opts.get('by', 9))
        rem = [UORD[k] for k in range(6) if OS_AT[k] >= 24]
        pos = {}
        for u, r in zip(rem, L1[-len(rem):]): pos[u] = put(r, [lambda u=u: out_store(t, u, 'L')])
        for u, r in zip((3, 4, 5), L2): p2 = put(r, [lambda u=u: out_store(t + 1, u, 'L2')])
        for u, r in zip((0, 1, 2), L3): put(r, [lambda u=u: out_store(t + 1, u, 'L2')])
        r = 3
        for u in range(3): r = put(r, epi(1, u, t & 1)) + 1
        assert r < 12*BX - 4
        r = 75
        for u in range(3): r = put(r, epi(0, u, t & 1)) + 1
        assert r < 12*BY - 4
        put(12*BX + 2, [lambda u=u: out_read(t + 1, u) for u in (3, 4, 5)])
        put(12*BY + 2, [lambda u=u: out_read(t + 1, u) for u in (0, 1, 2)])
        assert put(pos.get(5, 0) + 1, part(sF[2])) < L2[0] and max(pos.values()) < 12*BX
        put(max(pos.values()) + 1, [f'  s_mov_b32 s{sSo[0]}, s{sF[1]}'])
        put(p2 + 1, part(sF[1]))
        for G_ in range(12):
            mt, kg = G_ // 6, G_ % 6
            if G_ in (BX, BY):
                g.wait(('L', 'bar', G_), lg=('OW', 1 if G_ == BX else 0, 2))
                e('  s_barrier')
            g.wait(('L', 'x', G_), lg=('X', t, 2*G_ + 1))
            for nt in range(6):
                for k in range(2):
                    ks = 2*kg + k
                    x = XF + 8*(G_ % 3) + 4*k
                    a = ACC + 24*mt + 4*nt
                    c = '0' if ks == 0 else f'v[{a}:{a+3}]'
                    e(f'  v_mfma_f32_16x16x32_bf16 v[{a}:{a+3}], {breg(ks, nt)}, a[{x}:{x+3}], {c}')
                    gap = 12*G_ + 2*nt + k
                    if gap % 12 in (0, 1) and 2*G_ + 4 + (gap % 12) < 24: rd(t, 2*G_ + 4 + (gap % 12))
                    run(F[gap])
        assert not any(F[144:])
        if DBG:
            e('  s_mov_b32 m0, s94'); e('  s_nop 0'); e('  v_writelane_b32 v0, s60, m0')
            e('  s_memrealtime s[60:61]'); e('  s_memtime s[88:89]')
        else: e('  s_nop 1')
        for u in range(3): run(epi(1, u, (t + 1) & 1))
        e('  s_waitcnt lgkmcnt(0)')
        e('  s_barrier')
        for u in range(3):
            e(f'  ds_read_b128 a[{XF+4*u}:{XF+4*u+3}], v{vOR[u]} offset:{((t + 1) & 1)*TILE_B + 12288}')
        for u in range(3):
            e(f'  s_waitcnt lgkmcnt({2-u})')
            e(f'  buffer_store_dwordx4 a[{XF+4*u}:{XF+4*u+3}], v{vTS if u == 1 else vST[u+3]}, s[{sO}:{sO+3}], s{sSo[u+1]} offen{NT_ST}')
    if FUSE: g.wait('ent', vm=('L', 1, 5), lg=('OW', 0, 2))
    if PEEL and unroll:
        for t in range(NTILE - 1): tile(t)
        last_tile(NTILE - 1)
    elif PEEL:
        e('L_loop:')
        tile(0)
        e(f'  s_cmp_ge_u32 s{sF[0]}, s{sOOB}')
        e(f'  s_cbranch_scc1 L_tail')
        tile(1)
        if DBG:
            e('  s_mov_b32 m0, s94'); e('  s_nop 0'); e('  v_writelane_b32 v0, s60, m0')
            e('  s_add_u32 s94, s94, 1')
            e('  s_memrealtime s[60:61]')
        e(f'  s_branch L_loop')
        e('L_tail:')
        last_tile(1)
        if DBG: e('  s_mov_b32 s94, 15')
    elif unroll:
        tile(0, 10 if FUSE else 0)
        for t in range(1, NTILE): tile(t)
        tail(NTILE)
    else:
        if FUSE: e('  s_branch L_ent')
        if opts.get('al'): e(f'  .p2align {opts["al"]}')
        e('L_loop:')
        tile(0)
        tile(1)
        if DBG:
            e('  s_mov_b32 m0, s94'); e('  s_nop 0'); e('  v_writelane_b32 v0, s60, m0')
            e('  s_add_u32 s94, s94, 1')
            e('  s_min_u32 s94, s94, 15')
            e('  s_memrealtime s[60:61]')
        e(f'  s_cmp_lt_u32 s{sF[1]}, s{sOOB}')
        e(f'  s_cbranch_scc1 L_loop')
        e('L_tail:')
        if DBG: e('  s_memtime s[88:89]')
        tail(0)
        if DBG: e('  s_mov_b32 s94, 15')
    if DBG:
        e('  s_mov_b32 m0, s94'); e('  s_nop 0'); e('  v_writelane_b32 v0, s60, m0')
        e('  s_add_u32 s94, s94, 1')
        e('  s_load_dwordx2 s[24:25], s[0:1], 40')
        e('  s_waitcnt vmcnt(0)')
        e('  s_memrealtime s[54:55]')
        e('  s_memtime s[98:99]')
        e('  s_waitcnt lgkmcnt(0)')
        e('  s_mov_b32 m0, s94'); e('  s_nop 0'); e('  v_writelane_b32 v0, s54, m0')
        e('  s_sub_u32 s98, s98, s96')
        e('  s_add_u32 s98, s98, s64')
        e('  v_writelane_b32 v0, s98, 31')
        e('  s_sub_u32 s88, s88, s86')
        e('  v_writelane_b32 v0, s88, 30')
        if DBG == 2:
            for i in range(6): e(f'  v_writelane_b32 v0, s{42+2*i}, {17+i}')
        e(f'  v_writelane_b32 v0, s{sPv}, 29')
        e(f'  v_writelane_b32 v0, s{sDec}, 28')
        e(f'  v_writelane_b32 v0, s3, 27')
        for i in range(sn[0]): e(f'  v_writelane_b32 v0, s{64+2*i}, {i}')
        e('  s_mov_b32 s56, s24'); e('  s_and_b32 s57, s25, 0xffff'); e('  s_mov_b32 s58, 452984832'); e('  s_mov_b32 s59, 0x00020000')
        e('  s_lshl_b32 s26, s2, 9'); e(f'  s_lshl_b32 s27, s{sW}, 7'); e('  s_add_u32 s26, s26, s27')
        e('  v_mbcnt_lo_u32_b32 v1, -1, 0')
        e('  v_lshlrev_b32 v1, 2, v1')
        e('  s_mov_b64 exec, 0xffffffff')
        e('  buffer_store_dword v0, v1, s[56:59], s26 offen')
    if AMP:
        e('  s_waitcnt vmcnt(0)')
        e('  s_memrealtime s[54:55]')
        e('  s_waitcnt lgkmcnt(0)')
        e(f'  s_cmp_lg_u32 s2, {int(opts.get("ampwg", 100))}')
        e('  s_cbranch_scc1 L_done')
        if AMP == 'c':
            e('  s_memtime s[98:99]')
            e('  s_waitcnt lgkmcnt(0)')
            e('  s_sub_u32 s27, s98, s96')
            e('  s_lshr_b32 s27, s27, 1')
        else:
            e(f'  s_sub_u32 s27, s{54 if AMP == "e" else 64 + 2*int(AMP)}, s64')
            e('  s_mul_i32 s27, s27, 10')
        e('L_spin:')
        e('  s_sleep 8')
        e('  s_memrealtime s[56:57]')
        e('  s_waitcnt lgkmcnt(0)')
        e('  s_sub_u32 s26, s56, s54')
        e('  s_cmp_lt_u32 s26, s27')
        e('  s_cbranch_scc1 L_spin')
    if NUMA:
        e('  s_endpgm')
        e('L_slow:')
        e(f'  v_mov_b32 v{vTX}, s{sEo}')
        SP = ACC + 40 if DEC else (254 if DS <= 10 else FT)
        assert DS != 11
        e(f'  v_mov_b32 v{SP}, 1')
        e(f'  v_mov_b32 v{SP+1}, 0')
        e('  s_mov_b64 exec, 1')
        e(f'  buffer_atomic_cmpswap v[{SP}:{SP+1}], v{vTX}, s[{sDS}:{sDS+3}], 0 offen sc0 sc1')
        e('  s_waitcnt vmcnt(0)')
        e(f'  v_readfirstlane_b32 s{sRd}, v{SP}')
        e('  s_mov_b64 exec, -1')
        if DBG: e('  s_mov_b32 s3, 1')
        e('  s_branch L_back')
    e('L_done:')
    e('  s_endpgm')
    e('.section .rodata,"a"')
    e('.p2align 6')
    e('.amdhsa_kernel standalone__depthwise_separable__vision_kernel')
    e('  .amdhsa_next_free_vgpr 512')
    e('  .amdhsa_next_free_sgpr 100')
    e('  .amdhsa_accum_offset 256')
    e('  .amdhsa_group_segment_fixed_size 0')
    e('  .amdhsa_kernarg_size 48')
    e('  .amdhsa_user_sgpr_count 2')
    e('  .amdhsa_user_sgpr_kernarg_segment_ptr 1')
    e('  .amdhsa_system_sgpr_workgroup_id_x 1')
    e('  .amdhsa_float_denorm_mode_32 3')
    e('.end_amdhsa_kernel')

if __name__ == '__main__':
    out = sys.argv[1]
    opts = dict(a.split('=', 1) for a in sys.argv[2:])
    for k in ('nt_ld', 'nt_st', 'nt_b'):
        if k in opts: opts[k] = (' ' + opts[k].replace('+', ' ')) if opts[k] != 'none' else ''
    open(out, 'w').write(gen(opts))
```

```python
import sys, re
from gen3 import G, HDR
from gen5 import regs_of

def hazard_check(L):
    ins = [l.strip() for l in L if l.startswith('  ') and not l.strip().startswith(';')]
    hist = []; st = 0; last_valu = []; last_st = []; last_m0 = -9; last_sg = []; lastscc = ''
    for l in ins:
        op = l.split()[0]
        toks = [t.strip(',') for t in l.split()[1:]]
        allr = set()
        for t in toks: allr |= regs_of(t)
        if op.startswith('v_mfma'):
            d = regs_of(toks[0]); a = regs_of(toks[1]); b = regs_of(toks[2]); c = regs_of(toks[3])
            for (s0, r) in last_valu:
                if st - s0 - 1 < 2 and (r & (a | b | c)): raise Exception(f'VALU->MFMA hazard: {l}')
            for (s0, dd, cc) in hist:
                if st - s0 - 1 < 8 and (dd & (a | b)): raise Exception(f'MFMA D->A/B hazard: {l}')
                if st - s0 - 1 < 6 and (dd & c) and dd != c: raise Exception(f'MFMA D->C overlap hazard: {l}')
                if st - s0 - 1 < 6 and (dd & d) and dd != c: raise Exception(f'MFMA D->D WAW: {l}')
            for (s0, r) in last_st:
                if st - s0 - 1 < 8 and (r & d): raise Exception(f'store data WAR (mfma): {l}')
            hist.append((st, d, c))
        elif op.startswith('v_') or op.startswith('ds_') or op.startswith('buffer_'):
            for (s0, dd, cc) in hist:
                if st - s0 - 1 < 8 and (dd & allr): raise Exception(f'MFMA D->use hazard dist {st-s0-1}: {l}')
            if op.startswith('v_'):
                w = regs_of(toks[0])
                for (s0, dd, cc) in hist:
                    if st - s0 - 1 < 3 and (cc & w): raise Exception(f'MFMA C WAR hazard: {l}')
                for (s0, r) in last_st:
                    if st - s0 - 1 < 2 and (r & w): raise Exception(f'store data WAR: {l}')
                if op in ('v_readfirstlane_b32', 'v_readlane_b32'):
                    for (s0, r) in last_valu:
                        if st - s0 - 1 < 1 and (r & regs_of(toks[1])): raise Exception(f'readlane hazard: {l}')
                    last_sg.append((st, toks[0]))
                else:
                    for (s0, sg) in last_sg:
                        if st - s0 - 1 < 2 and sg in toks[1:]: raise Exception(f'VALU sgpr->VALU hazard: {l}')
                last_valu.append((st, w)); last_valu = last_valu[-4:]
            if op.startswith('buffer_store') or op.startswith('ds_write'):
                last_st.append((st, regs_of(toks[0] if op.startswith('buffer') else toks[1]))); last_st = last_st[-4:]
            if op.startswith('buffer_') and l.endswith('lds') and st - last_m0 - 1 < 1: raise Exception(f'm0 hazard: {l}')
            if op.startswith('buffer_'):
                for (s0, sg) in last_sg:
                    if st - s0 - 1 < 5 and sg in toks: raise Exception(f'VALU sgpr->VMEM hazard: {l}')
        elif op.startswith('s_') and toks and toks[0] == 'm0': last_m0 = st
        if op.startswith('s_cselect') or op.startswith('s_cbranch_scc'):
            if not (lastscc.startswith('s_cmp') or lastscc.startswith('s_bitcmp')): raise Exception(f'SCC clobbered by {lastscc}: {l}')
        elif re.match(r's_(add|sub|and|or|xor|min|max|lshl|lshr|cmp|bitcmp|andn2|ashr|bfe|not)', op): lastscc = op
        hist = [h for h in hist if st - h[0] < 24]
        st += int(toks[0]) + 1 if op == 's_nop' else 1

class G2(G):
    def __init__(self):
        self.need = {}
        super().__init__()
    def reset(self, mode):
        super().reset(mode); self.lgd = 0; self.vmd = 0
    def _cnt(self, lst, tag):
        if tag[:2] == ('O', 0) and tag not in lst: return len(lst)
        return super()._cnt(lst, tag)
    def wait(self, key, vm=None, lg=None, opt=False):
        if self.mode == 'collect2':
            nd = False
            if lg is not None and len(self.lg) - self._cnt(self.lg, lg) > self.lgd: nd = True
            if vm is not None and len(self.vm) - self._cnt(self.vm, vm) > self.vmd: nd = True
            self.need[key] = self.need.get(key, False) or nd or not opt
            v, l = self.sites[key]
            if not opt:
                if lg is not None: self.lgd = max(self.lgd, len(self.lg) - l)
                if vm is not None: self.vmd = max(self.vmd, len(self.vm) - v)
            return
        if self.mode in ('emit', 'check') and not self.need[key]: return
        super().wait(key, vm, lg)

def gen(opts):
    g = G2()
    g.reset('collect')
    build(g, opts, unroll=True)
    g.reset('collect2')
    build(g, opts, unroll=True)
    g.reset('check')
    build(g, opts, unroll=True)
    hazard_check(g.L)
    L2 = []; skip = None
    for l in g.L:
        if skip:
            if l == skip + ':': skip = None
            continue
        L2.append(l)
        m = re.match(r'  s_cbranch_scc1 (L_np\w*)', l)
        if m: skip = m.group(1)
    hazard_check(L2)
    g.reset('emit')
    build(g, opts, unroll=False)
    L = g.L
    if int(opts.get('iw', 0)):
        S = int(opts['iw'])
        i0 = L.index('L_tail:') + 1
        i1 = max(k for k, l in enumerate(L) if l == '  s_endpgm' and k < L.index('L_done:'))
        def size(l):
            t = l.strip()
            if not l.startswith('  '): return 0
            if re.match(r's_(waitcnt|barrier|nop|cbranch|branch|endpgm|cmp|mov_b32 s\d+, s|min_u32 s\d+, s\d+, s|cselect)', t): return 4
            return 8
        out = []; acc = S; n = 0
        for l in L[i0:i1]:
            if acc >= S and (l.startswith('  v_mfma') or l.startswith('  v_cvt') or l.startswith('  ds_') or l.startswith('  s_waitcnt')):
                out += [f'L_iw{n}:', f'@PAD{n}']; n += 1; acc = 4
            out.append(l); acc += size(l)
        seg = -(-n // 4)
        out = [(f'  s_cbranch_vccnz {"L_iwr" if (int(l[4:]) % seg == seg - 1 or int(l[4:]) == n - 1) else f"L_iw{int(l[4:]) + 1}"}' if l.startswith('@PAD') else l) for l in out]
        L = L[:i0] + out + L[i1:]
        h = L.index('@IWHOP')
        hop = ['  s_mov_b64 vcc, -1']
        for w in range(1, 4):
            if w * seg < n: hop += [f'  s_cmp_eq_u32 s20, {w}', f'  s_cbranch_scc1 L_iw{w*seg}']
        hop += ['  s_branch L_iw0', 'L_iwr:']
        L = L[:h] + hop + L[h+1:]
    L = [l for l in L if l != '@IWHOP']
    abl = opts.get('abl', '')
    if abl:
        i0 = L.index('L_loop:'); i1 = L.index('L_tail:')
        def keep(l):
            s = l.strip()
            if 'O' in abl and (s.startswith('ds_write_b128') or re.match(r'ds_read_b128 a\[(16[89]|17\d|18\d)', s)): return False
            if 'T' in abl and s.startswith('buffer_store'): return False
            if 'L' in abl and s.startswith('buffer_load'): return False
            if 'B' in abl and s.startswith('s_barrier'): return False
            if 'C' in abl and s.startswith('v_cvt'): return False
            if 'H' in abl and s.startswith('v_mfma') and int(re.search(r'v\[(\d+):', s).group(1)) % 8 == 4: return False
            return True
        L = L[:i0] + [l for l in L[i0:i1] if keep(l)] + L[i1:]
    return '\n'.join(L) + '\n'

def build(g, opts, unroll):
    NT_LD = opts.get('nt_ld', ' nt'); NT_ST = opts.get('nt_st', ' sc1'); NT_B = opts.get('nt_b', '')
    DBG = int(opts.get('dbg', 0)); AMP = opts.get('amp')
    DIR = int(opts.get('dir', 0))
    PD = int(opts.get('pd', 2))
    e = g.e
    TILE_B = 32 * 768; NTILE = 18; STRIDE = 256 * TILE_B
    LDS_O = 4 * TILE_B + 256; LDS_DW = 6 * TILE_B + 512; LDS_PR = LDS_DW + 4096; LDS_TOTAL = LDS_PR + 64
    AREA = [LDS_O, LDS_O + TILE_B + 64, 2 * TILE_B, 3 * TILE_B + 64]
    OOB = 113246208
    vLdsR = [1, 2, 3, 4]; vOR = [5, 6, 7]; vXS = [8, 9, 10, 11, 12, 13]; vXS4b = 14; vTX = 15
    ACC = 16
    PT = 64
    vBL = [PT, PT+1, PT+2]; vTr = PT+3; vDW = PT+4; vM = [PT+5, PT+6]; vTr2 = PT+7
    DWR = [PT+8, PT+12]
    vST = [PT+16+i for i in range(6)]; vOW = [PT+22, PT+23]; vST4b = PT; vTS = PT+1
    T = [ACC+i for i in range(12)]; vLane = ACC + 12
    FUSE = int(opts.get('fuse', 0))
    FT = 88 if FUSE else ACC; NFT = 6 if FUSE else (8 if opts.get('dec') else 12)
    BV = 112 if FUSE else 88
    NA = 6 if FUSE else 5
    ASLOTS = [int(c, 16) for c in opts.get('aslots', '012346' if FUSE else '13579')]
    NAR = 4 if FUSE else int(opts.get('nar', 4))
    if NAR == 5: AREA = [TILE_B + k * (TILE_B + 64) for k in range(5)]
    assert len(ASLOTS) == NA
    VSLOTS = [s for s in range(12) if s not in ASLOTS]
    XF = 144
    OB = 168
    RAW = [192, 216]
    sX, sO, sP, sD = 4, 8, 12, 16
    sW, sCnt = 20, 21
    sRing, sOOB = 39, 40
    sF = [76, 78, 80, 82]
    sBase, sVa, sDec, sEnd = 32, 33, 34, 35
    sX4 = 22; sXm = 56
    sSo = [58, 59, 62, 63]; sSm = 90
    sDb = 92
    sDS = 16
    sRd = 95; sEo = 36; sPa = 37; sPb = 38; sPr = 23; sPv = 41; sPT = 84
    KSTEP = 16 * 49152
    sG = [42, 43, 44]; sQ = [45, 46, 47, 48]; sBW = 49; sT = [50, 51, 52, 53]; sR1, sR2 = 54, 55

    def breg(s, nt, n=4, o=0):
        if s in ASLOTS:
            i = ASLOTS.index(s) * 24 + nt * 4 + o
            return f'a[{i}:{i+n-1}]' if n > 1 else f'a{i}'
        i = BV + VSLOTS.index(s) * 24 + nt * 4 + o
        return f'v[{i}:{i+n-1}]' if n > 1 else f'v{i}'
    sn = [0]
    def stamp():
        if DBG or AMP:
            e(f'  s_memrealtime s[{64+2*sn[0]}:{65+2*sn[0]}]'); sn[0] += 1
    def run(items):
        for it in items:
            if callable(it): it()
            else: e(it)

    e(HDR.rstrip('\n'))
    e(f'; @launch grid=(256,1,1) block=(256,1,1) lds={LDS_TOTAL}')
    e('.amdgcn_target "amdgcn-amd-amdhsa--gfx950"')
    e('.text')
    e('.globl standalone__depthwise_separable__vision_kernel')
    e('.p2align 8')
    e('.type standalone__depthwise_separable__vision_kernel,@function')
    e('standalone__depthwise_separable__vision_kernel:')
    e('  s_load_dwordx8 s[24:31], s[0:1], 0')
    e(f'  s_load_dwordx2 s[{sDb}:{sDb+1}], s[0:1], 32')
    e('  s_cmp_ge_u32 s2, 256')
    e('  s_cbranch_scc1 L_done')
    stamp()
    if AMP == 'c': e('  s_memtime s[96:97]')
    if DBG: e('  s_memtime s[96:97]'); e('  s_mov_b32 s3, 0'); e(f'  s_mov_b32 s{sPv}, 0')
    e(f'  v_lshrrev_b32 v{T[0]}, 6, v0')
    e(f'  v_and_b32 v{vLane}, 63, v0')
    e(f'  v_readfirstlane_b32 s{sW}, v{T[0]}')
    KICK = int(opts.get('kick', 0))
    def kick_a():
        e(f'  s_lshr_b32 s{sT[2]}, s2, 3')
        e(f'  s_mul_i32 s{sT[2]}, s{sT[2]}, 9216')
        if KICK == 2: e(f'  v_and_b32 v{T[5]}, 127, v0')
        e(f'  v_lshl_add_u32 v{T[5]}, v{T[5] if KICK == 2 else 0}, 7, s{sT[2]}')
        e(f'  v_min_u32 v{T[5]}, 294784, v{T[5]}')
    def kick_b():
        e('  s_waitcnt lgkmcnt(0)')
        g.vmop(f'  global_load_dword v{BV+1}, v{T[5]}, s[28:29]', ('K',))
    if KICK: kick_a()
    if KICK and opts.get('kf'): kick_b()
    CW = int(opts.get('cw', 128))
    if CW:
        e(f'  s_getpc_b64 s[{sT[0]}:{sT[1]}]')
        e('L_pc:')
        e(f'  v_mul_u32_u24 v{T[2]}, {CW}, v0')
        e(f'  v_min_u32 v{T[2]}, L_done-L_pc, v{T[2]}')
        e(f'  v_mov_b32 v{T[3]}, s{sT[1]}')
        e(f'  v_add_co_u32 v{T[2]}, vcc, s{sT[0]}, v{T[2]}')
        e(f'  s_nop 1')
        e(f'  v_addc_co_u32 v{T[3]}, vcc, 0, v{T[3]}, vcc')
        g.vmop(f'  global_load_dword v{BV}, v[{T[2]}:{T[3]}], off', ('CW',))
    if KICK and not opts.get('kf'): kick_b()
    e(f'  s_lshr_b32 s{sT[0]}, s2, 3')
    e(f'  s_and_b32 s{sR2}, s{sT[0]}, 3')
    e(f'  s_lshr_b32 s{sR1}, s{sT[0]}, 2')
    e(f'  s_mul_i32 s{sT[1]}, s{sR1}, 11')
    e(f'  s_lshr_b32 s{sT[1]}, s{sT[1]}, 5')
    e(f'  s_mul_i32 s{sT[1]}, s{sT[1]}, 3')
    e(f'  s_sub_u32 s{sR1}, s{sR1}, s{sT[1]}')
    if opts.get('norot'):
        e(f'  s_mov_b32 s{sR1}, 0'); e(f'  s_mov_b32 s{sR2}, 0')
    e(f'  s_mul_i32 s{sT[2]}, s{sW}, 192')
    for i in range(3):
        if i: e(f'  v_add_u32 v{T[1]}, {64*i}, v{vLane}')
        q = T[1] if i else vLane
        e(f'  v_mul_u32_u24 v{T[2]}, 0xaaab, v{q}')
        e(f'  v_lshrrev_b32 v{T[2]}, 19, v{T[2]}')
        e(f'  v_mul_u32_u24 v{T[3]}, 576, v{T[2]}')
        e(f'  v_lshl_add_u32 v{T[3]}, v{vLane}, 4, v{T[3]}')
        if i == 1:
            e(f'  v_lshrrev_b32 v{T[2]}, 3, v{T[2]}')
            e(f'  v_mul_u32_u24 v{T[2]}, 6144, v{T[2]}')
            e(f'  v_add_u32 v{T[3]}, v{T[3]}, v{T[2]}')
        if i == 2: e(f'  v_add_u32 v{T[3]}, 6144, v{T[3]}')
        e(f'  v_add_u32 v{vBL[i]}, s{sT[2]}, v{T[3]}')
    NUMA = int(opts.get('numa', 1))
    PRM = int(opts.get('prm', 28))
    def srd(sd, lo, nbytes):
        e(f'  s_mov_b32 s{sd}, s{lo}')
        e(f'  s_and_b32 s{sd+1}, s{lo+1}, 0xffff')
        e(f'  s_mov_b32 s{sd+2}, {nbytes}')
        e(f'  s_mov_b32 s{sd+3}, 0x00020000')
    def p_gb1():
        e(f'  s_add_u32 s{sG[1]}, s{sG[0]}, 98304')
        e(f'  s_cmp_eq_u32 s{sR1}, 2')
        e(f'  s_cselect_b32 s{sG[1]}, 0, s{sG[1]}')
        e(f'  s_add_u32 s{sG[2]}, s{sG[1]}, 98304')
        e(f'  s_cmp_eq_u32 s{sR1}, 1')
        e(f'  s_cselect_b32 s{sG[2]}, 0, s{sG[2]}')
        for q in range(1, 4):
            e(f'  s_xor_b32 s{sQ[q]}, s{sR2}, {q}')
            e(f'  s_mul_i32 s{sQ[q]}, s{sQ[q]}, {TILE_B}')
    def p_dws():
        e(f'  s_lshl_b32 s{sT[3]}, s{sR2}, 2')
        e(f'  v_lshrrev_b32 v{T[1]}, 4, v{vLane}')
        e(f'  v_add_u32 v{T[2]}, s{sR1}, v{T[1]}')
        e(f'  v_subrev_u32 v{T[3]}, 3, v{T[2]}')
        e(f'  v_min_u32 v{T[2]}, v{T[2]}, v{T[3]}')
        e(f'  v_and_b32 v{T[4]}, 15, v{vLane}')
        e(f'  v_xor_b32 v{T[3]}, s{sT[3]}, v{T[4]}')
        e(f'  v_lshlrev_b32 v{T[3]}, 4, v{T[3]}')
        e(f'  v_lshl_add_u32 v{T[3]}, v{T[2]}, 8, v{T[3]}')
        e(f'  v_cmp_lt_u32 vcc, 47, v{vLane}')
        e(f'  s_lshl_b32 s{sT[0]}, s{sW}, 10')
        e(f'  s_add_u32 m0, s{sT[0]}, {LDS_DW}')
        e(f'  v_cndmask_b32 v{T[3]}, v{T[3]}, v{vBL[2]}, vcc')
    def p_tl():
        e(f'  s_lshr_b32 s{sT[1]}, s2, 5')
        e(f'  s_and_b32 s{sT[2]}, s2, 3')
        e(f'  s_lshl2_add_u32 s{sEo}, s{sT[1]}, s{sT[2]}')
        e(f'  s_lshl_b32 s{sEo}, s{sEo}, 2')
        e(f'  s_mul_i32 s{sT[1]}, s{sT[1]}, 288')
        e(f'  s_lshl2_add_u32 s{sT[2]}, s{sR2}, s{sT[2]}')
        e(f'  s_add_u32 s{sT[1]}, s{sT[1]}, s{sT[2]}')
        e(f'  s_mul_i32 s{sBase}, s{sT[1]}, 49152')
        e(f'  s_add_u32 s{sEnd}, s{sBase}, {NTILE*KSTEP}')
        if NUMA:
            e(f'  s_lshl_b32 s{sT[1]}, s{sW}, 11')
            e(f'  s_and_b32 s{sT[2]}, s2, 4')
            e(f'  s_lshl_b32 s{sT[2]}, s{sT[2]}, 6')
            e(f'  s_add_u32 s{sT[1]}, s{sT[1]}, s{sT[2]}')
            e(f'  s_add_u32 s{sPa}, s{sBase}, s{sT[1]}')
            e(f'  s_add_u32 s{sPa}, s{sPa}, {9*KSTEP}')
            e(f'  s_add_u32 s{sPb}, s{sPa}, 8192')
            e(f'  s_and_b32 s{sPr}, s2, {PRM}')
            e(f'  s_cmp_lg_u32 s{sPr}, 0')
    def p_warm():
        if NUMA:
            e(f'  s_cbranch_scc1 L_np0')
            e(f'  s_load_dword s{sPT}, s[24:25], s{sPa} glc')
            e(f'  s_load_dword s{sPT+1}, s[24:25], s{sPb} glc')
            e('L_np0:')
    def p_dwl():
        srd(sD, 26, 768)
        g.vmop(f'  buffer_load_dwordx4 v{T[3]}, s[{sD}:{sD+3}], 0 offen lds', ('W',))
    e(f'  s_mul_i32 s{sG[0]}, s{sR1}, 98304')
    e(f'  s_mul_i32 s{sQ[0]}, s{sR2}, {TILE_B}')
    e(f'  s_mul_i32 s{sBW}, s{sW}, 6160')
    LEAN = int(opts.get('lean', 2))
    if LEAN == 0: p_gb1(); p_dws()
    if LEAN <= 1: p_tl()
    e('  s_waitcnt lgkmcnt(0)')
    if LEAN <= 1: p_warm()
    if LEAN == 0: p_dwl()
    srd(sP, 28, 294912)
    def bload(s):
        it = []
        for h in range(2):
            it.append(f'  s_add_u32 m0, s{sBW}, {AREA[s % NAR] + h*3080}')
            it.append(f'  s_add_u32 s{sT[0]}, s{sG[s >> 2]}, s{sQ[s & 3]}' if h == 0 else f'  s_add_u32 s{sT[0]}, s{sT[0]}, 6144')
            for i in range(3):
                it.append(lambda h=h, i=i: g.vmop(f'  buffer_load_dwordx4 v{vBL[i]}, s[{sP}:{sP+3}], s{sT[0]} offen offset:{i*1024}{NT_B} lds', ('B', s, 3*h + i)))
        return it
    def xdma(t, u):
        it = []
        if u == 0:
            a, b = sF[0], sF[0] + 1
            it += [f'  s_mov_b64 s[{sF[k]}:{sF[k]+1}], s[{sF[k-1]}:{sF[k-1]+1}]' for k in range(len(sF) - 1, 0, -1)]
            it += [f'  s_add_u32 s{a}, s{sVa}, s{sBase}', f'  s_xor_b32 s{a}, s{a}, s{sDec}',
                   f'  s_add_u32 s{b}, s{sBase}, {TILE_B}', f'  s_cmp_lt_u32 s{sBase}, s{sEnd}',
                   f'  s_cselect_b32 s{sX4}, s{sBase}, s{sOOB}', f'  s_cselect_b32 s{b}, s{b}, s{sOOB}',
                   f'  s_bitcmp1_b32 s{a}, 21', f'  s_cselect_b32 s{a}, s{b}, s{sX4}', f'  s_cselect_b32 s{b}, s{sX4}, s{b}',
                   f'  s_cselect_b64 s[{sXm}:{sXm+1}], -1, 0', f'  s_add_u32 s{sBase}, s{sBase}, {KSTEP}']
        if u == 0 and opts.get('de'):
            it += [f'  s_add_u32 s21, s{sBase}, {(int(opts["de"]) - 1)*KSTEP}', f'  s_cmp_lt_u32 s21, s{sEnd}', f'  s_cselect_b32 s{sX+2}, s{sX+2}, 0']
        if u == 4: it.append(f'  v_cndmask_b32 v{vTX}, v{vXS[4]}, v{vXS4b}, s[{sXm}:{sXm+1}]')
        it.append(f'  s_add_u32 m0, s{sRing}, {(t & 1)*TILE_B + u*4096}')
        if u == 5 and (t & 1): it.append(f'  s_xor_b32 s{sRing}, s{sRing}, {2*TILE_B}')
        else: it.append('NOP')
        it.append(lambda: g.vmop(f'  buffer_load_dwordx4 v{vTX if u == 4 else vXS[u]}, s[{sX}:{sX+3}], s{[sF[0], sX4, sF[0]+1][max(0, u - 3)]} offen{NT_LD} lds', ('L', t, u)))
        return it
    PF = opts.get('pf')
    vPF = PT + 2; vPD = PT + 3; sPf0 = 21; sPfo = 37
    def pf_items():
        return [f'  s_add_u32 s{sPfo}, s{sVa}, s{sBase}', f'  s_xor_b32 s{sPfo}, s{sPfo}, s{sDec}', f'  s_lshr_b32 s{sPfo}, s{sPfo}, 8',
                f'  s_and_b32 s{sPfo}, s{sPfo}, 8192', f'  s_add_u32 s{sPfo}, s{sPfo}, s{sBase}',
                f'  s_cmp_lt_u32 s{sBase}, s{sEnd}', f'  s_cselect_b32 s{sPfo}, s{sPfo}, s{sOOB}',
                f'  s_cmp_ge_u32 s{sBase}, s{sPf0}', f'  s_cselect_b32 s{sPfo}, s{sPfo}, s{sOOB}',
                lambda: g.vmop(f'  buffer_load_dword v{vPD}, v{vPF}, s[{sX}:{sX+3}], s{sPfo} offen{opts.get("pfl", "")}', None)]
    def xdma_items(t):
        return ['  s_nop 0' if x == 'NOP' else x for u in range(6) for x in xdma(t, u)]
    NB0 = int(opts.get('nb0', 1)) if FUSE else 99
    NI = int(opts.get('ni', 1))
    run(bload(0))
    if LEAN == 2: p_tl(); p_warm()
    if LEAN: p_dws(); p_dwl(); p_gb1()
    for s in range(1, min(NB0, NI)): run(bload(s))
    if opts.get('tw'):
        e(f'  v_mov_b32 v{T[5]}, s{sBase}')
        g.vmop(f'  global_load_dword v{BV+2}, v{T[5]}, s[24:25]', ('K',))
        g.vmop(f'  global_load_dword v{BV+3}, v{T[5]}, s[30:31]', ('K',))
    if opts.get('st2') == '2': stamp()
    srd(sX, 24, 113246208)
    hi2, lo4 = T[1], T[4]
    e(f'  s_add_u32 s{sVa}, s24, {TILE_B}')
    e(f'  s_mov_b32 s{sOOB}, {OOB}')
    e(f'  s_lshl_b32 s{sRing}, s{sW}, 10')
    for r in [x + k for x in sF[:3] for k in range(2)]: e(f'  s_mov_b32 s{r}, s{sOOB}')
    e(f'  s_lshr_b32 s{sDec}, s2, 1')
    e(f'  s_xor_b32 s{sDec}, s{sDec}, s2')
    e(f'  s_and_b32 s{sDec}, s{sDec}, 4')
    e(f'  s_lshl_b32 s{sDec}, s{sDec}, 19')
    ROW = [ACC+16, ACC+17, ACC+18]; GG = [ACC+19, ACC+20, ACC+21]
    def rowmap(dst, dst4b, base, u):
        if u == 0:
            e(f'  v_add_u32 v{dst[3]}, {26*768}, v{base}')
            if base != dst[0]: e(f'  v_mov_b32 v{dst[0]}, v{base}')
        if u == 1:
            e(f'  v_cmp_lt_u32 vcc, 5, v{ROW[1]}')
            e(f'  v_add_u32 v{T[8]}, {26*768}, v{base}')
            e(f'  v_add_u32 v{T[9]}, {37*768}, v{base}')
            e(f'  v_cndmask_b32 v{dst[4]}, v{T[8]}, v{T[9]}, vcc')
            if dst4b is not None:
                e(f'  v_add_u32 v{T[8]}, {58*768}, v{base}')
                e(f'  v_add_u32 v{T[9]}, {5*768}, v{base}')
                e(f'  v_cndmask_b32 v{dst4b}, v{T[8]}, v{T[9]}, vcc')
            if base != dst[1]: e(f'  v_mov_b32 v{dst[1]}, v{base}')
        if u == 2:
            e(f'  v_cmp_lt_u32 vcc, 10, v{ROW[2]}')
            e(f'  v_add_u32 v{T[8]}, 7680, v{base}')
            e(f'  v_add_u32 v{dst[5]}, {5*768}, v{base}')
            e(f'  v_cndmask_b32 v{dst[2]}, v{base}, v{T[8]}, vcc')
    e(f'  v_lshrrev_b32 v{GG[0]}, 4, v0')
    e(f'  v_xor_b32 v{T[6]}, s{sT[3]}, v{lo4}')
    for u in range(3):
        if u: e(f'  v_add_u32 v{GG[u]}, {16*u}, v{GG[0]}')
        e(f'  v_mul_u32_u24 v{ROW[u]}, 43, v{GG[u]}')
        e(f'  v_lshrrev_b32 v{ROW[u]}, 7, v{ROW[u]}')
        e(f'  v_mul_u32_u24 v{T[2]}, 3, v{ROW[u]}')
        e(f'  v_sub_u32 v{T[3]}, v{GG[u]}, v{T[2]}')
        e(f'  v_add_u32 v{T[3]}, s{sR1}, v{T[3]}')
        e(f'  v_subrev_u32 v{T[5]}, 3, v{T[3]}')
        e(f'  v_min_u32 v{T[3]}, v{T[3]}, v{T[5]}')
        e(f'  v_add_u32 v{T[3]}, v{T[3]}, v{T[2]}')
        e(f'  v_xor_b32 v{T[5]}, v{ROW[u]}, v{T[6]}')
        e(f'  v_lshlrev_b32 v{T[5]}, 4, v{T[5]}')
        e(f'  v_lshl_add_u32 v{vXS[u]}, v{T[3]}, 8, v{T[5]}')
        rowmap(vXS, vXS4b, vXS[u], u)
    if NB0 <= 2: run(xdma_items(0))
    STG = int(opts.get('stg', 0))
    sS3 = [58, 59, 62]; sSR = 63
    def x0_site(early):
        it = []
        if early: it += [x for x in xdma(0, 0)[:-3]]
        it += [f'  s_and_b32 s{sSR}, s2, {STG}', f'  s_cmp_eq_u32 s{sSR}, 0' if early else f'  s_cmp_lg_u32 s{sSR}, 0']
        for r, src in zip(sS3, (sF[0], sX4, sF[0] + 1)): it.append(f'  s_cselect_b32 s{r}, s{src}, s{sOOB}')
        it += [f'  s_cselect_b32 s{sSR}, 0, {TILE_B}', f'  s_add_u32 s{sSR}, s{sSR}, s{sRing}']
        for u in range(6):
            if u == 4: it.append(f'  v_cndmask_b32 v{vTX}, v{vXS[4]}, v{vXS4b}, s[{sXm}:{sXm+1}]')
            it += [f'  s_add_u32 m0, s{sSR}, {u*4096}', '  s_nop 0',
                   lambda u=u: g.vmop(f'  buffer_load_dwordx4 v{vTX if u == 4 else vXS[u]}, s[{sX}:{sX+3}], s{sS3[max(0, u - 3)]} offen{NT_LD} lds', ('L', 0, u))]
        return it
    XE = int(opts.get('xe', -1))
    if STG and XE < 0: run(x0_site(True))
    for s in range(NB0, 2): run(bload(s))
    srd(sO, 30, 113246208)
    e(f'  v_lshlrev_b32 v{vST[0]}, 4, v0')
    for u in range(3):
        if u: e(f'  v_add_u32 v{vST[u]}, {4096*u}, v{vST[0]}')
        e(f'  v_and_b32 v{T[5]}, 7, v{ROW[u]}')
        e(f'  v_xor_b32 v{T[5]}, v{T[5]}, v{lo4}')
        e(f'  v_lshlrev_b32 v{T[5]}, 4, v{T[5]}')
        e(f'  v_lshl_add_u32 v{T[5]}, v{GG[u]}, 8, v{T[5]}')
        e(f'  v_add_u32 v{vOR[u]}, {LDS_O}, v{T[5]}')
    for u in range(3): rowmap(vST, None, vST[u], u)
    e(f'  v_mul_u32_u24 v{T[0]}, 0x300, v{lo4}')
    e(f'  v_xor_b32 v{T[2]}, v{hi2}, v{lo4}')
    e(f'  v_lshl_add_u32 v{vLdsR[0]}, v{T[2]}, 4, v{T[0]}')
    for s in range(1, 4): e(f'  v_xor_b32 v{vLdsR[s]}, {s*64}, v{vLdsR[0]}')
    e(f'  s_mul_i32 s{sT[1]}, s{sW}, 12')
    e(f'  v_and_b32 v{T[2]}, 7, v{lo4}')
    for u in range(2):
        e(f'  v_add_u32 v{T[3]}, s{sT[1]}, v{hi2}')
        if u: e(f'  v_add_u32 v{T[3]}, {4*u}, v{T[3]}')
        e(f'  v_xor_b32 v{T[3]}, v{T[3]}, v{T[2]}')
        e(f'  v_lshl_add_u32 v{vOW[u]}, v{T[3]}, 4, v{T[0]}')
        e(f'  v_add_u32 v{vOW[u]}, {LDS_O}, v{vOW[u]}')
    e(f'  v_bfe_u32 v{T[2]}, v{vLane}, 2, 2')
    e(f'  v_and_b32 v{T[3]}, 3, v{vLane}')
    e(f'  v_lshrrev_b32 v{T[5]}, 1, v{hi2}')
    e(f'  v_lshl_add_u32 v{T[5]}, v{T[5]}, 3, v{T[2]}')
    e(f'  v_mul_u32_u24 v{T[5]}, 192, v{T[5]}')
    e(f'  v_and_b32 v{T[7]}, 1, v{hi2}')
    e(f'  v_mul_u32_u24 v{T[7]}, 3080, v{T[7]}')
    e(f'  v_add_u32 v{T[5]}, v{T[5]}, v{T[7]}')
    e(f'  v_lshl_add_u32 v{T[5]}, v{T[3]}, 4, v{T[5]}')
    e(f'  s_add_u32 s{sT[1]}, s{sBW}, {AREA[2]}')
    e(f'  v_add_u32 v{vTr2}, s{sT[1]}, v{T[5]}')
    e(f'  v_add_u32 v{vTr}, {(AREA[0] - AREA[2]) & 0xffffffff}, v{vTr2}')
    e(f'  s_add_u32 s{sT[1]}, s{sRing}, {LDS_DW}')
    e(f'  v_lshl_add_u32 v{vDW}, v{hi2}, 4, s{sT[1]}')
    e(f'  v_and_b32 v{T[5]}, 1, v{vLane}')
    e(f'  v_lshlrev_b32 v{T[5]}, 4, v{T[5]}')
    e(f'  v_mov_b32 v{T[7]}, 0xffff')
    e(f'  v_lshlrev_b32 v{T[5]}, v{T[5]}, v{T[7]}')
    e(f'  v_lshlrev_b32 v{T[0]}, 1, v{hi2}')
    e(f'  v_bfe_u32 v{T[7]}, v{vLane}, 1, 3')
    e(f'  v_cmp_eq_u32 vcc, v{T[0]}, v{T[7]}')
    e(f'  v_add_u32 v{T[0]}, 1, v{T[0]}')
    e(f'  s_nop 0')
    e(f'  v_cndmask_b32 v{vM[0]}, 0, v{T[5]}, vcc')
    e(f'  v_cmp_eq_u32 vcc, v{T[0]}, v{T[7]}')
    srd(sDS, sDb, 256)
    e(f'  v_cndmask_b32 v{vM[1]}, 0, v{T[5]}, vcc')
    NR = int(opts.get('nr', 2))
    def probe():
        e(f'  s_cmp_lg_u32 s{sPr}, 0')
        e(f'  s_cbranch_scc1 L_npr')
        e(f'  s_mov_b32 s{sPv}, 0xffff')
        e(f'  s_mov_b32 s{sRd}, 0xffff')
        e(f'  s_lshl_b32 s{sT[2]}, s{sW}, 2')
        e(f'  s_add_u32 s{sT[2]}, s{sT[2]}, {LDS_PR}')
        e(f'  v_mov_b32 v{T[0]}, s{sT[2]}')
        if int(opts.get('pb', 0)):
            e('  s_waitcnt lgkmcnt(0)')
            for i in range(NR):
                e('  s_barrier')
                e(f'  s_memtime s[{sPT}:{sPT+1}]')
                e(f'  s_load_dword s{sT[2]}, s[24:25], s{sPb if i & 1 else sPa} glc')
                e('  s_waitcnt lgkmcnt(0)')
                e(f'  s_memtime s[{sPT+2}:{sPT+3}]')
                e('  s_waitcnt lgkmcnt(0)')
                e(f'  s_sub_u32 s{sT[1]}, s{sPT+2}, s{sPT}')
                e(f'  s_min_u32 s{sRd if i & 1 else sPv}, s{sRd if i & 1 else sPv}, s{sT[1]}')
        else:
            e('  s_waitcnt lgkmcnt(0)')
            e(f'  s_memtime s[{sPT}:{sPT+1}]')
            for i in range(NR):
                a, b = (sPT, sPT + 2) if i % 2 == 0 else (sPT + 2, sPT)
                e(f'  s_load_dword s{sT[2]}, s[24:25], s{sPb if i & 1 else sPa} glc')
                e('  s_waitcnt lgkmcnt(0)')
                if i:
                    e(f'  s_sub_u32 s{sT[1]}, s{a}, s{b}')
                e(f'  s_memtime s[{b}:{b+1}]')
                if i: e(f'  s_min_u32 s{sRd if (i - 1) & 1 else sPv}, s{sRd if (i - 1) & 1 else sPv}, s{sT[1]}')
            e('  s_waitcnt lgkmcnt(0)')
            e(f'  s_sub_u32 s{sT[1]}, s{sPT}, s{sPT+2}')
            e(f'  s_min_u32 s{sRd}, s{sRd}, s{sT[1]}')
        e(f'  s_lshl_b32 s{sPv}, s{sPv}, 16')
        e(f'  s_or_b32 s{sPv}, s{sPv}, s{sRd}')
        e(f'  v_mov_b32 v{T[2]}, s{sPv}')
        e(f'  ds_write_b32 v{T[0]}, v{T[2]}')
        e('  s_waitcnt lgkmcnt(0)')
        e(f'L_npr:')
    PQ = 248
    assert 11 not in ASLOTS
    def publish():
        if NB0 >= 2:
            e(f'  s_cmp_lg_u32 s{sPr}, 0')
            e(f'  s_cbranch_scc1 L_np1')
            e('  s_barrier')
        e(f'  s_or_b32 s{sT[1]}, s{sPr}, s{sW}')
        e(f'  s_cmp_lg_u32 s{sT[1]}, 0')
        e(f'  s_cbranch_scc1 L_np1')
        e(f'  v_mov_b32 v{PQ+4}, {LDS_PR}')
        e(f'  ds_read_b128 v[{PQ}:{PQ+3}], v{PQ+4}')
        e(f'  s_add_u32 s{sT[1]}, s{sVa}, s{sPa}')
        e(f'  s_lshr_b32 s{sT[1]}, s{sT[1]}, 21')
        e(f'  s_lshr_b32 s{sT[2]}, s2, 2')
        e(f'  s_xor_b32 s{sT[1]}, s{sT[1]}, s{sT[2]}')
        e(f'  s_and_b32 s{sT[1]}, s{sT[1]}, 1')
        e(f'  s_add_u32 s{sT[2]}, s{sT[1]}, 1')
        e(f'  s_sub_u32 s{sT[1]}, 2, s{sT[1]}')
        e(f'  v_mov_b32 v{PQ+6}, s{sT[2]}')
        e(f'  v_mov_b32 v{PQ+5}, s{sT[1]}')
        e(f'  v_mov_b32 v{PQ+7}, 0')
        e(f'  v_mov_b32 v{PQ+4}, s{sEo}')
        e('  s_waitcnt lgkmcnt(0)')
        e(f'  v_pk_min_u16 v{PQ}, v{PQ}, v{PQ+1}')
        e(f'  v_pk_min_u16 v{PQ+2}, v{PQ+2}, v{PQ+3}')
        e(f'  v_pk_min_u16 v{PQ}, v{PQ}, v{PQ+2}')
        e(f'  v_lshrrev_b32 v{PQ+1}, 16, v{PQ}')
        e(f'  v_and_b32 v{PQ}, 0xffff, v{PQ}')
        e(f'  v_cmp_gt_u32 vcc, v{PQ+1}, v{PQ}')
        e('  s_mov_b64 exec, 1')
        e('  s_nop 0')
        e(f'  v_cndmask_b32 v{PQ+6}, v{PQ+6}, v{PQ+5}, vcc')
        e(f'  buffer_atomic_cmpswap v[{PQ+6}:{PQ+7}], v{PQ+4}, s[{sDS}:{sDS+3}], 0 offen sc1')
        e('  s_mov_b64 exec, -1')
        e('L_np1:')
    if opts.get('st2') == '2': stamp()
    if int(opts.get('iw', 0)):
        for r in sSo: e(f'  s_mov_b32 s{r}, s{sOOB}')
        e(f'  s_mov_b64 s[{sSm}:{sSm+1}], 0')
        if opts.get('iwp', '0') == '0': e('@IWHOP')
    PP = int(opts.get('pp', 0))
    if NUMA and PP == -1: probe()
    for s in range(NI, 2): run(bload(s))
    if NUMA and PP == 0: probe()
    LA = int(opts.get('la', NAR))
    assert LA <= NAR
    if LA > 2: run(bload(2))
    if NUMA and PP == 1: probe()
    if NB0 == 3: run(xdma_items(0))
    if LA > 3: run(bload(3))
    if LA > 4: run(bload(4))
    if NUMA and PP == 2: probe()

    def trs(s):
        it = [lambda: g.wait(('b', s), vm=('W',) if (s == 0 and LEAN) else ('B', s, 5))]
        base = vTr if (s % NAR) < 2 else vTr2
        so = AREA[s % NAR] - AREA[0 if (s % NAR) < 2 else 2]
        it.append(lambda: g.lgop(f'  ds_read_b128 v[{DWR[s & 1]}:{DWR[s & 1]+3}], v{vDW} offset:{s*64}', ('TR', s)))
        for nt in range(6):
            for hh in range(2):
                r = RAW[s & 1] + nt*4 + 2*hh
                it.append(lambda r=r, nt=nt, hh=hh: g.lgop(f'  ds_read_b64_tr_b16 a[{r}:{r+1}], v{base} offset:{so + hh*768 + (nt >> 1)*64 + (nt & 1)*8}', ('TR', s)))
        return it
    def cvts(s, j, q=None):
        nt, hh = j // 2, j % 2
        if q is None: q = FT + 4*(j % NFT)
        if s in ASLOTS:
            return [f'  v_cvt_pk_bf16_f32 v{q}, v{q}, v{q+1}', f'  v_cvt_pk_bf16_f32 v{q+1}, v{q+2}, v{q+3}',
                    f'  v_accvgpr_write_b32 {breg(s, nt, 1, 2*hh)}, v{q}', f'  v_accvgpr_write_b32 {breg(s, nt, 1, 2*hh+1)}, v{q+1}']
        return [f'  v_cvt_pk_bf16_f32 {breg(s, nt, 1, 2*hh)}, v{q}, v{q+1}', f'  v_cvt_pk_bf16_f32 {breg(s, nt, 1, 2*hh+1)}, v{q+2}, v{q+3}']
    def rd(t, i):
        mt, ks = i // 12, i % 12
        x = XF + 8*((i // 2) % 3) + 4*(i & 1)
        g.lgop(f'  ds_read_b128 a[{x}:{x+3}], v{vLdsR[ks & 3]} offset:{(t & 1)*TILE_B + mt*12288 + (ks >> 2)*256}', ('X', t, i))
    TS = NB0 if FUSE else 13
    units = sorted([(0, k) for k in range(12)] + [(1, k) for k in range(8)], key=lambda u: (u[1] + 4*u[0], -u[0]))
    UPS = int(opts.get('ups', 2 if NB0 <= 2 else 3))
    SCH = {s: [] for s in range(13)}
    rem = list(units) if FUSE else []
    for s in range(12, TS - 1, -1):
        n = 2 if s == 12 else UPS
        take = [u for u in reversed(rem) if u[1] < s][:n]
        SCH[s] = sorted(take, key=lambda u: (u[1], u[0]))
        rem = [u for u in rem if u not in take]
    assert not rem, rem
    for mt in range(2 if FUSE else 0):
        seq = [u[1] for s in range(13) for u in SCH[s] if u[0] == mt]
        assert seq[0] == 0 and sorted(seq) == list(range(len(seq)))
    def tl(s): return SCH[s]
    def fx(s, mt, ks): return OB + 12*(s % 2) + 4*SCH[s].index((mt, ks))
    def prd(s):
        return [lambda mt=mt, ks=ks: g.lgop(f'  ds_read_b128 a[{fx(s, mt, ks)}:{fx(s, mt, ks)+3}], v{vLdsR[ks & 3]} offset:{mt*12288 + (ks >> 2)*256}', ('TR', s)) for (mt, ks) in tl(s)]
    def tm(s, mt, ks, nt):
        a = ACC + 24*mt + 4*nt; x = fx(s, mt, ks)
        return f'  v_mfma_f32_16x16x32_bf16 v[{a}:{a+3}], {breg(ks, nt)}, a[{x}:{x+3}], {"0" if ks == 0 else f"v[{a}:{a+3}]"}'
    if opts.get('iwp') == '1': e('@IWHOP')
    DEC = int(opts.get('dec', 0))
    def trd(s):
        it = [lambda: g.wait(('b', s), vm=('W',) if (s == 0 and LEAN) else ('B', s, 5))]
        base = vTr if (s % NAR) < 2 else vTr2
        so = AREA[s % NAR] - AREA[0 if (s % NAR) < 2 else 2]
        for nt in range(6):
            for hh in range(2):
                it.append(lambda nt=nt, hh=hh: g.lgop(f'  ds_read_b64_tr_b16 {breg(s, nt, 2, 2*hh)}, v{base} offset:{so + hh*768 + (nt >> 1)*64 + (nt & 1)*8}', ('TR', s)))
        return it
    def dwr(s): g.lgop(f'  ds_read_b128 v[{DWR[s & 1]}:{DWR[s & 1]+3}], v{vDW} offset:{s*64}', ('DW', s))
    if DEC:
        run(trd(0)); dwr(0)
    else: run(trs(0))
    stamp()
    LAG = int(opts.get('lag', 3))
    XA = int(opts.get('xa', 8)); XB = int(opts.get('xb', 12)); DS = int(opts.get('ds', XA)); BQ = 10
    X0 = int(opts.get('x0', 11 - LA)); X1 = int(opts.get('x1', 11))
    if not FUSE: XA = XB = BQ = 99; DS = int(opts.get('ds', 10)); LAG = int(opts.get('lag', 4))
    assert XB >= BQ
    pend = []
    def decide():
        if NUMA:
            e(f'  s_cmp_eq_u32 s{sRd}, 0')
            e('  s_cbranch_scc1 L_slow')
            e('L_back:')
            e(f'  s_lshr_b32 s{sT[1]}, s2, 1')
            e(f'  s_xor_b32 s{sDec}, s{sRd}, s{sT[1]}')
            e(f'  s_and_b32 s{sDec}, s{sDec}, 2')
            e(f'  s_lshl_b32 s{sDec}, s{sDec}, 20')
    if DEC:
        QU = [[] for _ in range(145)]
        def spread(items, n0, n1):
            for i, it in enumerate(items): QU[n0 + (i * (n1 - n0)) // len(items)].append(it)
        for a in range(11):
            it = trd(a + 1)
            if a + LA < 12: it += [lambda a=a: g.wait(('trf', a), lg=('TR', a))] + bload(a + LA)
            if a == X0: it += xdma_items(0)
            spread(it, DEC * a, DEC * (a + 1))
        if NUMA: QU[12*DS - 8].append(f'  s_load_dword s{sRd}, s[{sDb}:{sDb+1}], s{sEo}')
        if X1 < 12: spread(xdma_items(1), 12*X1, 12*X1 + 12)
        assert DEC * (X0 + 1) <= 12*DS
        for n in range(144):
            k, j = n // 12, n % 12
            d = DWR[k & 1]
            if j == 0:
                if k == DS and NUMA: e('  s_waitcnt lgkmcnt(0)')
                else:
                    g.wait(('tr', k), lg=('TR', k)); g.wait(('dw', k), lg=('DW', k), opt=True)
                for i in range(4): e(f'  v_and_b32 v{d+i}, v{vM[i & 1]}, v{d+i}')
                if k == DS: decide()
                if k + 1 < 12: dwr(k + 1)
                else: e('  s_nop 0')
                e('  s_nop 0')
            nt, hh = j // 2, j % 2
            q = FT + 4*(n % NFT)
            e(f'  v_mfma_f32_16x16x16_bf16 v[{q}:{q+3}], v[{d+2*hh}:{d+2*hh+1}], {breg(k, nt, 2, 2*hh)}, 0')
            pend.append(cvts(k, j, q))
            run(QU[n])
            if len(pend) > LAG: run(pend.pop(0))
            if n in (47, 95): stamp()
            if n == 11 and NUMA: publish()
    for s in range(0 if DEC else 12):
        if s == DS and NUMA: e('  s_waitcnt lgkmcnt(0)')
        else: g.wait(('tr', s), lg=('TR', s))
        if s == BQ: e('  s_barrier')
        d = DWR[s & 1]
        for i in range(4): e(f'  v_and_b32 v{d+i}, v{vM[i & 1]}, v{d+i}')
        if s == DS: decide()
        Q = []
        if s + 4 == NB0: Q += xdma_items(0)
        if s + LA < 12: Q += bload(s + LA)
        nx = trs(s + 1) if s + 1 < 12 else []
        if s == NB0 - 1:
            nx = nx[:1] + ['  s_barrier'] + nx[1:]
        nx += prd(s + 1)
        Q = (Q + nx) if opts.get('qo', '1') == '0' else (nx + Q)
        if s == DS - 1 and NUMA: Q.append(f'  s_load_dword s{sRd}, s[{sDb}:{sDb+1}], s{sEo}')
        if STG and s == XE: Q += x0_site(True)
        if s == X0 and not FUSE: Q += (x0_site(False) if STG else xdma_items(0))
        if s == X1 and not FUSE: Q += xdma_items(1)
        if s == XA: Q += xdma_items(1)
        if s == XB: Q += xdma_items(2)
        if s == 11 and FUSE: Q += [lambda i=i: rd(0, i) for i in range(20, 24)]
        while len(Q) < 2: Q.append('  s_nop 0')
        M = []
        TL = [tm(s, mt, ks, nt) for nt in range(6) for (mt, ks) in tl(s)]
        for j in range(12):
            nt, hh = j // 2, j % 2
            r = RAW[s & 1] + nt*4 + 2*hh
            q = FT + 4*(j % NFT)
            M.append((f'  v_mfma_f32_16x16x16_bf16 v[{q}:{q+3}], v[{d+2*hh}:{d+2*hh+1}], a[{r}:{r+1}], 0', j))
            k0, k1 = (j*len(TL))//12, ((j+1)*len(TL))//12
            M += [(x, None) for x in TL[k0:k1]]
        run(Q[:2]); Q = Q[2:]
        front = int(opts.get('front', 2))
        cq = []
        for mi, (m, j) in enumerate(M):
            if j is not None:
                run(cq); cq = []
            e(m)
            if j is not None:
                pend.append(cvts(s, j))
                if len(pend) > LAG: cq = pend.pop(0)
            QE = (len(M) * int(opts.get('qe', 4))) // 4
            nq = -(-len(Q) // max(1, QE - mi)) if mi < QE else len(Q)
            run(Q[:nq]); Q = Q[nq:]
            nc = 2 if (mi + 1 < len(M) and M[mi + 1][1] is None) else len(cq)
            run(cq[:nc]); cq = cq[nc:]
        assert not Q and not cq
        if s in (3, 7) and not opts.get('st2'): stamp()
        if s == (0 if NB0 >= 2 else NB0 - 1) and NUMA: publish()
    if FUSE:
        g.wait(('tr', 12), lg=('TR', 12))
        T0 = [tm(12, 0, 11, nt) for nt in range(6)]
        T1 = [tm(12, 1, ks, nt) for (mt, ks) in tl(12) if mt == 1 for nt in range(6)]
        for nt in range(4):
            e(T0[nt])
            if pend: run(pend.pop(0))
        if DS == 12:
            e('  s_waitcnt lgkmcnt(0)'); decide()
        e(f'  v_sub_u32 v{vST4b}, v{vXS4b}, v{vXS[4]}')
        e(f'  v_add_u32 v{vST4b}, v{vST4b}, v{vST[4]}')
        e(T0[4]); e(T0[5])
        stamp()
        FIN = (T1, XB)
    else:
        run(pend.pop(0)); run(pend.pop(0))
        stamp()
        e(f'  v_sub_u32 v{vST4b}, v{vXS4b}, v{vXS[4]}')
        e(f'  v_add_u32 v{vST4b}, v{vST4b}, v{vST[4]}')
        for r in sSo: e(f'  s_mov_b32 s{r}, s{sOOB}')
        if PF:
            a_, m_ = [int(v) for v in PF.split(',')]
            e(f'  v_mbcnt_lo_u32_b32 v{vPF}, -1, 0')
            e(f'  v_mbcnt_hi_u32_b32 v{vPF}, -1, v{vPF}')
            e(f'  v_min_u32 v{vPF}, 47, v{vPF}')
            e(f'  s_mul_i32 s{sPf0}, s{sW}, 48')
            e(f'  v_add_u32 v{vPF}, s{sPf0}, v{vPF}')
            e(f'  v_lshrrev_b32 v{vPD}, 6, v{vPF}')
            e(f'  v_lshlrev_b32 v{vPD}, 13, v{vPD}')
            e(f'  v_lshl_add_u32 v{vPF}, v{vPF}, 7, v{vPD}')
            e(f'  s_lshr_b32 s{sPf0}, s2, 3')
            e(f'  s_and_b32 s{sPf0}, s{sPf0}, {m_}')
            e(f'  s_add_u32 s{sPf0}, s{sPf0}, {a_ - NTILE & 0xffffffff}')
            e(f'  s_mul_i32 s{sPf0}, s{sPf0}, {KSTEP}')
            e(f'  s_add_u32 s{sPf0}, s{sPf0}, s{sEnd}')
        if opts.get('iwp') == '2': e('@IWHOP')
        if int(opts.get('iw', 0)): e('  s_mov_b64 vcc, 0')
        g.wait('x0', vm=('L', 0, 5))
        e('  s_barrier')
        for i in range(4): rd(0, i)
        while pend: run(pend.pop(0))
        if X1 == 13: run(xdma_items(1))
        else: assert NAR == 4 and X1 >= DS

    def epi(mt, u, po):
        a = ACC + 24*mt + 8*u
        cv = [f'  v_cvt_pk_bf16_f32 v{a+i}, v{a+2*i}, v{a+2*i+1}' for i in range(4)]
        off = po*TILE_B + mt*12288 + (u >> 1)*128
        if DIR:
            return cv + [lambda: g.vmop(f'  buffer_store_dwordx4 v[{a}:{a+3}], v{vTS if mt else vST[0]}, s[{sO}:{sO+3}], s{sSo[2] if mt else sSo[0]} offen offset:{64*u}{NT_ST}', None)]
        if opts.get('w64'):
            return cv[:2] + [lambda: g.lgop(f'  ds_write_b64 v{vOW[u & 1]}, v[{a}:{a+1}] offset:{off}', ('OWa', mt, u))] + cv[2:] + \
                   [lambda: g.lgop(f'  ds_write_b64 v{vOW[u & 1]}, v[{a+2}:{a+3}] offset:{off+8}', ('OW', mt, u))]
        return cv + [lambda: g.lgop(f'  ds_write_b128 v{vOW[u & 1]}, v[{a}:{a+3}] offset:{off}', ('OW', mt, u))]
    OBT = 'a'
    def out_read(t, u):
        o = OB + 4*u
        g.lgop(f'  ds_read_b128 {OBT}[{o}:{o+3}], v{vOR[u % 3]} offset:{((t^1)&1)*TILE_B + (u // 3)*12288}', ('O', t, u))
    def out_store(t, u, key):
        o = OB + 4*u
        g.wait((key, 'o', u), lg=('O', t, u), opt=True)
        g.vmop(f'  buffer_store_dwordx4 {OBT}[{o}:{o+3}], v{vTS if u == 4 else vST[u]}, s[{sO}:{sO+3}], s{sSo[max(0, u - 2)]} offen{NT_ST}', None)
    def st_adv(d=0):
        p, q = sF[2 - d], sF[3 - d]
        if DIR:
            return [f'  s_mov_b32 s{sSo[0]}, s{p}', f'  s_min_u32 s{sSo[2]}, s{p}, s{p+1}', f'  s_cmp_gt_u32 s{p}, s{p+1}',
                    f'  s_cselect_b64 s[{sSm}:{sSm+1}], -1, 0', 'NOP', f'  v_cndmask_b32 v{vTS}, v{vST[1]}, v{vST[2]}, s[{sSm}:{sSm+1}]']
        return [f'  s_mov_b32 s{sSo[0]}, s{p}', f'  s_mov_b32 s{sSo[1]}, s{q}', f'  s_mov_b32 s{sSo[3]}, s{q+1}', f'  s_min_u32 s{sSo[2]}, s{q}, s{q+1}',
                f'  s_cmp_gt_u32 s{q}, s{q+1}', f'  s_cselect_b64 s[{sSm}:{sSm+1}], -1, 0',
                'NOP', f'  v_cndmask_b32 v{vTS}, v{vST[4]}, v{vST4b}, s[{sSm}:{sSm+1}]']
    def ints(k, d): return [int(v) for v in opts.get(k, d).split(',')]
    OR_AT = ints('or', '2,3,4,5,6,7'); OS_AT = ints('os', '14,20,30,40,52,64')
    UORD = ints('uord', '3,4,5,0,1,2')
    XD_AT = ints('xd', '76,88,100,112,124,136')
    E1_AT = ints('e1', '27,39,61'); E0_AT = ints('e0', '99,106,123')
    SH_AT = int(opts.get('sh', 26)); CAP = int(opts.get('cap', 1)); HG = int(opts.get('hg', 0))
    def fillers(t):
        F = [[] for _ in range(144)]
        use = [0] * 150
        for r in range(144):
            if r % 12 in (0, 1, 11): use[r] = 1
        HP = opts.get('hp')
        def heavy(rho, it):
            while use[rho] or (HP and rho % 2 != int(HP)): rho += 1
            F[rho].append(it); use[rho] = 9
            for k in range(1, HG + 1): use[rho + k] = max(use[rho + k], 8)
            return rho
        def light(rho, items, cap=CAP, back=False):
            if back:
                for it in reversed(items):
                    while use[rho] >= cap: rho -= 1
                    F[rho].insert(0, it); use[rho] += 1
                return rho
            for it in items:
                while use[rho] >= cap: rho += 1
                F[rho].append(it); use[rho] += 1
            return rho
        kp = t & 1
        post = []
        vpos = []
        for k in range(0 if DIR else 6):
            u = UORD[k]
            lastst = heavy(OS_AT[k], lambda u=u: out_store(t, u, kp))
            vpos.append(lastst)
        xpos = []
        for u in range(6):
            it = [x for x in xdma(t + PD, u) if x != 'NOP']
            xpos.append((heavy(XD_AT[u], it[-1]), it[:-1]))
        for mt, AT in ((1, E1_AT), (0, E0_AT)):
            for u in range(3):
                r = AT[u]
                for it in epi(mt, u, t & 1):
                    r = (heavy(r, it) if callable(it) else light(r, [it], 1)) + 1
                if DIR:
                    vpos.append(r - 1)
                    if mt == 1: lastst = r - 1
        for k in range(0 if DIR else 6):
            light(OR_AT[k], [lambda u=UORD[k]: out_read(t, u)], 1)
        prevx = 0
        for (r, it) in xpos:
            r0 = light(r - 1, it, 2 if len(it) > 6 else CAP, back=True)
            assert r0 >= 24 and r0 > prevx, (r0, prevx)
            prevx = r
        if PF:
            it = pf_items()
            rp = heavy(int(opts.get('pfa', 140)), it[-1])
            assert light(rp - 1, it[:-1], 2, back=True) > xpos[4][0]
        if opts.get('lim'):
            for r in vpos + [x[0] for x in xpos]:
                light(r - 1, [f'  s_waitcnt vmcnt({opts["lim"]})'], 2, back=True)
        for a, b in zip(xpos, xpos[1:]): assert b[0] - a[0] >= 5
        r1 = light(max(lastst, xpos[0][0]) + 1, [x for x in st_adv() if x != 'NOP'], 2)
        assert r1 < (E0_AT[0] + 4 if DIR else 144)
        return F
    def tile(t, G0=0):
        kp = t & 1
        F0 = fillers(t); F1 = fillers(t + 1)
        for G_ in range(G0, 12):
            mt, kg = G_ // 6, G_ % 6
            if DBG == 2 and G_ in (4, 10): e(f'  s_memrealtime s[{[42, 44, 48, 50][2*kp + (G_ == 10)]}:{[42, 44, 48, 50][2*kp + (G_ == 10)]+1}]')
            if G_ == 10:
                if G0 == 0 and kp == 1 and opts.get('skv'):
                    e(f'  s_cmp_ge_u32 s{sF[1]}, s{sOOB}')
                    e(f'  s_cbranch_scc1 L_npv{t}')
                    g.wait((kp, 'barv'), vm=('L', t + 1, 5))
                    e(f'L_npv{t}:')
                    g.wait((kp, 'bar'), lg=('OW', 0, 2))
                elif G0 == 0: g.wait((kp, 'bar'), vm=('L', t + 1, 5), lg=('OW', 0, 2))
                if kp == 0 and not unroll: e('L_ent:')
                e('  s_barrier')
                if DBG == 2: e(f'  s_memrealtime s[{[46, 52][kp]}:{[46, 52][kp]+1}]')
                if t & 1:
                    for r in vLdsR: e(f'  v_xor_b32 v{r}, {2*TILE_B}, v{r}')
            g.wait((kp, 'x', G_), lg=('X', t, 2*G_ + 1))
            for pd_ in (opts['pad'].split(',') if opts.get('pad') else []): e(f'  s_nop {pd_}')
            for nt in range(6):
                for k in range(2):
                    kk = k ^ (nt & 1) if opts.get('snake') else k
                    ks = 2*kg + kk; i = 12*mt + ks
                    x = XF + 8*(G_ % 3) + 4*kk
                    a = ACC + 24*mt + 4*nt
                    c = '0' if kg == 0 and k == 0 else f'v[{a}:{a+3}]'
                    e(f'  v_mfma_f32_16x16x32_bf16 v[{a}:{a+3}], {breg(ks, nt)}, a[{x}:{x+3}], {c}')
                    gap = 12*G_ + 2*nt + k
                    if gap % 12 in (0, 1):
                        j = 2*G_ + 4 + (gap % 12)
                        if j < 24: rd(t, j)
                        else: rd(t + 1, j - 24)
                    run(F0[gap + 24] if gap < 120 else F1[gap - 120])
    if FUSE:
        Q = (xdma_items(2) if XB == 12 else []) + [x if x != 'NOP' else '  s_nop 0' for x in st_adv()]
        E = epi(0, 0, 0) + epi(0, 1, 0) + epi(0, 2, 0)
        T1 = list(FIN[0])
        run(Q[:4]); Q = Q[4:]
        while T1 or E:
            if T1: e(T1.pop(0))
            run(E[:3]); E = E[3:]
        run(Q)
    stamp()
    if DBG:
        e(f'  s_mov_b32 s94, {sn[0]}')
        e('  s_mov_b32 s60, s64')
        e('  s_memtime s[38:39]') if 0 else e('  s_memtime s[86:87]')
    def tail(t):
        if DIR:
            e('  s_nop 3')
            for u in range(3): run(epi(1, u, t & 1))
            return
        done = [UORD[k] for k in range(6) if OS_AT[k] < 24]
        rdone = [UORD[k] for k in range(6) if OR_AT[k] < 24]
        for u in UORD:
            if u not in rdone: out_read(t, u)
        e('  s_nop 3')
        for u in range(3): run(epi(1, u, t & 1))
        for u in UORD:
            if u not in done: out_store(t, u, 'T')
        run([x if x != 'NOP' else '  s_nop 0' for x in st_adv(1)])
        e('  s_waitcnt lgkmcnt(0)')
        e('  s_barrier')
        for u in range(3):
            e(f'  ds_read_b128 a[{XF+4*u}:{XF+4*u+3}], v{vOR[u]} offset:{(t & 1)*TILE_B + 12288}')
        for u in range(3):
            e(f'  s_waitcnt lgkmcnt({2-u})')
            e(f'  buffer_store_dwordx4 a[{XF+4*u}:{XF+4*u+3}], v{vTS if u == 1 else vST[u+3]}, s[{sO}:{sO+3}], s{sSo[u+1]} offen{NT_ST}')
    PEEL = int(opts.get('peel', 1))
    def last_tile(t):
        F = [[] for _ in range(150)]
        use = [(1 if (r % 12 == 11 or (r % 12 in (0, 1) and r < 120)) else 0) for r in range(150)]
        def put(r, items):
            for it in items:
                if it == 'NOP': continue
                while use[r]: r += 1
                F[r].append(it); use[r] = 1
            return r
        def part(q):
            return [f'  s_mov_b32 s{sSo[1]}, s{q}', f'  s_mov_b32 s{sSo[3]}, s{q+1}', f'  s_min_u32 s{sSo[2]}, s{q}, s{q+1}',
                    f'  s_cmp_gt_u32 s{q}, s{q+1}', f'  s_cselect_b64 s[{sSm}:{sSm+1}], -1, 0', f'  v_cndmask_b32 v{vTS}, v{vST[4]}, v{vST4b}, s[{sSm}:{sSm+1}]']
        assert all(o < 24 for o in OR_AT) and UORD[:3] == [3, 4, 5]
        L1 = ints('l1', '6,16,28,40'); L2 = ints('l2', '62,74,88'); L3 = ints('l3', '120,128,136')
        BX, BY = int(opts.get('bx', 4)), int(opts.get('by', 9))
        rem = [UORD[k] for k in range(6) if OS_AT[k] >= 24]
        pos = {}
        for u, r in zip(rem, L1[-len(rem):]): pos[u] = put(r, [lambda u=u: out_store(t, u, 'L')])
        for u, r in zip((3, 4, 5), L2): p2 = put(r, [lambda u=u: out_store(t + 1, u, 'L2')])
        for u, r in zip((0, 1, 2), L3): put(r, [lambda u=u: out_store(t + 1, u, 'L2')])
        r = 3
        for u in range(3): r = put(r, epi(1, u, t & 1)) + 1
        assert r < 12*BX - 4
        r = 75
        for u in range(3): r = put(r, epi(0, u, t & 1)) + 1
        assert r < 12*BY - 4
        put(12*BX + 2, [lambda u=u: out_read(t + 1, u) for u in (3, 4, 5)])
        put(12*BY + 2, [lambda u=u: out_read(t + 1, u) for u in (0, 1, 2)])
        assert put(pos.get(5, 0) + 1, part(sF[2])) < L2[0] and max(pos.values()) < 12*BX
        put(max(pos.values()) + 1, [f'  s_mov_b32 s{sSo[0]}, s{sF[1]}'])
        put(p2 + 1, part(sF[1]))
        for G_ in range(12):
            mt, kg = G_ // 6, G_ % 6
            if G_ in (BX, BY):
                g.wait(('L', 'bar', G_), lg=('OW', 1 if G_ == BX else 0, 2))
                e('  s_barrier')
            g.wait(('L', 'x', G_), lg=('X', t, 2*G_ + 1))
            for nt in range(6):
                for k in range(2):
                    ks = 2*kg + k
                    x = XF + 8*(G_ % 3) + 4*k
                    a = ACC + 24*mt + 4*nt
                    c = '0' if ks == 0 else f'v[{a}:{a+3}]'
                    e(f'  v_mfma_f32_16x16x32_bf16 v[{a}:{a+3}], {breg(ks, nt)}, a[{x}:{x+3}], {c}')
                    gap = 12*G_ + 2*nt + k
                    if gap % 12 in (0, 1) and 2*G_ + 4 + (gap % 12) < 24: rd(t, 2*G_ + 4 + (gap % 12))
                    run(F[gap])
        assert not any(F[144:])
        if DBG:
            e('  s_mov_b32 m0, s94'); e('  s_nop 0'); e('  v_writelane_b32 v0, s60, m0')
            e('  s_memrealtime s[60:61]'); e('  s_memtime s[88:89]')
        else: e('  s_nop 1')
        for u in range(3): run(epi(1, u, (t + 1) & 1))
        e('  s_waitcnt lgkmcnt(0)')
        e('  s_barrier')
        for u in range(3):
            e(f'  ds_read_b128 a[{XF+4*u}:{XF+4*u+3}], v{vOR[u]} offset:{((t + 1) & 1)*TILE_B + 12288}')
        for u in range(3):
            e(f'  s_waitcnt lgkmcnt({2-u})')
            e(f'  buffer_store_dwordx4 a[{XF+4*u}:{XF+4*u+3}], v{vTS if u == 1 else vST[u+3]}, s[{sO}:{sO+3}], s{sSo[u+1]} offen{NT_ST}')
    if FUSE: g.wait('ent', vm=('L', 1, 5), lg=('OW', 0, 2))
    if PEEL and unroll:
        for t in range(NTILE - 1): tile(t)
        last_tile(NTILE - 1)
    elif PEEL:
        e('L_loop:')
        tile(0)
        e(f'  s_cmp_ge_u32 s{sF[0]}, s{sOOB}')
        e(f'  s_cbranch_scc1 L_tail')
        tile(1)
        if DBG:
            e('  s_mov_b32 m0, s94'); e('  s_nop 0'); e('  v_writelane_b32 v0, s60, m0')
            e('  s_add_u32 s94, s94, 1')
            e('  s_memrealtime s[60:61]')
        e(f'  s_branch L_loop')
        e('L_tail:')
        last_tile(1)
        if DBG: e('  s_mov_b32 s94, 15')
    elif unroll:
        tile(0, 10 if FUSE else 0)
        for t in range(1, NTILE): tile(t)
        tail(NTILE)
    else:
        if FUSE: e('  s_branch L_ent')
        if opts.get('al'): e(f'  .p2align {opts["al"]}')
        e('L_loop:')
        tile(0)
        tile(1)
        if DBG:
            e('  s_mov_b32 m0, s94'); e('  s_nop 0'); e('  v_writelane_b32 v0, s60, m0')
            e('  s_add_u32 s94, s94, 1')
            e('  s_min_u32 s94, s94, 15')
            e('  s_memrealtime s[60:61]')
        e(f'  s_cmp_lt_u32 s{sF[1]}, s{sOOB}')
        e(f'  s_cbranch_scc1 L_loop')
        e('L_tail:')
        if DBG: e('  s_memtime s[88:89]')
        tail(0)
        if DBG: e('  s_mov_b32 s94, 15')
    if DBG:
        e('  s_mov_b32 m0, s94'); e('  s_nop 0'); e('  v_writelane_b32 v0, s60, m0')
        e('  s_add_u32 s94, s94, 1')
        e('  s_load_dwordx2 s[24:25], s[0:1], 40')
        e('  s_waitcnt vmcnt(0)')
        e('  s_memrealtime s[54:55]')
        e('  s_memtime s[98:99]')
        e('  s_waitcnt lgkmcnt(0)')
        e('  s_mov_b32 m0, s94'); e('  s_nop 0'); e('  v_writelane_b32 v0, s54, m0')
        e('  s_sub_u32 s98, s98, s96')
        e('  s_add_u32 s98, s98, s64')
        e('  v_writelane_b32 v0, s98, 31')
        e('  s_sub_u32 s88, s88, s86')
        e('  v_writelane_b32 v0, s88, 30')
        if DBG == 2:
            for i in range(6): e(f'  v_writelane_b32 v0, s{42+2*i}, {17+i}')
        e(f'  v_writelane_b32 v0, s{sPv}, 29')
        e(f'  v_writelane_b32 v0, s{sDec}, 28')
        e(f'  v_writelane_b32 v0, s3, 27')
        for i in range(sn[0]): e(f'  v_writelane_b32 v0, s{64+2*i}, {i}')
        e('  s_mov_b32 s56, s24'); e('  s_and_b32 s57, s25, 0xffff'); e('  s_mov_b32 s58, 452984832'); e('  s_mov_b32 s59, 0x00020000')
        e('  s_lshl_b32 s26, s2, 9'); e(f'  s_lshl_b32 s27, s{sW}, 7'); e('  s_add_u32 s26, s26, s27')
        e('  v_mbcnt_lo_u32_b32 v1, -1, 0')
        e('  v_lshlrev_b32 v1, 2, v1')
        e('  s_mov_b64 exec, 0xffffffff')
        e('  buffer_store_dword v0, v1, s[56:59], s26 offen')
    if AMP:
        e('  s_waitcnt vmcnt(0)')
        e('  s_memrealtime s[54:55]')
        e('  s_waitcnt lgkmcnt(0)')
        e(f'  s_cmp_lg_u32 s2, {int(opts.get("ampwg", 100))}')
        e('  s_cbranch_scc1 L_done')
        if AMP == 'c':
            e('  s_memtime s[98:99]')
            e('  s_waitcnt lgkmcnt(0)')
            e('  s_sub_u32 s27, s98, s96')
            e('  s_lshr_b32 s27, s27, 1')
        else:
            e(f'  s_sub_u32 s27, s{54 if AMP == "e" else 64 + 2*int(AMP)}, s64')
            e('  s_mul_i32 s27, s27, 10')
        e('L_spin:')
        e('  s_sleep 8')
        e('  s_memrealtime s[56:57]')
        e('  s_waitcnt lgkmcnt(0)')
        e('  s_sub_u32 s26, s56, s54')
        e('  s_cmp_lt_u32 s26, s27')
        e('  s_cbranch_scc1 L_spin')
    if NUMA:
        e('  s_endpgm')
        e('L_slow:')
        e(f'  v_mov_b32 v{vTX}, s{sEo}')
        SP = ACC + 40 if DEC else (254 if DS <= 10 else FT)
        assert DS != 11
        e(f'  v_mov_b32 v{SP}, 1')
        e(f'  v_mov_b32 v{SP+1}, 0')
        e('  s_mov_b64 exec, 1')
        e(f'  buffer_atomic_cmpswap v[{SP}:{SP+1}], v{vTX}, s[{sDS}:{sDS+3}], 0 offen sc0 sc1')
        e('  s_waitcnt vmcnt(0)')
        e(f'  v_readfirstlane_b32 s{sRd}, v{SP}')
        e('  s_mov_b64 exec, -1')
        if DBG: e('  s_mov_b32 s3, 1')
        e('  s_branch L_back')
    e('L_done:')
    e('  s_endpgm')
    e('.section .rodata,"a"')
    e('.p2align 6')
    e('.amdhsa_kernel standalone__depthwise_separable__vision_kernel')
    e('  .amdhsa_next_free_vgpr 512')
    e('  .amdhsa_next_free_sgpr 100')
    e('  .amdhsa_accum_offset 256')
    e('  .amdhsa_group_segment_fixed_size 0')
    e('  .amdhsa_kernarg_size 48')
    e('  .amdhsa_user_sgpr_count 2')
    e('  .amdhsa_user_sgpr_kernarg_segment_ptr 1')
    e('  .amdhsa_system_sgpr_workgroup_id_x 1')
    e('  .amdhsa_float_denorm_mode_32 3')
    e('.end_amdhsa_kernel')

if __name__ == '__main__':
    out = sys.argv[1]
    opts = dict(a.split('=', 1) for a in sys.argv[2:])
    for k in ('nt_ld', 'nt_st', 'nt_b'):
        if k in opts: opts[k] = (' ' + opts[k].replace('+', ' ')) if opts[k] != 'none' else ''
    open(out, 'w').write(gen(opts))
```

```python
import sys, re
from gen3 import G, HDR
from gen5 import regs_of

def hazard_check(L):
    ins = [l.strip() for l in L if l.startswith('  ') and not l.strip().startswith(';')]
    hist = []; st = 0; last_valu = []; last_st = []; last_m0 = -9; last_sg = []; lastscc = ''
    for l in ins:
        op = l.split()[0]
        toks = [t.strip(',') for t in l.split()[1:]]
        allr = set()
        for t in toks: allr |= regs_of(t)
        if op.startswith('v_mfma'):
            d = regs_of(toks[0]); a = regs_of(toks[1]); b = regs_of(toks[2]); c = regs_of(toks[3])
            for (s0, r) in last_valu:
                if st - s0 - 1 < 2 and (r & (a | b | c)): raise Exception(f'VALU->MFMA hazard: {l}')
            for (s0, dd, cc) in hist:
                if st - s0 - 1 < 8 and (dd & (a | b)): raise Exception(f'MFMA D->A/B hazard: {l}')
                if st - s0 - 1 < 6 and (dd & c) and dd != c: raise Exception(f'MFMA D->C overlap hazard: {l}')
                if st - s0 - 1 < 6 and (dd & d) and dd != c: raise Exception(f'MFMA D->D WAW: {l}')
            for (s0, r) in last_st:
                if st - s0 - 1 < 8 and (r & d): raise Exception(f'store data WAR (mfma): {l}')
            hist.append((st, d, c))
        elif op.startswith('v_') or op.startswith('ds_') or op.startswith('buffer_'):
            for (s0, dd, cc) in hist:
                if st - s0 - 1 < 8 and (dd & allr): raise Exception(f'MFMA D->use hazard dist {st-s0-1}: {l}')
            if op.startswith('v_'):
                w = regs_of(toks[0])
                for (s0, dd, cc) in hist:
                    if st - s0 - 1 < 3 and (cc & w): raise Exception(f'MFMA C WAR hazard: {l}')
                for (s0, r) in last_st:
                    if st - s0 - 1 < 2 and (r & w): raise Exception(f'store data WAR: {l}')
                if op in ('v_readfirstlane_b32', 'v_readlane_b32'):
                    for (s0, r) in last_valu:
                        if st - s0 - 1 < 1 and (r & regs_of(toks[1])): raise Exception(f'readlane hazard: {l}')
                    last_sg.append((st, toks[0]))
                else:
                    for (s0, sg) in last_sg:
                        if st - s0 - 1 < 2 and sg in toks[1:]: raise Exception(f'VALU sgpr->VALU hazard: {l}')
                last_valu.append((st, w)); last_valu = last_valu[-4:]
            if op.startswith('buffer_store') or op.startswith('ds_write'):
                last_st.append((st, regs_of(toks[0] if op.startswith('buffer') else toks[1]))); last_st = last_st[-4:]
            if op.startswith('buffer_') and l.endswith('lds') and st - last_m0 - 1 < 1: raise Exception(f'm0 hazard: {l}')
            if op.startswith('buffer_'):
                for (s0, sg) in last_sg:
                    if st - s0 - 1 < 5 and sg in toks: raise Exception(f'VALU sgpr->VMEM hazard: {l}')
        elif op.startswith('s_') and toks and toks[0] == 'm0': last_m0 = st
        if op.startswith('s_cselect') or op.startswith('s_cbranch_scc'):
            if not (lastscc.startswith('s_cmp') or lastscc.startswith('s_bitcmp')): raise Exception(f'SCC clobbered by {lastscc}: {l}')
        elif re.match(r's_(add|sub|and|or|xor|min|max|lshl|lshr|cmp|bitcmp|andn2|ashr|bfe|not)', op): lastscc = op
        hist = [h for h in hist if st - h[0] < 24]
        st += int(toks[0]) + 1 if op == 's_nop' else 1

class G2(G):
    def __init__(self):
        self.need = {}
        super().__init__()
    def reset(self, mode):
        super().reset(mode); self.lgd = 0; self.vmd = 0
    def _cnt(self, lst, tag):
        if tag[:2] == ('O', 0) and tag not in lst: return len(lst)
        return super()._cnt(lst, tag)
    def wait(self, key, vm=None, lg=None, opt=False):
        if self.mode == 'collect2':
            nd = False
            if lg is not None and len(self.lg) - self._cnt(self.lg, lg) > self.lgd: nd = True
            if vm is not None and len(self.vm) - self._cnt(self.vm, vm) > self.vmd: nd = True
            self.need[key] = self.need.get(key, False) or nd or not opt
            v, l = self.sites[key]
            if not opt:
                if lg is not None: self.lgd = max(self.lgd, len(self.lg) - l)
                if vm is not None: self.vmd = max(self.vmd, len(self.vm) - v)
            return
        if self.mode in ('emit', 'check') and not self.need[key]: return
        super().wait(key, vm, lg)

def gen(opts):
    g = G2()
    g.reset('collect')
    build(g, opts, unroll=True)
    g.reset('collect2')
    build(g, opts, unroll=True)
    g.reset('check')
    build(g, opts, unroll=True)
    hazard_check(g.L)
    L2 = []; skip = None
    for l in g.L:
        if skip:
            if l == skip + ':': skip = None
            continue
        L2.append(l)
        m = re.match(r'  s_cbranch_scc1 (L_np\w*)', l)
        if m: skip = m.group(1)
    hazard_check(L2)
    g.reset('emit')
    build(g, opts, unroll=False)
    L = g.L
    abl = opts.get('abl', '')
    if abl:
        i0 = L.index('L_loop:'); i1 = L.index('L_tail:')
        def keep(l):
            s = l.strip()
            if 'O' in abl and (s.startswith('ds_write_b128') or re.match(r'ds_read_b128 a\[(16[89]|17\d|18\d)', s)): return False
            if 'T' in abl and s.startswith('buffer_store'): return False
            if 'L' in abl and s.startswith('buffer_load'): return False
            if 'B' in abl and s.startswith('s_barrier'): return False
            if 'C' in abl and s.startswith('v_cvt'): return False
            if 'H' in abl and s.startswith('v_mfma') and int(re.search(r'v\[(\d+):', s).group(1)) % 8 == 4: return False
            return True
        L = L[:i0] + [l for l in L[i0:i1] if keep(l)] + L[i1:]
    return '\n'.join(L) + '\n'

def build(g, opts, unroll):
    NT_LD = opts.get('nt_ld', ' nt'); NT_ST = opts.get('nt_st', ' sc1'); NT_B = opts.get('nt_b', '')
    DBG = int(opts.get('dbg', 0)); AMP = opts.get('amp')
    DIR = int(opts.get('dir', 0))
    PD = int(opts.get('pd', 2))
    e = g.e
    TILE_B = 32 * 768; NTILE = 18; STRIDE = 256 * TILE_B
    LDS_O = 4 * TILE_B + 256; LDS_DW = 6 * TILE_B + 512; LDS_PR = LDS_DW + 4096; LDS_TOTAL = LDS_PR + 64
    AREA = [LDS_O, LDS_O + TILE_B + 64, 2 * TILE_B, 3 * TILE_B + 64]
    OOB = 113246208
    vLdsR = [1, 2, 3, 4]; vOR = [5, 6, 7]; vXS = [8, 9, 10, 11, 12, 13]; vXS4b = 14; vTX = 15
    ACC = 16
    PT = 64
    vBL = [PT, PT+1, PT+2]; vTr = PT+3; vDW = PT+4; vM = [PT+5, PT+6]; vTr2 = PT+7
    DWR = [PT+8, PT+12]
    vST = [PT+16+i for i in range(6)]; vOW = [PT+22, PT+23]; vST4b = PT; vTS = PT+1
    T = [ACC+i for i in range(12)]; vLane = ACC + 12
    FUSE = int(opts.get('fuse', 0))
    FT = 88 if FUSE else ACC; NFT = 6 if FUSE else 12
    BV = 112 if FUSE else 88
    NA = 6 if FUSE else 5
    ASLOTS = [int(c, 16) for c in opts.get('aslots', '012346' if FUSE else '13579')]
    NAR = 4 if FUSE else int(opts.get('nar', 4))
    if NAR == 5: AREA = [TILE_B + k * (TILE_B + 64) for k in range(5)]
    assert len(ASLOTS) == NA
    VSLOTS = [s for s in range(12) if s not in ASLOTS]
    XF = 144
    OB = 168
    RAW = [192, 216]
    sX, sO, sP, sD = 4, 8, 12, 16
    sW, sCnt = 20, 21
    sRing, sOOB = 39, 40
    sF = [76, 78, 80, 82]
    sBase, sVa, sDec, sEnd = 32, 33, 34, 35
    sX4 = 22; sXm = 56
    sSo = [58, 59, 62, 63]; sSm = 90
    sDb = 92
    sDS = 16
    sRd = 88; sVO = 94; sSw = 95; sPP = 60; sEo = 36; sPa = 37; sPb = 38; sPr = 23; sPv = 41; sPT = 84
    KSTEP = 16 * 49152
    sG = [42, 43, 44]; sQ = [45, 46, 47, 48]; sBW = 49; sT = [50, 51, 52, 53]; sR1, sR2 = 54, 55

    def breg(s, nt, n=4, o=0):
        if s in ASLOTS:
            i = ASLOTS.index(s) * 24 + nt * 4 + o
            return f'a[{i}:{i+n-1}]' if n > 1 else f'a{i}'
        i = BV + VSLOTS.index(s) * 24 + nt * 4 + o
        return f'v[{i}:{i+n-1}]' if n > 1 else f'v{i}'
    sn = [0]
    def stamp():
        if DBG or AMP:
            e(f'  s_memrealtime s[{64+2*sn[0]}:{65+2*sn[0]}]'); sn[0] += 1
    def run(items):
        for it in items:
            if callable(it): it()
            else: e(it)

    e(HDR.rstrip('\n'))
    e(f'; @launch grid=(256,1,1) block=(256,1,1) lds={LDS_TOTAL}')
    e('.amdgcn_target "amdgcn-amd-amdhsa--gfx950"')
    e('.text')
    e('.globl standalone__depthwise_separable__vision_kernel')
    e('.p2align 8')
    e('.type standalone__depthwise_separable__vision_kernel,@function')
    e('standalone__depthwise_separable__vision_kernel:')
    e('  s_load_dwordx8 s[24:31], s[0:1], 0')
    e(f'  s_load_dwordx2 s[{sDb}:{sDb+1}], s[0:1], 32')
    e('  s_cmp_ge_u32 s2, 256')
    e('  s_cbranch_scc1 L_done')
    stamp()
    if AMP == 'c': e('  s_memtime s[96:97]')
    if DBG: e('  s_memtime s[96:97]'); e('  s_mov_b32 s3, 0'); e(f'  s_mov_b32 s{sPv}, 0')
    e(f'  v_lshrrev_b32 v{T[0]}, 6, v0')
    e(f'  v_and_b32 v{vLane}, 63, v0')
    e(f'  v_readfirstlane_b32 s{sW}, v{T[0]}')
    KICK = int(opts.get('kick', 0))
    def kick_a():
        e(f'  s_lshr_b32 s{sT[2]}, s2, 3')
        e(f'  s_mul_i32 s{sT[2]}, s{sT[2]}, 9216')
        if KICK == 2: e(f'  v_and_b32 v{T[5]}, 127, v0')
        e(f'  v_lshl_add_u32 v{T[5]}, v{T[5] if KICK == 2 else 0}, 7, s{sT[2]}')
        e(f'  v_min_u32 v{T[5]}, 294784, v{T[5]}')
    def kick_b():
        e('  s_waitcnt lgkmcnt(0)')
        g.vmop(f'  global_load_dword v{BV+1}, v{T[5]}, s[28:29]', ('K',))
    if KICK: kick_a()
    if KICK and opts.get('kf'): kick_b()
    CW = int(opts.get('cw', 128))
    if CW:
        e(f'  s_getpc_b64 s[{sT[0]}:{sT[1]}]')
        e('L_pc:')
        e(f'  v_mul_u32_u24 v{T[2]}, {CW}, v0')
        e(f'  v_min_u32 v{T[2]}, L_done-L_pc, v{T[2]}')
        e(f'  v_mov_b32 v{T[3]}, s{sT[1]}')
        e(f'  v_add_co_u32 v{T[2]}, vcc, s{sT[0]}, v{T[2]}')
        e(f'  s_nop 1')
        e(f'  v_addc_co_u32 v{T[3]}, vcc, 0, v{T[3]}, vcc')
        g.vmop(f'  global_load_dword v{BV}, v[{T[2]}:{T[3]}], off', ('CW',))
    if KICK and not opts.get('kf'): kick_b()
    e(f'  s_lshr_b32 s{sT[0]}, s2, 3')
    e(f'  s_and_b32 s{sR2}, s{sT[0]}, 3')
    e(f'  s_lshr_b32 s{sR1}, s{sT[0]}, 2')
    e(f'  s_mul_i32 s{sT[1]}, s{sR1}, 11')
    e(f'  s_lshr_b32 s{sT[1]}, s{sT[1]}, 5')
    e(f'  s_mul_i32 s{sT[1]}, s{sT[1]}, 3')
    e(f'  s_sub_u32 s{sR1}, s{sR1}, s{sT[1]}')
    if opts.get('norot'):
        e(f'  s_mov_b32 s{sR1}, 0'); e(f'  s_mov_b32 s{sR2}, 0')
    e(f'  s_mul_i32 s{sT[2]}, s{sW}, 192')
    for i in range(3):
        if i: e(f'  v_add_u32 v{T[1]}, {64*i}, v{vLane}')
        q = T[1] if i else vLane
        e(f'  v_mul_u32_u24 v{T[2]}, 0xaaab, v{q}')
        e(f'  v_lshrrev_b32 v{T[2]}, 19, v{T[2]}')
        e(f'  v_mul_u32_u24 v{T[3]}, 576, v{T[2]}')
        e(f'  v_lshl_add_u32 v{T[3]}, v{vLane}, 4, v{T[3]}')
        if i == 1:
            e(f'  v_lshrrev_b32 v{T[2]}, 3, v{T[2]}')
            e(f'  v_mul_u32_u24 v{T[2]}, 6144, v{T[2]}')
            e(f'  v_add_u32 v{T[3]}, v{T[3]}, v{T[2]}')
        if i == 2: e(f'  v_add_u32 v{T[3]}, 6144, v{T[3]}')
        e(f'  v_add_u32 v{vBL[i]}, s{sT[2]}, v{T[3]}')
    NUMA = int(opts.get('numa', 1))
    PRM = int(opts.get('prm', 24))
    def srd(sd, lo, nbytes):
        e(f'  s_mov_b32 s{sd}, s{lo}')
        e(f'  s_and_b32 s{sd+1}, s{lo+1}, 0xffff')
        e(f'  s_mov_b32 s{sd+2}, {nbytes}')
        e(f'  s_mov_b32 s{sd+3}, 0x00020000')
    def p_gb1():
        e(f'  s_add_u32 s{sG[1]}, s{sG[0]}, 98304')
        e(f'  s_cmp_eq_u32 s{sR1}, 2')
        e(f'  s_cselect_b32 s{sG[1]}, 0, s{sG[1]}')
        e(f'  s_add_u32 s{sG[2]}, s{sG[1]}, 98304')
        e(f'  s_cmp_eq_u32 s{sR1}, 1')
        e(f'  s_cselect_b32 s{sG[2]}, 0, s{sG[2]}')
        for q in range(1, 4):
            e(f'  s_xor_b32 s{sQ[q]}, s{sR2}, {q}')
            e(f'  s_mul_i32 s{sQ[q]}, s{sQ[q]}, {TILE_B}')
    def p_dws():
        e(f'  s_lshl_b32 s{sT[3]}, s{sR2}, 2')
        e(f'  v_lshrrev_b32 v{T[1]}, 4, v{vLane}')
        e(f'  v_add_u32 v{T[2]}, s{sR1}, v{T[1]}')
        e(f'  v_subrev_u32 v{T[3]}, 3, v{T[2]}')
        e(f'  v_min_u32 v{T[2]}, v{T[2]}, v{T[3]}')
        e(f'  v_and_b32 v{T[4]}, 15, v{vLane}')
        e(f'  v_xor_b32 v{T[3]}, s{sT[3]}, v{T[4]}')
        e(f'  v_lshlrev_b32 v{T[3]}, 4, v{T[3]}')
        e(f'  v_lshl_add_u32 v{T[3]}, v{T[2]}, 8, v{T[3]}')
        e(f'  v_cmp_lt_u32 vcc, 47, v{vLane}')
        e(f'  s_lshl_b32 s{sT[0]}, s{sW}, 10')
        e(f'  s_add_u32 m0, s{sT[0]}, {LDS_DW}')
        e(f'  v_cndmask_b32 v{T[3]}, v{T[3]}, v{vBL[2]}, vcc')
    def p_tl():
        e(f'  s_lshr_b32 s{sT[1]}, s2, 5')
        e(f'  s_and_b32 s{sT[2]}, s2, 3')
        e(f'  s_lshl2_add_u32 s{sEo}, s{sT[1]}, s{sT[2]}')
        e(f'  s_lshl_b32 s{sEo}, s{sEo}, 3')
        e(f'  s_mul_i32 s{sT[1]}, s{sT[1]}, 288')
        e(f'  s_lshl2_add_u32 s{sT[2]}, s{sR2}, s{sT[2]}')
        e(f'  s_add_u32 s{sT[1]}, s{sT[1]}, s{sT[2]}')
        e(f'  s_mul_i32 s{sBase}, s{sT[1]}, 49152')
        e(f'  s_add_u32 s{sEnd}, s{sBase}, {NTILE*KSTEP}')
        e(f'  s_mul_i32 s{sSw}, s{sT[2]}, {int(opts.get("km", 43))}')
        e(f'  s_lshr_b32 s{sSw}, s{sSw}, 5')
        e(f'  s_sub_i32 s{sSw}, s{sSw}, {int(opts.get("ko", 8))}')
        e(f'  s_max_i32 s{sSw}, s{sSw}, 0')
        e(f'  s_mul_i32 s{sSw}, s{sSw}, {KSTEP}')
        e(f'  s_add_u32 s{sSw}, s{sSw}, s{sBase}')
        if NUMA:
            e(f'  s_lshl_b32 s{sT[1]}, s{sW}, 11')
            e(f'  s_and_b32 s{sT[2]}, s2, 4')
            e(f'  s_lshl_b32 s{sT[2]}, s{sT[2]}, 6')
            e(f'  s_add_u32 s{sT[1]}, s{sT[1]}, s{sT[2]}')
            e(f'  s_add_u32 s{sPa}, s{sBase}, s{sT[1]}')
            e(f'  s_add_u32 s{sPa}, s{sPa}, {9*KSTEP}')
            e(f'  s_add_u32 s{sPb}, s{sPa}, 8192')
            e(f'  s_and_b32 s{sPr}, s2, {PRM}')
            e(f'  s_cmp_lg_u32 s{sPr}, 0')
    def p_warm():
        if NUMA:
            e(f'  s_cbranch_scc1 L_np0')
            e(f'  s_bitcmp1_b32 s2, 2')
            e(f'  s_cselect_b64 s[{sPP}:{sPP+1}], s[30:31], s[24:25]')
            e(f'  s_load_dword s{sPT}, s[{sPP}:{sPP+1}], s{sPa} glc')
            e(f'  s_load_dword s{sPT+1}, s[{sPP}:{sPP+1}], s{sPb} glc')
            e('L_np0:')
    def p_dwl():
        srd(sD, 26, 768)
        g.vmop(f'  buffer_load_dwordx4 v{T[3]}, s[{sD}:{sD+3}], 0 offen lds', ('W',))
    e(f'  s_mul_i32 s{sG[0]}, s{sR1}, 98304')
    e(f'  s_mul_i32 s{sQ[0]}, s{sR2}, {TILE_B}')
    e(f'  s_mul_i32 s{sBW}, s{sW}, 6160')
    LEAN = int(opts.get('lean', 2))
    if LEAN == 0: p_gb1(); p_dws()
    if LEAN <= 1: p_tl()
    e('  s_waitcnt lgkmcnt(0)')
    if LEAN <= 1: p_warm()
    if LEAN == 0: p_dwl()
    srd(sP, 28, 294912)
    def bload(s):
        it = []
        for h in range(2):
            it.append(f'  s_add_u32 m0, s{sBW}, {AREA[s % NAR] + h*3080}')
            it.append(f'  s_add_u32 s{sT[0]}, s{sG[s >> 2]}, s{sQ[s & 3]}' if h == 0 else f'  s_add_u32 s{sT[0]}, s{sT[0]}, 6144')
            for i in range(3):
                it.append(lambda h=h, i=i: g.vmop(f'  buffer_load_dwordx4 v{vBL[i]}, s[{sP}:{sP+3}], s{sT[0]} offen offset:{i*1024}{NT_B} lds', ('B', s, 3*h + i)))
        return it
    def xdma(t, u):
        it = []
        if u == 0:
            a, b = sF[0], sF[0] + 1
            it += [f'  s_mov_b64 s[{sF[k]}:{sF[k]+1}], s[{sF[k-1]}:{sF[k-1]+1}]' for k in range(len(sF) - 1, 0, -1)]
            it += [f'  s_cmp_lt_u32 s{sBase}, s{sSw}', f'  s_cselect_b32 s{a}, s{sVO}, s{sVa}', f'  s_add_u32 s{a}, s{a}, s{sBase}',
                   f'  s_add_u32 s{b}, s{sBase}, {TILE_B}', f'  s_cmp_lt_u32 s{sBase}, s{sEnd}',
                   f'  s_cselect_b32 s{sX4}, s{sBase}, s{sOOB}', f'  s_cselect_b32 s{b}, s{b}, s{sOOB}',
                   f'  s_bitcmp1_b32 s{a}, 21', f'  s_cselect_b32 s{a}, s{b}, s{sX4}', f'  s_cselect_b32 s{b}, s{sX4}, s{b}',
                   f'  s_cselect_b64 s[{sXm}:{sXm+1}], -1, 0', f'  s_add_u32 s{sBase}, s{sBase}, {KSTEP}']
        if u == 4: it.append(f'  v_cndmask_b32 v{vTX}, v{vXS[4]}, v{vXS4b}, s[{sXm}:{sXm+1}]')
        it.append(f'  s_add_u32 m0, s{sRing}, {(t & 1)*TILE_B + u*4096}')
        if u == 5 and (t & 1): it.append(f'  s_xor_b32 s{sRing}, s{sRing}, {2*TILE_B}')
        else: it.append('NOP')
        it.append(lambda: g.vmop(f'  buffer_load_dwordx4 v{vTX if u == 4 else vXS[u]}, s[{sX}:{sX+3}], s{[sF[0], sX4, sF[0]+1][max(0, u - 3)]} offen{NT_LD} lds', ('L', t, u)))
        return it
    def xdma_items(t):
        return ['  s_nop 0' if x == 'NOP' else x for u in range(6) for x in xdma(t, u)]
    NB0 = int(opts.get('nb0', 1)) if FUSE else 99
    NI = int(opts.get('ni', 1))
    run(bload(0))
    if LEAN == 2: p_tl(); p_warm()
    if LEAN: p_dws(); p_dwl(); p_gb1()
    for s in range(1, min(NB0, NI)): run(bload(s))
    if opts.get('tw'):
        e(f'  v_mov_b32 v{T[5]}, s{sBase}')
        g.vmop(f'  global_load_dword v{BV+2}, v{T[5]}, s[24:25]', ('K',))
        g.vmop(f'  global_load_dword v{BV+3}, v{T[5]}, s[30:31]', ('K',))
    if opts.get('st2') == '2': stamp()
    srd(sX, 24, 113246208)
    hi2, lo4 = T[1], T[4]
    e(f'  s_mov_b32 s{sOOB}, {OOB}')
    e(f'  s_lshl_b32 s{sRing}, s{sW}, 10')
    for r in [x + k for x in sF[:3] for k in range(2)]: e(f'  s_mov_b32 s{r}, s{sOOB}')
    e(f'  s_lshr_b32 s{sDec}, s2, 1')
    e(f'  s_xor_b32 s{sDec}, s{sDec}, s2')
    e(f'  s_and_b32 s{sDec}, s{sDec}, 4')
    e(f'  s_lshl_b32 s{sVa}, s{sDec}, 19')
    e(f'  s_mov_b32 s{sVO}, s{sVa}')
    ROW = [ACC+16, ACC+17, ACC+18]; GG = [ACC+19, ACC+20, ACC+21]
    def rowmap(dst, dst4b, base, u):
        if u == 0:
            e(f'  v_add_u32 v{dst[3]}, {26*768}, v{base}')
            if base != dst[0]: e(f'  v_mov_b32 v{dst[0]}, v{base}')
        if u == 1:
            e(f'  v_cmp_lt_u32 vcc, 5, v{ROW[1]}')
            e(f'  v_add_u32 v{T[8]}, {26*768}, v{base}')
            e(f'  v_add_u32 v{T[9]}, {37*768}, v{base}')
            e(f'  v_cndmask_b32 v{dst[4]}, v{T[8]}, v{T[9]}, vcc')
            if dst4b is not None:
                e(f'  v_add_u32 v{T[8]}, {58*768}, v{base}')
                e(f'  v_add_u32 v{T[9]}, {5*768}, v{base}')
                e(f'  v_cndmask_b32 v{dst4b}, v{T[8]}, v{T[9]}, vcc')
            if base != dst[1]: e(f'  v_mov_b32 v{dst[1]}, v{base}')
        if u == 2:
            e(f'  v_cmp_lt_u32 vcc, 10, v{ROW[2]}')
            e(f'  v_add_u32 v{T[8]}, 7680, v{base}')
            e(f'  v_add_u32 v{dst[5]}, {5*768}, v{base}')
            e(f'  v_cndmask_b32 v{dst[2]}, v{base}, v{T[8]}, vcc')
    e(f'  v_lshrrev_b32 v{GG[0]}, 4, v0')
    e(f'  v_xor_b32 v{T[6]}, s{sT[3]}, v{lo4}')
    for u in range(3):
        if u: e(f'  v_add_u32 v{GG[u]}, {16*u}, v{GG[0]}')
        e(f'  v_mul_u32_u24 v{ROW[u]}, 43, v{GG[u]}')
        e(f'  v_lshrrev_b32 v{ROW[u]}, 7, v{ROW[u]}')
        e(f'  v_mul_u32_u24 v{T[2]}, 3, v{ROW[u]}')
        e(f'  v_sub_u32 v{T[3]}, v{GG[u]}, v{T[2]}')
        e(f'  v_add_u32 v{T[3]}, s{sR1}, v{T[3]}')
        e(f'  v_subrev_u32 v{T[5]}, 3, v{T[3]}')
        e(f'  v_min_u32 v{T[3]}, v{T[3]}, v{T[5]}')
        e(f'  v_add_u32 v{T[3]}, v{T[3]}, v{T[2]}')
        e(f'  v_xor_b32 v{T[5]}, v{ROW[u]}, v{T[6]}')
        e(f'  v_lshlrev_b32 v{T[5]}, 4, v{T[5]}')
        e(f'  v_lshl_add_u32 v{vXS[u]}, v{T[3]}, 8, v{T[5]}')
        rowmap(vXS, vXS4b, vXS[u], u)
    if NB0 <= 2: run(xdma_items(0))
    for s in range(NB0, 2): run(bload(s))
    srd(sO, 30, 113246208)
    e(f'  v_lshlrev_b32 v{vST[0]}, 4, v0')
    for u in range(3):
        if u: e(f'  v_add_u32 v{vST[u]}, {4096*u}, v{vST[0]}')
        e(f'  v_and_b32 v{T[5]}, 7, v{ROW[u]}')
        e(f'  v_xor_b32 v{T[5]}, v{T[5]}, v{lo4}')
        e(f'  v_lshlrev_b32 v{T[5]}, 4, v{T[5]}')
        e(f'  v_lshl_add_u32 v{T[5]}, v{GG[u]}, 8, v{T[5]}')
        e(f'  v_add_u32 v{vOR[u]}, {LDS_O}, v{T[5]}')
    for u in range(3): rowmap(vST, None, vST[u], u)
    e(f'  v_mul_u32_u24 v{T[0]}, 0x300, v{lo4}')
    e(f'  v_xor_b32 v{T[2]}, v{hi2}, v{lo4}')
    e(f'  v_lshl_add_u32 v{vLdsR[0]}, v{T[2]}, 4, v{T[0]}')
    for s in range(1, 4): e(f'  v_xor_b32 v{vLdsR[s]}, {s*64}, v{vLdsR[0]}')
    e(f'  s_mul_i32 s{sT[1]}, s{sW}, 12')
    e(f'  v_and_b32 v{T[2]}, 7, v{lo4}')
    for u in range(2):
        e(f'  v_add_u32 v{T[3]}, s{sT[1]}, v{hi2}')
        if u: e(f'  v_add_u32 v{T[3]}, {4*u}, v{T[3]}')
        e(f'  v_xor_b32 v{T[3]}, v{T[3]}, v{T[2]}')
        e(f'  v_lshl_add_u32 v{vOW[u]}, v{T[3]}, 4, v{T[0]}')
        e(f'  v_add_u32 v{vOW[u]}, {LDS_O}, v{vOW[u]}')
    e(f'  v_bfe_u32 v{T[2]}, v{vLane}, 2, 2')
    e(f'  v_and_b32 v{T[3]}, 3, v{vLane}')
    e(f'  v_lshrrev_b32 v{T[5]}, 1, v{hi2}')
    e(f'  v_lshl_add_u32 v{T[5]}, v{T[5]}, 3, v{T[2]}')
    e(f'  v_mul_u32_u24 v{T[5]}, 192, v{T[5]}')
    e(f'  v_and_b32 v{T[7]}, 1, v{hi2}')
    e(f'  v_mul_u32_u24 v{T[7]}, 3080, v{T[7]}')
    e(f'  v_add_u32 v{T[5]}, v{T[5]}, v{T[7]}')
    e(f'  v_lshl_add_u32 v{T[5]}, v{T[3]}, 4, v{T[5]}')
    e(f'  s_add_u32 s{sT[1]}, s{sBW}, {AREA[2]}')
    e(f'  v_add_u32 v{vTr2}, s{sT[1]}, v{T[5]}')
    e(f'  v_add_u32 v{vTr}, {(AREA[0] - AREA[2]) & 0xffffffff}, v{vTr2}')
    e(f'  s_add_u32 s{sT[1]}, s{sRing}, {LDS_DW}')
    e(f'  v_lshl_add_u32 v{vDW}, v{hi2}, 4, s{sT[1]}')
    e(f'  v_and_b32 v{T[5]}, 1, v{vLane}')
    e(f'  v_lshlrev_b32 v{T[5]}, 4, v{T[5]}')
    e(f'  v_mov_b32 v{T[7]}, 0xffff')
    e(f'  v_lshlrev_b32 v{T[5]}, v{T[5]}, v{T[7]}')
    e(f'  v_lshlrev_b32 v{T[0]}, 1, v{hi2}')
    e(f'  v_bfe_u32 v{T[7]}, v{vLane}, 1, 3')
    e(f'  v_cmp_eq_u32 vcc, v{T[0]}, v{T[7]}')
    e(f'  v_add_u32 v{T[0]}, 1, v{T[0]}')
    e(f'  s_nop 0')
    e(f'  v_cndmask_b32 v{vM[0]}, 0, v{T[5]}, vcc')
    e(f'  v_cmp_eq_u32 vcc, v{T[0]}, v{T[7]}')
    srd(sDS, sDb, 256)
    e(f'  v_cndmask_b32 v{vM[1]}, 0, v{T[5]}, vcc')
    NR = int(opts.get('nr', 2))
    def probe():
        e(f'  s_cmp_lg_u32 s{sPr}, 0')
        e(f'  s_cbranch_scc1 L_npr')
        e(f'  s_mov_b32 s{sPv}, 0xffff')
        e(f'  s_mov_b32 s{sRd}, 0xffff')
        e(f'  s_lshl_b32 s{sT[2]}, s{sW}, 2')
        e(f'  s_add_u32 s{sT[2]}, s{sT[2]}, {LDS_PR}')
        e(f'  v_mov_b32 v{T[0]}, s{sT[2]}')
        if int(opts.get('pb', 0)):
            e('  s_waitcnt lgkmcnt(0)')
            for i in range(NR):
                e('  s_barrier')
                e(f'  s_memtime s[{sPT}:{sPT+1}]')
                e(f'  s_load_dword s{sT[2]}, s[{sPP}:{sPP+1}], s{sPb if i & 1 else sPa} glc')
                e('  s_waitcnt lgkmcnt(0)')
                e(f'  s_memtime s[{sPT+2}:{sPT+3}]')
                e('  s_waitcnt lgkmcnt(0)')
                e(f'  s_sub_u32 s{sT[1]}, s{sPT+2}, s{sPT}')
                e(f'  s_min_u32 s{sRd if i & 1 else sPv}, s{sRd if i & 1 else sPv}, s{sT[1]}')
        else:
            e('  s_waitcnt lgkmcnt(0)')
            e(f'  s_memtime s[{sPT}:{sPT+1}]')
            for i in range(NR):
                a, b = (sPT, sPT + 2) if i % 2 == 0 else (sPT + 2, sPT)
                e(f'  s_load_dword s{sT[2]}, s[{sPP}:{sPP+1}], s{sPb if i & 1 else sPa} glc')
                e('  s_waitcnt lgkmcnt(0)')
                if i:
                    e(f'  s_sub_u32 s{sT[1]}, s{a}, s{b}')
                e(f'  s_memtime s[{b}:{b+1}]')
                if i: e(f'  s_min_u32 s{sRd if (i - 1) & 1 else sPv}, s{sRd if (i - 1) & 1 else sPv}, s{sT[1]}')
            e('  s_waitcnt lgkmcnt(0)')
            e(f'  s_sub_u32 s{sT[1]}, s{sPT}, s{sPT+2}')
            e(f'  s_min_u32 s{sRd}, s{sRd}, s{sT[1]}')
        e(f'  s_lshl_b32 s{sPv}, s{sPv}, 16')
        e(f'  s_or_b32 s{sPv}, s{sPv}, s{sRd}')
        e(f'  v_mov_b32 v{T[2]}, s{sPv}')
        e(f'  ds_write_b32 v{T[0]}, v{T[2]}')
        e('  s_waitcnt lgkmcnt(0)')
        e(f'L_npr:')
    PQ = 248
    assert 11 not in ASLOTS
    def publish():
        if NB0 >= 2:
            e(f'  s_cmp_lg_u32 s{sPr}, 0')
            e(f'  s_cbranch_scc1 L_np1')
            e('  s_barrier')
        e(f'  s_or_b32 s{sT[1]}, s{sPr}, s{sW}')
        e(f'  s_cmp_lg_u32 s{sT[1]}, 0')
        e(f'  s_cbranch_scc1 L_np1')
        e(f'  v_mov_b32 v{PQ+4}, {LDS_PR}')
        e(f'  ds_read_b128 v[{PQ}:{PQ+3}], v{PQ+4}')
        e(f'  s_add_u32 s{sT[1]}, s{sPP}, s{sPa}')
        e(f'  s_add_u32 s{sT[1]}, s{sT[1]}, {TILE_B}')
        e(f'  s_lshr_b32 s{sT[1]}, s{sT[1]}, 21')
        e(f'  s_lshr_b32 s{sT[2]}, s2, 2')
        e(f'  s_xor_b32 s{sT[1]}, s{sT[1]}, s{sT[2]}')
        e(f'  s_and_b32 s{sT[1]}, s{sT[1]}, 1')
        e(f'  s_add_u32 s{sT[2]}, s{sT[1]}, 1')
        e(f'  s_sub_u32 s{sT[1]}, 2, s{sT[1]}')
        e(f'  v_mov_b32 v{PQ+6}, s{sT[2]}')
        e(f'  v_mov_b32 v{PQ+5}, s{sT[1]}')
        e(f'  v_mov_b32 v{PQ+7}, 0')
        e(f'  s_and_b32 s{sT[1]}, s2, 4')
        e(f'  s_add_u32 s{sT[1]}, s{sT[1]}, s{sEo}')
        e(f'  v_mov_b32 v{PQ+4}, s{sT[1]}')
        e('  s_waitcnt lgkmcnt(0)')
        e(f'  v_pk_min_u16 v{PQ}, v{PQ}, v{PQ+1}')
        e(f'  v_pk_min_u16 v{PQ+2}, v{PQ+2}, v{PQ+3}')
        e(f'  v_pk_min_u16 v{PQ}, v{PQ}, v{PQ+2}')
        e(f'  v_lshrrev_b32 v{PQ+1}, 16, v{PQ}')
        e(f'  v_and_b32 v{PQ}, 0xffff, v{PQ}')
        e(f'  v_cmp_gt_u32 vcc, v{PQ+1}, v{PQ}')
        e('  s_mov_b64 exec, 1')
        e('  s_nop 0')
        e(f'  v_cndmask_b32 v{PQ+6}, v{PQ+6}, v{PQ+5}, vcc')
        e(f'  buffer_atomic_cmpswap v[{PQ+6}:{PQ+7}], v{PQ+4}, s[{sDS}:{sDS+3}], 0 offen sc1')
        e('  s_mov_b64 exec, -1')
        e('L_np1:')
    if opts.get('st2') == '2': stamp()
    PP = int(opts.get('pp', 1))
    if NUMA and PP == -1: probe()
    for s in range(NI, 2): run(bload(s))
    if NUMA and PP == 0: probe()
    LA = int(opts.get('la', NAR))
    assert LA <= NAR
    if LA > 2: run(bload(2))
    if NUMA and PP == 1: probe()
    if NB0 == 3: run(xdma_items(0))
    if LA > 3: run(bload(3))
    if LA > 4: run(bload(4))
    if NUMA and PP == 2: probe()

    def trs(s):
        it = [lambda: g.wait(('b', s), vm=('W',) if (s == 0 and LEAN) else ('B', s, 5))]
        base = vTr if (s % NAR) < 2 else vTr2
        so = AREA[s % NAR] - AREA[0 if (s % NAR) < 2 else 2]
        it.append(lambda: g.lgop(f'  ds_read_b128 v[{DWR[s & 1]}:{DWR[s & 1]+3}], v{vDW} offset:{s*64}', ('TR', s)))
        for nt in range(6):
            for hh in range(2):
                r = RAW[s & 1] + nt*4 + 2*hh
                it.append(lambda r=r, nt=nt, hh=hh: g.lgop(f'  ds_read_b64_tr_b16 a[{r}:{r+1}], v{base} offset:{so + hh*768 + (nt >> 1)*64 + (nt & 1)*8}', ('TR', s)))
        return it
    def cvts(s, j):
        nt, hh = j // 2, j % 2
        q = FT + 4*(j % NFT)
        if s in ASLOTS:
            return [f'  v_cvt_pk_bf16_f32 v{q}, v{q}, v{q+1}', f'  v_cvt_pk_bf16_f32 v{q+1}, v{q+2}, v{q+3}',
                    f'  v_accvgpr_write_b32 {breg(s, nt, 1, 2*hh)}, v{q}', f'  v_accvgpr_write_b32 {breg(s, nt, 1, 2*hh+1)}, v{q+1}']
        return [f'  v_cvt_pk_bf16_f32 {breg(s, nt, 1, 2*hh)}, v{q}, v{q+1}', f'  v_cvt_pk_bf16_f32 {breg(s, nt, 1, 2*hh+1)}, v{q+2}, v{q+3}']
    def rd(t, i):
        mt, ks = i // 12, i % 12
        x = XF + 8*((i // 2) % 3) + 4*(i & 1)
        g.lgop(f'  ds_read_b128 a[{x}:{x+3}], v{vLdsR[ks & 3]} offset:{(t & 1)*TILE_B + mt*12288 + (ks >> 2)*256}', ('X', t, i))
    TS = NB0 if FUSE else 13
    units = sorted([(0, k) for k in range(12)] + [(1, k) for k in range(8)], key=lambda u: (u[1] + 4*u[0], -u[0]))
    UPS = int(opts.get('ups', 2 if NB0 <= 2 else 3))
    SCH = {s: [] for s in range(13)}
    rem = list(units) if FUSE else []
    for s in range(12, TS - 1, -1):
        n = 2 if s == 12 else UPS
        take = [u for u in reversed(rem) if u[1] < s][:n]
        SCH[s] = sorted(take, key=lambda u: (u[1], u[0]))
        rem = [u for u in rem if u not in take]
    assert not rem, rem
    for mt in range(2 if FUSE else 0):
        seq = [u[1] for s in range(13) for u in SCH[s] if u[0] == mt]
        assert seq[0] == 0 and sorted(seq) == list(range(len(seq)))
    def tl(s): return SCH[s]
    def fx(s, mt, ks): return OB + 12*(s % 2) + 4*SCH[s].index((mt, ks))
    def prd(s):
        return [lambda mt=mt, ks=ks: g.lgop(f'  ds_read_b128 a[{fx(s, mt, ks)}:{fx(s, mt, ks)+3}], v{vLdsR[ks & 3]} offset:{mt*12288 + (ks >> 2)*256}', ('TR', s)) for (mt, ks) in tl(s)]
    def tm(s, mt, ks, nt):
        a = ACC + 24*mt + 4*nt; x = fx(s, mt, ks)
        return f'  v_mfma_f32_16x16x32_bf16 v[{a}:{a+3}], {breg(ks, nt)}, a[{x}:{x+3}], {"0" if ks == 0 else f"v[{a}:{a+3}]"}'
    run(trs(0))
    stamp()
    LAG = int(opts.get('lag', 3))
    XA = int(opts.get('xa', 8)); XB = int(opts.get('xb', 12)); DS = int(opts.get('ds', XA)); BQ = 10
    X0 = int(opts.get('x0', 11 - LA)); X1 = int(opts.get('x1', 11))
    if not FUSE: XA = XB = BQ = 99; DS = int(opts.get('ds', 10)); LAG = int(opts.get('lag', 4))
    assert XB >= BQ
    pend = []
    def decide():
        if NUMA:
            e(f'  s_min_u32 s{sT[1]}, s{sRd}, s{sRd+1}')
            e(f'  s_cmp_eq_u32 s{sT[1]}, 0')
            e('  s_cbranch_scc1 L_slow')
            e('L_back:')
            e(f'  s_lshr_b32 s{sT[1]}, s2, 1')
            for (r, dst, lo) in ((sRd, sVa, 24), (sRd + 1, sVO, 30)):
                e(f'  s_xor_b32 s{sDec}, s{r}, s{sT[1]}')
                e(f'  s_and_b32 s{sDec}, s{sDec}, 2')
                e(f'  s_lshl_b32 s{sDec}, s{sDec}, 20')
                e(f'  s_add_u32 s{dst}, s{sDec}, s{lo}')
                e(f'  s_add_u32 s{dst}, s{dst}, {TILE_B}')
    for s in range(12):
        if s == DS and NUMA: e('  s_waitcnt lgkmcnt(0)')
        else: g.wait(('tr', s), lg=('TR', s))
        if s == BQ: e('  s_barrier')
        d = DWR[s & 1]
        for i in range(4): e(f'  v_and_b32 v{d+i}, v{vM[i & 1]}, v{d+i}')
        if s == DS: decide()
        Q = []
        if s + 4 == NB0: Q += xdma_items(0)
        if s + LA < 12: Q += bload(s + LA)
        nx = trs(s + 1) if s + 1 < 12 else []
        if s == NB0 - 1:
            nx = nx[:1] + ['  s_barrier'] + nx[1:]
        nx += prd(s + 1)
        Q = (Q + nx) if opts.get('qo', '1') == '0' else (nx + Q)
        if s == DS - 1 and NUMA: Q.append(f'  s_load_dwordx2 s[{sRd}:{sRd+1}], s[{sDb}:{sDb+1}], s{sEo}')
        if s == X0 and not FUSE: Q += xdma_items(0)
        if s == X1 and not FUSE: Q += xdma_items(1)
        if s == XA: Q += xdma_items(1)
        if s == XB: Q += xdma_items(2)
        if s == 11 and FUSE: Q += [lambda i=i: rd(0, i) for i in range(20, 24)]
        while len(Q) < 2: Q.append('  s_nop 0')
        M = []
        TL = [tm(s, mt, ks, nt) for nt in range(6) for (mt, ks) in tl(s)]
        for j in range(12):
            nt, hh = j // 2, j % 2
            r = RAW[s & 1] + nt*4 + 2*hh
            q = FT + 4*(j % NFT)
            M.append((f'  v_mfma_f32_16x16x16_bf16 v[{q}:{q+3}], v[{d+2*hh}:{d+2*hh+1}], a[{r}:{r+1}], 0', j))
            k0, k1 = (j*len(TL))//12, ((j+1)*len(TL))//12
            M += [(x, None) for x in TL[k0:k1]]
        run(Q[:2]); Q = Q[2:]
        front = int(opts.get('front', 2))
        cq = []
        for mi, (m, j) in enumerate(M):
            if j is not None:
                run(cq); cq = []
            e(m)
            if j is not None:
                pend.append(cvts(s, j))
                if len(pend) > LAG: cq = pend.pop(0)
            QE = (len(M) * int(opts.get('qe', 4))) // 4
            nq = -(-len(Q) // max(1, QE - mi)) if mi < QE else len(Q)
            run(Q[:nq]); Q = Q[nq:]
            nc = 2 if (mi + 1 < len(M) and M[mi + 1][1] is None) else len(cq)
            run(cq[:nc]); cq = cq[nc:]
        assert not Q and not cq
        if s in (3, 7) and not opts.get('st2'): stamp()
        if s == (0 if NB0 >= 2 else NB0 - 1) and NUMA: publish()
    if FUSE:
        g.wait(('tr', 12), lg=('TR', 12))
        T0 = [tm(12, 0, 11, nt) for nt in range(6)]
        T1 = [tm(12, 1, ks, nt) for (mt, ks) in tl(12) if mt == 1 for nt in range(6)]
        for nt in range(4):
            e(T0[nt])
            if pend: run(pend.pop(0))
        if DS == 12:
            e('  s_waitcnt lgkmcnt(0)'); decide()
        e(f'  v_sub_u32 v{vST4b}, v{vXS4b}, v{vXS[4]}')
        e(f'  v_add_u32 v{vST4b}, v{vST4b}, v{vST[4]}')
        e(T0[4]); e(T0[5])
        stamp()
        FIN = (T1, XB)
    else:
        run(pend.pop(0)); run(pend.pop(0))
        stamp()
        e(f'  v_sub_u32 v{vST4b}, v{vXS4b}, v{vXS[4]}')
        e(f'  v_add_u32 v{vST4b}, v{vST4b}, v{vST[4]}')
        for r in sSo: e(f'  s_mov_b32 s{r}, s{sOOB}')
        g.wait('x0', vm=('L', 0, 5))
        e('  s_barrier')
        for i in range(4): rd(0, i)
        while pend: run(pend.pop(0))
        if X1 == 13: run(xdma_items(1))
        else: assert NAR == 4 and X1 >= DS

    def epi(mt, u, po):
        a = ACC + 24*mt + 8*u
        cv = [f'  v_cvt_pk_bf16_f32 v{a+i}, v{a+2*i}, v{a+2*i+1}' for i in range(4)]
        off = po*TILE_B + mt*12288 + (u >> 1)*128
        if DIR:
            return cv + [lambda: g.vmop(f'  buffer_store_dwordx4 v[{a}:{a+3}], v{vTS if mt else vST[0]}, s[{sO}:{sO+3}], s{sSo[2] if mt else sSo[0]} offen offset:{64*u}{NT_ST}', None)]
        if opts.get('w64'):
            return cv[:2] + [lambda: g.lgop(f'  ds_write_b64 v{vOW[u & 1]}, v[{a}:{a+1}] offset:{off}', ('OWa', mt, u))] + cv[2:] + \
                   [lambda: g.lgop(f'  ds_write_b64 v{vOW[u & 1]}, v[{a+2}:{a+3}] offset:{off+8}', ('OW', mt, u))]
        return cv + [lambda: g.lgop(f'  ds_write_b128 v{vOW[u & 1]}, v[{a}:{a+3}] offset:{off}', ('OW', mt, u))]
    OBT = 'a'
    def out_read(t, u):
        o = OB + 4*u
        g.lgop(f'  ds_read_b128 {OBT}[{o}:{o+3}], v{vOR[u % 3]} offset:{((t^1)&1)*TILE_B + (u // 3)*12288}', ('O', t, u))
    def out_store(t, u, key):
        o = OB + 4*u
        g.wait((key, 'o', u), lg=('O', t, u), opt=True)
        g.vmop(f'  buffer_store_dwordx4 {OBT}[{o}:{o+3}], v{vTS if u == 4 else vST[u]}, s[{sO}:{sO+3}], s{sSo[max(0, u - 2)]} offen{NT_ST}', None)
    def st_adv(d=0):
        p, q = sF[2 - d], sF[3 - d]
        if DIR:
            return [f'  s_mov_b32 s{sSo[0]}, s{p}', f'  s_min_u32 s{sSo[2]}, s{p}, s{p+1}', f'  s_cmp_gt_u32 s{p}, s{p+1}',
                    f'  s_cselect_b64 s[{sSm}:{sSm+1}], -1, 0', 'NOP', f'  v_cndmask_b32 v{vTS}, v{vST[1]}, v{vST[2]}, s[{sSm}:{sSm+1}]']
        return [f'  s_mov_b32 s{sSo[0]}, s{p}', f'  s_mov_b32 s{sSo[1]}, s{q}', f'  s_mov_b32 s{sSo[3]}, s{q+1}', f'  s_min_u32 s{sSo[2]}, s{q}, s{q+1}',
                f'  s_cmp_gt_u32 s{q}, s{q+1}', f'  s_cselect_b64 s[{sSm}:{sSm+1}], -1, 0',
                'NOP', f'  v_cndmask_b32 v{vTS}, v{vST[4]}, v{vST4b}, s[{sSm}:{sSm+1}]']
    def ints(k, d): return [int(v) for v in opts.get(k, d).split(',')]
    OR_AT = ints('or', '2,3,4,5,6,7'); OS_AT = ints('os', '14,20,30,40,52,64')
    UORD = ints('uord', '3,4,5,0,1,2')
    XD_AT = ints('xd', '76,88,100,112,124,136')
    E1_AT = ints('e1', '27,39,61'); E0_AT = ints('e0', '99,106,123')
    SH_AT = int(opts.get('sh', 26)); CAP = int(opts.get('cap', 1)); HG = int(opts.get('hg', 0))
    def fillers(t):
        F = [[] for _ in range(144)]
        use = [0] * 150
        for r in range(144):
            if r % 12 in (0, 1, 11): use[r] = 1
        HP = opts.get('hp')
        def heavy(rho, it):
            while use[rho] or (HP and rho % 2 != int(HP)): rho += 1
            F[rho].append(it); use[rho] = 9
            for k in range(1, HG + 1): use[rho + k] = max(use[rho + k], 8)
            return rho
        def light(rho, items, cap=CAP, back=False):
            if back:
                for it in reversed(items):
                    while use[rho] >= cap: rho -= 1
                    F[rho].insert(0, it); use[rho] += 1
                return rho
            for it in items:
                while use[rho] >= cap: rho += 1
                F[rho].append(it); use[rho] += 1
            return rho
        kp = t & 1
        post = []
        vpos = []
        for k in range(0 if DIR else 6):
            u = UORD[k]
            lastst = heavy(OS_AT[k], lambda u=u: out_store(t, u, kp))
            vpos.append(lastst)
        xpos = []
        for u in range(6):
            it = [x for x in xdma(t + PD, u) if x != 'NOP']
            xpos.append((heavy(XD_AT[u], it[-1]), it[:-1]))
        for mt, AT in ((1, E1_AT), (0, E0_AT)):
            for u in range(3):
                r = AT[u]
                for it in epi(mt, u, t & 1):
                    r = (heavy(r, it) if callable(it) else light(r, [it], 1)) + 1
                if DIR:
                    vpos.append(r - 1)
                    if mt == 1: lastst = r - 1
        for k in range(0 if DIR else 6):
            light(OR_AT[k], [lambda u=UORD[k]: out_read(t, u)], 1)
        prevx = 0
        for (r, it) in xpos:
            r0 = light(r - 1, it, 2 if len(it) > 6 else CAP, back=True)
            assert r0 >= 24 and r0 > prevx, (r0, prevx)
            prevx = r
        if opts.get('lim'):
            for r in vpos + [x[0] for x in xpos]:
                light(r - 1, [f'  s_waitcnt vmcnt({opts["lim"]})'], 2, back=True)
        for a, b in zip(xpos, xpos[1:]): assert b[0] - a[0] >= 5
        r1 = light(max(lastst, xpos[0][0]) + 1, [x for x in st_adv() if x != 'NOP'], 2)
        assert r1 < (E0_AT[0] + 4 if DIR else 144)
        return F
    def tile(t, G0=0):
        kp = t & 1
        F0 = fillers(t); F1 = fillers(t + 1)
        for G_ in range(G0, 12):
            mt, kg = G_ // 6, G_ % 6
            if G_ == 10:
                if G0 == 0 and kp == 1 and opts.get('skv'):
                    e(f'  s_cmp_ge_u32 s{sF[1]}, s{sOOB}')
                    e(f'  s_cbranch_scc1 L_npv{t}')
                    g.wait((kp, 'barv'), vm=('L', t + 1, 5))
                    e(f'L_npv{t}:')
                    g.wait((kp, 'bar'), lg=('OW', 0, 2))
                elif G0 == 0: g.wait((kp, 'bar'), vm=('L', t + 1, 5), lg=('OW', 0, 2))
                if kp == 0 and not unroll: e('L_ent:')
                e('  s_barrier')
                if t & 1:
                    for r in vLdsR: e(f'  v_xor_b32 v{r}, {2*TILE_B}, v{r}')
            g.wait((kp, 'x', G_), lg=('X', t, 2*G_ + 1))
            if opts.get('pad'): e(f'  s_nop {opts["pad"]}')
            for nt in range(6):
                for k in range(2):
                    kk = k ^ (nt & 1) if opts.get('snake') else k
                    ks = 2*kg + kk; i = 12*mt + ks
                    x = XF + 8*(G_ % 3) + 4*kk
                    a = ACC + 24*mt + 4*nt
                    c = '0' if kg == 0 and k == 0 else f'v[{a}:{a+3}]'
                    e(f'  v_mfma_f32_16x16x32_bf16 v[{a}:{a+3}], {breg(ks, nt)}, a[{x}:{x+3}], {c}')
                    gap = 12*G_ + 2*nt + k
                    if gap % 12 in (0, 1):
                        j = 2*G_ + 4 + (gap % 12)
                        if j < 24: rd(t, j)
                        else: rd(t + 1, j - 24)
                    run(F0[gap + 24] if gap < 120 else F1[gap - 120])
    if FUSE:
        Q = (xdma_items(2) if XB == 12 else []) + [x if x != 'NOP' else '  s_nop 0' for x in st_adv()]
        E = epi(0, 0, 0) + epi(0, 1, 0) + epi(0, 2, 0)
        T1 = list(FIN[0])
        run(Q[:4]); Q = Q[4:]
        while T1 or E:
            if T1: e(T1.pop(0))
            run(E[:3]); E = E[3:]
        run(Q)
    stamp()
    if DBG:
        e(f'  s_mov_b32 s21, {sn[0]}')
        e('  s_mov_b32 s60, s64')
        e('  s_memtime s[38:39]') if 0 else e('  s_memtime s[86:87]')
    def tail(t):
        if DIR:
            e('  s_nop 3')
            for u in range(3): run(epi(1, u, t & 1))
            return
        done = [UORD[k] for k in range(6) if OS_AT[k] < 24]
        rdone = [UORD[k] for k in range(6) if OR_AT[k] < 24]
        for u in UORD:
            if u not in rdone: out_read(t, u)
        e('  s_nop 3')
        for u in range(3): run(epi(1, u, t & 1))
        for u in UORD:
            if u not in done: out_store(t, u, 'T')
        run([x if x != 'NOP' else '  s_nop 0' for x in st_adv(1)])
        e('  s_waitcnt lgkmcnt(0)')
        e('  s_barrier')
        for u in range(3):
            e(f'  ds_read_b128 a[{XF+4*u}:{XF+4*u+3}], v{vOR[u]} offset:{(t & 1)*TILE_B + 12288}')
        for u in range(3):
            e(f'  s_waitcnt lgkmcnt({2-u})')
            e(f'  buffer_store_dwordx4 a[{XF+4*u}:{XF+4*u+3}], v{vTS if u == 1 else vST[u+3]}, s[{sO}:{sO+3}], s{sSo[u+1]} offen{NT_ST}')
    if FUSE: g.wait('ent', vm=('L', 1, 5), lg=('OW', 0, 2))
    if unroll:
        tile(0, 10 if FUSE else 0)
        for t in range(1, NTILE): tile(t)
        tail(NTILE)
    else:
        if FUSE: e('  s_branch L_ent')
        if opts.get('al'): e(f'  .p2align {opts["al"]}')
        e('L_loop:')
        tile(0)
        tile(1)
        if DBG:
            e('  s_mov_b32 m0, s21'); e('  s_nop 0'); e('  v_writelane_b32 v0, s60, m0')
            e('  s_add_u32 s21, s21, 1')
            e('  s_min_u32 s21, s21, 15')
            e('  s_memrealtime s[60:61]')
        e(f'  s_cmp_lt_u32 s{sF[1]}, s{sOOB}')
        e(f'  s_cbranch_scc1 L_loop')
        e('L_tail:')
        if DBG: e('  s_memtime s[88:89]')
        tail(0)
        if DBG: e('  s_mov_b32 s21, 15')
    if DBG:
        e('  s_mov_b32 m0, s21'); e('  s_nop 0'); e('  v_writelane_b32 v0, s60, m0')
        e('  s_add_u32 s21, s21, 1')
        e('  s_load_dwordx2 s[24:25], s[0:1], 40')
        e('  s_waitcnt vmcnt(0)')
        e('  s_memrealtime s[54:55]')
        e('  s_memtime s[98:99]')
        e('  s_waitcnt lgkmcnt(0)')
        e('  s_mov_b32 m0, s21'); e('  s_nop 0'); e('  v_writelane_b32 v0, s54, m0')
        e('  s_sub_u32 s98, s98, s96')
        e('  s_add_u32 s98, s98, s64')
        e('  v_writelane_b32 v0, s98, 31')
        e('  s_sub_u32 s88, s88, s86')
        e('  v_writelane_b32 v0, s88, 30')
        e(f'  v_writelane_b32 v0, s{sPv}, 29')
        e(f'  v_writelane_b32 v0, s{sVa}, 28')
        e(f'  v_writelane_b32 v0, s{sVO}, 26')
        e(f'  v_writelane_b32 v0, s3, 27')
        for i in range(sn[0]): e(f'  v_writelane_b32 v0, s{64+2*i}, {i}')
        e('  s_mov_b32 s56, s24'); e('  s_and_b32 s57, s25, 0xffff'); e('  s_mov_b32 s58, 452984832'); e('  s_mov_b32 s59, 0x00020000')
        e('  s_lshl_b32 s26, s2, 9'); e(f'  s_lshl_b32 s27, s{sW}, 7'); e('  s_add_u32 s26, s26, s27')
        e('  v_mbcnt_lo_u32_b32 v1, -1, 0')
        e('  v_lshlrev_b32 v1, 2, v1')
        e('  s_mov_b64 exec, 0xffffffff')
        e('  buffer_store_dword v0, v1, s[56:59], s26 offen')
    if AMP:
        e('  s_waitcnt vmcnt(0)')
        e('  s_memrealtime s[54:55]')
        e('  s_waitcnt lgkmcnt(0)')
        e(f'  s_cmp_lg_u32 s2, {int(opts.get("ampwg", 100))}')
        e('  s_cbranch_scc1 L_done')
        if AMP == 'c':
            e('  s_memtime s[98:99]')
            e('  s_waitcnt lgkmcnt(0)')
            e('  s_sub_u32 s27, s98, s96')
            e('  s_lshr_b32 s27, s27, 1')
        else:
            e(f'  s_sub_u32 s27, s{54 if AMP == "e" else 64 + 2*int(AMP)}, s64')
            e('  s_mul_i32 s27, s27, 10')
        e('L_spin:')
        e('  s_sleep 8')
        e('  s_memrealtime s[56:57]')
        e('  s_waitcnt lgkmcnt(0)')
        e('  s_sub_u32 s26, s56, s54')
        e('  s_cmp_lt_u32 s26, s27')
        e('  s_cbranch_scc1 L_spin')
    if NUMA:
        e('  s_endpgm')
        e('L_slow:')
        e(f'  v_mbcnt_lo_u32_b32 v{vTX}, -1, 0')
        e(f'  v_lshl_add_u32 v{vTX}, v{vTX}, 2, s{sEo}')
        SP = 254 if DS <= 10 else FT
        assert DS != 11
        e(f'  v_mov_b32 v{SP}, 1')
        e(f'  v_mov_b32 v{SP+1}, 0')
        e('  s_mov_b64 exec, 3')
        e(f'  buffer_atomic_cmpswap v[{SP}:{SP+1}], v{vTX}, s[{sDS}:{sDS+3}], 0 offen sc0 sc1')
        e('  s_waitcnt vmcnt(0)')
        e(f'  v_readlane_b32 s{sRd}, v{SP}, 0')
        e(f'  v_readlane_b32 s{sRd+1}, v{SP}, 1')
        e('  s_mov_b64 exec, -1')
        if DBG: e('  s_mov_b32 s3, 1')
        e('  s_branch L_back')
    e('L_done:')
    e('  s_endpgm')
    e('.section .rodata,"a"')
    e('.p2align 6')
    e('.amdhsa_kernel standalone__depthwise_separable__vision_kernel')
    e('  .amdhsa_next_free_vgpr 512')
    e('  .amdhsa_next_free_sgpr 100')
    e('  .amdhsa_accum_offset 256')
    e('  .amdhsa_group_segment_fixed_size 0')
    e('  .amdhsa_kernarg_size 48')
    e('  .amdhsa_user_sgpr_count 2')
    e('  .amdhsa_user_sgpr_kernarg_segment_ptr 1')
    e('  .amdhsa_system_sgpr_workgroup_id_x 1')
    e('  .amdhsa_float_denorm_mode_32 3')
    e('.end_amdhsa_kernel')

if __name__ == '__main__':
    out = sys.argv[1]
    opts = dict(a.split('=', 1) for a in sys.argv[2:])
    for k in ('nt_ld', 'nt_st', 'nt_b'):
        if k in opts: opts[k] = (' ' + opts[k].replace('+', ' ')) if opts[k] != 'none' else ''
    open(out, 'w').write(gen(opts))
```

```python
import sys, re
from gen3 import G, HDR
from gen5 import regs_of

def hazard_check(L):
    ins = [l.strip() for l in L if l.startswith('  ') and not l.strip().startswith(';')]
    hist = []; st = 0; last_valu = []; last_st = []; last_m0 = -9; last_sg = []; lastscc = ''
    for l in ins:
        op = l.split()[0]
        toks = [t.strip(',') for t in l.split()[1:]]
        allr = set()
        for t in toks: allr |= regs_of(t)
        if op.startswith('v_mfma'):
            d = regs_of(toks[0]); a = regs_of(toks[1]); b = regs_of(toks[2]); c = regs_of(toks[3])
            for (s0, r) in last_valu:
                if st - s0 - 1 < 2 and (r & (a | b | c)): raise Exception(f'VALU->MFMA hazard: {l}')
            for (s0, dd, cc) in hist:
                if st - s0 - 1 < 8 and (dd & (a | b)): raise Exception(f'MFMA D->A/B hazard: {l}')
                if st - s0 - 1 < 6 and (dd & c) and dd != c: raise Exception(f'MFMA D->C overlap hazard: {l}')
                if st - s0 - 1 < 6 and (dd & d) and dd != c: raise Exception(f'MFMA D->D WAW: {l}')
            for (s0, r) in last_st:
                if st - s0 - 1 < 8 and (r & d): raise Exception(f'store data WAR (mfma): {l}')
            hist.append((st, d, c))
        elif op.startswith('v_') or op.startswith('ds_') or op.startswith('buffer_'):
            for (s0, dd, cc) in hist:
                if st - s0 - 1 < 8 and (dd & allr): raise Exception(f'MFMA D->use hazard dist {st-s0-1}: {l}')
            if op.startswith('v_'):
                w = regs_of(toks[0])
                for (s0, dd, cc) in hist:
                    if st - s0 - 1 < 3 and (cc & w): raise Exception(f'MFMA C WAR hazard: {l}')
                for (s0, r) in last_st:
                    if st - s0 - 1 < 2 and (r & w): raise Exception(f'store data WAR: {l}')
                if op in ('v_readfirstlane_b32', 'v_readlane_b32'):
                    for (s0, r) in last_valu:
                        if st - s0 - 1 < 1 and (r & regs_of(toks[1])): raise Exception(f'readlane hazard: {l}')
                    last_sg.append((st, toks[0]))
                else:
                    for (s0, sg) in last_sg:
                        if st - s0 - 1 < 2 and sg in toks[1:]: raise Exception(f'VALU sgpr->VALU hazard: {l}')
                last_valu.append((st, w)); last_valu = last_valu[-4:]
            if op.startswith('buffer_store') or op.startswith('ds_write'):
                last_st.append((st, regs_of(toks[0] if op.startswith('buffer') else toks[1]))); last_st = last_st[-4:]
            if op.startswith('buffer_') and l.endswith('lds') and st - last_m0 - 1 < 1: raise Exception(f'm0 hazard: {l}')
            if op.startswith('buffer_'):
                for (s0, sg) in last_sg:
                    if st - s0 - 1 < 5 and sg in toks: raise Exception(f'VALU sgpr->VMEM hazard: {l}')
        elif op.startswith('s_') and toks and toks[0] == 'm0': last_m0 = st
        if op.startswith('s_cselect') or op.startswith('s_cbranch_scc'):
            if not (lastscc.startswith('s_cmp') or lastscc.startswith('s_bitcmp')): raise Exception(f'SCC clobbered by {lastscc}: {l}')
        elif re.match(r's_(add|sub|and|or|xor|min|max|lshl|lshr|cmp|bitcmp|andn2|ashr|bfe|not)', op): lastscc = op
        hist = [h for h in hist if st - h[0] < 24]
        st += int(toks[0]) + 1 if op == 's_nop' else 1

class G2(G):
    def __init__(self):
        self.need = {}
        super().__init__()
    def reset(self, mode):
        super().reset(mode); self.lgd = 0; self.vmd = 0
    def _cnt(self, lst, tag):
        if tag[:2] == ('O', 0) and tag not in lst: return len(lst)
        return super()._cnt(lst, tag)
    def wait(self, key, vm=None, lg=None, opt=False):
        if self.mode == 'collect2':
            nd = False
            if lg is not None and len(self.lg) - self._cnt(self.lg, lg) > self.lgd: nd = True
            if vm is not None and len(self.vm) - self._cnt(self.vm, vm) > self.vmd: nd = True
            self.need[key] = self.need.get(key, False) or nd or not opt
            v, l = self.sites[key]
            if not opt:
                if lg is not None: self.lgd = max(self.lgd, len(self.lg) - l)
                if vm is not None: self.vmd = max(self.vmd, len(self.vm) - v)
            return
        if self.mode in ('emit', 'check') and not self.need[key]: return
        super().wait(key, vm, lg)

def gen(opts):
    g = G2()
    g.reset('collect')
    build(g, opts, unroll=True)
    g.reset('collect2')
    build(g, opts, unroll=True)
    g.reset('check')
    build(g, opts, unroll=True)
    hazard_check(g.L)
    L2 = []; skip = None
    for l in g.L:
        if skip:
            if l == skip + ':': skip = None
            continue
        L2.append(l)
        m = re.match(r'  s_cbranch_scc1 (L_np\w*)', l)
        if m: skip = m.group(1)
    hazard_check(L2)
    g.reset('emit')
    build(g, opts, unroll=False)
    L = g.L
    if int(opts.get('iw', 0)):
        S = int(opts['iw'])
        i0 = L.index('L_tail:') + 1
        i1 = max(k for k, l in enumerate(L) if l == '  s_endpgm' and k < L.index('L_done:'))
        def size(l):
            t = l.strip()
            if not l.startswith('  '): return 0
            if re.match(r's_(waitcnt|barrier|nop|cbranch|branch|endpgm|cmp|mov_b32 s\d+, s|min_u32 s\d+, s\d+, s|cselect)', t): return 4
            return 8
        out = []; acc = S; n = 0
        for l in L[i0:i1]:
            if acc >= S and (l.startswith('  v_mfma') or l.startswith('  v_cvt') or l.startswith('  ds_') or l.startswith('  s_waitcnt')):
                out += [f'L_iw{n}:', f'@PAD{n}']; n += 1; acc = 4
            out.append(l); acc += size(l)
        seg = -(-n // 4)
        out = [(f'  s_cbranch_vccnz {"L_iwr" if (int(l[4:]) % seg == seg - 1 or int(l[4:]) == n - 1) else f"L_iw{int(l[4:]) + 1}"}' if l.startswith('@PAD') else l) for l in out]
        L = L[:i0] + out + L[i1:]
        h = L.index('@IWHOP')
        hop = ['  s_mov_b64 vcc, -1']
        for w in range(1, 4):
            if w * seg < n: hop += [f'  s_cmp_eq_u32 s20, {w}', f'  s_cbranch_scc1 L_iw{w*seg}']
        hop += ['  s_branch L_iw0', 'L_iwr:']
        L = L[:h] + hop + L[h+1:]
    L = [l for l in L if l != '@IWHOP']
    abl = opts.get('abl', '')
    if abl:
        i0 = L.index('L_loop:'); i1 = L.index('L_tail:')
        def keep(l):
            s = l.strip()
            if 'O' in abl and (s.startswith('ds_write_b128') or re.match(r'ds_read_b128 a\[(16[89]|17\d|18\d)', s)): return False
            if 'T' in abl and s.startswith('buffer_store'): return False
            if 'L' in abl and s.startswith('buffer_load'): return False
            if 'B' in abl and s.startswith('s_barrier'): return False
            if 'C' in abl and s.startswith('v_cvt'): return False
            if 'H' in abl and s.startswith('v_mfma') and int(re.search(r'v\[(\d+):', s).group(1)) % 8 == 4: return False
            return True
        L = L[:i0] + [l for l in L[i0:i1] if keep(l)] + L[i1:]
    return '\n'.join(L) + '\n'

def build(g, opts, unroll):
    NT_LD = opts.get('nt_ld', ' nt'); NT_ST = opts.get('nt_st', ' sc1'); NT_B = opts.get('nt_b', '')
    DBG = int(opts.get('dbg', 0)); AMP = opts.get('amp')
    DIR = int(opts.get('dir', 0))
    PD = int(opts.get('pd', 2))
    e = g.e
    TILE_B = 32 * 768; NTILE = 18; STRIDE = 256 * TILE_B
    LDS_O = 4 * TILE_B + 256; LDS_DW = 6 * TILE_B + 512; LDS_PR = LDS_DW + 4096; LDS_TOTAL = LDS_PR + 64
    AREA = [LDS_O, LDS_O + TILE_B + 64, 2 * TILE_B, 3 * TILE_B + 64]
    OOB = 113246208
    vLdsR = [1, 2, 3, 4]; vOR = [5, 6, 7]; vXS = [8, 9, 10]; vMk = [11, 12]; vTS2 = 13; vTS3 = 14; vTX = 15
    ACC = 16
    PT = 64
    vBL = [PT, PT+1, PT+2]; vTr = PT+3; vDW = PT+4; vM = [PT+5, PT+6]; vTr2 = PT+7
    DWR = [PT+8, PT+12]
    vST = [PT+16+i for i in range(3)]; vOW = [PT+22, PT+23]
    T = [ACC+i for i in range(12)]; vLane = ACC + 12
    FUSE = int(opts.get('fuse', 0))
    FT = 88 if FUSE else ACC; NFT = 6 if FUSE else (8 if opts.get('dec') else 12)
    BV = 112 if FUSE else 88
    NA = 6 if FUSE else 5
    ASLOTS = [int(c, 16) for c in opts.get('aslots', '012346' if FUSE else '13579')]
    NAR = 4 if FUSE else int(opts.get('nar', 4))
    if NAR == 5: AREA = [TILE_B + k * (TILE_B + 64) for k in range(5)]
    assert len(ASLOTS) == NA
    VSLOTS = [s for s in range(12) if s not in ASLOTS]
    XF = 144
    OB = 168
    RAW = [192, 216]
    sX, sO, sP, sD = 4, 8, 12, 16
    sW, sCnt = 20, 21
    sRing, sOOB = 39, 40
    sF = [76, 78, 80, 82]
    sBase, sVa, sDec, sEnd = 32, 33, 34, 35
    sXa, sXb, sXd, sXe = 22, 56, 57, 90; sSd = 91; sPw = 21
    sSo = [58, 59, 62, 63]; sSm = 90
    sDb = 92
    sDS = 16
    sRd = 88; sRd2 = 60; sVc = 61; sVb = 95; sEo = 36; sPa = 37; sPb = 38; sPr = 23; sPv = 41; sPT = 84
    KSTEP = 16 * 49152
    sG = [42, 43, 44]; sQ = [45, 46, 47, 48]; sBW = 49; sT = [50, 51, 52, 53]; sR1, sR2 = 54, 55

    def breg(s, nt, n=4, o=0):
        if s in ASLOTS:
            i = ASLOTS.index(s) * 24 + nt * 4 + o
            return f'a[{i}:{i+n-1}]' if n > 1 else f'a{i}'
        i = BV + VSLOTS.index(s) * 24 + nt * 4 + o
        return f'v[{i}:{i+n-1}]' if n > 1 else f'v{i}'
    sn = [0]
    def stamp():
        if DBG or AMP:
            e(f'  s_memrealtime s[{64+2*sn[0]}:{65+2*sn[0]}]'); sn[0] += 1
    def run(items):
        for it in items:
            if callable(it): it()
            else: e(it)

    e(HDR.rstrip('\n'))
    e(f'; @launch grid=(256,1,1) block=(256,1,1) lds={LDS_TOTAL}')
    e('.amdgcn_target "amdgcn-amd-amdhsa--gfx950"')
    e('.text')
    e('.globl standalone__depthwise_separable__vision_kernel')
    e('.p2align 8')
    e('.type standalone__depthwise_separable__vision_kernel,@function')
    e('standalone__depthwise_separable__vision_kernel:')
    e('  s_load_dwordx8 s[24:31], s[0:1], 0')
    e(f'  s_load_dwordx2 s[{sDb}:{sDb+1}], s[0:1], 32')
    e('  s_cmp_ge_u32 s2, 256')
    e('  s_cbranch_scc1 L_done')
    stamp()
    if AMP == 'c': e('  s_memtime s[96:97]')
    if DBG: e('  s_memtime s[96:97]'); e('  s_mov_b32 s3, 0'); e(f'  s_mov_b32 s{sPv}, 0')
    e(f'  v_lshrrev_b32 v{T[0]}, 6, v0')
    e(f'  v_and_b32 v{vLane}, 63, v0')
    e(f'  v_readfirstlane_b32 s{sW}, v{T[0]}')
    KICK = int(opts.get('kick', 0))
    def kick_a():
        e(f'  s_lshr_b32 s{sT[2]}, s2, 3')
        e(f'  s_mul_i32 s{sT[2]}, s{sT[2]}, 9216')
        if KICK == 2: e(f'  v_and_b32 v{T[5]}, 127, v0')
        e(f'  v_lshl_add_u32 v{T[5]}, v{T[5] if KICK == 2 else 0}, 7, s{sT[2]}')
        e(f'  v_min_u32 v{T[5]}, 294784, v{T[5]}')
    def kick_b():
        e('  s_waitcnt lgkmcnt(0)')
        g.vmop(f'  global_load_dword v{BV+1}, v{T[5]}, s[28:29]', ('K',))
    if KICK: kick_a()
    if KICK and opts.get('kf'): kick_b()
    CW = int(opts.get('cw', 128))
    if CW:
        e(f'  s_getpc_b64 s[{sT[0]}:{sT[1]}]')
        e('L_pc:')
        e(f'  v_mul_u32_u24 v{T[2]}, {CW}, v0')
        e(f'  v_min_u32 v{T[2]}, L_done-L_pc, v{T[2]}')
        e(f'  v_mov_b32 v{T[3]}, s{sT[1]}')
        e(f'  v_add_co_u32 v{T[2]}, vcc, s{sT[0]}, v{T[2]}')
        e(f'  s_nop 1')
        e(f'  v_addc_co_u32 v{T[3]}, vcc, 0, v{T[3]}, vcc')
        g.vmop(f'  global_load_dword v{BV}, v[{T[2]}:{T[3]}], off', ('CW',))
    if KICK and not opts.get('kf'): kick_b()
    e(f'  s_lshr_b32 s{sT[0]}, s2, 3')
    e(f'  s_and_b32 s{sR2}, s{sT[0]}, 3')
    e(f'  s_lshr_b32 s{sR1}, s{sT[0]}, 2')
    e(f'  s_mul_i32 s{sT[1]}, s{sR1}, 11')
    e(f'  s_lshr_b32 s{sT[1]}, s{sT[1]}, 5')
    e(f'  s_mul_i32 s{sT[1]}, s{sT[1]}, 3')
    e(f'  s_sub_u32 s{sR1}, s{sR1}, s{sT[1]}')
    if opts.get('norot'):
        e(f'  s_mov_b32 s{sR1}, 0'); e(f'  s_mov_b32 s{sR2}, 0')
    e(f'  s_mul_i32 s{sT[2]}, s{sW}, 192')
    for i in range(3):
        if i: e(f'  v_add_u32 v{T[1]}, {64*i}, v{vLane}')
        q = T[1] if i else vLane
        e(f'  v_mul_u32_u24 v{T[2]}, 0xaaab, v{q}')
        e(f'  v_lshrrev_b32 v{T[2]}, 19, v{T[2]}')
        e(f'  v_mul_u32_u24 v{T[3]}, 576, v{T[2]}')
        e(f'  v_lshl_add_u32 v{T[3]}, v{vLane}, 4, v{T[3]}')
        if i == 1:
            e(f'  v_lshrrev_b32 v{T[2]}, 3, v{T[2]}')
            e(f'  v_mul_u32_u24 v{T[2]}, 6144, v{T[2]}')
            e(f'  v_add_u32 v{T[3]}, v{T[3]}, v{T[2]}')
        if i == 2: e(f'  v_add_u32 v{T[3]}, 6144, v{T[3]}')
        e(f'  v_add_u32 v{vBL[i]}, s{sT[2]}, v{T[3]}')
    NUMA = int(opts.get('numa', 1))
    PRM = int(opts.get('prm', 28))
    def srd(sd, lo, nbytes):
        e(f'  s_mov_b32 s{sd}, s{lo}')
        e(f'  s_and_b32 s{sd+1}, s{lo+1}, 0xffff')
        e(f'  s_mov_b32 s{sd+2}, {nbytes}')
        e(f'  s_mov_b32 s{sd+3}, 0x00020000')
    def p_gb1():
        e(f'  s_add_u32 s{sG[1]}, s{sG[0]}, 98304')
        e(f'  s_cmp_eq_u32 s{sR1}, 2')
        e(f'  s_cselect_b32 s{sG[1]}, 0, s{sG[1]}')
        e(f'  s_add_u32 s{sG[2]}, s{sG[1]}, 98304')
        e(f'  s_cmp_eq_u32 s{sR1}, 1')
        e(f'  s_cselect_b32 s{sG[2]}, 0, s{sG[2]}')
        for q in range(1, 4):
            e(f'  s_xor_b32 s{sQ[q]}, s{sR2}, {q}')
            e(f'  s_mul_i32 s{sQ[q]}, s{sQ[q]}, {TILE_B}')
    def p_dws():
        e(f'  s_lshl_b32 s{sT[3]}, s{sR2}, 2')
        e(f'  v_lshrrev_b32 v{T[1]}, 4, v{vLane}')
        e(f'  v_add_u32 v{T[2]}, s{sR1}, v{T[1]}')
        e(f'  v_subrev_u32 v{T[3]}, 3, v{T[2]}')
        e(f'  v_min_u32 v{T[2]}, v{T[2]}, v{T[3]}')
        e(f'  v_and_b32 v{T[4]}, 15, v{vLane}')
        e(f'  v_xor_b32 v{T[3]}, s{sT[3]}, v{T[4]}')
        e(f'  v_lshlrev_b32 v{T[3]}, 4, v{T[3]}')
        e(f'  v_lshl_add_u32 v{T[3]}, v{T[2]}, 8, v{T[3]}')
        e(f'  v_cmp_lt_u32 vcc, 47, v{vLane}')
        e(f'  s_lshl_b32 s{sT[0]}, s{sW}, 10')
        e(f'  s_add_u32 m0, s{sT[0]}, {LDS_DW}')
        e(f'  v_cndmask_b32 v{T[3]}, v{T[3]}, v{vBL[2]}, vcc')
    def p_tl():
        e(f'  s_lshr_b32 s{sT[1]}, s2, 5')
        e(f'  s_and_b32 s{sT[2]}, s2, 3')
        e(f'  s_lshl2_add_u32 s{sEo}, s{sT[1]}, s{sT[2]}')
        e(f'  s_lshl_b32 s{sEo}, s{sEo}, 2')
        e(f'  s_mul_i32 s{sT[1]}, s{sT[1]}, 144')
        e(f'  s_lshr_b32 s{sT[2]}, s{sT[2]}, 1')
        e(f'  s_lshl1_add_u32 s{sT[2]}, s{sR2}, s{sT[2]}')
        e(f'  s_add_u32 s{sT[1]}, s{sT[1]}, s{sT[2]}')
        e(f'  s_mul_i32 s{sBase}, s{sT[1]}, 98304')
        e(f'  s_add_u32 s{sEnd}, s{sBase}, {NTILE*KSTEP}')
        if NUMA:
            e(f'  s_lshl_b32 s{sT[1]}, s{sW}, 11')
            e(f'  s_and_b32 s{sT[2]}, s2, 1')
            e(f'  s_lshl_b32 s{sT[2]}, s{sT[2]}, 8')
            e(f'  s_add_u32 s{sT[1]}, s{sT[1]}, s{sT[2]}')
            e(f'  s_add_u32 s{sPa}, s{sBase}, s{sT[1]}')
            e(f'  s_add_u32 s{sPa}, s{sPa}, {9*KSTEP + 32768}')
            e(f'  s_and_b32 s{sPr}, s2, {PRM}')
            e(f'  s_lshr_b32 s{sVc}, s2, 5')
            e(f'  s_lshl2_add_u32 s{sVc}, s{sVc}, 128')
            e(f'  s_and_b32 s{sT[1]}, s2, 31')
            e(f'  s_cmp_eq_u32 s{sT[1]}, 8')
            e(f'  s_cselect_b32 s{sPr}, 0, s{sPr}')
            e(f'  s_cselect_b32 s{sPw}, s{sVc}, s{sEo}')
            e(f'  s_cselect_b32 s{sT[1]}, {2*98304 - 16384}, 0')
            e(f'  s_sub_u32 s{sPa}, s{sPa}, s{sT[1]}')
            e(f'  s_add_u32 s{sPb}, s{sPa}, 8192')
            e(f'  s_cmp_lg_u32 s{sPr}, 0')
    def p_warm():
        if NUMA:
            e(f'  s_cbranch_scc1 L_np0')
            e(f'  s_load_dword s{sPT}, s[24:25], s{sPa} glc')
            e(f'  s_load_dword s{sPT+1}, s[24:25], s{sPb} glc')
            e('L_np0:')
    def p_dwl():
        srd(sD, 26, 768)
        g.vmop(f'  buffer_load_dwordx4 v{T[3]}, s[{sD}:{sD+3}], 0 offen lds', ('W',))
    e(f'  s_mul_i32 s{sG[0]}, s{sR1}, 98304')
    e(f'  s_mul_i32 s{sQ[0]}, s{sR2}, {TILE_B}')
    e(f'  s_mul_i32 s{sBW}, s{sW}, 6160')
    LEAN = int(opts.get('lean', 2))
    if LEAN == 0: p_gb1(); p_dws()
    if LEAN <= 1: p_tl()
    e('  s_waitcnt lgkmcnt(0)')
    if LEAN <= 1: p_warm()
    if LEAN == 0: p_dwl()
    srd(sP, 28, 294912)
    def bload(s):
        it = []
        for h in range(2):
            it.append(f'  s_add_u32 m0, s{sBW}, {AREA[s % NAR] + h*3080}')
            it.append(f'  s_add_u32 s{sT[0]}, s{sG[s >> 2]}, s{sQ[s & 3]}' if h == 0 else f'  s_add_u32 s{sT[0]}, s{sT[0]}, 6144')
            for i in range(3):
                it.append(lambda h=h, i=i: g.vmop(f'  buffer_load_dwordx4 v{vBL[i]}, s[{sP}:{sP+3}], s{sT[0]} offen offset:{i*1024}{NT_B} lds', ('B', s, 3*h + i)))
        return it
    def halfA(f, o0, dl):
        return [f'  s_cmp_eq_u32 s{f+1}, 0', f'  s_cselect_b32 s{dl}, 73728, s26', f'  s_add_u32 s{o0}, s{f}, s{f+1}',
                f'  s_add_u32 s{o0}, s{o0}, s{dl}', f'  s_min_u32 s{o0}, s{o0}, s{sOOB}']
    def halfB(f, o2, dl, d1p):
        return [f'  s_cmp_eq_u32 s{f+1}, 73728', f'  s_cselect_b32 s{dl}, {-73728 & 0xffffffff}, s27', f'  s_add_u32 s{d1p}, s{f+1}, 12288',
                f'  s_add_u32 s{o2}, s{f}, s{d1p}', f'  s_add_u32 s{o2}, s{o2}, s{dl}', f'  s_min_u32 s{o2}, s{o2}, s{sOOB}']
    def mixv(dst, src, mk, dl, d1):
        return [f'  v_and_b32 v{dst}, s{dl}, v{mk}', f'  v_add3_u32 v{dst}, v{src}, v{dst}, s{d1}']
    def xdma(t, u):
        it = []
        a, b = sF[0], sF[0] + 1
        if u == 0:
            it += [f'  s_mov_b64 s[{sF[k]}:{sF[k]+1}], s[{sF[k-1]}:{sF[k-1]+1}]' for k in range(len(sF) - 1, 0, -1)]
            it += [f'  s_add_u32 s{a}, s{sVa}, s{sBase}', f'  s_xor_b32 s{a}, s{a}, s{sDec}',
                   f'  s_bfe_u32 s{b}, s{a}, {21 | (1 << 16)}', f'  s_bfe_u32 s{a}, s{a}, {19 | (1 << 16)}', f'  s_lshl1_add_u32 s{b}, s{a}, s{b}',
                   f'  s_sub_u32 s{b}, 1, s{b}', f'  s_and_b32 s{b}, s{b}, 3', f'  s_mul_i32 s{b}, s{b}, {TILE_B}',
                   f'  s_cmp_lt_u32 s{sBase}, s{sEnd}', f'  s_cselect_b32 s{a}, s{sBase}, s{sOOB}', f'  s_add_u32 s{sBase}, s{sBase}, {KSTEP}']
            it += halfA(a, sXa, sXd)
        if u == 2: it += mixv(vTX, vXS[2], vMk[0], sXd, b)
        if u == 3: it += halfB(a, sXb, sXd, sXe) + mixv(vTX, vXS[0], vMk[1], sXd, sXe)
        it.append(f'  s_add_u32 m0, s{sRing}, {(t & 1)*TILE_B + u*4096}')
        if u == 5 and (t & 1): it.append(f'  s_xor_b32 s{sRing}, s{sRing}, {2*TILE_B}')
        else: it.append('NOP')
        it.append(lambda: g.vmop(f'  buffer_load_dwordx4 v{vTX if u in (2, 3) else vXS[u % 3]}, s[{sX}:{sX+3}], s{[sXa, sXa, a, a, sXb, sXb][u]} offen{NT_LD} lds', ('L', t, u)))
        return it
    PF = opts.get('pf')
    vPF = PT + 2; vPD = PT + 3; sPf0 = 21; sPfo = 37
    def pf_items():
        return [f'  s_add_u32 s{sPfo}, s{sVa}, s{sBase}', f'  s_xor_b32 s{sPfo}, s{sPfo}, s{sDec}', f'  s_lshr_b32 s{sPfo}, s{sPfo}, 8',
                f'  s_and_b32 s{sPfo}, s{sPfo}, 8192', f'  s_add_u32 s{sPfo}, s{sPfo}, s{sBase}',
                f'  s_cmp_lt_u32 s{sBase}, s{sEnd}', f'  s_cselect_b32 s{sPfo}, s{sPfo}, s{sOOB}',
                f'  s_cmp_ge_u32 s{sBase}, s{sPf0}', f'  s_cselect_b32 s{sPfo}, s{sPfo}, s{sOOB}',
                lambda: g.vmop(f'  buffer_load_dword v{vPD}, v{vPF}, s[{sX}:{sX+3}], s{sPfo} offen{opts.get("pfl", "")}', None)]
    def xdma_items(t):
        return ['  s_nop 0' if x == 'NOP' else x for u in range(6) for x in xdma(t, u)]
    NB0 = int(opts.get('nb0', 1)) if FUSE else 99
    NI = int(opts.get('ni', 1))
    run(bload(0))
    if LEAN == 2: p_tl(); p_warm()
    if LEAN: p_dws(); p_dwl(); p_gb1()
    for s in range(1, min(NB0, NI)): run(bload(s))
    if opts.get('tw'):
        e(f'  v_mov_b32 v{T[5]}, s{sBase}')
        g.vmop(f'  global_load_dword v{BV+2}, v{T[5]}, s[24:25]', ('K',))
        g.vmop(f'  global_load_dword v{BV+3}, v{T[5]}, s[30:31]', ('K',))
    if opts.get('st2') == '2': stamp()
    srd(sX, 24, 113246208)
    hi2, lo4 = T[1], T[4]
    e(f'  s_add_u32 s{sVa}, s24, 49152')
    e(f'  s_mov_b32 s{sOOB}, {OOB}')
    e(f'  s_mov_b32 s26, {-24576 & 0xffffffff}')
    e('  s_mov_b32 s27, 24576')
    e(f'  s_lshl_b32 s{sRing}, s{sW}, 10')
    for x in sF[:3]: e(f'  s_mov_b32 s{x}, s{sOOB}'); e(f'  s_mov_b32 s{x+1}, 0')
    e(f'  s_lshr_b32 s{sDec}, s2, 1')
    e(f'  s_xor_b32 s{sDec}, s{sDec}, s2')
    e(f'  s_and_b32 s{sDec}, s{sDec}, 4')
    e(f'  s_and_b32 s{sT[1]}, s2, 1')
    e(f'  s_or_b32 s{sDec}, s{sDec}, s{sT[1]}')
    e(f'  s_lshl_b32 s{sDec}, s{sDec}, 19')
    ROW = [ACC+16, ACC+17, ACC+18]; GG = [ACC+19, ACC+20, ACC+21]
    def rowmap(dst, dst4b, base, u):
        if u == 0:
            e(f'  v_add_u32 v{dst[3]}, {26*768}, v{base}')
            if base != dst[0]: e(f'  v_mov_b32 v{dst[0]}, v{base}')
        if u == 1:
            e(f'  v_cmp_lt_u32 vcc, 5, v{ROW[1]}')
            e(f'  v_add_u32 v{T[8]}, {26*768}, v{base}')
            e(f'  v_add_u32 v{T[9]}, {37*768}, v{base}')
            e(f'  v_cndmask_b32 v{dst[4]}, v{T[8]}, v{T[9]}, vcc')
            if dst4b is not None:
                e(f'  v_add_u32 v{T[8]}, {58*768}, v{base}')
                e(f'  v_add_u32 v{T[9]}, {5*768}, v{base}')
                e(f'  v_cndmask_b32 v{dst4b}, v{T[8]}, v{T[9]}, vcc')
            if base != dst[1]: e(f'  v_mov_b32 v{dst[1]}, v{base}')
        if u == 2:
            e(f'  v_cmp_lt_u32 vcc, 10, v{ROW[2]}')
            e(f'  v_add_u32 v{T[8]}, 7680, v{base}')
            e(f'  v_add_u32 v{dst[5]}, {5*768}, v{base}')
            e(f'  v_cndmask_b32 v{dst[2]}, v{base}, v{T[8]}, vcc')
    e(f'  v_lshrrev_b32 v{GG[0]}, 4, v0')
    e(f'  v_xor_b32 v{T[6]}, s{sT[3]}, v{lo4}')
    for u in range(3):
        if u: e(f'  v_add_u32 v{GG[u]}, {16*u}, v{GG[0]}')
        e(f'  v_mul_u32_u24 v{ROW[u]}, 43, v{GG[u]}')
        e(f'  v_lshrrev_b32 v{ROW[u]}, 7, v{ROW[u]}')
        e(f'  v_mul_u32_u24 v{T[2]}, 3, v{ROW[u]}')
        e(f'  v_sub_u32 v{T[3]}, v{GG[u]}, v{T[2]}')
        e(f'  v_add_u32 v{T[3]}, s{sR1}, v{T[3]}')
        e(f'  v_subrev_u32 v{T[5]}, 3, v{T[3]}')
        e(f'  v_min_u32 v{T[3]}, v{T[3]}, v{T[5]}')
        e(f'  v_add_u32 v{T[3]}, v{T[3]}, v{T[2]}')
        e(f'  v_xor_b32 v{T[5]}, v{ROW[u]}, v{T[6]}')
        e(f'  v_lshlrev_b32 v{T[5]}, 4, v{T[5]}')
        e(f'  v_lshl_add_u32 v{vXS[u]}, v{T[3]}, 8, v{T[5]}')
        if u != 1:
            e(f'  v_cmp_eq_u32 vcc, {10 if u == 2 else 5}, v{ROW[u]}')
            e(f'  s_nop 1')
            e(f'  v_cndmask_b32 v{vMk[0 if u == 2 else 1]}, 0, -1, vcc')
    if NB0 <= 2: run(xdma_items(0))
    STG = int(opts.get('stg', 0))
    sS3 = [58, 59, 62]; sSR = 63
    def x0_site(early):
        it = []
        if early: it += [x for x in xdma(0, 0)[:-3]]
        it += [f'  s_and_b32 s{sSR}, s2, {STG}', f'  s_cmp_eq_u32 s{sSR}, 0' if early else f'  s_cmp_lg_u32 s{sSR}, 0']
        for r, src in zip(sS3, (sF[0], sX4, sF[0] + 1)): it.append(f'  s_cselect_b32 s{r}, s{src}, s{sOOB}')
        it += [f'  s_cselect_b32 s{sSR}, 0, {TILE_B}', f'  s_add_u32 s{sSR}, s{sSR}, s{sRing}']
        for u in range(6):
            if u == 4: it.append(f'  v_cndmask_b32 v{vTX}, v{vXS[4]}, v{vXS4b}, s[{sXm}:{sXm+1}]')
            it += [f'  s_add_u32 m0, s{sSR}, {u*4096}', '  s_nop 0',
                   lambda u=u: g.vmop(f'  buffer_load_dwordx4 v{vTX if u == 4 else vXS[u]}, s[{sX}:{sX+3}], s{sS3[max(0, u - 3)]} offen{NT_LD} lds', ('L', 0, u))]
        return it
    XE = int(opts.get('xe', -1))
    if STG and XE < 0: run(x0_site(True))
    for s in range(NB0, 2): run(bload(s))
    srd(sO, 30, 113246208)
    e(f'  v_lshlrev_b32 v{vST[0]}, 4, v0')
    for u in range(3):
        if u: e(f'  v_add_u32 v{vST[u]}, {4096*u}, v{vST[0]}')
        e(f'  v_and_b32 v{T[5]}, 7, v{ROW[u]}')
        e(f'  v_xor_b32 v{T[5]}, v{T[5]}, v{lo4}')
        e(f'  v_lshlrev_b32 v{T[5]}, 4, v{T[5]}')
        e(f'  v_lshl_add_u32 v{T[5]}, v{GG[u]}, 8, v{T[5]}')
        e(f'  v_add_u32 v{vOR[u]}, {LDS_O}, v{T[5]}')
    e(f'  v_mul_u32_u24 v{T[0]}, 0x300, v{lo4}')
    e(f'  v_xor_b32 v{T[2]}, v{hi2}, v{lo4}')
    e(f'  v_lshl_add_u32 v{vLdsR[0]}, v{T[2]}, 4, v{T[0]}')
    for s in range(1, 4): e(f'  v_xor_b32 v{vLdsR[s]}, {s*64}, v{vLdsR[0]}')
    e(f'  s_mul_i32 s{sT[1]}, s{sW}, 12')
    e(f'  v_and_b32 v{T[2]}, 7, v{lo4}')
    for u in range(2):
        e(f'  v_add_u32 v{T[3]}, s{sT[1]}, v{hi2}')
        if u: e(f'  v_add_u32 v{T[3]}, {4*u}, v{T[3]}')
        e(f'  v_xor_b32 v{T[3]}, v{T[3]}, v{T[2]}')
        e(f'  v_lshl_add_u32 v{vOW[u]}, v{T[3]}, 4, v{T[0]}')
        e(f'  v_add_u32 v{vOW[u]}, {LDS_O}, v{vOW[u]}')
    e(f'  v_bfe_u32 v{T[2]}, v{vLane}, 2, 2')
    e(f'  v_and_b32 v{T[3]}, 3, v{vLane}')
    e(f'  v_lshrrev_b32 v{T[5]}, 1, v{hi2}')
    e(f'  v_lshl_add_u32 v{T[5]}, v{T[5]}, 3, v{T[2]}')
    e(f'  v_mul_u32_u24 v{T[5]}, 192, v{T[5]}')
    e(f'  v_and_b32 v{T[7]}, 1, v{hi2}')
    e(f'  v_mul_u32_u24 v{T[7]}, 3080, v{T[7]}')
    e(f'  v_add_u32 v{T[5]}, v{T[5]}, v{T[7]}')
    e(f'  v_lshl_add_u32 v{T[5]}, v{T[3]}, 4, v{T[5]}')
    e(f'  s_add_u32 s{sT[1]}, s{sBW}, {AREA[2]}')
    e(f'  v_add_u32 v{vTr2}, s{sT[1]}, v{T[5]}')
    e(f'  v_add_u32 v{vTr}, {(AREA[0] - AREA[2]) & 0xffffffff}, v{vTr2}')
    e(f'  s_add_u32 s{sT[1]}, s{sRing}, {LDS_DW}')
    e(f'  v_lshl_add_u32 v{vDW}, v{hi2}, 4, s{sT[1]}')
    e(f'  v_and_b32 v{T[5]}, 1, v{vLane}')
    e(f'  v_lshlrev_b32 v{T[5]}, 4, v{T[5]}')
    e(f'  v_mov_b32 v{T[7]}, 0xffff')
    e(f'  v_lshlrev_b32 v{T[5]}, v{T[5]}, v{T[7]}')
    e(f'  v_lshlrev_b32 v{T[0]}, 1, v{hi2}')
    e(f'  v_bfe_u32 v{T[7]}, v{vLane}, 1, 3')
    e(f'  v_cmp_eq_u32 vcc, v{T[0]}, v{T[7]}')
    e(f'  v_add_u32 v{T[0]}, 1, v{T[0]}')
    e(f'  s_nop 0')
    e(f'  v_cndmask_b32 v{vM[0]}, 0, v{T[5]}, vcc')
    e(f'  v_cmp_eq_u32 vcc, v{T[0]}, v{T[7]}')
    srd(sDS, sDb, 256)
    e(f'  v_cndmask_b32 v{vM[1]}, 0, v{T[5]}, vcc')
    NR = int(opts.get('nr', 2))
    def probe():
        e(f'  s_cmp_lg_u32 s{sPr}, 0')
        e(f'  s_cbranch_scc1 L_npr')
        e(f'  s_mov_b32 s{sPv}, 0xffff')
        e(f'  s_mov_b32 s{sRd}, 0xffff')
        e(f'  s_lshl_b32 s{sT[2]}, s{sW}, 2')
        e(f'  s_add_u32 s{sT[2]}, s{sT[2]}, {LDS_PR}')
        e(f'  v_mov_b32 v{T[0]}, s{sT[2]}')
        if int(opts.get('pb', 0)):
            e('  s_waitcnt lgkmcnt(0)')
            for i in range(NR):
                e('  s_barrier')
                e(f'  s_memtime s[{sPT}:{sPT+1}]')
                e(f'  s_load_dword s{sT[2]}, s[24:25], s{sPb if i & 1 else sPa} glc')
                e('  s_waitcnt lgkmcnt(0)')
                e(f'  s_memtime s[{sPT+2}:{sPT+3}]')
                e('  s_waitcnt lgkmcnt(0)')
                e(f'  s_sub_u32 s{sT[1]}, s{sPT+2}, s{sPT}')
                e(f'  s_min_u32 s{sRd if i & 1 else sPv}, s{sRd if i & 1 else sPv}, s{sT[1]}')
        else:
            e('  s_waitcnt lgkmcnt(0)')
            e(f'  s_memtime s[{sPT}:{sPT+1}]')
            for i in range(NR):
                a, b = (sPT, sPT + 2) if i % 2 == 0 else (sPT + 2, sPT)
                e(f'  s_load_dword s{sT[2]}, s[24:25], s{sPb if i & 1 else sPa} glc')
                e('  s_waitcnt lgkmcnt(0)')
                if i:
                    e(f'  s_sub_u32 s{sT[1]}, s{a}, s{b}')
                e(f'  s_memtime s[{b}:{b+1}]')
                if i: e(f'  s_min_u32 s{sRd if (i - 1) & 1 else sPv}, s{sRd if (i - 1) & 1 else sPv}, s{sT[1]}')
            e('  s_waitcnt lgkmcnt(0)')
            e(f'  s_sub_u32 s{sT[1]}, s{sPT}, s{sPT+2}')
            e(f'  s_min_u32 s{sRd}, s{sRd}, s{sT[1]}')
        e(f'  s_lshl_b32 s{sPv}, s{sPv}, 16')
        e(f'  s_or_b32 s{sPv}, s{sPv}, s{sRd}')
        e(f'  v_mov_b32 v{T[2]}, s{sPv}')
        e(f'  ds_write_b32 v{T[0]}, v{T[2]}')
        e('  s_waitcnt lgkmcnt(0)')
        e(f'L_npr:')
    PQ = 248
    assert 11 not in ASLOTS
    def publish():
        if NB0 >= 2:
            e(f'  s_cmp_lg_u32 s{sPr}, 0')
            e(f'  s_cbranch_scc1 L_np1')
            e('  s_barrier')
        e(f'  s_or_b32 s{sT[1]}, s{sPr}, s{sW}')
        e(f'  s_cmp_lg_u32 s{sT[1]}, 0')
        e(f'  s_cbranch_scc1 L_np1')
        PR = 240
        e(f'  v_mov_b32 v{PR+8}, {LDS_PR}')
        e(f'  ds_read_b128 v[{PR}:{PR+3}], v{PR+8}')
        e(f'  s_add_u32 s{sT[1]}, s{sVa}, s{sBase}')
        e(f'  s_add_u32 s{sT[1]}, s{sT[1]}, {9*KSTEP}')
        e(f'  s_lshr_b32 s{sT[2]}, s{sT[1]}, 20')
        e(f'  s_lshr_b32 s{sT[0]}, s2, 1')
        e(f'  s_xor_b32 s{sT[2]}, s{sT[2]}, s{sT[0]}')
        e(f'  s_and_b32 s{sT[2]}, s{sT[2]}, 2')
        e(f'  s_lshr_b32 s{sT[1]}, s{sT[1]}, 17')
        e(f'  s_and_b32 s{sT[1]}, s{sT[1]}, 4')
        e(f'  s_or_b32 s{sT[1]}, s{sT[1]}, s{sT[2]}')
        e(f'  s_or_b32 s{sT[1]}, s{sT[1]}, 1')
        e(f'  v_mov_b32 v{PR+11}, 0')
        e(f'  v_mov_b32 v{PR+8}, s{sPw}')
        e('  s_waitcnt lgkmcnt(0)')
        for o in (0,):
            e(f'  v_pk_min_u16 v{PR+o}, v{PR+o}, v{PR+o+1}')
            e(f'  v_pk_min_u16 v{PR+o+2}, v{PR+o+2}, v{PR+o+3}')
            e(f'  v_pk_min_u16 v{PR+o}, v{PR+o}, v{PR+o+2}')
            e(f'  v_lshrrev_b32 v{PR+o+1}, 16, v{PR+o}')
            e(f'  v_and_b32 v{PR+o}, 0xffff, v{PR+o}')
        e(f'  v_cmp_gt_u32 vcc, v{PR+1}, v{PR}')
        e(f'  v_min_u32 v{PR+2}, v{PR}, v{PR+1}')
        e('  s_nop 0')
        e(f'  v_cndmask_b32 v{PR+10}, 0, 2, vcc')
        e(f'  v_xor_b32 v{PR+10}, s{sT[1]}, v{PR+10}')
        e('  s_mov_b64 exec, 1')
        e(f'  v_lshl_or_b32 v{PR+10}, v{PR+2}, 16, v{PR+10}')
        e(f'  buffer_atomic_cmpswap v[{PR+10}:{PR+11}], v{PR+8}, s[{sDS}:{sDS+3}], 0 offen sc1')
        e('  s_mov_b64 exec, -1')
        e('L_np1:')
    if opts.get('st2') == '2': stamp()
    if int(opts.get('iw', 0)):
        for r in sSo: e(f'  s_mov_b32 s{r}, s{sOOB}')
        e(f'  s_mov_b64 s[{sSm}:{sSm+1}], 0')
        if opts.get('iwp', '0') == '0': e('@IWHOP')
    PP = int(opts.get('pp', 1))
    if NUMA and PP == -1: probe()
    for s in range(NI, 2): run(bload(s))
    if NUMA and PP == 0: probe()
    LA = int(opts.get('la', NAR))
    assert LA <= NAR
    if LA > 2: run(bload(2))
    if NUMA and PP == 1: probe()
    if NB0 == 3: run(xdma_items(0))
    if LA > 3: run(bload(3))
    if LA > 4: run(bload(4))
    if NUMA and PP == 2: probe()

    def trs(s):
        it = [lambda: g.wait(('b', s), vm=('W',) if (s == 0 and LEAN) else ('B', s, 5))]
        base = vTr if (s % NAR) < 2 else vTr2
        so = AREA[s % NAR] - AREA[0 if (s % NAR) < 2 else 2]
        it.append(lambda: g.lgop(f'  ds_read_b128 v[{DWR[s & 1]}:{DWR[s & 1]+3}], v{vDW} offset:{s*64}', ('TR', s)))
        for nt in range(6):
            for hh in range(2):
                r = RAW[s & 1] + nt*4 + 2*hh
                it.append(lambda r=r, nt=nt, hh=hh: g.lgop(f'  ds_read_b64_tr_b16 a[{r}:{r+1}], v{base} offset:{so + hh*768 + (nt >> 1)*64 + (nt & 1)*8}', ('TR', s)))
        return it
    def cvts(s, j, q=None):
        nt, hh = j // 2, j % 2
        if q is None: q = FT + 4*(j % NFT)
        if s in ASLOTS:
            return [f'  v_cvt_pk_bf16_f32 v{q}, v{q}, v{q+1}', f'  v_cvt_pk_bf16_f32 v{q+1}, v{q+2}, v{q+3}',
                    f'  v_accvgpr_write_b32 {breg(s, nt, 1, 2*hh)}, v{q}', f'  v_accvgpr_write_b32 {breg(s, nt, 1, 2*hh+1)}, v{q+1}']
        return [f'  v_cvt_pk_bf16_f32 {breg(s, nt, 1, 2*hh)}, v{q}, v{q+1}', f'  v_cvt_pk_bf16_f32 {breg(s, nt, 1, 2*hh+1)}, v{q+2}, v{q+3}']
    def rd(t, i):
        mt, ks = i // 12, i % 12
        x = XF + 8*((i // 2) % 3) + 4*(i & 1)
        g.lgop(f'  ds_read_b128 a[{x}:{x+3}], v{vLdsR[ks & 3]} offset:{(t & 1)*TILE_B + mt*12288 + (ks >> 2)*256}', ('X', t, i))
    TS = NB0 if FUSE else 13
    units = sorted([(0, k) for k in range(12)] + [(1, k) for k in range(8)], key=lambda u: (u[1] + 4*u[0], -u[0]))
    UPS = int(opts.get('ups', 2 if NB0 <= 2 else 3))
    SCH = {s: [] for s in range(13)}
    rem = list(units) if FUSE else []
    for s in range(12, TS - 1, -1):
        n = 2 if s == 12 else UPS
        take = [u for u in reversed(rem) if u[1] < s][:n]
        SCH[s] = sorted(take, key=lambda u: (u[1], u[0]))
        rem = [u for u in rem if u not in take]
    assert not rem, rem
    for mt in range(2 if FUSE else 0):
        seq = [u[1] for s in range(13) for u in SCH[s] if u[0] == mt]
        assert seq[0] == 0 and sorted(seq) == list(range(len(seq)))
    def tl(s): return SCH[s]
    def fx(s, mt, ks): return OB + 12*(s % 2) + 4*SCH[s].index((mt, ks))
    def prd(s):
        return [lambda mt=mt, ks=ks: g.lgop(f'  ds_read_b128 a[{fx(s, mt, ks)}:{fx(s, mt, ks)+3}], v{vLdsR[ks & 3]} offset:{mt*12288 + (ks >> 2)*256}', ('TR', s)) for (mt, ks) in tl(s)]
    def tm(s, mt, ks, nt):
        a = ACC + 24*mt + 4*nt; x = fx(s, mt, ks)
        return f'  v_mfma_f32_16x16x32_bf16 v[{a}:{a+3}], {breg(ks, nt)}, a[{x}:{x+3}], {"0" if ks == 0 else f"v[{a}:{a+3}]"}'
    if opts.get('iwp') == '1': e('@IWHOP')
    DEC = int(opts.get('dec', 0))
    def trd(s):
        it = [lambda: g.wait(('b', s), vm=('W',) if (s == 0 and LEAN) else ('B', s, 5))]
        base = vTr if (s % NAR) < 2 else vTr2
        so = AREA[s % NAR] - AREA[0 if (s % NAR) < 2 else 2]
        for nt in range(6):
            for hh in range(2):
                it.append(lambda nt=nt, hh=hh: g.lgop(f'  ds_read_b64_tr_b16 {breg(s, nt, 2, 2*hh)}, v{base} offset:{so + hh*768 + (nt >> 1)*64 + (nt & 1)*8}', ('TR', s)))
        return it
    def dwr(s): g.lgop(f'  ds_read_b128 v[{DWR[s & 1]}:{DWR[s & 1]+3}], v{vDW} offset:{s*64}', ('DW', s))
    if DEC:
        run(trd(0)); dwr(0)
    else: run(trs(0))
    stamp()
    LAG = int(opts.get('lag', 3))
    XA = int(opts.get('xa', 8)); XB = int(opts.get('xb', 12)); DS = int(opts.get('ds', XA)); BQ = 10
    X0 = int(opts.get('x0', 11 - LA)); X1 = int(opts.get('x1', 11))
    if not FUSE: XA = XB = BQ = 99; DS = int(opts.get('ds', 10)); LAG = int(opts.get('lag', 4))
    assert XB >= BQ
    pend = []
    def decide():
        if NUMA:
            e(f'  s_min_u32 s{sT[1]}, s{sRd}, s{sRd+1}')
            e(f'  s_min_u32 s{sT[1]}, s{sT[1]}, s{sRd2}')
            e(f'  s_cmp_eq_u32 s{sT[1]}, 0')
            e('  s_cbranch_scc1 L_slow')
            e('L_back:')
            e(f'  s_lshr_b32 s{sT[1]}, s2, 1')
            e(f'  s_xor_b32 s{sDec}, s{sRd}, s{sT[1]}')
            e(f'  s_and_b32 s{sDec}, s{sDec}, 2')
            e(f'  s_lshl_b32 s{sDec}, s{sDec}, 20')
            e(f'  s_lshr_b32 s{sT[1]}, s{sRd+1}, 2')
            e(f'  s_cmp_gt_u32 s{sRd+1}, s{sRd2}')
            e(f'  s_addc_u32 s{sT[1]}, s{sT[1]}, 0')
            if opts.get('eflip'): e(f'  s_xor_b32 s{sT[1]}, s{sT[1]}, 1')
            e(f'  s_xor_b32 s{sT[1]}, s{sT[1]}, s2')
            e(f'  s_and_b32 s{sT[1]}, s{sT[1]}, 1')
            e(f'  s_lshl_b32 s{sT[1]}, s{sT[1]}, 19')
            e(f'  s_or_b32 s{sDec}, s{sDec}, s{sT[1]}')
    if DEC:
        QU = [[] for _ in range(145)]
        def spread(items, n0, n1):
            for i, it in enumerate(items): QU[n0 + (i * (n1 - n0)) // len(items)].append(it)
        for a in range(11):
            it = trd(a + 1)
            if a + LA < 12: it += [lambda a=a: g.wait(('trf', a), lg=('TR', a))] + bload(a + LA)
            if a == X0: it += xdma_items(0)
            spread(it, DEC * a, DEC * (a + 1))
        if NUMA: QU[12*DS - 8].append(f'  s_load_dword s{sRd}, s[{sDb}:{sDb+1}], s{sEo}')
        if X1 < 12: spread(xdma_items(1), 12*X1, 12*X1 + 12)
        assert DEC * (X0 + 1) <= 12*DS
        for n in range(144):
            k, j = n // 12, n % 12
            d = DWR[k & 1]
            if j == 0:
                if k == DS and NUMA: e('  s_waitcnt lgkmcnt(0)')
                else:
                    g.wait(('tr', k), lg=('TR', k)); g.wait(('dw', k), lg=('DW', k), opt=True)
                for i in range(4): e(f'  v_and_b32 v{d+i}, v{vM[i & 1]}, v{d+i}')
                if k == DS: decide()
                if k + 1 < 12: dwr(k + 1)
                else: e('  s_nop 0')
                e('  s_nop 0')
            nt, hh = j // 2, j % 2
            q = FT + 4*(n % NFT)
            e(f'  v_mfma_f32_16x16x16_bf16 v[{q}:{q+3}], v[{d+2*hh}:{d+2*hh+1}], {breg(k, nt, 2, 2*hh)}, 0')
            pend.append(cvts(k, j, q))
            run(QU[n])
            if len(pend) > LAG: run(pend.pop(0))
            if n in (47, 95): stamp()
            if n == 11 and NUMA: publish()
    for s in range(0 if DEC else 12):
        if s == DS and NUMA: e('  s_waitcnt lgkmcnt(0)')
        else: g.wait(('tr', s), lg=('TR', s))
        if s == BQ: e('  s_barrier')
        d = DWR[s & 1]
        for i in range(4): e(f'  v_and_b32 v{d+i}, v{vM[i & 1]}, v{d+i}')
        if s == DS: decide()
        Q = []
        if s + 4 == NB0: Q += xdma_items(0)
        if s + LA < 12: Q += bload(s + LA)
        nx = trs(s + 1) if s + 1 < 12 else []
        if s == NB0 - 1:
            nx = nx[:1] + ['  s_barrier'] + nx[1:]
        nx += prd(s + 1)
        Q = (Q + nx) if opts.get('qo', '1') == '0' else (nx + Q)
        if s == DS - 1 and NUMA: Q += [f'  s_load_dword s{sRd}, s[{sDb}:{sDb+1}], s{sEo}', f'  s_and_b32 s{sVb}, s{sEo}, -16', f'  s_load_dword s{sRd+1}, s[{sDb}:{sDb+1}], s{sVb}', f'  s_load_dword s{sRd2}, s[{sDb}:{sDb+1}], s{sVc}']
        if STG and s == XE: Q += x0_site(True)
        if s == X0 and not FUSE: Q += (x0_site(False) if STG else xdma_items(0))
        if s == X1 and not FUSE: Q += xdma_items(1)
        if s == XA: Q += xdma_items(1)
        if s == XB: Q += xdma_items(2)
        if s == 11 and FUSE: Q += [lambda i=i: rd(0, i) for i in range(20, 24)]
        while len(Q) < 2: Q.append('  s_nop 0')
        M = []
        TL = [tm(s, mt, ks, nt) for nt in range(6) for (mt, ks) in tl(s)]
        for j in range(12):
            nt, hh = j // 2, j % 2
            r = RAW[s & 1] + nt*4 + 2*hh
            q = FT + 4*(j % NFT)
            M.append((f'  v_mfma_f32_16x16x16_bf16 v[{q}:{q+3}], v[{d+2*hh}:{d+2*hh+1}], a[{r}:{r+1}], 0', j))
            k0, k1 = (j*len(TL))//12, ((j+1)*len(TL))//12
            M += [(x, None) for x in TL[k0:k1]]
        run(Q[:2]); Q = Q[2:]
        front = int(opts.get('front', 2))
        cq = []
        for mi, (m, j) in enumerate(M):
            if j is not None:
                run(cq); cq = []
            e(m)
            if j is not None:
                pend.append(cvts(s, j))
                if len(pend) > LAG: cq = pend.pop(0)
            QE = (len(M) * int(opts.get('qe', 4))) // 4
            nq = -(-len(Q) // max(1, QE - mi)) if mi < QE else len(Q)
            run(Q[:nq]); Q = Q[nq:]
            nc = 2 if (mi + 1 < len(M) and M[mi + 1][1] is None) else len(cq)
            run(cq[:nc]); cq = cq[nc:]
        assert not Q and not cq
        if s in (3, 7) and not opts.get('st2'): stamp()
        if s == int(opts.get('pubs', 0)) and NUMA: publish()
    if FUSE:
        g.wait(('tr', 12), lg=('TR', 12))
        T0 = [tm(12, 0, 11, nt) for nt in range(6)]
        T1 = [tm(12, 1, ks, nt) for (mt, ks) in tl(12) if mt == 1 for nt in range(6)]
        for nt in range(4):
            e(T0[nt])
            if pend: run(pend.pop(0))
        if DS == 12:
            e('  s_waitcnt lgkmcnt(0)'); decide()
        e(f'  v_sub_u32 v{vST4b}, v{vXS4b}, v{vXS[4]}')
        e(f'  v_add_u32 v{vST4b}, v{vST4b}, v{vST[4]}')
        e(T0[4]); e(T0[5])
        stamp()
        FIN = (T1, XB)
    else:
        run(pend.pop(0)); run(pend.pop(0))
        stamp()
        e(f'  v_mov_b32 v{vTS2}, 0')
        e(f'  v_mov_b32 v{vTS3}, 0')
        for r in sSo: e(f'  s_mov_b32 s{r}, s{sOOB}')
        if PF:
            a_, m_ = [int(v) for v in PF.split(',')]
            e(f'  v_mbcnt_lo_u32_b32 v{vPF}, -1, 0')
            e(f'  v_mbcnt_hi_u32_b32 v{vPF}, -1, v{vPF}')
            e(f'  v_min_u32 v{vPF}, 47, v{vPF}')
            e(f'  s_mul_i32 s{sPf0}, s{sW}, 48')
            e(f'  v_add_u32 v{vPF}, s{sPf0}, v{vPF}')
            e(f'  v_lshrrev_b32 v{vPD}, 6, v{vPF}')
            e(f'  v_lshlrev_b32 v{vPD}, 13, v{vPD}')
            e(f'  v_lshl_add_u32 v{vPF}, v{vPF}, 7, v{vPD}')
            e(f'  s_lshr_b32 s{sPf0}, s2, 3')
            e(f'  s_and_b32 s{sPf0}, s{sPf0}, {m_}')
            e(f'  s_add_u32 s{sPf0}, s{sPf0}, {a_ - NTILE & 0xffffffff}')
            e(f'  s_mul_i32 s{sPf0}, s{sPf0}, {KSTEP}')
            e(f'  s_add_u32 s{sPf0}, s{sPf0}, s{sEnd}')
        if opts.get('iwp') == '2': e('@IWHOP')
        if int(opts.get('iw', 0)): e('  s_mov_b64 vcc, 0')
        g.wait('x0', vm=('L', 0, 5))
        e('  s_barrier')
        for i in range(4): rd(0, i)
        while pend: run(pend.pop(0))
        if X1 == 13: run(xdma_items(1))
        else: assert NAR == 4 and X1 >= DS

    def epi(mt, u, po):
        a = ACC + 24*mt + 8*u
        cv = [f'  v_cvt_pk_bf16_f32 v{a+i}, v{a+2*i}, v{a+2*i+1}' for i in range(4)]
        off = po*TILE_B + mt*12288 + (u >> 1)*128
        if DIR:
            return cv + [lambda: g.vmop(f'  buffer_store_dwordx4 v[{a}:{a+3}], v{vTS if mt else vST[0]}, s[{sO}:{sO+3}], s{sSo[2] if mt else sSo[0]} offen offset:{64*u}{NT_ST}', None)]
        if opts.get('w64'):
            return cv[:2] + [lambda: g.lgop(f'  ds_write_b64 v{vOW[u & 1]}, v[{a}:{a+1}] offset:{off}', ('OWa', mt, u))] + cv[2:] + \
                   [lambda: g.lgop(f'  ds_write_b64 v{vOW[u & 1]}, v[{a+2}:{a+3}] offset:{off+8}', ('OW', mt, u))]
        return cv + [lambda: g.lgop(f'  ds_write_b128 v{vOW[u & 1]}, v[{a}:{a+3}] offset:{off}', ('OW', mt, u))]
    OBT = 'a'
    def out_read(t, u):
        o = OB + 4*u
        g.lgop(f'  ds_read_b128 {OBT}[{o}:{o+3}], v{vOR[u % 3]} offset:{((t^1)&1)*TILE_B + (u // 3)*12288}', ('O', t, u))
    def out_store(t, u, key):
        o = OB + 4*u
        g.wait((key, 'o', u), lg=('O', t, u), opt=True)
        g.vmop(f'  buffer_store_dwordx4 {OBT}[{o}:{o+3}], v{[vST[0], vST[1], vTS2, vTS3, vST[1], vST[2]][u]}, s[{sO}:{sO+3}], s{sSo[[0, 0, 1, 2, 3, 3][u]]} offen{NT_ST}', None)
    def st_adv(d=0):
        p, q = sF[2 - d], sF[3 - d]
        return halfA(p, sSo[0], sSd) + [f'  s_mov_b32 s{sSo[1]}, s{p}'] + mixv(vTS2, vST[2], vMk[0], sSd, p + 1) + \
               halfB(q, sSo[3], sSd, sSo[2]) + mixv(vTS3, vST[0], vMk[1], sSd, sSo[2]) + [f'  s_mov_b32 s{sSo[2]}, s{q}']
    def ints(k, d): return [int(v) for v in opts.get(k, d).split(',')]
    OR_AT = ints('or', '2,3,4,5,6,7'); OS_AT = ints('os', '14,20,30,40,52,64')
    UORD = ints('uord', '3,4,5,0,1,2')
    XD_AT = ints('xd', '76,88,100,112,124,136')
    E1_AT = ints('e1', '27,39,61'); E0_AT = ints('e0', '99,106,123')
    SH_AT = int(opts.get('sh', 26)); CAP = int(opts.get('cap', 1)); HG = int(opts.get('hg', 0))
    def fillers(t):
        F = [[] for _ in range(144)]
        use = [0] * 150
        for r in range(144):
            if r % 12 in (0, 1, 11): use[r] = 1
        HP = opts.get('hp')
        def heavy(rho, it):
            while use[rho] or (HP and rho % 2 != int(HP)): rho += 1
            F[rho].append(it); use[rho] = 9
            for k in range(1, HG + 1): use[rho + k] = max(use[rho + k], 8)
            return rho
        def light(rho, items, cap=CAP, back=False):
            if back:
                for it in reversed(items):
                    while use[rho] >= cap: rho -= 1
                    F[rho].insert(0, it); use[rho] += 1
                return rho
            for it in items:
                while use[rho] >= cap: rho += 1
                F[rho].append(it); use[rho] += 1
            return rho
        kp = t & 1
        post = []
        vpos = []
        for k in range(0 if DIR else 6):
            u = UORD[k]
            lastst = heavy(OS_AT[k], lambda u=u: out_store(t, u, kp))
            vpos.append(lastst)
        xpos = []
        for u in range(6):
            it = [x for x in xdma(t + PD, u) if x != 'NOP']
            xpos.append((heavy(XD_AT[u], it[-1]), it[:-1]))
        for mt, AT in ((1, E1_AT), (0, E0_AT)):
            for u in range(3):
                r = AT[u]
                for it in epi(mt, u, t & 1):
                    r = (heavy(r, it) if callable(it) else light(r, [it], 1)) + 1
                if DIR:
                    vpos.append(r - 1)
                    if mt == 1: lastst = r - 1
        for k in range(0 if DIR else 6):
            light(OR_AT[k], [lambda u=UORD[k]: out_read(t, u)], 1)
        prevx = 0
        for (r, it) in xpos:
            r0 = light(r - 1, it, 2 if len(it) > 6 else CAP, back=True)
            assert r0 >= 24 and r0 > prevx, (r0, prevx)
            prevx = r
        if opts.get('xr'):
            a_, b_ = [int(v) for v in opts['xr'].split(',')]
            it = [f'  s_sub_u32 s37, s{sEnd}, s{sBase}', f'  s_sub_u32 s37, s37, {(NTILE - b_)*KSTEP + 1}', f'  s_cmp_lt_u32 s37, {(b_ - a_)*KSTEP}',
                  f'  s_cselect_b32 s37, s{sF[0]}, s{sOOB}', f'  s_xor_b32 s37, s37, 0x2000000']
            r1_ = heavy(104, lambda: g.vmop(f'  buffer_load_dwordx4 a[240:243], v{vXS[0]}, s[{sX}:{sX+3}], s37 offen nt', None))
            heavy(130, lambda: g.vmop(f'  buffer_load_dwordx4 a[244:247], v{vXS[1]}, s[{sX}:{sX+3}], s37 offen nt', None))
            light(94, it, 2, back=True)
        if PF:
            it = pf_items()
            rp = heavy(int(opts.get('pfa', 140)), it[-1])
            assert light(rp - 1, it[:-1], 2, back=True) > xpos[4][0]
        if opts.get('lim'):
            for r in vpos + [x[0] for x in xpos]:
                light(r - 1, [f'  s_waitcnt vmcnt({opts["lim"]})'], 2, back=True)
        for a, b in zip(xpos, xpos[1:]): assert b[0] - a[0] >= 5
        r1 = light(max(lastst, xpos[0][0]) + 1, [x for x in st_adv() if x != 'NOP'], 2)
        assert r1 < (E0_AT[0] + 4 if DIR else 144)
        return F
    def tile(t, G0=0):
        kp = t & 1
        F0 = fillers(t); F1 = fillers(t + 1)
        for G_ in range(G0, 12):
            mt, kg = G_ // 6, G_ % 6
            if DBG == 2 and G_ in (4, 10): e(f'  s_memrealtime s[{[42, 44, 48, 50][2*kp + (G_ == 10)]}:{[42, 44, 48, 50][2*kp + (G_ == 10)]+1}]')
            if G_ == 10:
                if G0 == 0 and kp == 1 and opts.get('skv'):
                    e(f'  s_cmp_ge_u32 s{sF[1]}, s{sOOB}')
                    e(f'  s_cbranch_scc1 L_npv{t}')
                    g.wait((kp, 'barv'), vm=('L', t + 1, 5))
                    e(f'L_npv{t}:')
                    g.wait((kp, 'bar'), lg=('OW', 0, 2))
                elif G0 == 0: g.wait((kp, 'bar'), vm=('L', t + 1, 5), lg=('OW', 0, 2))
                if kp == 0 and not unroll: e('L_ent:')
                e('  s_barrier')
                if DBG == 2: e(f'  s_memrealtime s[{[46, 52][kp]}:{[46, 52][kp]+1}]')
                if t & 1:
                    for r in vLdsR: e(f'  v_xor_b32 v{r}, {2*TILE_B}, v{r}')
            g.wait((kp, 'x', G_), lg=('X', t, 2*G_ + 1))
            for pd_ in (opts['pad'].split(',') if opts.get('pad') else []): e(f'  s_nop {pd_}')
            for nt in range(6):
                for k in range(2):
                    kk = k ^ (nt & 1) if opts.get('snake') else k
                    ks = 2*kg + kk; i = 12*mt + ks
                    x = XF + 8*(G_ % 3) + 4*kk
                    a = ACC + 24*mt + 4*nt
                    c = '0' if kg == 0 and k == 0 else f'v[{a}:{a+3}]'
                    e(f'  v_mfma_f32_16x16x32_bf16 v[{a}:{a+3}], {breg(ks, nt)}, a[{x}:{x+3}], {c}')
                    gap = 12*G_ + 2*nt + k
                    if gap % 12 in (0, 1):
                        j = 2*G_ + 4 + (gap % 12)
                        if j < 24: rd(t, j)
                        else: rd(t + 1, j - 24)
                    run(F0[gap + 24] if gap < 120 else F1[gap - 120])
    if FUSE:
        Q = (xdma_items(2) if XB == 12 else []) + [x if x != 'NOP' else '  s_nop 0' for x in st_adv()]
        E = epi(0, 0, 0) + epi(0, 1, 0) + epi(0, 2, 0)
        T1 = list(FIN[0])
        run(Q[:4]); Q = Q[4:]
        while T1 or E:
            if T1: e(T1.pop(0))
            run(E[:3]); E = E[3:]
        run(Q)
    stamp()
    if DBG:
        e(f'  s_mov_b32 s94, {sn[0]}')
        e('  s_mov_b32 s60, s64')
        e('  s_memtime s[38:39]') if 0 else e('  s_memtime s[86:87]')
    def tail(t):
        if DIR:
            e('  s_nop 3')
            for u in range(3): run(epi(1, u, t & 1))
            return
        done = [UORD[k] for k in range(6) if OS_AT[k] < 24]
        rdone = [UORD[k] for k in range(6) if OR_AT[k] < 24]
        for u in UORD:
            if u not in rdone: out_read(t, u)
        e('  s_nop 3')
        for u in range(3): run(epi(1, u, t & 1))
        for u in UORD:
            if u not in done: out_store(t, u, 'T')
        run([x if x != 'NOP' else '  s_nop 0' for x in st_adv(1)])
        e('  s_waitcnt lgkmcnt(0)')
        e('  s_barrier')
        for u in range(3):
            e(f'  ds_read_b128 a[{XF+4*u}:{XF+4*u+3}], v{vOR[u]} offset:{(t & 1)*TILE_B + 12288}')
        for u in range(3):
            e(f'  s_waitcnt lgkmcnt({2-u})')
            e(f'  buffer_store_dwordx4 a[{XF+4*u}:{XF+4*u+3}], v{[vTS3, vST[1], vST[2]][u]}, s[{sO}:{sO+3}], s{sSo[[2, 3, 3][u]]} offen{NT_ST}')
    PEEL = int(opts.get('peel', 0))
    def last_tile(t):
        F = [[] for _ in range(150)]
        use = [(1 if (r % 12 == 11 or (r % 12 in (0, 1) and r < 120)) else 0) for r in range(150)]
        def put(r, items):
            for it in items:
                if it == 'NOP': continue
                while use[r]: r += 1
                F[r].append(it); use[r] = 1
            return r
        def part(q):
            return [f'  s_mov_b32 s{sSo[1]}, s{q}', f'  s_mov_b32 s{sSo[3]}, s{q+1}', f'  s_min_u32 s{sSo[2]}, s{q}, s{q+1}',
                    f'  s_cmp_gt_u32 s{q}, s{q+1}', f'  s_cselect_b64 s[{sSm}:{sSm+1}], -1, 0', f'  v_cndmask_b32 v{vTS}, v{vST[4]}, v{vST4b}, s[{sSm}:{sSm+1}]']
        assert all(o < 24 for o in OR_AT) and UORD[:3] == [3, 4, 5]
        L1 = ints('l1', '6,16,28,40'); L2 = ints('l2', '62,74,88'); L3 = ints('l3', '120,128,136')
        BX, BY = int(opts.get('bx', 4)), int(opts.get('by', 9))
        rem = [UORD[k] for k in range(6) if OS_AT[k] >= 24]
        pos = {}
        for u, r in zip(rem, L1[-len(rem):]): pos[u] = put(r, [lambda u=u: out_store(t, u, 'L')])
        for u, r in zip((3, 4, 5), L2): p2 = put(r, [lambda u=u: out_store(t + 1, u, 'L2')])
        for u, r in zip((0, 1, 2), L3): put(r, [lambda u=u: out_store(t + 1, u, 'L2')])
        r = 3
        for u in range(3): r = put(r, epi(1, u, t & 1)) + 1
        assert r < 12*BX - 4
        r = 75
        for u in range(3): r = put(r, epi(0, u, t & 1)) + 1
        assert r < 12*BY - 4
        put(12*BX + 2, [lambda u=u: out_read(t + 1, u) for u in (3, 4, 5)])
        put(12*BY + 2, [lambda u=u: out_read(t + 1, u) for u in (0, 1, 2)])
        assert put(pos.get(5, 0) + 1, part(sF[2])) < L2[0] and max(pos.values()) < 12*BX
        put(max(pos.values()) + 1, [f'  s_mov_b32 s{sSo[0]}, s{sF[1]}'])
        put(p2 + 1, part(sF[1]))
        for G_ in range(12):
            mt, kg = G_ // 6, G_ % 6
            if G_ in (BX, BY):
                g.wait(('L', 'bar', G_), lg=('OW', 1 if G_ == BX else 0, 2))
                e('  s_barrier')
            g.wait(('L', 'x', G_), lg=('X', t, 2*G_ + 1))
            for nt in range(6):
                for k in range(2):
                    ks = 2*kg + k
                    x = XF + 8*(G_ % 3) + 4*k
                    a = ACC + 24*mt + 4*nt
                    c = '0' if ks == 0 else f'v[{a}:{a+3}]'
                    e(f'  v_mfma_f32_16x16x32_bf16 v[{a}:{a+3}], {breg(ks, nt)}, a[{x}:{x+3}], {c}')
                    gap = 12*G_ + 2*nt + k
                    if gap % 12 in (0, 1) and 2*G_ + 4 + (gap % 12) < 24: rd(t, 2*G_ + 4 + (gap % 12))
                    run(F[gap])
        assert not any(F[144:])
        if DBG:
            e('  s_mov_b32 m0, s94'); e('  s_nop 0'); e('  v_writelane_b32 v0, s60, m0')
            e('  s_memrealtime s[60:61]'); e('  s_memtime s[88:89]')
        else: e('  s_nop 1')
        for u in range(3): run(epi(1, u, (t + 1) & 1))
        e('  s_waitcnt lgkmcnt(0)')
        e('  s_barrier')
        for u in range(3):
            e(f'  ds_read_b128 a[{XF+4*u}:{XF+4*u+3}], v{vOR[u]} offset:{((t + 1) & 1)*TILE_B + 12288}')
        for u in range(3):
            e(f'  s_waitcnt lgkmcnt({2-u})')
            e(f'  buffer_store_dwordx4 a[{XF+4*u}:{XF+4*u+3}], v{vTS if u == 1 else vST[u+3]}, s[{sO}:{sO+3}], s{sSo[u+1]} offen{NT_ST}')
    if FUSE: g.wait('ent', vm=('L', 1, 5), lg=('OW', 0, 2))
    if PEEL and unroll:
        for t in range(NTILE - 1): tile(t)
        last_tile(NTILE - 1)
    elif PEEL:
        e('L_loop:')
        tile(0)
        e(f'  s_cmp_ge_u32 s{sF[0]}, s{sOOB}')
        e(f'  s_cbranch_scc1 L_tail')
        tile(1)
        if DBG:
            e('  s_mov_b32 m0, s94'); e('  s_nop 0'); e('  v_writelane_b32 v0, s60, m0')
            e('  s_add_u32 s94, s94, 1')
            e('  s_memrealtime s[60:61]')
        e(f'  s_branch L_loop')
        e('L_tail:')
        last_tile(1)
        if DBG: e('  s_mov_b32 s94, 15')
    elif unroll:
        tile(0, 10 if FUSE else 0)
        for t in range(1, NTILE): tile(t)
        tail(NTILE)
    else:
        if FUSE: e('  s_branch L_ent')
        if opts.get('al'): e(f'  .p2align {opts["al"]}')
        e('L_loop:')
        tile(0)
        tile(1)
        if DBG:
            e('  s_mov_b32 m0, s94'); e('  s_nop 0'); e('  v_writelane_b32 v0, s60, m0')
            e('  s_add_u32 s94, s94, 1')
            e('  s_min_u32 s94, s94, 15')
            e('  s_memrealtime s[60:61]')
        e(f'  s_cmp_lt_u32 s{sF[1]}, s{sOOB}')
        e(f'  s_cbranch_scc1 L_loop')
        e('L_tail:')
        if DBG: e('  s_memtime s[88:89]')
        tail(0)
        if DBG: e('  s_mov_b32 s94, 15')
    if DBG:
        e('  s_mov_b32 m0, s94'); e('  s_nop 0'); e('  v_writelane_b32 v0, s60, m0')
        e('  s_add_u32 s94, s94, 1')
        e('  s_load_dwordx2 s[24:25], s[0:1], 40')
        e('  s_waitcnt vmcnt(0)')
        e('  s_memrealtime s[54:55]')
        e('  s_memtime s[98:99]')
        e('  s_waitcnt lgkmcnt(0)')
        e('  s_mov_b32 m0, s94'); e('  s_nop 0'); e('  v_writelane_b32 v0, s54, m0')
        e('  s_sub_u32 s98, s98, s96')
        e('  s_add_u32 s98, s98, s64')
        e('  v_writelane_b32 v0, s98, 31')
        e('  s_sub_u32 s88, s88, s86')
        e('  v_writelane_b32 v0, s88, 30')
        if DBG == 2:
            for i in range(6): e(f'  v_writelane_b32 v0, s{42+2*i}, {17+i}')
        e(f'  v_writelane_b32 v0, s{sPv}, 29')
        e(f'  v_writelane_b32 v0, s{sDec}, 28')
        e(f'  v_writelane_b32 v0, s3, 27')
        e(f'  v_writelane_b32 v0, s{sPw}, 26')
        for i in range(sn[0]): e(f'  v_writelane_b32 v0, s{64+2*i}, {i}')
        e('  s_mov_b32 s56, s24'); e('  s_and_b32 s57, s25, 0xffff'); e('  s_mov_b32 s58, 452984832'); e('  s_mov_b32 s59, 0x00020000')
        e('  s_lshl_b32 s26, s2, 9'); e(f'  s_lshl_b32 s27, s{sW}, 7'); e('  s_add_u32 s26, s26, s27')
        e('  v_mbcnt_lo_u32_b32 v1, -1, 0')
        e('  v_lshlrev_b32 v1, 2, v1')
        e('  s_mov_b64 exec, 0xffffffff')
        e('  buffer_store_dword v0, v1, s[56:59], s26 offen')
    if AMP:
        e('  s_waitcnt vmcnt(0)')
        e('  s_memrealtime s[54:55]')
        e('  s_waitcnt lgkmcnt(0)')
        e(f'  s_cmp_lg_u32 s2, {int(opts.get("ampwg", 100))}')
        e('  s_cbranch_scc1 L_done')
        if AMP == 'c':
            e('  s_memtime s[98:99]')
            e('  s_waitcnt lgkmcnt(0)')
            e('  s_sub_u32 s27, s98, s96')
            e('  s_lshr_b32 s27, s27, 1')
        else:
            e(f'  s_sub_u32 s27, s{54 if AMP == "e" else 64 + 2*int(AMP)}, s64')
            e('  s_mul_i32 s27, s27, 10')
        e('L_spin:')
        e('  s_sleep 8')
        e('  s_memrealtime s[56:57]')
        e('  s_waitcnt lgkmcnt(0)')
        e('  s_sub_u32 s26, s56, s54')
        e('  s_cmp_lt_u32 s26, s27')
        e('  s_cbranch_scc1 L_spin')
    if NUMA:
        e('  s_endpgm')
        e('L_slow:')
        e(f'  v_mov_b32 v{vTX}, s{sEo}')
        e(f'  v_writelane_b32 v{vTX}, s{sVb}, 1')
        e(f'  v_writelane_b32 v{vTX}, s{sVc}, 2')
        SP = ACC + 40 if DEC else (254 if DS <= 10 else FT)
        assert DS != 11
        e(f'  v_mov_b32 v{SP}, 1')
        e(f'  v_mov_b32 v{SP+1}, 0')
        e('  s_mov_b64 exec, 7')
        e(f'  buffer_atomic_cmpswap v[{SP}:{SP+1}], v{vTX}, s[{sDS}:{sDS+3}], 0 offen sc0 sc1')
        e('  s_waitcnt vmcnt(0)')
        e(f'  v_readlane_b32 s{sRd}, v{SP}, 0')
        e(f'  v_readlane_b32 s{sRd+1}, v{SP}, 1')
        e(f'  v_readlane_b32 s{sRd2}, v{SP}, 2')
        e('  s_nop 3')
        e(f'  s_max_u32 s{sRd+1}, s{sRd+1}, 1')
        e(f'  s_max_u32 s{sRd2}, s{sRd2}, 1')
        e('  s_mov_b64 exec, -1')
        if DBG: e('  s_mov_b32 s3, 1')
        e('  s_branch L_back')
    e('L_done:')
    e('  s_endpgm')
    e('.section .rodata,"a"')
    e('.p2align 6')
    e('.amdhsa_kernel standalone__depthwise_separable__vision_kernel')
    e('  .amdhsa_next_free_vgpr 512')
    e('  .amdhsa_next_free_sgpr 100')
    e('  .amdhsa_accum_offset 256')
    e('  .amdhsa_group_segment_fixed_size 0')
    e('  .amdhsa_kernarg_size 48')
    e('  .amdhsa_user_sgpr_count 2')
    e('  .amdhsa_user_sgpr_kernarg_segment_ptr 1')
    e('  .amdhsa_system_sgpr_workgroup_id_x 1')
    e('  .amdhsa_float_denorm_mode_32 3')
    e('.end_amdhsa_kernel')

if __name__ == '__main__':
    out = sys.argv[1]
    opts = dict(a.split('=', 1) for a in sys.argv[2:])
    for k in ('nt_ld', 'nt_st', 'nt_b'):
        if k in opts: opts[k] = (' ' + opts[k].replace('+', ' ')) if opts[k] != 'none' else ''
    open(out, 'w').write(gen(opts))
```

```python
import sys, re
from gen3 import G, HDR
from gen5 import regs_of

def hazard_check(L):
    ins = [l.strip() for l in L if l.startswith('  ') and not l.strip().startswith(';')]
    hist = []; st = 0; last_valu = []; last_st = []; last_m0 = -9; last_sg = []; lastscc = ''
    for l in ins:
        op = l.split()[0]
        toks = [t.strip(',') for t in l.split()[1:]]
        allr = set()
        for t in toks: allr |= regs_of(t)
        if op.startswith('v_mfma'):
            d = regs_of(toks[0]); a = regs_of(toks[1]); b = regs_of(toks[2]); c = regs_of(toks[3])
            for (s0, r) in last_valu:
                if st - s0 - 1 < 2 and (r & (a | b | c)): raise Exception(f'VALU->MFMA hazard: {l}')
            for (s0, dd, cc) in hist:
                if st - s0 - 1 < 8 and (dd & (a | b)): raise Exception(f'MFMA D->A/B hazard: {l}')
                if st - s0 - 1 < 6 and (dd & c) and dd != c: raise Exception(f'MFMA D->C overlap hazard: {l}')
                if st - s0 - 1 < 6 and (dd & d) and dd != c: raise Exception(f'MFMA D->D WAW: {l}')
            for (s0, r) in last_st:
                if st - s0 - 1 < 8 and (r & d): raise Exception(f'store data WAR (mfma): {l}')
            hist.append((st, d, c))
        elif op.startswith('v_') or op.startswith('ds_') or op.startswith('buffer_'):
            for (s0, dd, cc) in hist:
                if st - s0 - 1 < 8 and (dd & allr): raise Exception(f'MFMA D->use hazard dist {st-s0-1}: {l}')
            if op.startswith('v_'):
                w = regs_of(toks[0])
                for (s0, dd, cc) in hist:
                    if st - s0 - 1 < 3 and (cc & w): raise Exception(f'MFMA C WAR hazard: {l}')
                for (s0, r) in last_st:
                    if st - s0 - 1 < 2 and (r & w): raise Exception(f'store data WAR: {l}')
                if op in ('v_readfirstlane_b32', 'v_readlane_b32'):
                    for (s0, r) in last_valu:
                        if st - s0 - 1 < 1 and (r & regs_of(toks[1])): raise Exception(f'readlane hazard: {l}')
                    last_sg.append((st, toks[0]))
                else:
                    for (s0, sg) in last_sg:
                        if st - s0 - 1 < 2 and sg in toks[1:]: raise Exception(f'VALU sgpr->VALU hazard: {l}')
                last_valu.append((st, w)); last_valu = last_valu[-4:]
            if op.startswith('buffer_store') or op.startswith('ds_write'):
                last_st.append((st, regs_of(toks[0] if op.startswith('buffer') else toks[1]))); last_st = last_st[-4:]
            if op.startswith('buffer_') and l.endswith('lds') and st - last_m0 - 1 < 1: raise Exception(f'm0 hazard: {l}')
            if op.startswith('buffer_'):
                for (s0, sg) in last_sg:
                    if st - s0 - 1 < 5 and sg in toks: raise Exception(f'VALU sgpr->VMEM hazard: {l}')
        elif op.startswith('s_') and toks and toks[0] == 'm0': last_m0 = st
        if op.startswith('s_cselect') or op.startswith('s_cbranch_scc'):
            if not (lastscc.startswith('s_cmp') or lastscc.startswith('s_bitcmp')): raise Exception(f'SCC clobbered by {lastscc}: {l}')
        elif re.match(r's_(add|sub|and|or|xor|min|max|lshl|lshr|cmp|bitcmp|andn2|ashr|bfe|not)', op): lastscc = op
        hist = [h for h in hist if st - h[0] < 24]
        st += int(toks[0]) + 1 if op == 's_nop' else 1

class G2(G):
    def __init__(self):
        self.need = {}
        super().__init__()
    def reset(self, mode):
        super().reset(mode); self.lgd = 0; self.vmd = 0
    def _cnt(self, lst, tag):
        if tag[:2] == ('O', 0) and tag not in lst: return len(lst)
        return super()._cnt(lst, tag)
    def wait(self, key, vm=None, lg=None, opt=False):
        if self.mode == 'collect2':
            nd = False
            if lg is not None and len(self.lg) - self._cnt(self.lg, lg) > self.lgd: nd = True
            if vm is not None and len(self.vm) - self._cnt(self.vm, vm) > self.vmd: nd = True
            self.need[key] = self.need.get(key, False) or nd or not opt
            v, l = self.sites[key]
            if not opt:
                if lg is not None: self.lgd = max(self.lgd, len(self.lg) - l)
                if vm is not None: self.vmd = max(self.vmd, len(self.vm) - v)
            return
        if self.mode in ('emit', 'check') and not self.need[key]: return
        super().wait(key, vm, lg)

def gen(opts):
    g = G2()
    g.reset('collect')
    build(g, opts, unroll=True)
    g.reset('collect2')
    build(g, opts, unroll=True)
    g.reset('check')
    build(g, opts, unroll=True)
    hazard_check(g.L)
    L2 = []; skip = None
    for l in g.L:
        if skip:
            if l == skip + ':': skip = None
            continue
        L2.append(l)
        m = re.match(r'  s_cbranch_scc1 (L_np\w*)', l)
        if m: skip = m.group(1)
    hazard_check(L2)
    g.reset('emit')
    build(g, opts, unroll=False)
    L = g.L
    if int(opts.get('iw', 0)):
        S = int(opts['iw'])
        i0 = L.index('L_tail:') + 1
        i1 = max(k for k, l in enumerate(L) if l == '  s_endpgm' and k < L.index('L_done:'))
        def size(l):
            t = l.strip()
            if not l.startswith('  '): return 0
            if re.match(r's_(waitcnt|barrier|nop|cbranch|branch|endpgm|cmp|mov_b32 s\d+, s|min_u32 s\d+, s\d+, s|cselect)', t): return 4
            return 8
        out = []; acc = S; n = 0
        for l in L[i0:i1]:
            if acc >= S and (l.startswith('  v_mfma') or l.startswith('  v_cvt') or l.startswith('  ds_') or l.startswith('  s_waitcnt')):
                out += [f'L_iw{n}:', f'@PAD{n}']; n += 1; acc = 4
            out.append(l); acc += size(l)
        seg = -(-n // 4)
        out = [(f'  s_cbranch_vccnz {"L_iwr" if (int(l[4:]) % seg == seg - 1 or int(l[4:]) == n - 1) else f"L_iw{int(l[4:]) + 1}"}' if l.startswith('@PAD') else l) for l in out]
        L = L[:i0] + out + L[i1:]
        h = L.index('@IWHOP')
        hop = ['  s_mov_b64 vcc, -1']
        for w in range(1, 4):
            if w * seg < n: hop += [f'  s_cmp_eq_u32 s20, {w}', f'  s_cbranch_scc1 L_iw{w*seg}']
        hop += ['  s_branch L_iw0', 'L_iwr:']
        L = L[:h] + hop + L[h+1:]
    L = [l for l in L if l != '@IWHOP']
    abl = opts.get('abl', '')
    if abl:
        i0 = L.index('L_loop:'); i1 = L.index('L_tail:')
        def keep(l):
            s = l.strip()
            if 'O' in abl and (s.startswith('ds_write_b128') or re.match(r'ds_read_b128 a\[(16[89]|17\d|18\d)', s)): return False
            if 'T' in abl and s.startswith('buffer_store'): return False
            if 'L' in abl and s.startswith('buffer_load'): return False
            if 'B' in abl and s.startswith('s_barrier'): return False
            if 'C' in abl and s.startswith('v_cvt'): return False
            if 'H' in abl and s.startswith('v_mfma') and int(re.search(r'v\[(\d+):', s).group(1)) % 8 == 4: return False
            return True
        L = L[:i0] + [l for l in L[i0:i1] if keep(l)] + L[i1:]
    return '\n'.join(L) + '\n'

def build(g, opts, unroll):
    NT_LD = opts.get('nt_ld', ' nt'); NT_ST = opts.get('nt_st', ' sc1'); NT_B = opts.get('nt_b', '')
    DBG = int(opts.get('dbg', 0)); AMP = opts.get('amp')
    DIR = int(opts.get('dir', 0))
    PD = int(opts.get('pd', 2))
    e = g.e
    TILE_B = 32 * 768; NTILE = 18; STRIDE = 256 * TILE_B
    LDS_O = 4 * TILE_B + 256; LDS_DW = 6 * TILE_B + 512; LDS_PR = LDS_DW + 4096; LDS_TOTAL = LDS_PR + 64
    AREA = [LDS_O, LDS_O + TILE_B + 64, 2 * TILE_B, 3 * TILE_B + 64]
    OOB = 113246208
    vLdsR = [1, 2, 3, 4]; vOR = [5, 6, 7]; vXS = [8, 9, 10]; vMk = [11, 12]; vTS2 = 13; vTS3 = 14; vTX = 15
    ACC = 16
    PT = 64
    vBL = [PT, PT+1, PT+2]; vTr = PT+3; vDW = PT+4; vM = [PT+5, PT+6]; vTr2 = PT+7
    DWR = [PT+8, PT+12]
    vST = [PT+16+i for i in range(3)]; vOW = [PT+22, PT+23]
    T = [ACC+i for i in range(12)]; vLane = ACC + 12
    FUSE = int(opts.get('fuse', 0))
    FT = 88 if FUSE else ACC; NFT = 6 if FUSE else (8 if opts.get('dec') else 12)
    BV = 112 if FUSE else 88
    NA = 6 if FUSE else 5
    ASLOTS = [int(c, 16) for c in opts.get('aslots', '012346' if FUSE else '13579')]
    NAR = 4 if FUSE else int(opts.get('nar', 4))
    if NAR == 5: AREA = [TILE_B + k * (TILE_B + 64) for k in range(5)]
    assert len(ASLOTS) == NA
    VSLOTS = [s for s in range(12) if s not in ASLOTS]
    XF = 144
    OB = 168
    RAW = [192, 216]
    sX, sO, sP, sD = 4, 8, 12, 16
    sW, sCnt = 20, 21
    sRing, sOOB = 39, 40
    sF = [76, 78, 80, 82]
    sBase, sVa, sDec, sEnd = 32, 33, 34, 35
    sXa, sXb, sXd, sXe = 22, 56, 57, 90; sSd = 91; sPw = 21
    sSo = [58, 59, 62, 63]; sSm = 90
    sDb = 92
    sDS = 16
    sRd = 88; sRd2 = 60; sVc = 61; sVb = 95; sEo = 36; sPa = 37; sPb = 38; sPr = 23; sPv = 41; sPT = 84
    KSTEP = 16 * 49152
    sG = [42, 43, 44]; sQ = [45, 46, 47, 48]; sBW = 49; sT = [50, 51, 52, 53]; sR1, sR2 = 54, 55

    def breg(s, nt, n=4, o=0):
        if s in ASLOTS:
            i = ASLOTS.index(s) * 24 + nt * 4 + o
            return f'a[{i}:{i+n-1}]' if n > 1 else f'a{i}'
        i = BV + VSLOTS.index(s) * 24 + nt * 4 + o
        return f'v[{i}:{i+n-1}]' if n > 1 else f'v{i}'
    sn = [0]
    def stamp():
        if DBG or AMP:
            e(f'  s_memrealtime s[{64+2*sn[0]}:{65+2*sn[0]}]'); sn[0] += 1
    def run(items):
        for it in items:
            if callable(it): it()
            else: e(it)

    e(HDR.rstrip('\n'))
    e(f'; @launch grid=(256,1,1) block=(256,1,1) lds={LDS_TOTAL}')
    e('.amdgcn_target "amdgcn-amd-amdhsa--gfx950"')
    e('.text')
    e('.globl standalone__depthwise_separable__vision_kernel')
    e('.p2align 8')
    e('.type standalone__depthwise_separable__vision_kernel,@function')
    e('standalone__depthwise_separable__vision_kernel:')
    e('  s_load_dwordx8 s[24:31], s[0:1], 0')
    e(f'  s_load_dwordx2 s[{sDb}:{sDb+1}], s[0:1], 32')
    e('  s_cmp_ge_u32 s2, 256')
    e('  s_cbranch_scc1 L_done')
    stamp()
    if AMP == 'c': e('  s_memtime s[96:97]')
    if DBG: e('  s_memtime s[96:97]'); e('  s_mov_b32 s3, 0'); e(f'  s_mov_b32 s{sPv}, 0')
    e(f'  v_lshrrev_b32 v{T[0]}, 6, v0')
    e(f'  v_and_b32 v{vLane}, 63, v0')
    e(f'  v_readfirstlane_b32 s{sW}, v{T[0]}')
    KICK = int(opts.get('kick', 0))
    def kick_a():
        e(f'  s_lshr_b32 s{sT[2]}, s2, 3')
        e(f'  s_mul_i32 s{sT[2]}, s{sT[2]}, 9216')
        if KICK == 2: e(f'  v_and_b32 v{T[5]}, 127, v0')
        e(f'  v_lshl_add_u32 v{T[5]}, v{T[5] if KICK == 2 else 0}, 7, s{sT[2]}')
        e(f'  v_min_u32 v{T[5]}, 294784, v{T[5]}')
    def kick_b():
        e('  s_waitcnt lgkmcnt(0)')
        g.vmop(f'  global_load_dword v{BV+1}, v{T[5]}, s[28:29]', ('K',))
    if KICK: kick_a()
    if KICK and opts.get('kf'): kick_b()
    CW = int(opts.get('cw', 128))
    if CW:
        e(f'  s_getpc_b64 s[{sT[0]}:{sT[1]}]')
        e('L_pc:')
        e(f'  v_mul_u32_u24 v{T[2]}, {CW}, v0')
        e(f'  v_min_u32 v{T[2]}, L_done-L_pc, v{T[2]}')
        e(f'  v_mov_b32 v{T[3]}, s{sT[1]}')
        e(f'  v_add_co_u32 v{T[2]}, vcc, s{sT[0]}, v{T[2]}')
        e(f'  s_nop 1')
        e(f'  v_addc_co_u32 v{T[3]}, vcc, 0, v{T[3]}, vcc')
        g.vmop(f'  global_load_dword v{BV}, v[{T[2]}:{T[3]}], off', ('CW',))
    if KICK and not opts.get('kf'): kick_b()
    e(f'  s_lshr_b32 s{sT[0]}, s2, 3')
    e(f'  s_and_b32 s{sR2}, s{sT[0]}, 3')
    e(f'  s_lshr_b32 s{sR1}, s{sT[0]}, 2')
    e(f'  s_mul_i32 s{sT[1]}, s{sR1}, 11')
    e(f'  s_lshr_b32 s{sT[1]}, s{sT[1]}, 5')
    e(f'  s_mul_i32 s{sT[1]}, s{sT[1]}, 3')
    e(f'  s_sub_u32 s{sR1}, s{sR1}, s{sT[1]}')
    if opts.get('norot'):
        e(f'  s_mov_b32 s{sR1}, 0'); e(f'  s_mov_b32 s{sR2}, 0')
    e(f'  s_mul_i32 s{sT[2]}, s{sW}, 192')
    for i in range(3):
        if i: e(f'  v_add_u32 v{T[1]}, {64*i}, v{vLane}')
        q = T[1] if i else vLane
        e(f'  v_mul_u32_u24 v{T[2]}, 0xaaab, v{q}')
        e(f'  v_lshrrev_b32 v{T[2]}, 19, v{T[2]}')
        e(f'  v_mul_u32_u24 v{T[3]}, 576, v{T[2]}')
        e(f'  v_lshl_add_u32 v{T[3]}, v{vLane}, 4, v{T[3]}')
        if i == 1:
            e(f'  v_lshrrev_b32 v{T[2]}, 3, v{T[2]}')
            e(f'  v_mul_u32_u24 v{T[2]}, 6144, v{T[2]}')
            e(f'  v_add_u32 v{T[3]}, v{T[3]}, v{T[2]}')
        if i == 2: e(f'  v_add_u32 v{T[3]}, 6144, v{T[3]}')
        e(f'  v_add_u32 v{vBL[i]}, s{sT[2]}, v{T[3]}')
    NUMA = int(opts.get('numa', 1))
    PRM = int(opts.get('prm', 28))
    def srd(sd, lo, nbytes):
        e(f'  s_mov_b32 s{sd}, s{lo}')
        e(f'  s_and_b32 s{sd+1}, s{lo+1}, 0xffff')
        e(f'  s_mov_b32 s{sd+2}, {nbytes}')
        e(f'  s_mov_b32 s{sd+3}, 0x00020000')
    def p_gb1():
        e(f'  s_add_u32 s{sG[1]}, s{sG[0]}, 98304')
        e(f'  s_cmp_eq_u32 s{sR1}, 2')
        e(f'  s_cselect_b32 s{sG[1]}, 0, s{sG[1]}')
        e(f'  s_add_u32 s{sG[2]}, s{sG[1]}, 98304')
        e(f'  s_cmp_eq_u32 s{sR1}, 1')
        e(f'  s_cselect_b32 s{sG[2]}, 0, s{sG[2]}')
        for q in range(1, 4):
            e(f'  s_xor_b32 s{sQ[q]}, s{sR2}, {q}')
            e(f'  s_mul_i32 s{sQ[q]}, s{sQ[q]}, {TILE_B}')
    def p_dws():
        e(f'  s_lshl_b32 s{sT[3]}, s{sR2}, 2')
        e(f'  v_lshrrev_b32 v{T[1]}, 4, v{vLane}')
        e(f'  v_add_u32 v{T[2]}, s{sR1}, v{T[1]}')
        e(f'  v_subrev_u32 v{T[3]}, 3, v{T[2]}')
        e(f'  v_min_u32 v{T[2]}, v{T[2]}, v{T[3]}')
        e(f'  v_and_b32 v{T[4]}, 15, v{vLane}')
        e(f'  v_xor_b32 v{T[3]}, s{sT[3]}, v{T[4]}')
        e(f'  v_lshlrev_b32 v{T[3]}, 4, v{T[3]}')
        e(f'  v_lshl_add_u32 v{T[3]}, v{T[2]}, 8, v{T[3]}')
        e(f'  v_cmp_lt_u32 vcc, 47, v{vLane}')
        e(f'  s_lshl_b32 s{sT[0]}, s{sW}, 10')
        e(f'  s_add_u32 m0, s{sT[0]}, {LDS_DW}')
        e(f'  v_cndmask_b32 v{T[3]}, v{T[3]}, v{vBL[2]}, vcc')
    def p_tl():
        e(f'  s_lshr_b32 s{sT[1]}, s2, 5')
        e(f'  s_and_b32 s{sT[2]}, s2, 3')
        e(f'  s_lshl2_add_u32 s{sEo}, s{sT[1]}, s{sT[2]}')
        e(f'  s_lshl_b32 s{sEo}, s{sEo}, 2')
        e(f'  s_mul_i32 s{sT[1]}, s{sT[1]}, 144')
        e(f'  s_lshr_b32 s{sT[2]}, s{sT[2]}, 1')
        e(f'  s_lshl1_add_u32 s{sT[2]}, s{sR2}, s{sT[2]}')
        e(f'  s_add_u32 s{sT[1]}, s{sT[1]}, s{sT[2]}')
        e(f'  s_mul_i32 s{sBase}, s{sT[1]}, 98304')
        e(f'  s_add_u32 s{sEnd}, s{sBase}, {NTILE*KSTEP}')
        if NUMA:
            e(f'  s_lshl_b32 s{sT[1]}, s{sW}, 11')
            e(f'  s_and_b32 s{sT[2]}, s2, 3')
            e(f'  s_lshl_b32 s{sT[2]}, s{sT[2]}, 8')
            e(f'  s_add_u32 s{sT[1]}, s{sT[1]}, s{sT[2]}')
            e(f'  s_add_u32 s{sPa}, s{sBase}, s{sT[1]}')
            e(f'  s_add_u32 s{sPa}, s{sPa}, {9*KSTEP + 32768}')
            e(f'  s_and_b32 s{sPr}, s2, {PRM}')
            e(f'  s_bitcmp1_b32 s2, 1')
            e(f'  s_cselect_b32 s{sPw}, 98304, 0')
            e(f'  s_sub_u32 s{sPa}, s{sPa}, s{sPw}')
            e(f'  s_add_u32 s{sPb}, s{sPa}, 8192')
            e(f'  s_cmp_lg_u32 s{sPr}, 0')
    def p_warm():
        if NUMA:
            e(f'  s_cbranch_scc1 L_np0')
            e(f'  s_load_dword s{sPT}, s[24:25], s{sPa} glc')
            e(f'  s_load_dword s{sPT+1}, s[24:25], s{sPb} glc')
            e('L_np0:')
    def p_dwl():
        srd(sD, 26, 768)
        g.vmop(f'  buffer_load_dwordx4 v{T[3]}, s[{sD}:{sD+3}], 0 offen lds', ('W',))
    e(f'  s_mul_i32 s{sG[0]}, s{sR1}, 98304')
    e(f'  s_mul_i32 s{sQ[0]}, s{sR2}, {TILE_B}')
    e(f'  s_mul_i32 s{sBW}, s{sW}, 6160')
    LEAN = int(opts.get('lean', 2))
    if LEAN == 0: p_gb1(); p_dws()
    if LEAN <= 1: p_tl()
    e('  s_waitcnt lgkmcnt(0)')
    if LEAN <= 1: p_warm()
    if LEAN == 0: p_dwl()
    srd(sP, 28, 294912)
    def bload(s):
        it = []
        for h in range(2):
            it.append(f'  s_add_u32 m0, s{sBW}, {AREA[s % NAR] + h*3080}')
            it.append(f'  s_add_u32 s{sT[0]}, s{sG[s >> 2]}, s{sQ[s & 3]}' if h == 0 else f'  s_add_u32 s{sT[0]}, s{sT[0]}, 6144')
            for i in range(3):
                it.append(lambda h=h, i=i: g.vmop(f'  buffer_load_dwordx4 v{vBL[i]}, s[{sP}:{sP+3}], s{sT[0]} offen offset:{i*1024}{NT_B} lds', ('B', s, 3*h + i)))
        return it
    def halfA(f, o0, dl):
        return [f'  s_cmp_eq_u32 s{f+1}, 0', f'  s_cselect_b32 s{dl}, 73728, s26', f'  s_add_u32 s{o0}, s{f}, s{f+1}',
                f'  s_add_u32 s{o0}, s{o0}, s{dl}', f'  s_min_u32 s{o0}, s{o0}, s{sOOB}']
    def halfB(f, o2, dl, d1p):
        return [f'  s_cmp_eq_u32 s{f+1}, 73728', f'  s_cselect_b32 s{dl}, {-73728 & 0xffffffff}, s27', f'  s_add_u32 s{d1p}, s{f+1}, 12288',
                f'  s_add_u32 s{o2}, s{f}, s{d1p}', f'  s_add_u32 s{o2}, s{o2}, s{dl}', f'  s_min_u32 s{o2}, s{o2}, s{sOOB}']
    def mixv(dst, src, mk, dl, d1):
        return [f'  v_and_b32 v{dst}, s{dl}, v{mk}', f'  v_add3_u32 v{dst}, v{src}, v{dst}, s{d1}']
    def xdma(t, u):
        it = []
        a, b = sF[0], sF[0] + 1
        if u == 0:
            it += [f'  s_mov_b64 s[{sF[k]}:{sF[k]+1}], s[{sF[k-1]}:{sF[k-1]+1}]' for k in range(len(sF) - 1, 0, -1)]
            it += [f'  s_add_u32 s{a}, s{sVa}, s{sBase}', f'  s_xor_b32 s{a}, s{a}, s{sDec}',
                   f'  s_bfe_u32 s{b}, s{a}, {21 | (1 << 16)}', f'  s_bfe_u32 s{a}, s{a}, {19 | (1 << 16)}', f'  s_lshl1_add_u32 s{b}, s{a}, s{b}',
                   f'  s_sub_u32 s{b}, 1, s{b}', f'  s_and_b32 s{b}, s{b}, 3', f'  s_mul_i32 s{b}, s{b}, {TILE_B}',
                   f'  s_cmp_lt_u32 s{sBase}, s{sEnd}', f'  s_cselect_b32 s{a}, s{sBase}, s{sOOB}', f'  s_add_u32 s{sBase}, s{sBase}, {KSTEP}']
            it += halfA(a, sXa, sXd)
        if u == 2: it += mixv(vTX, vXS[2], vMk[0], sXd, b)
        if u == 3: it += halfB(a, sXb, sXd, sXe) + mixv(vTX, vXS[0], vMk[1], sXd, sXe)
        it.append(f'  s_add_u32 m0, s{sRing}, {(t & 1)*TILE_B + u*4096}')
        if u == 5 and (t & 1): it.append(f'  s_xor_b32 s{sRing}, s{sRing}, {2*TILE_B}')
        else: it.append('NOP')
        it.append(lambda: g.vmop(f'  buffer_load_dwordx4 v{vTX if u in (2, 3) else vXS[u % 3]}, s[{sX}:{sX+3}], s{[sXa, sXa, a, a, sXb, sXb][u]} offen{NT_LD} lds', ('L', t, u)))
        return it
    PF = opts.get('pf')
    vPF = PT + 2; vPD = PT + 3; sPf0 = 21; sPfo = 37
    def pf_items():
        return [f'  s_add_u32 s{sPfo}, s{sVa}, s{sBase}', f'  s_xor_b32 s{sPfo}, s{sPfo}, s{sDec}', f'  s_lshr_b32 s{sPfo}, s{sPfo}, 8',
                f'  s_and_b32 s{sPfo}, s{sPfo}, 8192', f'  s_add_u32 s{sPfo}, s{sPfo}, s{sBase}',
                f'  s_cmp_lt_u32 s{sBase}, s{sEnd}', f'  s_cselect_b32 s{sPfo}, s{sPfo}, s{sOOB}',
                f'  s_cmp_ge_u32 s{sBase}, s{sPf0}', f'  s_cselect_b32 s{sPfo}, s{sPfo}, s{sOOB}',
                lambda: g.vmop(f'  buffer_load_dword v{vPD}, v{vPF}, s[{sX}:{sX+3}], s{sPfo} offen{opts.get("pfl", "")}', None)]
    def xdma_items(t):
        return ['  s_nop 0' if x == 'NOP' else x for u in range(6) for x in xdma(t, u)]
    NB0 = int(opts.get('nb0', 1)) if FUSE else 99
    NI = int(opts.get('ni', 1))
    run(bload(0))
    if LEAN == 2: p_tl(); p_warm()
    if LEAN: p_dws(); p_dwl(); p_gb1()
    for s in range(1, min(NB0, NI)): run(bload(s))
    if opts.get('tw'):
        e(f'  v_mov_b32 v{T[5]}, s{sBase}')
        g.vmop(f'  global_load_dword v{BV+2}, v{T[5]}, s[24:25]', ('K',))
        g.vmop(f'  global_load_dword v{BV+3}, v{T[5]}, s[30:31]', ('K',))
    if opts.get('st2') == '2': stamp()
    srd(sX, 24, 113246208)
    hi2, lo4 = T[1], T[4]
    e(f'  s_add_u32 s{sVa}, s24, 49152')
    e(f'  s_mov_b32 s{sOOB}, {OOB}')
    e(f'  s_mov_b32 s26, {-24576 & 0xffffffff}')
    e('  s_mov_b32 s27, 24576')
    e(f'  s_lshl_b32 s{sRing}, s{sW}, 10')
    for x in sF[:3]: e(f'  s_mov_b32 s{x}, s{sOOB}'); e(f'  s_mov_b32 s{x+1}, 0')
    e(f'  s_lshr_b32 s{sDec}, s2, 1')
    e(f'  s_xor_b32 s{sDec}, s{sDec}, s2')
    e(f'  s_and_b32 s{sDec}, s{sDec}, 4')
    e(f'  s_and_b32 s{sT[1]}, s2, 1')
    e(f'  s_or_b32 s{sDec}, s{sDec}, s{sT[1]}')
    e(f'  s_lshl_b32 s{sDec}, s{sDec}, 19')
    ROW = [ACC+16, ACC+17, ACC+18]; GG = [ACC+19, ACC+20, ACC+21]
    def rowmap(dst, dst4b, base, u):
        if u == 0:
            e(f'  v_add_u32 v{dst[3]}, {26*768}, v{base}')
            if base != dst[0]: e(f'  v_mov_b32 v{dst[0]}, v{base}')
        if u == 1:
            e(f'  v_cmp_lt_u32 vcc, 5, v{ROW[1]}')
            e(f'  v_add_u32 v{T[8]}, {26*768}, v{base}')
            e(f'  v_add_u32 v{T[9]}, {37*768}, v{base}')
            e(f'  v_cndmask_b32 v{dst[4]}, v{T[8]}, v{T[9]}, vcc')
            if dst4b is not None:
                e(f'  v_add_u32 v{T[8]}, {58*768}, v{base}')
                e(f'  v_add_u32 v{T[9]}, {5*768}, v{base}')
                e(f'  v_cndmask_b32 v{dst4b}, v{T[8]}, v{T[9]}, vcc')
            if base != dst[1]: e(f'  v_mov_b32 v{dst[1]}, v{base}')
        if u == 2:
            e(f'  v_cmp_lt_u32 vcc, 10, v{ROW[2]}')
            e(f'  v_add_u32 v{T[8]}, 7680, v{base}')
            e(f'  v_add_u32 v{dst[5]}, {5*768}, v{base}')
            e(f'  v_cndmask_b32 v{dst[2]}, v{base}, v{T[8]}, vcc')
    e(f'  v_lshrrev_b32 v{GG[0]}, 4, v0')
    e(f'  v_xor_b32 v{T[6]}, s{sT[3]}, v{lo4}')
    for u in range(3):
        if u: e(f'  v_add_u32 v{GG[u]}, {16*u}, v{GG[0]}')
        e(f'  v_mul_u32_u24 v{ROW[u]}, 43, v{GG[u]}')
        e(f'  v_lshrrev_b32 v{ROW[u]}, 7, v{ROW[u]}')
        e(f'  v_mul_u32_u24 v{T[2]}, 3, v{ROW[u]}')
        e(f'  v_sub_u32 v{T[3]}, v{GG[u]}, v{T[2]}')
        e(f'  v_add_u32 v{T[3]}, s{sR1}, v{T[3]}')
        e(f'  v_subrev_u32 v{T[5]}, 3, v{T[3]}')
        e(f'  v_min_u32 v{T[3]}, v{T[3]}, v{T[5]}')
        e(f'  v_add_u32 v{T[3]}, v{T[3]}, v{T[2]}')
        e(f'  v_xor_b32 v{T[5]}, v{ROW[u]}, v{T[6]}')
        e(f'  v_lshlrev_b32 v{T[5]}, 4, v{T[5]}')
        e(f'  v_lshl_add_u32 v{vXS[u]}, v{T[3]}, 8, v{T[5]}')
        if u != 1:
            e(f'  v_cmp_eq_u32 vcc, {10 if u == 2 else 5}, v{ROW[u]}')
            e(f'  s_nop 1')
            e(f'  v_cndmask_b32 v{vMk[0 if u == 2 else 1]}, 0, -1, vcc')
    if NB0 <= 2: run(xdma_items(0))
    STG = int(opts.get('stg', 0))
    sS3 = [58, 59, 62]; sSR = 63
    def x0_site(early):
        it = []
        if early: it += [x for x in xdma(0, 0)[:-3]]
        it += [f'  s_and_b32 s{sSR}, s2, {STG}', f'  s_cmp_eq_u32 s{sSR}, 0' if early else f'  s_cmp_lg_u32 s{sSR}, 0']
        for r, src in zip(sS3, (sF[0], sX4, sF[0] + 1)): it.append(f'  s_cselect_b32 s{r}, s{src}, s{sOOB}')
        it += [f'  s_cselect_b32 s{sSR}, 0, {TILE_B}', f'  s_add_u32 s{sSR}, s{sSR}, s{sRing}']
        for u in range(6):
            if u == 4: it.append(f'  v_cndmask_b32 v{vTX}, v{vXS[4]}, v{vXS4b}, s[{sXm}:{sXm+1}]')
            it += [f'  s_add_u32 m0, s{sSR}, {u*4096}', '  s_nop 0',
                   lambda u=u: g.vmop(f'  buffer_load_dwordx4 v{vTX if u == 4 else vXS[u]}, s[{sX}:{sX+3}], s{sS3[max(0, u - 3)]} offen{NT_LD} lds', ('L', 0, u))]
        return it
    XE = int(opts.get('xe', -1))
    if STG and XE < 0: run(x0_site(True))
    for s in range(NB0, 2): run(bload(s))
    srd(sO, 30, 113246208)
    e(f'  v_lshlrev_b32 v{vST[0]}, 4, v0')
    for u in range(3):
        if u: e(f'  v_add_u32 v{vST[u]}, {4096*u}, v{vST[0]}')
        e(f'  v_and_b32 v{T[5]}, 7, v{ROW[u]}')
        e(f'  v_xor_b32 v{T[5]}, v{T[5]}, v{lo4}')
        e(f'  v_lshlrev_b32 v{T[5]}, 4, v{T[5]}')
        e(f'  v_lshl_add_u32 v{T[5]}, v{GG[u]}, 8, v{T[5]}')
        e(f'  v_add_u32 v{vOR[u]}, {LDS_O}, v{T[5]}')
    e(f'  v_mul_u32_u24 v{T[0]}, 0x300, v{lo4}')
    e(f'  v_xor_b32 v{T[2]}, v{hi2}, v{lo4}')
    e(f'  v_lshl_add_u32 v{vLdsR[0]}, v{T[2]}, 4, v{T[0]}')
    for s in range(1, 4): e(f'  v_xor_b32 v{vLdsR[s]}, {s*64}, v{vLdsR[0]}')
    e(f'  s_mul_i32 s{sT[1]}, s{sW}, 12')
    e(f'  v_and_b32 v{T[2]}, 7, v{lo4}')
    for u in range(2):
        e(f'  v_add_u32 v{T[3]}, s{sT[1]}, v{hi2}')
        if u: e(f'  v_add_u32 v{T[3]}, {4*u}, v{T[3]}')
        e(f'  v_xor_b32 v{T[3]}, v{T[3]}, v{T[2]}')
        e(f'  v_lshl_add_u32 v{vOW[u]}, v{T[3]}, 4, v{T[0]}')
        e(f'  v_add_u32 v{vOW[u]}, {LDS_O}, v{vOW[u]}')
    e(f'  v_bfe_u32 v{T[2]}, v{vLane}, 2, 2')
    e(f'  v_and_b32 v{T[3]}, 3, v{vLane}')
    e(f'  v_lshrrev_b32 v{T[5]}, 1, v{hi2}')
    e(f'  v_lshl_add_u32 v{T[5]}, v{T[5]}, 3, v{T[2]}')
    e(f'  v_mul_u32_u24 v{T[5]}, 192, v{T[5]}')
    e(f'  v_and_b32 v{T[7]}, 1, v{hi2}')
    e(f'  v_mul_u32_u24 v{T[7]}, 3080, v{T[7]}')
    e(f'  v_add_u32 v{T[5]}, v{T[5]}, v{T[7]}')
    e(f'  v_lshl_add_u32 v{T[5]}, v{T[3]}, 4, v{T[5]}')
    e(f'  s_add_u32 s{sT[1]}, s{sBW}, {AREA[2]}')
    e(f'  v_add_u32 v{vTr2}, s{sT[1]}, v{T[5]}')
    e(f'  v_add_u32 v{vTr}, {(AREA[0] - AREA[2]) & 0xffffffff}, v{vTr2}')
    e(f'  s_add_u32 s{sT[1]}, s{sRing}, {LDS_DW}')
    e(f'  v_lshl_add_u32 v{vDW}, v{hi2}, 4, s{sT[1]}')
    e(f'  v_and_b32 v{T[5]}, 1, v{vLane}')
    e(f'  v_lshlrev_b32 v{T[5]}, 4, v{T[5]}')
    e(f'  v_mov_b32 v{T[7]}, 0xffff')
    e(f'  v_lshlrev_b32 v{T[5]}, v{T[5]}, v{T[7]}')
    e(f'  v_lshlrev_b32 v{T[0]}, 1, v{hi2}')
    e(f'  v_bfe_u32 v{T[7]}, v{vLane}, 1, 3')
    e(f'  v_cmp_eq_u32 vcc, v{T[0]}, v{T[7]}')
    e(f'  v_add_u32 v{T[0]}, 1, v{T[0]}')
    e(f'  s_nop 0')
    e(f'  v_cndmask_b32 v{vM[0]}, 0, v{T[5]}, vcc')
    e(f'  v_cmp_eq_u32 vcc, v{T[0]}, v{T[7]}')
    srd(sDS, sDb, 256)
    e(f'  v_cndmask_b32 v{vM[1]}, 0, v{T[5]}, vcc')
    NR = int(opts.get('nr', 2))
    def probe():
        e(f'  s_cmp_lg_u32 s{sPr}, 0')
        e(f'  s_cbranch_scc1 L_npr')
        e(f'  s_mov_b32 s{sPv}, 0xffff')
        e(f'  s_mov_b32 s{sRd}, 0xffff')
        e(f'  s_lshl_b32 s{sT[2]}, s{sW}, 2')
        e(f'  s_add_u32 s{sT[2]}, s{sT[2]}, {LDS_PR}')
        e(f'  v_mov_b32 v{T[0]}, s{sT[2]}')
        if int(opts.get('pb', 0)):
            e('  s_waitcnt lgkmcnt(0)')
            for i in range(NR):
                e('  s_barrier')
                e(f'  s_memtime s[{sPT}:{sPT+1}]')
                e(f'  s_load_dword s{sT[2]}, s[24:25], s{sPb if i & 1 else sPa} glc')
                e('  s_waitcnt lgkmcnt(0)')
                e(f'  s_memtime s[{sPT+2}:{sPT+3}]')
                e('  s_waitcnt lgkmcnt(0)')
                e(f'  s_sub_u32 s{sT[1]}, s{sPT+2}, s{sPT}')
                e(f'  s_min_u32 s{sRd if i & 1 else sPv}, s{sRd if i & 1 else sPv}, s{sT[1]}')
        else:
            e('  s_waitcnt lgkmcnt(0)')
            e(f'  s_memtime s[{sPT}:{sPT+1}]')
            for i in range(NR):
                a, b = (sPT, sPT + 2) if i % 2 == 0 else (sPT + 2, sPT)
                e(f'  s_load_dword s{sT[2]}, s[24:25], s{sPb if i & 1 else sPa} glc')
                e('  s_waitcnt lgkmcnt(0)')
                if i:
                    e(f'  s_sub_u32 s{sT[1]}, s{a}, s{b}')
                e(f'  s_memtime s[{b}:{b+1}]')
                if i: e(f'  s_min_u32 s{sRd if (i - 1) & 1 else sPv}, s{sRd if (i - 1) & 1 else sPv}, s{sT[1]}')
            e('  s_waitcnt lgkmcnt(0)')
            e(f'  s_sub_u32 s{sT[1]}, s{sPT}, s{sPT+2}')
            e(f'  s_min_u32 s{sRd}, s{sRd}, s{sT[1]}')
        e(f'  s_lshl_b32 s{sPv}, s{sPv}, 16')
        e(f'  s_or_b32 s{sPv}, s{sPv}, s{sRd}')
        e(f'  v_mov_b32 v{T[2]}, s{sPv}')
        e(f'  ds_write_b32 v{T[0]}, v{T[2]}')
        e('  s_waitcnt lgkmcnt(0)')
        e(f'L_npr:')
    PQ = 248
    assert 11 not in ASLOTS
    def publish():
        if NB0 >= 2:
            e(f'  s_cmp_lg_u32 s{sPr}, 0')
            e(f'  s_cbranch_scc1 L_np1')
            e('  s_barrier')
        e(f'  s_or_b32 s{sT[1]}, s{sPr}, s{sW}')
        e(f'  s_cmp_lg_u32 s{sT[1]}, 0')
        e(f'  s_cbranch_scc1 L_np1')
        PR = 240
        e(f'  v_mov_b32 v{PR+8}, {LDS_PR}')
        e(f'  ds_read_b128 v[{PR}:{PR+3}], v{PR+8}')
        e(f'  s_add_u32 s{sT[1]}, s{sVa}, s{sBase}')
        e(f'  s_add_u32 s{sT[1]}, s{sT[1]}, {9*KSTEP}')
        e(f'  s_sub_u32 s{sT[1]}, s{sT[1]}, s{sPw}')
        e(f'  s_lshr_b32 s{sT[2]}, s{sT[1]}, 20')
        e(f'  s_lshr_b32 s{sT[0]}, s2, 1')
        e(f'  s_xor_b32 s{sT[2]}, s{sT[2]}, s{sT[0]}')
        e(f'  s_and_b32 s{sT[2]}, s{sT[2]}, 2')
        e(f'  s_lshr_b32 s{sT[1]}, s{sT[1]}, 17')
        e(f'  s_and_b32 s{sT[1]}, s{sT[1]}, 4')
        e(f'  s_or_b32 s{sT[1]}, s{sT[1]}, s{sT[2]}')
        e(f'  s_or_b32 s{sT[1]}, s{sT[1]}, 1')
        e(f'  v_mov_b32 v{PR+11}, 0')
        e(f'  v_mov_b32 v{PR+8}, s{sEo}')
        e('  s_waitcnt lgkmcnt(0)')
        for o in (0,):
            e(f'  v_pk_min_u16 v{PR+o}, v{PR+o}, v{PR+o+1}')
            e(f'  v_pk_min_u16 v{PR+o+2}, v{PR+o+2}, v{PR+o+3}')
            e(f'  v_pk_min_u16 v{PR+o}, v{PR+o}, v{PR+o+2}')
            e(f'  v_lshrrev_b32 v{PR+o+1}, 16, v{PR+o}')
            e(f'  v_and_b32 v{PR+o}, 0xffff, v{PR+o}')
        e(f'  v_cmp_gt_u32 vcc, v{PR+1}, v{PR}')
        e(f'  v_min_u32 v{PR+2}, v{PR}, v{PR+1}')
        e('  s_nop 0')
        e(f'  v_cndmask_b32 v{PR+10}, 0, 2, vcc')
        e(f'  v_xor_b32 v{PR+10}, s{sT[1]}, v{PR+10}')
        e('  s_mov_b64 exec, 1')
        e(f'  v_lshl_or_b32 v{PR+10}, v{PR+2}, 16, v{PR+10}')
        e(f'  buffer_atomic_cmpswap v[{PR+10}:{PR+11}], v{PR+8}, s[{sDS}:{sDS+3}], 0 offen sc1')
        e('  s_mov_b64 exec, -1')
        e('L_np1:')
    if opts.get('st2') == '2': stamp()
    if int(opts.get('iw', 0)):
        for r in sSo: e(f'  s_mov_b32 s{r}, s{sOOB}')
        e(f'  s_mov_b64 s[{sSm}:{sSm+1}], 0')
        if opts.get('iwp', '0') == '0': e('@IWHOP')
    PP = int(opts.get('pp', 1))
    if NUMA and PP == -1: probe()
    for s in range(NI, 2): run(bload(s))
    if NUMA and PP == 0: probe()
    LA = int(opts.get('la', NAR))
    assert LA <= NAR
    if LA > 2: run(bload(2))
    if NUMA and PP == 1: probe()
    if NB0 == 3: run(xdma_items(0))
    if LA > 3: run(bload(3))
    if LA > 4: run(bload(4))
    if NUMA and PP == 2: probe()

    def trs(s):
        it = [lambda: g.wait(('b', s), vm=('W',) if (s == 0 and LEAN) else ('B', s, 5))]
        base = vTr if (s % NAR) < 2 else vTr2
        so = AREA[s % NAR] - AREA[0 if (s % NAR) < 2 else 2]
        it.append(lambda: g.lgop(f'  ds_read_b128 v[{DWR[s & 1]}:{DWR[s & 1]+3}], v{vDW} offset:{s*64}', ('TR', s)))
        for nt in range(6):
            for hh in range(2):
                r = RAW[s & 1] + nt*4 + 2*hh
                it.append(lambda r=r, nt=nt, hh=hh: g.lgop(f'  ds_read_b64_tr_b16 a[{r}:{r+1}], v{base} offset:{so + hh*768 + (nt >> 1)*64 + (nt & 1)*8}', ('TR', s)))
        return it
    def cvts(s, j, q=None):
        nt, hh = j // 2, j % 2
        if q is None: q = FT + 4*(j % NFT)
        if s in ASLOTS:
            return [f'  v_cvt_pk_bf16_f32 v{q}, v{q}, v{q+1}', f'  v_cvt_pk_bf16_f32 v{q+1}, v{q+2}, v{q+3}',
                    f'  v_accvgpr_write_b32 {breg(s, nt, 1, 2*hh)}, v{q}', f'  v_accvgpr_write_b32 {breg(s, nt, 1, 2*hh+1)}, v{q+1}']
        return [f'  v_cvt_pk_bf16_f32 {breg(s, nt, 1, 2*hh)}, v{q}, v{q+1}', f'  v_cvt_pk_bf16_f32 {breg(s, nt, 1, 2*hh+1)}, v{q+2}, v{q+3}']
    def rd(t, i):
        mt, ks = i // 12, i % 12
        x = XF + 8*((i // 2) % 3) + 4*(i & 1)
        g.lgop(f'  ds_read_b128 a[{x}:{x+3}], v{vLdsR[ks & 3]} offset:{(t & 1)*TILE_B + mt*12288 + (ks >> 2)*256}', ('X', t, i))
    TS = NB0 if FUSE else 13
    units = sorted([(0, k) for k in range(12)] + [(1, k) for k in range(8)], key=lambda u: (u[1] + 4*u[0], -u[0]))
    UPS = int(opts.get('ups', 2 if NB0 <= 2 else 3))
    SCH = {s: [] for s in range(13)}
    rem = list(units) if FUSE else []
    for s in range(12, TS - 1, -1):
        n = 2 if s == 12 else UPS
        take = [u for u in reversed(rem) if u[1] < s][:n]
        SCH[s] = sorted(take, key=lambda u: (u[1], u[0]))
        rem = [u for u in rem if u not in take]
    assert not rem, rem
    for mt in range(2 if FUSE else 0):
        seq = [u[1] for s in range(13) for u in SCH[s] if u[0] == mt]
        assert seq[0] == 0 and sorted(seq) == list(range(len(seq)))
    def tl(s): return SCH[s]
    def fx(s, mt, ks): return OB + 12*(s % 2) + 4*SCH[s].index((mt, ks))
    def prd(s):
        return [lambda mt=mt, ks=ks: g.lgop(f'  ds_read_b128 a[{fx(s, mt, ks)}:{fx(s, mt, ks)+3}], v{vLdsR[ks & 3]} offset:{mt*12288 + (ks >> 2)*256}', ('TR', s)) for (mt, ks) in tl(s)]
    def tm(s, mt, ks, nt):
        a = ACC + 24*mt + 4*nt; x = fx(s, mt, ks)
        return f'  v_mfma_f32_16x16x32_bf16 v[{a}:{a+3}], {breg(ks, nt)}, a[{x}:{x+3}], {"0" if ks == 0 else f"v[{a}:{a+3}]"}'
    if opts.get('iwp') == '1': e('@IWHOP')
    DEC = int(opts.get('dec', 0))
    def trd(s):
        it = [lambda: g.wait(('b', s), vm=('W',) if (s == 0 and LEAN) else ('B', s, 5))]
        base = vTr if (s % NAR) < 2 else vTr2
        so = AREA[s % NAR] - AREA[0 if (s % NAR) < 2 else 2]
        for nt in range(6):
            for hh in range(2):
                it.append(lambda nt=nt, hh=hh: g.lgop(f'  ds_read_b64_tr_b16 {breg(s, nt, 2, 2*hh)}, v{base} offset:{so + hh*768 + (nt >> 1)*64 + (nt & 1)*8}', ('TR', s)))
        return it
    def dwr(s): g.lgop(f'  ds_read_b128 v[{DWR[s & 1]}:{DWR[s & 1]+3}], v{vDW} offset:{s*64}', ('DW', s))
    if DEC:
        run(trd(0)); dwr(0)
    else: run(trs(0))
    stamp()
    LAG = int(opts.get('lag', 3))
    XA = int(opts.get('xa', 8)); XB = int(opts.get('xb', 12)); DS = int(opts.get('ds', XA)); BQ = 10
    X0 = int(opts.get('x0', 11 - LA)); X1 = int(opts.get('x1', 11))
    if not FUSE: XA = XB = BQ = 99; DS = int(opts.get('ds', 10)); LAG = int(opts.get('lag', 4))
    assert XB >= BQ
    pend = []
    def decide():
        if NUMA:
            e(f'  s_min_u32 s{sT[1]}, s{sPT}, s{sPT+2}')
            e(f'  s_min_u32 s{sT[2]}, s{sPT+1}, s{sPT+3}')
            e(f'  s_min_u32 s{sRd}, s{sT[1]}, s{sT[2]}')
            e(f'  s_cmp_eq_u32 s{sRd}, 0')
            e('  s_cbranch_scc1 L_slow')
            e('L_back:')
            e(f'  s_bitcmp1_b32 s2, 1')
            e(f'  s_cselect_b64 s[{sRd}:{sRd+1}], s[{sPT+2}:{sPT+3}], s[{sPT}:{sPT+1}]')
            e(f'  s_bitcmp1_b32 s2, 0')
            e(f'  s_cselect_b32 s{sRd}, s{sRd+1}, s{sRd}')
            e(f'  s_lshr_b32 s{sDec}, s2, 1')
            e(f'  s_xor_b32 s{sDec}, s{sRd}, s{sDec}')
            e(f'  s_and_b32 s{sDec}, s{sDec}, 2')
            e(f'  s_lshl_b32 s{sDec}, s{sDec}, 20')
            e(f'  s_cmp_gt_u32 s{sT[1]}, s{sT[2]}')
            e(f'  s_cselect_b32 s{sT[1]}, 1, 0')
            e(f'  s_lshr_b32 s{sT[2]}, s{sPT}, 2')
            e(f'  s_xor_b32 s{sT[1]}, s{sT[1]}, s{sT[2]}')
            if opts.get('eflip'): e(f'  s_xor_b32 s{sT[1]}, s{sT[1]}, 1')
            e(f'  s_xor_b32 s{sT[1]}, s{sT[1]}, s2')
            e(f'  s_and_b32 s{sT[1]}, s{sT[1]}, 1')
            e(f'  s_lshl_b32 s{sT[1]}, s{sT[1]}, 19')
            e(f'  s_or_b32 s{sDec}, s{sDec}, s{sT[1]}')
    if DEC:
        QU = [[] for _ in range(145)]
        def spread(items, n0, n1):
            for i, it in enumerate(items): QU[n0 + (i * (n1 - n0)) // len(items)].append(it)
        for a in range(11):
            it = trd(a + 1)
            if a + LA < 12: it += [lambda a=a: g.wait(('trf', a), lg=('TR', a))] + bload(a + LA)
            if a == X0: it += xdma_items(0)
            spread(it, DEC * a, DEC * (a + 1))
        if NUMA: QU[12*DS - 8].append(f'  s_load_dword s{sRd}, s[{sDb}:{sDb+1}], s{sEo}')
        if X1 < 12: spread(xdma_items(1), 12*X1, 12*X1 + 12)
        assert DEC * (X0 + 1) <= 12*DS
        for n in range(144):
            k, j = n // 12, n % 12
            d = DWR[k & 1]
            if j == 0:
                if k == DS and NUMA: e('  s_waitcnt lgkmcnt(0)')
                else:
                    g.wait(('tr', k), lg=('TR', k)); g.wait(('dw', k), lg=('DW', k), opt=True)
                for i in range(4): e(f'  v_and_b32 v{d+i}, v{vM[i & 1]}, v{d+i}')
                if k == DS: decide()
                if k + 1 < 12: dwr(k + 1)
                else: e('  s_nop 0')
                e('  s_nop 0')
            nt, hh = j // 2, j % 2
            q = FT + 4*(n % NFT)
            e(f'  v_mfma_f32_16x16x16_bf16 v[{q}:{q+3}], v[{d+2*hh}:{d+2*hh+1}], {breg(k, nt, 2, 2*hh)}, 0')
            pend.append(cvts(k, j, q))
            run(QU[n])
            if len(pend) > LAG: run(pend.pop(0))
            if n in (47, 95): stamp()
            if n == 11 and NUMA: publish()
    for s in range(0 if DEC else 12):
        if s == DS and NUMA: e('  s_waitcnt lgkmcnt(0)')
        else: g.wait(('tr', s), lg=('TR', s))
        if s == BQ: e('  s_barrier')
        d = DWR[s & 1]
        for i in range(4): e(f'  v_and_b32 v{d+i}, v{vM[i & 1]}, v{d+i}')
        if s == DS: decide()
        Q = []
        if s + 4 == NB0: Q += xdma_items(0)
        if s + LA < 12: Q += bload(s + LA)
        nx = trs(s + 1) if s + 1 < 12 else []
        if s == NB0 - 1:
            nx = nx[:1] + ['  s_barrier'] + nx[1:]
        nx += prd(s + 1)
        Q = (Q + nx) if opts.get('qo', '1') == '0' else (nx + Q)
        if s == DS - 1 and NUMA: Q += [f'  s_and_b32 s{sVb}, s{sEo}, -16', f'  s_load_dwordx4 s[{sPT}:{sPT+3}], s[{sDb}:{sDb+1}], s{sVb}']
        if STG and s == XE: Q += x0_site(True)
        if s == X0 and not FUSE: Q += (x0_site(False) if STG else xdma_items(0))
        if s == X1 and not FUSE: Q += xdma_items(1)
        if s == XA: Q += xdma_items(1)
        if s == XB: Q += xdma_items(2)
        if s == 11 and FUSE: Q += [lambda i=i: rd(0, i) for i in range(20, 24)]
        while len(Q) < 2: Q.append('  s_nop 0')
        M = []
        TL = [tm(s, mt, ks, nt) for nt in range(6) for (mt, ks) in tl(s)]
        for j in range(12):
            nt, hh = j // 2, j % 2
            r = RAW[s & 1] + nt*4 + 2*hh
            q = FT + 4*(j % NFT)
            M.append((f'  v_mfma_f32_16x16x16_bf16 v[{q}:{q+3}], v[{d+2*hh}:{d+2*hh+1}], a[{r}:{r+1}], 0', j))
            k0, k1 = (j*len(TL))//12, ((j+1)*len(TL))//12
            M += [(x, None) for x in TL[k0:k1]]
        run(Q[:2]); Q = Q[2:]
        front = int(opts.get('front', 2))
        cq = []
        for mi, (m, j) in enumerate(M):
            if j is not None:
                run(cq); cq = []
            e(m)
            if j is not None:
                pend.append(cvts(s, j))
                if len(pend) > LAG: cq = pend.pop(0)
            QE = (len(M) * int(opts.get('qe', 4))) // 4
            nq = -(-len(Q) // max(1, QE - mi)) if mi < QE else len(Q)
            run(Q[:nq]); Q = Q[nq:]
            nc = 2 if (mi + 1 < len(M) and M[mi + 1][1] is None) else len(cq)
            run(cq[:nc]); cq = cq[nc:]
        assert not Q and not cq
        if s in (3, 7) and not opts.get('st2'): stamp()
        if s == int(opts.get('pubs', 0)) and NUMA: publish()
    if FUSE:
        g.wait(('tr', 12), lg=('TR', 12))
        T0 = [tm(12, 0, 11, nt) for nt in range(6)]
        T1 = [tm(12, 1, ks, nt) for (mt, ks) in tl(12) if mt == 1 for nt in range(6)]
        for nt in range(4):
            e(T0[nt])
            if pend: run(pend.pop(0))
        if DS == 12:
            e('  s_waitcnt lgkmcnt(0)'); decide()
        e(f'  v_sub_u32 v{vST4b}, v{vXS4b}, v{vXS[4]}')
        e(f'  v_add_u32 v{vST4b}, v{vST4b}, v{vST[4]}')
        e(T0[4]); e(T0[5])
        stamp()
        FIN = (T1, XB)
    else:
        run(pend.pop(0)); run(pend.pop(0))
        stamp()
        e(f'  v_mov_b32 v{vTS2}, 0')
        e(f'  v_mov_b32 v{vTS3}, 0')
        for r in sSo: e(f'  s_mov_b32 s{r}, s{sOOB}')
        if PF:
            a_, m_ = [int(v) for v in PF.split(',')]
            e(f'  v_mbcnt_lo_u32_b32 v{vPF}, -1, 0')
            e(f'  v_mbcnt_hi_u32_b32 v{vPF}, -1, v{vPF}')
            e(f'  v_min_u32 v{vPF}, 47, v{vPF}')
            e(f'  s_mul_i32 s{sPf0}, s{sW}, 48')
            e(f'  v_add_u32 v{vPF}, s{sPf0}, v{vPF}')
            e(f'  v_lshrrev_b32 v{vPD}, 6, v{vPF}')
            e(f'  v_lshlrev_b32 v{vPD}, 13, v{vPD}')
            e(f'  v_lshl_add_u32 v{vPF}, v{vPF}, 7, v{vPD}')
            e(f'  s_lshr_b32 s{sPf0}, s2, 3')
            e(f'  s_and_b32 s{sPf0}, s{sPf0}, {m_}')
            e(f'  s_add_u32 s{sPf0}, s{sPf0}, {a_ - NTILE & 0xffffffff}')
            e(f'  s_mul_i32 s{sPf0}, s{sPf0}, {KSTEP}')
            e(f'  s_add_u32 s{sPf0}, s{sPf0}, s{sEnd}')
        if opts.get('iwp') == '2': e('@IWHOP')
        if int(opts.get('iw', 0)): e('  s_mov_b64 vcc, 0')
        g.wait('x0', vm=('L', 0, 5))
        e('  s_barrier')
        for i in range(4): rd(0, i)
        while pend: run(pend.pop(0))
        if X1 == 13: run(xdma_items(1))
        else: assert NAR == 4 and X1 >= DS

    def epi(mt, u, po):
        a = ACC + 24*mt + 8*u
        cv = [f'  v_cvt_pk_bf16_f32 v{a+i}, v{a+2*i}, v{a+2*i+1}' for i in range(4)]
        off = po*TILE_B + mt*12288 + (u >> 1)*128
        if DIR:
            return cv + [lambda: g.vmop(f'  buffer_store_dwordx4 v[{a}:{a+3}], v{vTS if mt else vST[0]}, s[{sO}:{sO+3}], s{sSo[2] if mt else sSo[0]} offen offset:{64*u}{NT_ST}', None)]
        if opts.get('w64'):
            return cv[:2] + [lambda: g.lgop(f'  ds_write_b64 v{vOW[u & 1]}, v[{a}:{a+1}] offset:{off}', ('OWa', mt, u))] + cv[2:] + \
                   [lambda: g.lgop(f'  ds_write_b64 v{vOW[u & 1]}, v[{a+2}:{a+3}] offset:{off+8}', ('OW', mt, u))]
        return cv + [lambda: g.lgop(f'  ds_write_b128 v{vOW[u & 1]}, v[{a}:{a+3}] offset:{off}', ('OW', mt, u))]
    OBT = 'a'
    def out_read(t, u):
        o = OB + 4*u
        g.lgop(f'  ds_read_b128 {OBT}[{o}:{o+3}], v{vOR[u % 3]} offset:{((t^1)&1)*TILE_B + (u // 3)*12288}', ('O', t, u))
    def out_store(t, u, key):
        o = OB + 4*u
        g.wait((key, 'o', u), lg=('O', t, u), opt=True)
        g.vmop(f'  buffer_store_dwordx4 {OBT}[{o}:{o+3}], v{[vST[0], vST[1], vTS2, vTS3, vST[1], vST[2]][u]}, s[{sO}:{sO+3}], s{sSo[[0, 0, 1, 2, 3, 3][u]]} offen{opts.get("mixf", " nt") if str(u) in opts.get("mix", "") else NT_ST}', None)
    def st_adv(d=0):
        p, q = sF[2 - d], sF[3 - d]
        return halfA(p, sSo[0], sSd) + [f'  s_mov_b32 s{sSo[1]}, s{p}'] + mixv(vTS2, vST[2], vMk[0], sSd, p + 1) + \
               halfB(q, sSo[3], sSd, sSo[2]) + mixv(vTS3, vST[0], vMk[1], sSd, sSo[2]) + [f'  s_mov_b32 s{sSo[2]}, s{q}']
    def ints(k, d): return [int(v) for v in opts.get(k, d).split(',')]
    OR_AT = ints('or', '2,3,4,5,6,7'); OS_AT = ints('os', '14,20,30,40,52,64')
    UORD = ints('uord', '3,4,5,0,1,2')
    XD_AT = ints('xd', '76,88,100,112,124,136')
    E1_AT = ints('e1', '27,39,61'); E0_AT = ints('e0', '99,106,123')
    SH_AT = int(opts.get('sh', 26)); CAP = int(opts.get('cap', 1)); HG = int(opts.get('hg', 0))
    def fillers(t):
        F = [[] for _ in range(144)]
        use = [0] * 150
        for r in range(144):
            if r % 12 in (0, 1, 11): use[r] = 1
        HP = opts.get('hp')
        def heavy(rho, it):
            while use[rho] or (HP and rho % 2 != int(HP)): rho += 1
            F[rho].append(it); use[rho] = 9
            for k in range(1, HG + 1): use[rho + k] = max(use[rho + k], 8)
            return rho
        def light(rho, items, cap=CAP, back=False):
            if back:
                for it in reversed(items):
                    while use[rho] >= cap: rho -= 1
                    F[rho].insert(0, it); use[rho] += 1
                return rho
            for it in items:
                while use[rho] >= cap: rho += 1
                F[rho].append(it); use[rho] += 1
            return rho
        kp = t & 1
        post = []
        vpos = []
        for k in range(0 if DIR else 6):
            u = UORD[k]
            lastst = heavy(OS_AT[k], lambda u=u: out_store(t, u, kp))
            vpos.append(lastst)
        xpos = []
        for u in range(6):
            it = [x for x in xdma(t + PD, u) if x != 'NOP']
            xpos.append((heavy(XD_AT[u], it[-1]), it[:-1]))
        for mt, AT in ((1, E1_AT), (0, E0_AT)):
            for u in range(3):
                r = AT[u]
                for it in epi(mt, u, t & 1):
                    r = (heavy(r, it) if callable(it) else light(r, [it], 1)) + 1
                if DIR:
                    vpos.append(r - 1)
                    if mt == 1: lastst = r - 1
        for k in range(0 if DIR else 6):
            light(OR_AT[k], [lambda u=UORD[k]: out_read(t, u)], 1)
        prevx = 0
        for (r, it) in xpos:
            r0 = light(r - 1, it, 2 if len(it) > 6 else CAP, back=True)
            assert r0 >= 24 and r0 > prevx, (r0, prevx)
            prevx = r
        if opts.get('xr'):
            a_, b_ = [int(v) for v in opts['xr'].split(',')]
            it = [f'  s_sub_u32 s37, s{sEnd}, s{sBase}', f'  s_sub_u32 s37, s37, {(NTILE - b_)*KSTEP + 1}', f'  s_cmp_lt_u32 s37, {(b_ - a_)*KSTEP}',
                  f'  s_cselect_b32 s37, s{sF[0]}, s{sOOB}', f'  s_xor_b32 s37, s37, 0x2000000']
            r1_ = heavy(104, lambda: g.vmop(f'  buffer_load_dwordx4 a[240:243], v{vXS[0]}, s[{sX}:{sX+3}], s37 offen nt', None))
            heavy(130, lambda: g.vmop(f'  buffer_load_dwordx4 a[244:247], v{vXS[1]}, s[{sX}:{sX+3}], s37 offen nt', None))
            light(94, it, 2, back=True)
        if PF:
            it = pf_items()
            rp = heavy(int(opts.get('pfa', 140)), it[-1])
            assert light(rp - 1, it[:-1], 2, back=True) > xpos[4][0]
        if opts.get('lim'):
            for r in vpos + [x[0] for x in xpos]:
                light(r - 1, [f'  s_waitcnt vmcnt({opts["lim"]})'], 2, back=True)
        for a, b in zip(xpos, xpos[1:]): assert b[0] - a[0] >= 5
        r1 = light(max(lastst, xpos[0][0]) + 1, [x for x in st_adv() if x != 'NOP'], 2)
        assert r1 < (E0_AT[0] + 4 if DIR else 144)
        return F
    def tile(t, G0=0):
        kp = t & 1
        F0 = fillers(t); F1 = fillers(t + 1)
        for G_ in range(G0, 12):
            mt, kg = G_ // 6, G_ % 6
            if DBG == 2 and G_ in (4, 10): e(f'  s_memrealtime s[{[42, 44, 48, 50][2*kp + (G_ == 10)]}:{[42, 44, 48, 50][2*kp + (G_ == 10)]+1}]')
            if G_ == 10:
                if G0 == 0 and kp == 1 and opts.get('skv'):
                    e(f'  s_cmp_ge_u32 s{sF[1]}, s{sOOB}')
                    e(f'  s_cbranch_scc1 L_npv{t}')
                    g.wait((kp, 'barv'), vm=('L', t + 1, 5))
                    e(f'L_npv{t}:')
                    g.wait((kp, 'bar'), lg=('OW', 0, 2))
                elif G0 == 0: g.wait((kp, 'bar'), vm=('L', t + 1, 5), lg=('OW', 0, 2))
                if kp == 0 and not unroll: e('L_ent:')
                e('  s_barrier')
                if DBG == 2: e(f'  s_memrealtime s[{[46, 52][kp]}:{[46, 52][kp]+1}]')
                if t & 1:
                    for r in vLdsR: e(f'  v_xor_b32 v{r}, {2*TILE_B}, v{r}')
            g.wait((kp, 'x', G_), lg=('X', t, 2*G_ + 1))
            for pd_ in (opts['pad'].split(',') if opts.get('pad') else []): e(f'  s_nop {pd_}')
            for nt in range(6):
                for k in range(2):
                    kk = k ^ (nt & 1) if opts.get('snake') else k
                    ks = 2*kg + kk; i = 12*mt + ks
                    x = XF + 8*(G_ % 3) + 4*kk
                    a = ACC + 24*mt + 4*nt
                    c = '0' if kg == 0 and k == 0 else f'v[{a}:{a+3}]'
                    e(f'  v_mfma_f32_16x16x32_bf16 v[{a}:{a+3}], {breg(ks, nt)}, a[{x}:{x+3}], {c}')
                    gap = 12*G_ + 2*nt + k
                    if gap % 12 in (0, 1):
                        j = 2*G_ + 4 + (gap % 12)
                        if j < 24: rd(t, j)
                        else: rd(t + 1, j - 24)
                    run(F0[gap + 24] if gap < 120 else F1[gap - 120])
    if FUSE:
        Q = (xdma_items(2) if XB == 12 else []) + [x if x != 'NOP' else '  s_nop 0' for x in st_adv()]
        E = epi(0, 0, 0) + epi(0, 1, 0) + epi(0, 2, 0)
        T1 = list(FIN[0])
        run(Q[:4]); Q = Q[4:]
        while T1 or E:
            if T1: e(T1.pop(0))
            run(E[:3]); E = E[3:]
        run(Q)
    stamp()
    if DBG:
        e(f'  s_mov_b32 s94, {sn[0]}')
        e('  s_mov_b32 s60, s64')
        e('  s_memtime s[38:39]') if 0 else e('  s_memtime s[86:87]')
    def tail(t):
        if DIR:
            e('  s_nop 3')
            for u in range(3): run(epi(1, u, t & 1))
            return
        done = [UORD[k] for k in range(6) if OS_AT[k] < 24]
        rdone = [UORD[k] for k in range(6) if OR_AT[k] < 24]
        for u in UORD:
            if u not in rdone: out_read(t, u)
        e('  s_nop 3')
        for u in range(3): run(epi(1, u, t & 1))
        for u in UORD:
            if u not in done: out_store(t, u, 'T')
        run([x if x != 'NOP' else '  s_nop 0' for x in st_adv(1)])
        e('  s_waitcnt lgkmcnt(0)')
        e('  s_barrier')
        for u in range(3):
            e(f'  ds_read_b128 a[{XF+4*u}:{XF+4*u+3}], v{vOR[u]} offset:{(t & 1)*TILE_B + 12288}')
        for u in range(3):
            e(f'  s_waitcnt lgkmcnt({2-u})')
            e(f'  buffer_store_dwordx4 a[{XF+4*u}:{XF+4*u+3}], v{[vTS3, vST[1], vST[2]][u]}, s[{sO}:{sO+3}], s{sSo[[2, 3, 3][u]]} offen{NT_ST}')
    PEEL = int(opts.get('peel', 0))
    def last_tile(t):
        F = [[] for _ in range(150)]
        use = [(1 if (r % 12 == 11 or (r % 12 in (0, 1) and r < 120)) else 0) for r in range(150)]
        def put(r, items):
            for it in items:
                if it == 'NOP': continue
                while use[r]: r += 1
                F[r].append(it); use[r] = 1
            return r
        def part(q):
            return [f'  s_mov_b32 s{sSo[1]}, s{q}', f'  s_mov_b32 s{sSo[3]}, s{q+1}', f'  s_min_u32 s{sSo[2]}, s{q}, s{q+1}',
                    f'  s_cmp_gt_u32 s{q}, s{q+1}', f'  s_cselect_b64 s[{sSm}:{sSm+1}], -1, 0', f'  v_cndmask_b32 v{vTS}, v{vST[4]}, v{vST4b}, s[{sSm}:{sSm+1}]']
        assert all(o < 24 for o in OR_AT) and UORD[:3] == [3, 4, 5]
        L1 = ints('l1', '6,16,28,40'); L2 = ints('l2', '62,74,88'); L3 = ints('l3', '120,128,136')
        BX, BY = int(opts.get('bx', 4)), int(opts.get('by', 9))
        rem = [UORD[k] for k in range(6) if OS_AT[k] >= 24]
        pos = {}
        for u, r in zip(rem, L1[-len(rem):]): pos[u] = put(r, [lambda u=u: out_store(t, u, 'L')])
        for u, r in zip((3, 4, 5), L2): p2 = put(r, [lambda u=u: out_store(t + 1, u, 'L2')])
        for u, r in zip((0, 1, 2), L3): put(r, [lambda u=u: out_store(t + 1, u, 'L2')])
        r = 3
        for u in range(3): r = put(r, epi(1, u, t & 1)) + 1
        assert r < 12*BX - 4
        r = 75
        for u in range(3): r = put(r, epi(0, u, t & 1)) + 1
        assert r < 12*BY - 4
        put(12*BX + 2, [lambda u=u: out_read(t + 1, u) for u in (3, 4, 5)])
        put(12*BY + 2, [lambda u=u: out_read(t + 1, u) for u in (0, 1, 2)])
        assert put(pos.get(5, 0) + 1, part(sF[2])) < L2[0] and max(pos.values()) < 12*BX
        put(max(pos.values()) + 1, [f'  s_mov_b32 s{sSo[0]}, s{sF[1]}'])
        put(p2 + 1, part(sF[1]))
        for G_ in range(12):
            mt, kg = G_ // 6, G_ % 6
            if G_ in (BX, BY):
                g.wait(('L', 'bar', G_), lg=('OW', 1 if G_ == BX else 0, 2))
                e('  s_barrier')
            g.wait(('L', 'x', G_), lg=('X', t, 2*G_ + 1))
            for nt in range(6):
                for k in range(2):
                    ks = 2*kg + k
                    x = XF + 8*(G_ % 3) + 4*k
                    a = ACC + 24*mt + 4*nt
                    c = '0' if ks == 0 else f'v[{a}:{a+3}]'
                    e(f'  v_mfma_f32_16x16x32_bf16 v[{a}:{a+3}], {breg(ks, nt)}, a[{x}:{x+3}], {c}')
                    gap = 12*G_ + 2*nt + k
                    if gap % 12 in (0, 1) and 2*G_ + 4 + (gap % 12) < 24: rd(t, 2*G_ + 4 + (gap % 12))
                    run(F[gap])
        assert not any(F[144:])
        if DBG:
            e('  s_mov_b32 m0, s94'); e('  s_nop 0'); e('  v_writelane_b32 v0, s60, m0')
            e('  s_memrealtime s[60:61]'); e('  s_memtime s[88:89]')
        else: e('  s_nop 1')
        for u in range(3): run(epi(1, u, (t + 1) & 1))
        e('  s_waitcnt lgkmcnt(0)')
        e('  s_barrier')
        for u in range(3):
            e(f'  ds_read_b128 a[{XF+4*u}:{XF+4*u+3}], v{vOR[u]} offset:{((t + 1) & 1)*TILE_B + 12288}')
        for u in range(3):
            e(f'  s_waitcnt lgkmcnt({2-u})')
            e(f'  buffer_store_dwordx4 a[{XF+4*u}:{XF+4*u+3}], v{vTS if u == 1 else vST[u+3]}, s[{sO}:{sO+3}], s{sSo[u+1]} offen{NT_ST}')
    if FUSE: g.wait('ent', vm=('L', 1, 5), lg=('OW', 0, 2))
    if PEEL and unroll:
        for t in range(NTILE - 1): tile(t)
        last_tile(NTILE - 1)
    elif PEEL:
        e('L_loop:')
        tile(0)
        e(f'  s_cmp_ge_u32 s{sF[0]}, s{sOOB}')
        e(f'  s_cbranch_scc1 L_tail')
        tile(1)
        if DBG:
            e('  s_mov_b32 m0, s94'); e('  s_nop 0'); e('  v_writelane_b32 v0, s60, m0')
            e('  s_add_u32 s94, s94, 1')
            e('  s_memrealtime s[60:61]')
        e(f'  s_branch L_loop')
        e('L_tail:')
        last_tile(1)
        if DBG: e('  s_mov_b32 s94, 15')
    elif unroll:
        tile(0, 10 if FUSE else 0)
        for t in range(1, NTILE): tile(t)
        tail(NTILE)
    else:
        if FUSE: e('  s_branch L_ent')
        if opts.get('al'): e(f'  .p2align {opts["al"]}')
        e('L_loop:')
        tile(0)
        tile(1)
        if DBG:
            e('  s_mov_b32 m0, s94'); e('  s_nop 0'); e('  v_writelane_b32 v0, s60, m0')
            e('  s_add_u32 s94, s94, 1')
            e('  s_min_u32 s94, s94, 15')
            e('  s_memrealtime s[60:61]')
        e(f'  s_cmp_lt_u32 s{sF[1]}, s{sOOB}')
        e(f'  s_cbranch_scc1 L_loop')
        e('L_tail:')
        if DBG: e('  s_memtime s[88:89]')
        tail(0)
        if DBG: e('  s_mov_b32 s94, 15')
    if DBG:
        e('  s_mov_b32 m0, s94'); e('  s_nop 0'); e('  v_writelane_b32 v0, s60, m0')
        e('  s_add_u32 s94, s94, 1')
        e('  s_load_dwordx2 s[24:25], s[0:1], 40')
        e('  s_waitcnt vmcnt(0)')
        e('  s_memrealtime s[54:55]')
        e('  s_memtime s[98:99]')
        e('  s_waitcnt lgkmcnt(0)')
        e('  s_mov_b32 m0, s94'); e('  s_nop 0'); e('  v_writelane_b32 v0, s54, m0')
        e('  s_sub_u32 s98, s98, s96')
        e('  s_add_u32 s98, s98, s64')
        e('  v_writelane_b32 v0, s98, 31')
        e('  s_sub_u32 s88, s88, s86')
        e('  v_writelane_b32 v0, s88, 30')
        if DBG == 2:
            for i in range(6): e(f'  v_writelane_b32 v0, s{42+2*i}, {17+i}')
        e(f'  v_writelane_b32 v0, s{sPv}, 29')
        e(f'  v_writelane_b32 v0, s{sDec}, 28')
        e(f'  v_writelane_b32 v0, s3, 27')
        e(f'  v_writelane_b32 v0, s{sPw}, 26')
        for i in range(sn[0]): e(f'  v_writelane_b32 v0, s{64+2*i}, {i}')
        e('  s_mov_b32 s56, s24'); e('  s_and_b32 s57, s25, 0xffff'); e('  s_mov_b32 s58, 452984832'); e('  s_mov_b32 s59, 0x00020000')
        e('  s_lshl_b32 s26, s2, 9'); e(f'  s_lshl_b32 s27, s{sW}, 7'); e('  s_add_u32 s26, s26, s27')
        e('  v_mbcnt_lo_u32_b32 v1, -1, 0')
        e('  v_lshlrev_b32 v1, 2, v1')
        e('  s_mov_b64 exec, 0xffffffff')
        e('  buffer_store_dword v0, v1, s[56:59], s26 offen')
    if AMP:
        e('  s_waitcnt vmcnt(0)')
        e('  s_memrealtime s[54:55]')
        e('  s_waitcnt lgkmcnt(0)')
        e(f'  s_cmp_lg_u32 s2, {int(opts.get("ampwg", 100))}')
        e('  s_cbranch_scc1 L_done')
        if AMP == 'c':
            e('  s_memtime s[98:99]')
            e('  s_waitcnt lgkmcnt(0)')
            e('  s_sub_u32 s27, s98, s96')
            e('  s_lshr_b32 s27, s27, 1')
        else:
            e(f'  s_sub_u32 s27, s{54 if AMP == "e" else 64 + 2*int(AMP)}, s64')
            e('  s_mul_i32 s27, s27, 10')
        e('L_spin:')
        e('  s_sleep 8')
        e('  s_memrealtime s[56:57]')
        e('  s_waitcnt lgkmcnt(0)')
        e('  s_sub_u32 s26, s56, s54')
        e('  s_cmp_lt_u32 s26, s27')
        e('  s_cbranch_scc1 L_spin')
    if NUMA:
        e('  s_endpgm')
        e('L_slow:')
        e(f'  v_mbcnt_lo_u32_b32 v{vTX}, -1, 0')
        e(f'  v_lshl_add_u32 v{vTX}, v{vTX}, 2, s{sVb}')
        SP = ACC + 40 if DEC else (254 if DS <= 10 else FT)
        assert DS != 11
        e(f'  v_mov_b32 v{SP}, 1')
        e(f'  v_mov_b32 v{SP+1}, 0')
        e('  s_mov_b64 exec, 15')
        e(f'  buffer_atomic_cmpswap v[{SP}:{SP+1}], v{vTX}, s[{sDS}:{sDS+3}], 0 offen sc0 sc1')
        e('  s_waitcnt vmcnt(0)')
        e(f'  v_max_u32 v{SP}, 1, v{SP}')
        e('  s_nop 0')
        for i in range(4): e(f'  v_readlane_b32 s{sPT+i}, v{SP}, {i}')
        e('  s_nop 3')
        e(f'  s_min_u32 s{sT[1]}, s{sPT}, s{sPT+2}')
        e(f'  s_min_u32 s{sT[2]}, s{sPT+1}, s{sPT+3}')
        e('  s_mov_b64 exec, -1')
        if DBG: e('  s_mov_b32 s3, 1')
        e('  s_branch L_back')
    e('L_done:')
    e('  s_endpgm')
    e('.section .rodata,"a"')
    e('.p2align 6')
    e('.amdhsa_kernel standalone__depthwise_separable__vision_kernel')
    e('  .amdhsa_next_free_vgpr 512')
    e('  .amdhsa_next_free_sgpr 100')
    e('  .amdhsa_accum_offset 256')
    e('  .amdhsa_group_segment_fixed_size 0')
    e('  .amdhsa_kernarg_size 48')
    e('  .amdhsa_user_sgpr_count 2')
    e('  .amdhsa_user_sgpr_kernarg_segment_ptr 1')
    e('  .amdhsa_system_sgpr_workgroup_id_x 1')
    e('  .amdhsa_float_denorm_mode_32 3')
    e('.end_amdhsa_kernel')

if __name__ == '__main__':
    out = sys.argv[1]
    opts = dict(a.split('=', 1) for a in sys.argv[2:])
    for k in ('nt_ld', 'nt_st', 'nt_b'):
        if k in opts: opts[k] = (' ' + opts[k].replace('+', ' ')) if opts[k] != 'none' else ''
    open(out, 'w').write(gen(opts))
```

```python
import sys, re
from gen3 import G, HDR
from gen5 import regs_of

def hazard_check(L):
    ins = [l.strip() for l in L if l.startswith('  ') and not l.strip().startswith(';')]
    hist = []; st = 0; last_valu = []; last_st = []; last_m0 = -9; last_sg = []; lastscc = ''
    for l in ins:
        op = l.split()[0]
        toks = [t.strip(',') for t in l.split()[1:]]
        allr = set()
        for t in toks: allr |= regs_of(t)
        if op.startswith('v_mfma'):
            d = regs_of(toks[0]); a = regs_of(toks[1]); b = regs_of(toks[2]); c = regs_of(toks[3])
            for (s0, r) in last_valu:
                if st - s0 - 1 < 2 and (r & (a | b | c)): raise Exception(f'VALU->MFMA hazard: {l}')
            for (s0, dd, cc) in hist:
                if st - s0 - 1 < 8 and (dd & (a | b)): raise Exception(f'MFMA D->A/B hazard: {l}')
                if st - s0 - 1 < 6 and (dd & c) and dd != c: raise Exception(f'MFMA D->C overlap hazard: {l}')
                if st - s0 - 1 < 6 and (dd & d) and dd != c: raise Exception(f'MFMA D->D WAW: {l}')
            for (s0, r) in last_st:
                if st - s0 - 1 < 8 and (r & d): raise Exception(f'store data WAR (mfma): {l}')
            hist.append((st, d, c))
        elif op.startswith('v_') or op.startswith('ds_') or op.startswith('buffer_'):
            for (s0, dd, cc) in hist:
                if st - s0 - 1 < 8 and (dd & allr): raise Exception(f'MFMA D->use hazard dist {st-s0-1}: {l}')
            if op.startswith('v_'):
                w = regs_of(toks[0])
                for (s0, dd, cc) in hist:
                    if st - s0 - 1 < 3 and (cc & w): raise Exception(f'MFMA C WAR hazard: {l}')
                for (s0, r) in last_st:
                    if st - s0 - 1 < 2 and (r & w): raise Exception(f'store data WAR: {l}')
                if op in ('v_readfirstlane_b32', 'v_readlane_b32'):
                    for (s0, r) in last_valu:
                        if st - s0 - 1 < 1 and (r & regs_of(toks[1])): raise Exception(f'readlane hazard: {l}')
                    last_sg.append((st, toks[0]))
                else:
                    for (s0, sg) in last_sg:
                        if st - s0 - 1 < 2 and sg in toks[1:]: raise Exception(f'VALU sgpr->VALU hazard: {l}')
                last_valu.append((st, w)); last_valu = last_valu[-4:]
            if op.startswith('buffer_store') or op.startswith('ds_write'):
                last_st.append((st, regs_of(toks[0] if op.startswith('buffer') else toks[1]))); last_st = last_st[-4:]
            if op.startswith('buffer_') and l.endswith('lds') and st - last_m0 - 1 < 1: raise Exception(f'm0 hazard: {l}')
            if op.startswith('buffer_'):
                for (s0, sg) in last_sg:
                    if st - s0 - 1 < 5 and sg in toks: raise Exception(f'VALU sgpr->VMEM hazard: {l}')
        elif op.startswith('s_') and toks and toks[0] == 'm0': last_m0 = st
        if op.startswith('s_cselect') or op.startswith('s_cbranch_scc'):
            if not (lastscc.startswith('s_cmp') or lastscc.startswith('s_bitcmp')): raise Exception(f'SCC clobbered by {lastscc}: {l}')
        elif re.match(r's_(add|sub|and|or|xor|min|max|lshl|lshr|cmp|bitcmp|andn2|ashr|bfe|not)', op): lastscc = op
        hist = [h for h in hist if st - h[0] < 24]
        st += int(toks[0]) + 1 if op == 's_nop' else 1

class G2(G):
    def __init__(self):
        self.need = {}
        super().__init__()
    def reset(self, mode):
        super().reset(mode); self.lgd = 0; self.vmd = 0
    def _cnt(self, lst, tag):
        if tag[:2] == ('O', 0) and tag not in lst: return len(lst)
        return super()._cnt(lst, tag)
    def wait(self, key, vm=None, lg=None, opt=False):
        if self.mode == 'collect2':
            nd = False
            if lg is not None and len(self.lg) - self._cnt(self.lg, lg) > self.lgd: nd = True
            if vm is not None and len(self.vm) - self._cnt(self.vm, vm) > self.vmd: nd = True
            self.need[key] = self.need.get(key, False) or nd or not opt
            v, l = self.sites[key]
            if not opt:
                if lg is not None: self.lgd = max(self.lgd, len(self.lg) - l)
                if vm is not None: self.vmd = max(self.vmd, len(self.vm) - v)
            return
        if self.mode in ('emit', 'check') and not self.need[key]: return
        super().wait(key, vm, lg)

def gen(opts):
    g = G2()
    g.reset('collect')
    build(g, opts, unroll=True)
    g.reset('collect2')
    build(g, opts, unroll=True)
    g.reset('check')
    build(g, opts, unroll=True)
    hazard_check(g.L)
    L2 = []; skip = None
    for l in g.L:
        if skip:
            if l == skip + ':': skip = None
            continue
        L2.append(l)
        m = re.match(r'  s_cbranch_scc1 (L_np\w*)', l)
        if m: skip = m.group(1)
    hazard_check(L2)
    g.reset('emit')
    build(g, opts, unroll=False)
    L = g.L
    if int(opts.get('iw', 0)):
        S = int(opts['iw'])
        i0 = L.index('L_tail:') + 1
        i1 = max(k for k, l in enumerate(L) if l == '  s_endpgm' and k < L.index('L_done:'))
        def size(l):
            t = l.strip()
            if not l.startswith('  '): return 0
            if re.match(r's_(waitcnt|barrier|nop|cbranch|branch|endpgm|cmp|mov_b32 s\d+, s|min_u32 s\d+, s\d+, s|cselect)', t): return 4
            return 8
        out = []; acc = S; n = 0
        for l in L[i0:i1]:
            if acc >= S and (l.startswith('  v_mfma') or l.startswith('  v_cvt') or l.startswith('  ds_') or l.startswith('  s_waitcnt')):
                out += [f'L_iw{n}:', f'@PAD{n}']; n += 1; acc = 4
            out.append(l); acc += size(l)
        seg = -(-n // 4)
        out = [(f'  s_cbranch_vccnz {"L_iwr" if (int(l[4:]) % seg == seg - 1 or int(l[4:]) == n - 1) else f"L_iw{int(l[4:]) + 1}"}' if l.startswith('@PAD') else l) for l in out]
        L = L[:i0] + out + L[i1:]
        h = L.index('@IWHOP')
        hop = ['  s_mov_b64 vcc, -1']
        for w in range(1, 4):
            if w * seg < n: hop += [f'  s_cmp_eq_u32 s20, {w}', f'  s_cbranch_scc1 L_iw{w*seg}']
        hop += ['  s_branch L_iw0', 'L_iwr:']
        L = L[:h] + hop + L[h+1:]
    L = [l for l in L if l != '@IWHOP']
    abl = opts.get('abl', '')
    if abl:
        i0 = L.index('L_loop:'); i1 = L.index('L_tail:')
        def keep(l):
            s = l.strip()
            if 'O' in abl and (s.startswith('ds_write_b128') or re.match(r'ds_read_b128 a\[(16[89]|17\d|18\d)', s)): return False
            if 'T' in abl and s.startswith('buffer_store'): return False
            if 'L' in abl and s.startswith('buffer_load'): return False
            if 'B' in abl and s.startswith('s_barrier'): return False
            if 'C' in abl and s.startswith('v_cvt'): return False
            if 'H' in abl and s.startswith('v_mfma') and int(re.search(r'v\[(\d+):', s).group(1)) % 8 == 4: return False
            return True
        L = L[:i0] + [l for l in L[i0:i1] if keep(l)] + L[i1:]
    return '\n'.join(L) + '\n'

def build(g, opts, unroll):
    NT_LD = opts.get('nt_ld', ' nt'); NT_ST = opts.get('nt_st', ' sc1'); NT_B = opts.get('nt_b', '')
    DBG = int(opts.get('dbg', 0)); AMP = opts.get('amp')
    DIR = int(opts.get('dir', 0))
    PD = int(opts.get('pd', 2))
    e = g.e
    TILE_B = 32 * 768; NTILE = 18; STRIDE = 256 * TILE_B
    LDS_O = 4 * TILE_B + 256; LDS_DW = 6 * TILE_B + 512; LDS_PR = LDS_DW + 4096; LDS_TOTAL = LDS_PR + 64
    AREA = [LDS_O, LDS_O + TILE_B + 64, 2 * TILE_B, 3 * TILE_B + 64]
    OOB = 113246208
    vLdsR = [1, 2, 3, 4]; vOR = [5, 6, 7]; vXS = [8, 9, 10]; vMk = [11, 12]; vTS2 = 13; vTS3 = 14; vTX = 15
    ACC = 16
    PT = 64
    vBL = [PT, PT+1, PT+2]; vTr = PT+3; vDW = PT+4; vM = [PT+5, PT+6]; vTr2 = PT+7
    DWR = [PT+8, PT+12]
    vST = [PT+16+i for i in range(3)]; vOW = [PT+22, PT+23]
    T = [ACC+i for i in range(12)]; vLane = ACC + 12
    FUSE = int(opts.get('fuse', 0))
    FT = 88 if FUSE else ACC; NFT = 6 if FUSE else (8 if opts.get('dec') else 12)
    BV = 112 if FUSE else 88
    NA = 6 if FUSE else 5
    ASLOTS = [int(c, 16) for c in opts.get('aslots', '012346' if FUSE else '13579')]
    NAR = 4 if FUSE else int(opts.get('nar', 4))
    if NAR == 5: AREA = [TILE_B + k * (TILE_B + 64) for k in range(5)]
    assert len(ASLOTS) == NA
    VSLOTS = [s for s in range(12) if s not in ASLOTS]
    XF = 144
    OB = 168
    RAW = [192, 216]
    sX, sO, sP, sD = 4, 8, 12, 16
    sW, sCnt = 20, 21
    sRing, sOOB = 39, 40
    sF = [76, 78, 80, 82]
    sBase, sVa, sDec, sEnd = 32, 33, 34, 21
    sP1, sP2 = 28, 30
    sEn = [44, 84, 12]; sOf = [88, 89, 95]
    sXa, sXb, sXd, sXe = 22, 56, 57, 90; sSd = 91
    sSo = [58, 59, 62, 63]; sSm = 90
    sDb = 92
    sDS = 16
    sRd = 88; sRd2 = 60; sVc = 61; sVb = 95; sEo = 36; sPa = 37; sPb = 38; sPr = 23; sPv = 41; sPT = 84
    KSTEP = 16 * 49152
    sG = [42, 43, 44]; sQ = [45, 46, 47, 48]; sBW = 49; sT = [50, 51, 52, 53]; sR1, sR2 = 54, 55

    def breg(s, nt, n=4, o=0):
        if s in ASLOTS:
            i = ASLOTS.index(s) * 24 + nt * 4 + o
            return f'a[{i}:{i+n-1}]' if n > 1 else f'a{i}'
        i = BV + VSLOTS.index(s) * 24 + nt * 4 + o
        return f'v[{i}:{i+n-1}]' if n > 1 else f'v{i}'
    sn = [0]
    def stamp():
        if DBG or AMP:
            e(f'  s_memrealtime s[{64+2*sn[0]}:{65+2*sn[0]}]'); sn[0] += 1
    def run(items):
        for it in items:
            if callable(it): it()
            else: e(it)

    e(HDR.rstrip('\n'))
    e(f'; @launch grid=(256,1,1) block=(256,1,1) lds={LDS_TOTAL}')
    e('.amdgcn_target "amdgcn-amd-amdhsa--gfx950"')
    e('.text')
    e('.globl standalone__depthwise_separable__vision_kernel')
    e('.p2align 8')
    e('.type standalone__depthwise_separable__vision_kernel,@function')
    e('standalone__depthwise_separable__vision_kernel:')
    e('  s_load_dwordx8 s[24:31], s[0:1], 0')
    e(f'  s_load_dwordx2 s[{sDb}:{sDb+1}], s[0:1], 32')
    e('  s_cmp_ge_u32 s2, 256')
    e('  s_cbranch_scc1 L_done')
    stamp()
    if AMP == 'c': e('  s_memtime s[96:97]')
    if DBG: e('  s_memtime s[96:97]'); e('  s_mov_b32 s3, 0'); e(f'  s_mov_b32 s{sPv}, 0')
    e(f'  v_lshrrev_b32 v{T[0]}, 6, v0')
    e(f'  v_and_b32 v{vLane}, 63, v0')
    e(f'  v_readfirstlane_b32 s{sW}, v{T[0]}')
    KICK = int(opts.get('kick', 0))
    def kick_a():
        e(f'  s_lshr_b32 s{sT[2]}, s2, 3')
        e(f'  s_mul_i32 s{sT[2]}, s{sT[2]}, 9216')
        if KICK == 2: e(f'  v_and_b32 v{T[5]}, 127, v0')
        e(f'  v_lshl_add_u32 v{T[5]}, v{T[5] if KICK == 2 else 0}, 7, s{sT[2]}')
        e(f'  v_min_u32 v{T[5]}, 294784, v{T[5]}')
    def kick_b():
        e('  s_waitcnt lgkmcnt(0)')
        g.vmop(f'  global_load_dword v{BV+1}, v{T[5]}, s[28:29]', ('K',))
    if KICK: kick_a()
    if KICK and opts.get('kf'): kick_b()
    CW = int(opts.get('cw', 128))
    if CW:
        e(f'  s_getpc_b64 s[{sT[0]}:{sT[1]}]')
        e('L_pc:')
        e(f'  v_mul_u32_u24 v{T[2]}, {CW}, v0')
        e(f'  v_min_u32 v{T[2]}, L_done-L_pc, v{T[2]}')
        e(f'  v_mov_b32 v{T[3]}, s{sT[1]}')
        e(f'  v_add_co_u32 v{T[2]}, vcc, s{sT[0]}, v{T[2]}')
        e(f'  s_nop 1')
        e(f'  v_addc_co_u32 v{T[3]}, vcc, 0, v{T[3]}, vcc')
        g.vmop(f'  global_load_dword v{BV}, v[{T[2]}:{T[3]}], off', ('CW',))
    if KICK and not opts.get('kf'): kick_b()
    e(f'  s_lshr_b32 s{sT[0]}, s2, 3')
    e(f'  s_and_b32 s{sR2}, s{sT[0]}, 3')
    e(f'  s_lshr_b32 s{sR1}, s{sT[0]}, 2')
    e(f'  s_mul_i32 s{sT[1]}, s{sR1}, 11')
    e(f'  s_lshr_b32 s{sT[1]}, s{sT[1]}, 5')
    e(f'  s_mul_i32 s{sT[1]}, s{sT[1]}, 3')
    e(f'  s_sub_u32 s{sR1}, s{sR1}, s{sT[1]}')
    if opts.get('norot'):
        e(f'  s_mov_b32 s{sR1}, 0'); e(f'  s_mov_b32 s{sR2}, 0')
    e(f'  s_mul_i32 s{sT[2]}, s{sW}, 192')
    for i in range(3):
        if i: e(f'  v_add_u32 v{T[1]}, {64*i}, v{vLane}')
        q = T[1] if i else vLane
        e(f'  v_mul_u32_u24 v{T[2]}, 0xaaab, v{q}')
        e(f'  v_lshrrev_b32 v{T[2]}, 19, v{T[2]}')
        e(f'  v_mul_u32_u24 v{T[3]}, 576, v{T[2]}')
        e(f'  v_lshl_add_u32 v{T[3]}, v{vLane}, 4, v{T[3]}')
        if i == 1:
            e(f'  v_lshrrev_b32 v{T[2]}, 3, v{T[2]}')
            e(f'  v_mul_u32_u24 v{T[2]}, 6144, v{T[2]}')
            e(f'  v_add_u32 v{T[3]}, v{T[3]}, v{T[2]}')
        if i == 2: e(f'  v_add_u32 v{T[3]}, 6144, v{T[3]}')
        e(f'  v_add_u32 v{vBL[i]}, s{sT[2]}, v{T[3]}')
    NUMA = int(opts.get('numa', 1))
    PRM = int(opts.get('prm', 28))
    def srd(sd, lo, nbytes):
        e(f'  s_mov_b32 s{sd}, s{lo}')
        e(f'  s_and_b32 s{sd+1}, s{lo+1}, 0xffff')
        e(f'  s_mov_b32 s{sd+2}, {nbytes}')
        e(f'  s_mov_b32 s{sd+3}, 0x00020000')
    def p_gb1():
        e(f'  s_add_u32 s{sG[1]}, s{sG[0]}, 98304')
        e(f'  s_cmp_eq_u32 s{sR1}, 2')
        e(f'  s_cselect_b32 s{sG[1]}, 0, s{sG[1]}')
        e(f'  s_add_u32 s{sG[2]}, s{sG[1]}, 98304')
        e(f'  s_cmp_eq_u32 s{sR1}, 1')
        e(f'  s_cselect_b32 s{sG[2]}, 0, s{sG[2]}')
        for q in range(1, 4):
            e(f'  s_xor_b32 s{sQ[q]}, s{sR2}, {q}')
            e(f'  s_mul_i32 s{sQ[q]}, s{sQ[q]}, {TILE_B}')
    def p_dws():
        e(f'  s_lshl_b32 s{sT[3]}, s{sR2}, 2')
        e(f'  v_lshrrev_b32 v{T[1]}, 4, v{vLane}')
        e(f'  v_add_u32 v{T[2]}, s{sR1}, v{T[1]}')
        e(f'  v_subrev_u32 v{T[3]}, 3, v{T[2]}')
        e(f'  v_min_u32 v{T[2]}, v{T[2]}, v{T[3]}')
        e(f'  v_and_b32 v{T[4]}, 15, v{vLane}')
        e(f'  v_xor_b32 v{T[3]}, s{sT[3]}, v{T[4]}')
        e(f'  v_lshlrev_b32 v{T[3]}, 4, v{T[3]}')
        e(f'  v_lshl_add_u32 v{T[3]}, v{T[2]}, 8, v{T[3]}')
        e(f'  v_cmp_lt_u32 vcc, 47, v{vLane}')
        e(f'  s_lshl_b32 s{sT[0]}, s{sW}, 10')
        e(f'  s_add_u32 m0, s{sT[0]}, {LDS_DW}')
        e(f'  v_cndmask_b32 v{T[3]}, v{T[3]}, v{vBL[2]}, vcc')
    def p_tl():
        e(f'  s_lshr_b32 s{sT[1]}, s2, 5')
        e(f'  s_and_b32 s{sT[2]}, s2, 3')
        e(f'  s_lshl2_add_u32 s{sEo}, s{sT[1]}, s{sT[2]}')
        e(f'  s_lshl_b32 s{sEo}, s{sEo}, 2')
        e(f'  s_mul_i32 s{sT[1]}, s{sT[1]}, 144')
        e(f'  s_lshr_b32 s{sT[2]}, s{sT[2]}, 1')
        e(f'  s_lshl1_add_u32 s{sT[2]}, s{sR2}, s{sT[2]}')
        e(f'  s_add_u32 s{sT[1]}, s{sT[1]}, s{sT[2]}')
        e(f'  s_mul_i32 s{sBase}, s{sT[1]}, 98304')
        e(f'  s_add_u32 s{sEnd}, s{sBase}, {NTILE*KSTEP}')
        if NUMA:
            e(f'  s_lshl_b32 s{sT[1]}, s{sW}, 11')
            e(f'  s_and_b32 s{sT[2]}, s2, 3')
            e(f'  s_lshl_b32 s{sT[2]}, s{sT[2]}, 8')
            e(f'  s_add_u32 s{sT[1]}, s{sT[1]}, s{sT[2]}')
            e(f'  s_lshr_b32 s{sT[2]}, s2, 5')
            e(f'  s_lshl_b32 s{sPa}, s{sT[2]}, 24')
            e(f'  s_add_u32 s{sPa}, s{sPa}, {(8 << 20) + 0x40000}')
            e(f'  s_mul_i32 s{sT[2]}, s{sT[2]}, {6 << 20}')
            e(f'  s_add_u32 s{sT[2]}, s{sT[2]}, {(64 << 20) + 0x40000}')
            e(f'  s_min_u32 s{sPa}, s{sPa}, s{sT[2]}')
            e(f'  s_add_u32 s{sPa}, s{sPa}, s{sT[1]}')
            e(f'  s_and_b32 s{sPr}, s2, {PRM}')
            e(f'  s_add_u32 s{sPb}, s{sPa}, 8192')
            e(f'  s_cmp_lg_u32 s{sPr}, 0')
    def p_warm():
        if NUMA:
            e(f'  s_cbranch_scc1 L_np0')
            e(f'  s_load_dword s{sPT}, s[24:25], s{sPa} glc')
            e(f'  s_load_dword s{sPT+1}, s[24:25], s{sPb} glc')
            if opts.get('dwm'):
                e(f'  v_mov_b32 v{T[10]}, {int(opts["dwm"])}')
                e(f'  global_load_dword v{BV+1}, v{T[10]}, s[{sDb}:{sDb+1}]{" sc1" if opts["dwm"] == "64" else ""}')
            e('L_np0:')
    def p_dwl():
        srd(sD, 26, 768)
        g.vmop(f'  buffer_load_dwordx4 v{T[3]}, s[{sD}:{sD+3}], 0 offen lds', ('W',))
    e(f'  s_mul_i32 s{sG[0]}, s{sR1}, 98304')
    e(f'  s_mul_i32 s{sQ[0]}, s{sR2}, {TILE_B}')
    e(f'  s_mul_i32 s{sBW}, s{sW}, 6160')
    LEAN = int(opts.get('lean', 2))
    if LEAN == 0: p_gb1(); p_dws()
    if LEAN <= 1: p_tl()
    e('  s_waitcnt lgkmcnt(0)')
    if LEAN <= 1: p_warm()
    if LEAN == 0: p_dwl()
    srd(sP, 28, 294912)
    def bload(s):
        it = []
        for h in range(2):
            it.append(f'  s_add_u32 m0, s{sBW}, {AREA[s % NAR] + h*3080}')
            it.append(f'  s_add_u32 s{sT[0]}, s{sG[s >> 2]}, s{sQ[s & 3]}' if h == 0 else f'  s_add_u32 s{sT[0]}, s{sT[0]}, 6144')
            for i in range(3):
                it.append(lambda h=h, i=i: g.vmop(f'  buffer_load_dwordx4 v{vBL[i]}, s[{sP}:{sP+3}], s{sT[0]} offen offset:{i*1024}{NT_B} lds', ('B', s, 3*h + i)))
        return it
    def halfA(f, o0, dl):
        return [f'  s_cmp_eq_u32 s{f+1}, 0', f'  s_cselect_b32 s{dl}, 73728, s26', f'  s_add_u32 s{o0}, s{f}, s{f+1}',
                f'  s_add_u32 s{o0}, s{o0}, s{dl}', f'  s_min_u32 s{o0}, s{o0}, s{sOOB}']
    def halfB(f, o2, dl, d1p):
        return [f'  s_cmp_eq_u32 s{f+1}, 73728', f'  s_cselect_b32 s{dl}, {-73728 & 0xffffffff}, s27', f'  s_add_u32 s{d1p}, s{f+1}, 12288',
                f'  s_add_u32 s{o2}, s{f}, s{d1p}', f'  s_add_u32 s{o2}, s{o2}, s{dl}', f'  s_min_u32 s{o2}, s{o2}, s{sOOB}']
    def mixv(dst, src, mk, dl, d1):
        return [f'  v_and_b32 v{dst}, s{dl}, v{mk}', f'  v_add3_u32 v{dst}, v{src}, v{dst}, s{d1}']
    def xdma(t, u):
        it = []
        a, b = sF[0], sF[0] + 1
        if u == 0:
            it += [f'  s_mov_b64 s[{sF[k]}:{sF[k]+1}], s[{sF[k-1]}:{sF[k-1]+1}]' for k in range(len(sF) - 1, 0, -1)]
            it += [f'  s_cmp_ge_u32 s{sBase}, s{sDec+1}', f'  s_cselect_b64 s[{sDec}:{sDec+1}], s[{sP1}:{sP1+1}], s[{sDec}:{sDec+1}]',
                   f'  s_cselect_b64 s[{sP1}:{sP1+1}], s[{sP2}:{sP2+1}], s[{sP1}:{sP1+1}]']
            it += [f'  s_add_u32 s{a}, s{sVa}, s{sBase}', f'  s_xor_b32 s{a}, s{a}, s{sDec}',
                   f'  s_bfe_u32 s{b}, s{a}, {21 | (1 << 16)}', f'  s_bfe_u32 s{a}, s{a}, {19 | (1 << 16)}', f'  s_lshl1_add_u32 s{b}, s{a}, s{b}',
                   f'  s_sub_u32 s{b}, 1, s{b}', f'  s_and_b32 s{b}, s{b}, 3', f'  s_mul_i32 s{b}, s{b}, {TILE_B}',
                   f'  s_cmp_lt_u32 s{sBase}, s{sEnd}', f'  s_cselect_b32 s{a}, s{sBase}, s{sOOB}', f'  s_add_u32 s{sBase}, s{sBase}, {KSTEP}']
            it += halfA(a, sXa, sXd)
        if u == 2: it += mixv(vTX, vXS[2], vMk[0], sXd, b)
        if u == 3: it += halfB(a, sXb, sXd, sXe) + mixv(vTX, vXS[0], vMk[1], sXd, sXe)
        it.append(f'  s_add_u32 m0, s{sRing}, {(t & 1)*TILE_B + u*4096}')
        if u == 5 and (t & 1): it.append(f'  s_xor_b32 s{sRing}, s{sRing}, {2*TILE_B}')
        else: it.append('NOP')
        it.append(lambda: g.vmop(f'  buffer_load_dwordx4 v{vTX if u in (2, 3) else vXS[u % 3]}, s[{sX}:{sX+3}], s{[sXa, sXa, a, a, sXb, sXb][u]} offen{NT_LD} lds', ('L', t, u)))
        return it
    PF = opts.get('pf')
    vPF = PT + 2; vPD = PT + 3; sPf0 = 21; sPfo = 37
    def pf_items():
        return [f'  s_add_u32 s{sPfo}, s{sVa}, s{sBase}', f'  s_xor_b32 s{sPfo}, s{sPfo}, s{sDec}', f'  s_lshr_b32 s{sPfo}, s{sPfo}, 8',
                f'  s_and_b32 s{sPfo}, s{sPfo}, 8192', f'  s_add_u32 s{sPfo}, s{sPfo}, s{sBase}',
                f'  s_cmp_lt_u32 s{sBase}, s{sEnd}', f'  s_cselect_b32 s{sPfo}, s{sPfo}, s{sOOB}',
                f'  s_cmp_ge_u32 s{sBase}, s{sPf0}', f'  s_cselect_b32 s{sPfo}, s{sPfo}, s{sOOB}',
                lambda: g.vmop(f'  buffer_load_dword v{vPD}, v{vPF}, s[{sX}:{sX+3}], s{sPfo} offen{opts.get("pfl", "")}', None)]
    def xdma_items(t):
        return ['  s_nop 0' if x == 'NOP' else x for u in range(6) for x in xdma(t, u)]
    NB0 = int(opts.get('nb0', 1)) if FUSE else 99
    NI = int(opts.get('ni', 1))
    run(bload(0))
    if LEAN == 2: p_tl(); p_warm()
    if LEAN: p_dws(); p_dwl(); p_gb1()
    for s in range(1, min(NB0, NI)): run(bload(s))
    if opts.get('tw'):
        e(f'  v_mov_b32 v{T[5]}, s{sBase}')
        g.vmop(f'  global_load_dword v{BV+2}, v{T[5]}, s[24:25]', ('K',))
        g.vmop(f'  global_load_dword v{BV+3}, v{T[5]}, s[30:31]', ('K',))
    if opts.get('st2') == '2': stamp()
    srd(sX, 24, 113246208)
    hi2, lo4 = T[1], T[4]
    e(f'  s_add_u32 s{sVa}, s24, 49152')
    e(f'  s_mov_b32 s{sOOB}, {OOB}')
    e(f'  s_mov_b32 s26, {-24576 & 0xffffffff}')
    e('  s_mov_b32 s27, 24576')
    e(f'  s_lshl_b32 s{sRing}, s{sW}, 10')
    for x in sF[:3]: e(f'  s_mov_b32 s{x}, s{sOOB}'); e(f'  s_mov_b32 s{x+1}, 0')
    e(f'  s_lshr_b32 s{sDec}, s2, 1')
    e(f'  s_xor_b32 s{sDec}, s{sDec}, s2')
    e(f'  s_and_b32 s{sDec}, s{sDec}, 4')
    e(f'  s_and_b32 s{sT[1]}, s2, 1')
    e(f'  s_or_b32 s{sDec}, s{sDec}, s{sT[1]}')
    e(f'  s_lshl_b32 s{sDec}, s{sDec}, 19')
    e(f'  s_mov_b32 s{sDec+1}, -1')
    ROW = [ACC+16, ACC+17, ACC+18]; GG = [ACC+19, ACC+20, ACC+21]
    def rowmap(dst, dst4b, base, u):
        if u == 0:
            e(f'  v_add_u32 v{dst[3]}, {26*768}, v{base}')
            if base != dst[0]: e(f'  v_mov_b32 v{dst[0]}, v{base}')
        if u == 1:
            e(f'  v_cmp_lt_u32 vcc, 5, v{ROW[1]}')
            e(f'  v_add_u32 v{T[8]}, {26*768}, v{base}')
            e(f'  v_add_u32 v{T[9]}, {37*768}, v{base}')
            e(f'  v_cndmask_b32 v{dst[4]}, v{T[8]}, v{T[9]}, vcc')
            if dst4b is not None:
                e(f'  v_add_u32 v{T[8]}, {58*768}, v{base}')
                e(f'  v_add_u32 v{T[9]}, {5*768}, v{base}')
                e(f'  v_cndmask_b32 v{dst4b}, v{T[8]}, v{T[9]}, vcc')
            if base != dst[1]: e(f'  v_mov_b32 v{dst[1]}, v{base}')
        if u == 2:
            e(f'  v_cmp_lt_u32 vcc, 10, v{ROW[2]}')
            e(f'  v_add_u32 v{T[8]}, 7680, v{base}')
            e(f'  v_add_u32 v{dst[5]}, {5*768}, v{base}')
            e(f'  v_cndmask_b32 v{dst[2]}, v{base}, v{T[8]}, vcc')
    e(f'  v_lshrrev_b32 v{GG[0]}, 4, v0')
    e(f'  v_xor_b32 v{T[6]}, s{sT[3]}, v{lo4}')
    for u in range(3):
        if u: e(f'  v_add_u32 v{GG[u]}, {16*u}, v{GG[0]}')
        e(f'  v_mul_u32_u24 v{ROW[u]}, 43, v{GG[u]}')
        e(f'  v_lshrrev_b32 v{ROW[u]}, 7, v{ROW[u]}')
        e(f'  v_mul_u32_u24 v{T[2]}, 3, v{ROW[u]}')
        e(f'  v_sub_u32 v{T[3]}, v{GG[u]}, v{T[2]}')
        e(f'  v_add_u32 v{T[3]}, s{sR1}, v{T[3]}')
        e(f'  v_subrev_u32 v{T[5]}, 3, v{T[3]}')
        e(f'  v_min_u32 v{T[3]}, v{T[3]}, v{T[5]}')
        e(f'  v_add_u32 v{T[3]}, v{T[3]}, v{T[2]}')
        e(f'  v_xor_b32 v{T[5]}, v{ROW[u]}, v{T[6]}')
        e(f'  v_lshlrev_b32 v{T[5]}, 4, v{T[5]}')
        e(f'  v_lshl_add_u32 v{vXS[u]}, v{T[3]}, 8, v{T[5]}')
        if u != 1:
            e(f'  v_cmp_eq_u32 vcc, {10 if u == 2 else 5}, v{ROW[u]}')
            e(f'  s_nop 1')
            e(f'  v_cndmask_b32 v{vMk[0 if u == 2 else 1]}, 0, -1, vcc')
    if NB0 <= 2: run(xdma_items(0))
    STG = int(opts.get('stg', 0))
    sS3 = [58, 59, 62]; sSR = 63
    def x0_site(early):
        it = []
        if early: it += [x for x in xdma(0, 0)[:-3]]
        it += [f'  s_and_b32 s{sSR}, s2, {STG}', f'  s_cmp_eq_u32 s{sSR}, 0' if early else f'  s_cmp_lg_u32 s{sSR}, 0']
        for r, src in zip(sS3, (sF[0], sX4, sF[0] + 1)): it.append(f'  s_cselect_b32 s{r}, s{src}, s{sOOB}')
        it += [f'  s_cselect_b32 s{sSR}, 0, {TILE_B}', f'  s_add_u32 s{sSR}, s{sSR}, s{sRing}']
        for u in range(6):
            if u == 4: it.append(f'  v_cndmask_b32 v{vTX}, v{vXS[4]}, v{vXS4b}, s[{sXm}:{sXm+1}]')
            it += [f'  s_add_u32 m0, s{sSR}, {u*4096}', '  s_nop 0',
                   lambda u=u: g.vmop(f'  buffer_load_dwordx4 v{vTX if u == 4 else vXS[u]}, s[{sX}:{sX+3}], s{sS3[max(0, u - 3)]} offen{NT_LD} lds', ('L', 0, u))]
        return it
    XE = int(opts.get('xe', -1))
    if STG and XE < 0: run(x0_site(True))
    for s in range(NB0, 2): run(bload(s))
    srd(sO, 30, 113246208)
    e(f'  v_lshlrev_b32 v{vST[0]}, 4, v0')
    for u in range(3):
        if u: e(f'  v_add_u32 v{vST[u]}, {4096*u}, v{vST[0]}')
        e(f'  v_and_b32 v{T[5]}, 7, v{ROW[u]}')
        e(f'  v_xor_b32 v{T[5]}, v{T[5]}, v{lo4}')
        e(f'  v_lshlrev_b32 v{T[5]}, 4, v{T[5]}')
        e(f'  v_lshl_add_u32 v{T[5]}, v{GG[u]}, 8, v{T[5]}')
        e(f'  v_add_u32 v{vOR[u]}, {LDS_O}, v{T[5]}')
    if opts.get('xlin'):
        for u in range(3): e(f'  v_mov_b32 v{vXS[u]}, v{vST[u]}')
    if opts.get('xlin') == '2':
        for u in range(2): e(f'  v_mov_b32 v{vMk[u]}, 0')
    e(f'  v_mul_u32_u24 v{T[0]}, 0x300, v{lo4}')
    e(f'  v_xor_b32 v{T[2]}, v{hi2}, v{lo4}')
    e(f'  v_lshl_add_u32 v{vLdsR[0]}, v{T[2]}, 4, v{T[0]}')
    for s in range(1, 4): e(f'  v_xor_b32 v{vLdsR[s]}, {s*64}, v{vLdsR[0]}')
    e(f'  s_mul_i32 s{sT[1]}, s{sW}, 12')
    e(f'  v_and_b32 v{T[2]}, 7, v{lo4}')
    for u in range(2):
        e(f'  v_add_u32 v{T[3]}, s{sT[1]}, v{hi2}')
        if u: e(f'  v_add_u32 v{T[3]}, {4*u}, v{T[3]}')
        e(f'  v_xor_b32 v{T[3]}, v{T[3]}, v{T[2]}')
        e(f'  v_lshl_add_u32 v{vOW[u]}, v{T[3]}, 4, v{T[0]}')
        e(f'  v_add_u32 v{vOW[u]}, {LDS_O}, v{vOW[u]}')
    e(f'  v_bfe_u32 v{T[2]}, v{vLane}, 2, 2')
    e(f'  v_and_b32 v{T[3]}, 3, v{vLane}')
    e(f'  v_lshrrev_b32 v{T[5]}, 1, v{hi2}')
    e(f'  v_lshl_add_u32 v{T[5]}, v{T[5]}, 3, v{T[2]}')
    e(f'  v_mul_u32_u24 v{T[5]}, 192, v{T[5]}')
    e(f'  v_and_b32 v{T[7]}, 1, v{hi2}')
    e(f'  v_mul_u32_u24 v{T[7]}, 3080, v{T[7]}')
    e(f'  v_add_u32 v{T[5]}, v{T[5]}, v{T[7]}')
    e(f'  v_lshl_add_u32 v{T[5]}, v{T[3]}, 4, v{T[5]}')
    e(f'  s_add_u32 s{sT[1]}, s{sBW}, {AREA[2]}')
    e(f'  v_add_u32 v{vTr2}, s{sT[1]}, v{T[5]}')
    e(f'  v_add_u32 v{vTr}, {(AREA[0] - AREA[2]) & 0xffffffff}, v{vTr2}')
    e(f'  s_add_u32 s{sT[1]}, s{sRing}, {LDS_DW}')
    e(f'  v_lshl_add_u32 v{vDW}, v{hi2}, 4, s{sT[1]}')
    e(f'  v_and_b32 v{T[5]}, 1, v{vLane}')
    e(f'  v_lshlrev_b32 v{T[5]}, 4, v{T[5]}')
    e(f'  v_mov_b32 v{T[7]}, 0xffff')
    e(f'  v_lshlrev_b32 v{T[5]}, v{T[5]}, v{T[7]}')
    e(f'  v_lshlrev_b32 v{T[0]}, 1, v{hi2}')
    e(f'  v_bfe_u32 v{T[7]}, v{vLane}, 1, 3')
    e(f'  v_cmp_eq_u32 vcc, v{T[0]}, v{T[7]}')
    e(f'  v_add_u32 v{T[0]}, 1, v{T[0]}')
    e(f'  s_nop 0')
    e(f'  v_cndmask_b32 v{vM[0]}, 0, v{T[5]}, vcc')
    e(f'  v_cmp_eq_u32 vcc, v{T[0]}, v{T[7]}')
    srd(sDS, sDb, 256)
    e(f'  v_cndmask_b32 v{vM[1]}, 0, v{T[5]}, vcc')
    NR = int(opts.get('nr', 2))
    def probe():
        e(f'  s_cmp_lg_u32 s{sPr}, 0')
        e(f'  s_cbranch_scc1 L_npr')
        e(f'  s_mov_b32 s{sPv}, 0xffff')
        e(f'  s_mov_b32 s{sRd}, 0xffff')
        e(f'  s_lshl_b32 s{sT[2]}, s{sW}, 2')
        e(f'  s_add_u32 s{sT[2]}, s{sT[2]}, {LDS_PR}')
        e(f'  v_mov_b32 v{T[0]}, s{sT[2]}')
        if int(opts.get('pb', 0)):
            e('  s_waitcnt lgkmcnt(0)')
            for i in range(NR):
                e('  s_barrier')
                e(f'  s_memtime s[{sPT}:{sPT+1}]')
                e(f'  s_load_dword s{sT[2]}, s[24:25], s{sPb if i & 1 else sPa} glc')
                e('  s_waitcnt lgkmcnt(0)')
                e(f'  s_memtime s[{sPT+2}:{sPT+3}]')
                e('  s_waitcnt lgkmcnt(0)')
                e(f'  s_sub_u32 s{sT[1]}, s{sPT+2}, s{sPT}')
                e(f'  s_min_u32 s{sRd if i & 1 else sPv}, s{sRd if i & 1 else sPv}, s{sT[1]}')
        else:
            e('  s_waitcnt lgkmcnt(0)')
            e(f'  s_memtime s[{sPT}:{sPT+1}]')
            for i in range(NR):
                a, b = (sPT, sPT + 2) if i % 2 == 0 else (sPT + 2, sPT)
                e(f'  s_load_dword s{sT[2]}, s[24:25], s{sPb if i & 1 else sPa} glc')
                e('  s_waitcnt lgkmcnt(0)')
                if i:
                    e(f'  s_sub_u32 s{sT[1]}, s{a}, s{b}')
                e(f'  s_memtime s[{b}:{b+1}]')
                if i: e(f'  s_min_u32 s{sRd if (i - 1) & 1 else sPv}, s{sRd if (i - 1) & 1 else sPv}, s{sT[1]}')
            e('  s_waitcnt lgkmcnt(0)')
            e(f'  s_sub_u32 s{sT[1]}, s{sPT}, s{sPT+2}')
            e(f'  s_min_u32 s{sRd}, s{sRd}, s{sT[1]}')
        e(f'  s_lshl_b32 s{sPv}, s{sPv}, 16')
        e(f'  s_or_b32 s{sPv}, s{sPv}, s{sRd}')
        e(f'  v_mov_b32 v{T[2]}, s{sPv}')
        e(f'  ds_write_b32 v{T[0]}, v{T[2]}')
        e('  s_waitcnt lgkmcnt(0)')
        e(f'L_npr:')
    PQ = 248
    assert 11 not in ASLOTS
    def publish():
        if NB0 >= 2:
            e(f'  s_cmp_lg_u32 s{sPr}, 0')
            e(f'  s_cbranch_scc1 L_np1')
            e('  s_barrier')
        e(f'  s_or_b32 s{sT[1]}, s{sPr}, s{sW}')
        e(f'  s_cmp_lg_u32 s{sT[1]}, 0')
        e(f'  s_cbranch_scc1 L_np1')
        PR = 240
        e(f'  v_mov_b32 v{PR+8}, {LDS_PR}')
        e(f'  ds_read_b128 v[{PR}:{PR+3}], v{PR+8}')
        e(f'  s_add_u32 s{sT[1]}, s24, s{sPa}')
        e(f'  s_lshr_b32 s{sT[2]}, s{sT[1]}, 20')
        e(f'  s_lshr_b32 s{sT[0]}, s2, 1')
        e(f'  s_xor_b32 s{sT[2]}, s{sT[2]}, s{sT[0]}')
        e(f'  s_and_b32 s{sT[2]}, s{sT[2]}, 2')
        e(f'  s_lshr_b32 s{sT[1]}, s{sT[1]}, 17')
        e(f'  s_and_b32 s{sT[1]}, s{sT[1]}, 4')
        e(f'  s_or_b32 s{sT[1]}, s{sT[1]}, s{sT[2]}')
        e(f'  s_or_b32 s{sT[1]}, s{sT[1]}, 1')
        e(f'  v_mov_b32 v{PR+11}, 0')
        e(f'  v_mov_b32 v{PR+8}, s{sEo}')
        e('  s_waitcnt lgkmcnt(0)')
        for o in (0,):
            e(f'  v_pk_min_u16 v{PR+o}, v{PR+o}, v{PR+o+1}')
            e(f'  v_pk_min_u16 v{PR+o+2}, v{PR+o+2}, v{PR+o+3}')
            e(f'  v_pk_min_u16 v{PR+o}, v{PR+o}, v{PR+o+2}')
            e(f'  v_lshrrev_b32 v{PR+o+1}, 16, v{PR+o}')
            e(f'  v_and_b32 v{PR+o}, 0xffff, v{PR+o}')
        e(f'  v_cmp_gt_u32 vcc, v{PR+1}, v{PR}')
        e(f'  v_min_u32 v{PR+2}, v{PR}, v{PR+1}')
        e('  s_nop 0')
        e(f'  v_cndmask_b32 v{PR+10}, 0, 2, vcc')
        e(f'  v_xor_b32 v{PR+10}, s{sT[1]}, v{PR+10}')
        e('  s_mov_b64 exec, 1')
        e(f'  v_lshl_or_b32 v{PR+10}, v{PR+2}, 16, v{PR+10}')
        if opts.get('sat'):
            e(f'  s_mov_b32 s{sRd+1}, 0')
            e(f'  v_readfirstlane_b32 s{sRd}, v{PR+10}')
            e('  s_nop 4')
            e(f'  s_atomic_cmpswap s[{sRd}:{sRd+1}], s[{sDb}:{sDb+1}], s{sEo}{" glc" if opts["sat"] == "1" else ""}')
        else:
            e(f'  buffer_atomic_cmpswap v[{PR+10}:{PR+11}], v{PR+8}, s[{sDS}:{sDS+3}], 0 offen sc1')
        e('  s_mov_b64 exec, -1')
        e('L_np1:')
    if opts.get('st2') == '2': stamp()
    if int(opts.get('iw', 0)):
        for r in sSo: e(f'  s_mov_b32 s{r}, s{sOOB}')
        e(f'  s_mov_b64 s[{sSm}:{sSm+1}], 0')
        if opts.get('iwp', '0') == '0': e('@IWHOP')
    PP = int(opts.get('pp', 1))
    if NUMA and PP == -1: probe()
    for s in range(NI, 2): run(bload(s))
    if NUMA and PP == 0: probe()
    LA = int(opts.get('la', NAR))
    assert LA <= NAR
    if LA > 2: run(bload(2))
    if NUMA and PP == 1: probe()
    if NB0 == 3: run(xdma_items(0))
    if LA > 3: run(bload(3))
    if LA > 4: run(bload(4))
    if NUMA and PP == 2: probe()

    def trs(s):
        it = [lambda: g.wait(('b', s), vm=('W',) if (s == 0 and LEAN) else ('B', s, 5))]
        base = vTr if (s % NAR) < 2 else vTr2
        so = AREA[s % NAR] - AREA[0 if (s % NAR) < 2 else 2]
        it.append(lambda: g.lgop(f'  ds_read_b128 v[{DWR[s & 1]}:{DWR[s & 1]+3}], v{vDW} offset:{s*64}', ('TR', s)))
        for nt in range(6):
            for hh in range(2):
                r = RAW[s & 1] + nt*4 + 2*hh
                it.append(lambda r=r, nt=nt, hh=hh: g.lgop(f'  ds_read_b64_tr_b16 a[{r}:{r+1}], v{base} offset:{so + hh*768 + (nt >> 1)*64 + (nt & 1)*8}', ('TR', s)))
        return it
    def cvts(s, j, q=None):
        nt, hh = j // 2, j % 2
        if q is None: q = FT + 4*(j % NFT)
        if s in ASLOTS:
            return [f'  v_cvt_pk_bf16_f32 v{q}, v{q}, v{q+1}', f'  v_cvt_pk_bf16_f32 v{q+1}, v{q+2}, v{q+3}',
                    f'  v_accvgpr_write_b32 {breg(s, nt, 1, 2*hh)}, v{q}', f'  v_accvgpr_write_b32 {breg(s, nt, 1, 2*hh+1)}, v{q+1}']
        return [f'  v_cvt_pk_bf16_f32 {breg(s, nt, 1, 2*hh)}, v{q}, v{q+1}', f'  v_cvt_pk_bf16_f32 {breg(s, nt, 1, 2*hh+1)}, v{q+2}, v{q+3}']
    def rd(t, i):
        mt, ks = i // 12, i % 12
        x = XF + 8*((i // 2) % 3) + 4*(i & 1)
        g.lgop(f'  ds_read_b128 a[{x}:{x+3}], v{vLdsR[ks & 3]} offset:{(t & 1)*TILE_B + mt*12288 + (ks >> 2)*256}', ('X', t, i))
    TS = NB0 if FUSE else 13
    units = sorted([(0, k) for k in range(12)] + [(1, k) for k in range(8)], key=lambda u: (u[1] + 4*u[0], -u[0]))
    UPS = int(opts.get('ups', 2 if NB0 <= 2 else 3))
    SCH = {s: [] for s in range(13)}
    rem = list(units) if FUSE else []
    for s in range(12, TS - 1, -1):
        n = 2 if s == 12 else UPS
        take = [u for u in reversed(rem) if u[1] < s][:n]
        SCH[s] = sorted(take, key=lambda u: (u[1], u[0]))
        rem = [u for u in rem if u not in take]
    assert not rem, rem
    for mt in range(2 if FUSE else 0):
        seq = [u[1] for s in range(13) for u in SCH[s] if u[0] == mt]
        assert seq[0] == 0 and sorted(seq) == list(range(len(seq)))
    def tl(s): return SCH[s]
    def fx(s, mt, ks): return OB + 12*(s % 2) + 4*SCH[s].index((mt, ks))
    def prd(s):
        return [lambda mt=mt, ks=ks: g.lgop(f'  ds_read_b128 a[{fx(s, mt, ks)}:{fx(s, mt, ks)+3}], v{vLdsR[ks & 3]} offset:{mt*12288 + (ks >> 2)*256}', ('TR', s)) for (mt, ks) in tl(s)]
    def tm(s, mt, ks, nt):
        a = ACC + 24*mt + 4*nt; x = fx(s, mt, ks)
        return f'  v_mfma_f32_16x16x32_bf16 v[{a}:{a+3}], {breg(ks, nt)}, a[{x}:{x+3}], {"0" if ks == 0 else f"v[{a}:{a+3}]"}'
    if opts.get('iwp') == '1': e('@IWHOP')
    DEC = int(opts.get('dec', 0))
    def trd(s):
        it = [lambda: g.wait(('b', s), vm=('W',) if (s == 0 and LEAN) else ('B', s, 5))]
        base = vTr if (s % NAR) < 2 else vTr2
        so = AREA[s % NAR] - AREA[0 if (s % NAR) < 2 else 2]
        for nt in range(6):
            for hh in range(2):
                it.append(lambda nt=nt, hh=hh: g.lgop(f'  ds_read_b64_tr_b16 {breg(s, nt, 2, 2*hh)}, v{base} offset:{so + hh*768 + (nt >> 1)*64 + (nt & 1)*8}', ('TR', s)))
        return it
    def dwr(s): g.lgop(f'  ds_read_b128 v[{DWR[s & 1]}:{DWR[s & 1]+3}], v{vDW} offset:{s*64}', ('DW', s))
    if DEC:
        run(trd(0)); dwr(0)
    else: run(trs(0))
    stamp()
    LAG = int(opts.get('lag', 3))
    XA = int(opts.get('xa', 8)); XB = int(opts.get('xb', 12)); DS = int(opts.get('ds', XA)); BQ = 10
    X0 = int(opts.get('x0', 11 - LA)); X1 = int(opts.get('x1', 11))
    if not FUSE: XA = XB = BQ = 99; DS = int(opts.get('ds', 9)); LAG = int(opts.get('lag', 4))
    assert XB >= BQ
    pend = []
    def region(dst, src, tmp):
        return [f'  s_lshr_b32 s{tmp}, s{src}, 23', f'  s_sub_u32 s{tmp}, s{tmp}, 6', f'  s_lshr_b32 s{dst}, s{src}, 24', f'  s_max_i32 s{dst}, s{dst}, s{tmp}']
    def reader():
        it = [f'  s_add_u32 s{sT[1]}, s{sBase}, 49152'] + region(sOf[0], sT[1], sT[2])
        it += [f'  s_sub_u32 s{sT[1]}, s{sEnd}, {KSTEP - 49152}'] + region(sOf[2], sT[1], sT[2])
        for k, lim in ((1, sP2), (2, sP1 + 1)):
            it += [f'  s_add_u32 s{sT[1]}, s{sOf[0]}, {k}', f'  s_lshl_b32 s{lim}, s{sT[1]}, 24', f'  s_add_u32 s{sT[1]}, s{sT[1]}, 6',
                   f'  s_lshl_b32 s{sT[1]}, s{sT[1]}, 23', f'  s_min_u32 s{lim}, s{lim}, s{sT[1]}', f'  s_sub_u32 s{lim}, s{lim}, 49152']
        it += [f'  s_add_u32 s{sOf[1]}, s{sOf[0]}, 1', f'  s_min_u32 s{sOf[1]}, s{sOf[1]}, s{sOf[2]}']
        for i in range(3):
            it += [f'  s_lshl_b32 s{sOf[i]}, s{sOf[i]}, 4', f'  s_load_dwordx4 s[{sEn[i]}:{sEn[i]+3}], s[{sDb}:{sDb+1}], s{sOf[i]}']
        return it
    def decide():
        if NUMA:
            e(f'  s_min_u32 s{sT[1]}, s{sEn[0]}, s{sEn[0]+1}')
            for r in [sEn[0]+2, sEn[0]+3] + [sEn[i] + k for i in (1, 2) for k in range(4)]: e(f'  s_min_u32 s{sT[1]}, s{sT[1]}, s{r}')
            e(f'  s_cmp_eq_u32 s{sT[1]}, 0')
            e('  s_cbranch_scc1 L_slow')
            e('L_back:')
    def decide2():
        it = []
        it.append(f'  s_mov_b32 s{sDec+1}, s{sP2}')
        it.append(f'  s_mov_b32 s{sP2+1}, -1')
        it.append(f'  s_and_b32 s{sT[0]}, s2, 5')
        it.append(f'  s_lshl_b32 s{sT[0]}, s{sT[0]}, 19')
        for q, dst in zip(sEn, (sDec, sP1, sP2)):
            it.append(f'  s_min_u32 s{sT[1]}, s{q}, s{q+2}')
            it.append(f'  s_min_u32 s{sT[2]}, s{q+1}, s{q+3}')
            it.append(f'  s_cmp_gt_u32 s{sT[1]}, s{sT[2]}')
            it.append(f'  s_cselect_b32 s{sT[1]}, 4, 0')
            it.append(f'  s_xor_b32 s{sT[1]}, s{sT[1]}, s{q}')
            it.append(f'  s_and_b32 s{sT[1]}, s{sT[1]}, 4')
            it.append(f'  s_lshl_b32 s{sT[1]}, s{sT[1]}, 17')
            it.append(f'  s_bitcmp1_b32 s2, 1')
            it.append(f'  s_cselect_b64 s[{q}:{q+1}], s[{q+2}:{q+3}], s[{q}:{q+1}]')
            it.append(f'  s_bitcmp1_b32 s2, 0')
            it.append(f'  s_cselect_b32 s{dst}, s{q+1}, s{q}')
            it.append(f'  s_and_b32 s{dst}, s{dst}, 2')
            it.append(f'  s_lshl_b32 s{dst}, s{dst}, 20')
            it.append(f'  s_or_b32 s{dst}, s{dst}, s{sT[1]}')
            it.append(f'  s_xor_b32 s{dst}, s{dst}, s{sT[0]}')
        return it
    if DEC:
        QU = [[] for _ in range(145)]
        def spread(items, n0, n1):
            for i, it in enumerate(items): QU[n0 + (i * (n1 - n0)) // len(items)].append(it)
        for a in range(11):
            it = trd(a + 1)
            if a + LA < 12: it += [lambda a=a: g.wait(('trf', a), lg=('TR', a))] + bload(a + LA)
            if a == X0: it += xdma_items(0)
            spread(it, DEC * a, DEC * (a + 1))
        if NUMA: QU[12*DS - 8].append(f'  s_load_dword s{sRd}, s[{sDb}:{sDb+1}], s{sEo}')
        if X1 < 12: spread(xdma_items(1), 12*X1, 12*X1 + 12)
        assert DEC * (X0 + 1) <= 12*DS
        for n in range(144):
            k, j = n // 12, n % 12
            d = DWR[k & 1]
            if j == 0:
                if k == DS and NUMA: e('  s_waitcnt lgkmcnt(0)')
                else:
                    g.wait(('tr', k), lg=('TR', k)); g.wait(('dw', k), lg=('DW', k), opt=True)
                for i in range(4): e(f'  v_and_b32 v{d+i}, v{vM[i & 1]}, v{d+i}')
                if k == DS: decide()
                if k + 1 < 12: dwr(k + 1)
                else: e('  s_nop 0')
                e('  s_nop 0')
            nt, hh = j // 2, j % 2
            q = FT + 4*(n % NFT)
            e(f'  v_mfma_f32_16x16x16_bf16 v[{q}:{q+3}], v[{d+2*hh}:{d+2*hh+1}], {breg(k, nt, 2, 2*hh)}, 0')
            pend.append(cvts(k, j, q))
            run(QU[n])
            if len(pend) > LAG: run(pend.pop(0))
            if n in (47, 95): stamp()
            if n == 11 and NUMA: publish()
    for s in range(0 if DEC else 12):
        if s == DS and NUMA: e('  s_waitcnt lgkmcnt(0)')
        else: g.wait(('tr', s), lg=('TR', s))
        if s == BQ: e('  s_barrier')
        d = DWR[s & 1]
        for i in range(4): e(f'  v_and_b32 v{d+i}, v{vM[i & 1]}, v{d+i}')
        if s == DS: decide()
        Q = []
        if s + 4 == NB0: Q += xdma_items(0)
        if s + LA < 12: Q += bload(s + LA)
        nx = trs(s + 1) if s + 1 < 12 else []
        if s == NB0 - 1:
            nx = nx[:1] + ['  s_barrier'] + nx[1:]
        nx += prd(s + 1)
        Q = (Q + nx) if opts.get('qo', '1') == '0' else (nx + Q)
        if s == DS - 1 and NUMA:
            assert s > X0 and s + LA >= 12
            Q += reader()
        if s == DS and NUMA: Q += decide2()
        if STG and s == XE: Q += x0_site(True)
        if s == X0 and not FUSE: Q += (x0_site(False) if STG else xdma_items(0))
        if s == X1 and not FUSE: Q += xdma_items(1)
        if s == XA: Q += xdma_items(1)
        if s == XB: Q += xdma_items(2)
        if s == 11 and FUSE: Q += [lambda i=i: rd(0, i) for i in range(20, 24)]
        while len(Q) < 2: Q.append('  s_nop 0')
        M = []
        TL = [tm(s, mt, ks, nt) for nt in range(6) for (mt, ks) in tl(s)]
        for j in range(12):
            nt, hh = j // 2, j % 2
            r = RAW[s & 1] + nt*4 + 2*hh
            q = FT + 4*(j % NFT)
            M.append((f'  v_mfma_f32_16x16x16_bf16 v[{q}:{q+3}], v[{d+2*hh}:{d+2*hh+1}], a[{r}:{r+1}], 0', j))
            k0, k1 = (j*len(TL))//12, ((j+1)*len(TL))//12
            M += [(x, None) for x in TL[k0:k1]]
        run(Q[:2]); Q = Q[2:]
        front = int(opts.get('front', 2))
        cq = []
        for mi, (m, j) in enumerate(M):
            if j is not None:
                run(cq); cq = []
            e(m)
            if j is not None:
                pend.append(cvts(s, j))
                if len(pend) > LAG: cq = pend.pop(0)
            QE = (len(M) * int(opts.get('qe', 4))) // 4
            nq = -(-len(Q) // max(1, QE - mi)) if mi < QE else len(Q)
            run(Q[:nq]); Q = Q[nq:]
            nc = 2 if (mi + 1 < len(M) and M[mi + 1][1] is None) else len(cq)
            run(cq[:nc]); cq = cq[nc:]
        assert not Q and not cq
        if s in (3, 7) and not opts.get('st2'): stamp()
        if s == int(opts.get('pubs', 0)) and NUMA: publish()
    if FUSE:
        g.wait(('tr', 12), lg=('TR', 12))
        T0 = [tm(12, 0, 11, nt) for nt in range(6)]
        T1 = [tm(12, 1, ks, nt) for (mt, ks) in tl(12) if mt == 1 for nt in range(6)]
        for nt in range(4):
            e(T0[nt])
            if pend: run(pend.pop(0))
        if DS == 12:
            e('  s_waitcnt lgkmcnt(0)'); decide()
        e(f'  v_sub_u32 v{vST4b}, v{vXS4b}, v{vXS[4]}')
        e(f'  v_add_u32 v{vST4b}, v{vST4b}, v{vST[4]}')
        e(T0[4]); e(T0[5])
        stamp()
        FIN = (T1, XB)
    else:
        run(pend.pop(0)); run(pend.pop(0))
        stamp()
        e(f'  v_mov_b32 v{vTS2}, 0')
        e(f'  v_mov_b32 v{vTS3}, 0')
        for r in sSo: e(f'  s_mov_b32 s{r}, s{sOOB}')
        if PF:
            a_, m_ = [int(v) for v in PF.split(',')]
            e(f'  v_mbcnt_lo_u32_b32 v{vPF}, -1, 0')
            e(f'  v_mbcnt_hi_u32_b32 v{vPF}, -1, v{vPF}')
            e(f'  v_min_u32 v{vPF}, 47, v{vPF}')
            e(f'  s_mul_i32 s{sPf0}, s{sW}, 48')
            e(f'  v_add_u32 v{vPF}, s{sPf0}, v{vPF}')
            e(f'  v_lshrrev_b32 v{vPD}, 6, v{vPF}')
            e(f'  v_lshlrev_b32 v{vPD}, 13, v{vPD}')
            e(f'  v_lshl_add_u32 v{vPF}, v{vPF}, 7, v{vPD}')
            e(f'  s_lshr_b32 s{sPf0}, s2, 3')
            e(f'  s_and_b32 s{sPf0}, s{sPf0}, {m_}')
            e(f'  s_add_u32 s{sPf0}, s{sPf0}, {a_ - NTILE & 0xffffffff}')
            e(f'  s_mul_i32 s{sPf0}, s{sPf0}, {KSTEP}')
            e(f'  s_add_u32 s{sPf0}, s{sPf0}, s{sEnd}')
        if opts.get('iwp') == '2': e('@IWHOP')
        if int(opts.get('iw', 0)): e('  s_mov_b64 vcc, 0')
        g.wait('x0', vm=('L', 0, 5))
        e('  s_barrier')
        for i in range(4): rd(0, i)
        while pend: run(pend.pop(0))
        if X1 == 13: run(xdma_items(1))
        else: assert NAR == 4 and X1 >= DS

    def epi(mt, u, po):
        a = ACC + 24*mt + 8*u
        cv = [f'  v_cvt_pk_bf16_f32 v{a+i}, v{a+2*i}, v{a+2*i+1}' for i in range(4)]
        off = po*TILE_B + mt*12288 + (u >> 1)*128
        if DIR:
            return cv + [lambda: g.vmop(f'  buffer_store_dwordx4 v[{a}:{a+3}], v{vTS if mt else vST[0]}, s[{sO}:{sO+3}], s{sSo[2] if mt else sSo[0]} offen offset:{64*u}{NT_ST}', None)]
        if opts.get('w64'):
            return cv[:2] + [lambda: g.lgop(f'  ds_write_b64 v{vOW[u & 1]}, v[{a}:{a+1}] offset:{off}', ('OWa', mt, u))] + cv[2:] + \
                   [lambda: g.lgop(f'  ds_write_b64 v{vOW[u & 1]}, v[{a+2}:{a+3}] offset:{off+8}', ('OW', mt, u))]
        return cv + [lambda: g.lgop(f'  ds_write_b128 v{vOW[u & 1]}, v[{a}:{a+3}] offset:{off}', ('OW', mt, u))]
    OBT = 'a'
    def out_read(t, u):
        o = OB + 4*u
        g.lgop(f'  ds_read_b128 {OBT}[{o}:{o+3}], v{vOR[u % 3]} offset:{((t^1)&1)*TILE_B + (u // 3)*12288}', ('O', t, u))
    def out_store(t, u, key):
        o = OB + 4*u
        g.wait((key, 'o', u), lg=('O', t, u), opt=True)
        g.vmop(f'  buffer_store_dwordx4 {OBT}[{o}:{o+3}], v{[vST[0], vST[1], vTS2, vTS3, vST[1], vST[2]][u]}, s[{sO}:{sO+3}], s{sSo[[0, 0, 1, 2, 3, 3][u]]} offen{opts.get("mixf", " nt") if str(u) in opts.get("mix", "") else NT_ST}', None)
    def st_adv(d=0):
        p, q = sF[2 - d], sF[3 - d]
        return halfA(p, sSo[0], sSd) + [f'  s_mov_b32 s{sSo[1]}, s{p}'] + mixv(vTS2, vST[2], vMk[0], sSd, p + 1) + \
               halfB(q, sSo[3], sSd, sSo[2]) + mixv(vTS3, vST[0], vMk[1], sSd, sSo[2]) + [f'  s_mov_b32 s{sSo[2]}, s{q}']
    def ints(k, d): return [int(v) for v in opts.get(k, d).split(',')]
    OR_AT = ints('or', '2,3,4,5,6,7'); OS_AT = ints('os', '14,20,30,40,52,64')
    UORD = ints('uord', '3,4,5,0,1,2')
    XD_AT = ints('xd', '76,88,100,112,124,136')
    E1_AT = ints('e1', '27,39,61'); E0_AT = ints('e0', '99,106,123')
    SH_AT = int(opts.get('sh', 26)); CAP = int(opts.get('cap', 1)); HG = int(opts.get('hg', 0))
    def fillers(t):
        F = [[] for _ in range(144)]
        use = [0] * 150
        for r in range(144):
            if r % 12 in (0, 1, 11): use[r] = 1
        HP = opts.get('hp')
        def heavy(rho, it):
            while use[rho] or (HP and rho % 2 != int(HP)): rho += 1
            F[rho].append(it); use[rho] = 9
            for k in range(1, HG + 1): use[rho + k] = max(use[rho + k], 8)
            return rho
        def light(rho, items, cap=CAP, back=False):
            if back:
                for it in reversed(items):
                    while use[rho] >= cap: rho -= 1
                    F[rho].insert(0, it); use[rho] += 1
                return rho
            for it in items:
                while use[rho] >= cap: rho += 1
                F[rho].append(it); use[rho] += 1
            return rho
        kp = t & 1
        post = []
        vpos = []
        for k in range(0 if DIR else 6):
            u = UORD[k]
            lastst = heavy(OS_AT[k], lambda u=u: out_store(t, u, kp))
            vpos.append(lastst)
        xpos = []
        for u in range(6):
            it = [x for x in xdma(t + PD, u) if x != 'NOP']
            xpos.append((heavy(XD_AT[u], it[-1]), it[:-1]))
        for mt, AT in ((1, E1_AT), (0, E0_AT)):
            for u in range(3):
                r = AT[u]
                for it in epi(mt, u, t & 1):
                    r = (heavy(r, it) if callable(it) else light(r, [it], 1)) + 1
                if DIR:
                    vpos.append(r - 1)
                    if mt == 1: lastst = r - 1
        for k in range(0 if DIR else 6):
            light(OR_AT[k], [lambda u=UORD[k]: out_read(t, u)], 1)
        prevx = 0
        for (r, it) in xpos:
            r0 = light(r - 1, it, 2 if len(it) > 6 else CAP, back=True)
            assert r0 >= 24 and r0 > prevx, (r0, prevx)
            prevx = r
        if opts.get('xr'):
            a_, b_ = [int(v) for v in opts['xr'].split(',')]
            it = [f'  s_sub_u32 s37, s{sEnd}, s{sBase}', f'  s_sub_u32 s37, s37, {(NTILE - b_)*KSTEP + 1}', f'  s_cmp_lt_u32 s37, {(b_ - a_)*KSTEP}',
                  f'  s_cselect_b32 s37, s{sF[0]}, s{sOOB}', f'  s_xor_b32 s37, s37, 0x2000000']
            r1_ = heavy(104, lambda: g.vmop(f'  buffer_load_dwordx4 a[240:243], v{vXS[0]}, s[{sX}:{sX+3}], s37 offen nt', None))
            heavy(130, lambda: g.vmop(f'  buffer_load_dwordx4 a[244:247], v{vXS[1]}, s[{sX}:{sX+3}], s37 offen nt', None))
            light(94, it, 2, back=True)
        if PF:
            it = pf_items()
            rp = heavy(int(opts.get('pfa', 140)), it[-1])
            assert light(rp - 1, it[:-1], 2, back=True) > xpos[4][0]
        if opts.get('lim'):
            for r in vpos + [x[0] for x in xpos]:
                light(r - 1, [f'  s_waitcnt vmcnt({opts["lim"]})'], 2, back=True)
        for a, b in zip(xpos, xpos[1:]): assert b[0] - a[0] >= 5
        r1 = light(max(lastst, xpos[0][0]) + 1, [x for x in st_adv() if x != 'NOP'], 2)
        assert r1 < (E0_AT[0] + 4 if DIR else 144)
        return F
    def tile(t, G0=0):
        kp = t & 1
        F0 = fillers(t); F1 = fillers(t + 1)
        for G_ in range(G0, 12):
            mt, kg = G_ // 6, G_ % 6
            if DBG == 2 and G_ in (4, 10): e(f'  s_memrealtime s[{[42, 44, 48, 50][2*kp + (G_ == 10)]}:{[42, 44, 48, 50][2*kp + (G_ == 10)]+1}]')
            if G_ == 10:
                if G0 == 0 and kp == 1 and opts.get('skv'):
                    e(f'  s_cmp_ge_u32 s{sF[1]}, s{sOOB}')
                    e(f'  s_cbranch_scc1 L_npv{t}')
                    g.wait((kp, 'barv'), vm=('L', t + 1, 5))
                    e(f'L_npv{t}:')
                    g.wait((kp, 'bar'), lg=('OW', 0, 2))
                elif G0 == 0: g.wait((kp, 'bar'), vm=('L', t + 1, 5), lg=('OW', 0, 2))
                if kp == 0 and not unroll: e('L_ent:')
                e('  s_barrier')
                if DBG == 2: e(f'  s_memrealtime s[{[46, 52][kp]}:{[46, 52][kp]+1}]')
                if t & 1:
                    for r in vLdsR: e(f'  v_xor_b32 v{r}, {2*TILE_B}, v{r}')
            g.wait((kp, 'x', G_), lg=('X', t, 2*G_ + 1))
            for pd_ in (opts['pad'].split(',') if opts.get('pad') else []): e(f'  s_nop {pd_}')
            for nt in range(6):
                for k in range(2):
                    kk = k ^ (nt & 1) if opts.get('snake') else k
                    ks = 2*kg + kk; i = 12*mt + ks
                    x = XF + 8*(G_ % 3) + 4*kk
                    a = ACC + 24*mt + 4*nt
                    c = '0' if kg == 0 and k == 0 else f'v[{a}:{a+3}]'
                    e(f'  v_mfma_f32_16x16x32_bf16 v[{a}:{a+3}], {breg(ks, nt)}, a[{x}:{x+3}], {c}')
                    gap = 12*G_ + 2*nt + k
                    if gap % 12 in (0, 1):
                        j = 2*G_ + 4 + (gap % 12)
                        if j < 24: rd(t, j)
                        else: rd(t + 1, j - 24)
                    run(F0[gap + 24] if gap < 120 else F1[gap - 120])
    if FUSE:
        Q = (xdma_items(2) if XB == 12 else []) + [x if x != 'NOP' else '  s_nop 0' for x in st_adv()]
        E = epi(0, 0, 0) + epi(0, 1, 0) + epi(0, 2, 0)
        T1 = list(FIN[0])
        run(Q[:4]); Q = Q[4:]
        while T1 or E:
            if T1: e(T1.pop(0))
            run(E[:3]); E = E[3:]
        run(Q)
    stamp()
    if DBG:
        e(f'  s_mov_b32 s94, {sn[0]}')
        e('  s_mov_b32 s60, s64')
        e('  s_memtime s[38:39]') if 0 else e('  s_memtime s[86:87]')
    def tail(t):
        if DIR:
            e('  s_nop 3')
            for u in range(3): run(epi(1, u, t & 1))
            return
        done = [UORD[k] for k in range(6) if OS_AT[k] < 24]
        rdone = [UORD[k] for k in range(6) if OR_AT[k] < 24]
        for u in UORD:
            if u not in rdone: out_read(t, u)
        e('  s_nop 3')
        for u in range(3): run(epi(1, u, t & 1))
        for u in UORD:
            if u not in done: out_store(t, u, 'T')
        run([x if x != 'NOP' else '  s_nop 0' for x in st_adv(1)])
        e('  s_waitcnt lgkmcnt(0)')
        e('  s_barrier')
        for u in range(3):
            e(f'  ds_read_b128 a[{XF+4*u}:{XF+4*u+3}], v{vOR[u]} offset:{(t & 1)*TILE_B + 12288}')
        for u in range(3):
            e(f'  s_waitcnt lgkmcnt({2-u})')
            e(f'  buffer_store_dwordx4 a[{XF+4*u}:{XF+4*u+3}], v{[vTS3, vST[1], vST[2]][u]}, s[{sO}:{sO+3}], s{sSo[[2, 3, 3][u]]} offen{NT_ST}')
    PEEL = int(opts.get('peel', 0))
    def last_tile(t):
        F = [[] for _ in range(150)]
        use = [(1 if (r % 12 == 11 or (r % 12 in (0, 1) and r < 120)) else 0) for r in range(150)]
        def put(r, items):
            for it in items:
                if it == 'NOP': continue
                while use[r]: r += 1
                F[r].append(it); use[r] = 1
            return r
        def part(q):
            return [f'  s_mov_b32 s{sSo[1]}, s{q}', f'  s_mov_b32 s{sSo[3]}, s{q+1}', f'  s_min_u32 s{sSo[2]}, s{q}, s{q+1}',
                    f'  s_cmp_gt_u32 s{q}, s{q+1}', f'  s_cselect_b64 s[{sSm}:{sSm+1}], -1, 0', f'  v_cndmask_b32 v{vTS}, v{vST[4]}, v{vST4b}, s[{sSm}:{sSm+1}]']
        assert all(o < 24 for o in OR_AT) and UORD[:3] == [3, 4, 5]
        L1 = ints('l1', '6,16,28,40'); L2 = ints('l2', '62,74,88'); L3 = ints('l3', '120,128,136')
        BX, BY = int(opts.get('bx', 4)), int(opts.get('by', 9))
        rem = [UORD[k] for k in range(6) if OS_AT[k] >= 24]
        pos = {}
        for u, r in zip(rem, L1[-len(rem):]): pos[u] = put(r, [lambda u=u: out_store(t, u, 'L')])
        for u, r in zip((3, 4, 5), L2): p2 = put(r, [lambda u=u: out_store(t + 1, u, 'L2')])
        for u, r in zip((0, 1, 2), L3): put(r, [lambda u=u: out_store(t + 1, u, 'L2')])
        r = 3
        for u in range(3): r = put(r, epi(1, u, t & 1)) + 1
        assert r < 12*BX - 4
        r = 75
        for u in range(3): r = put(r, epi(0, u, t & 1)) + 1
        assert r < 12*BY - 4
        put(12*BX + 2, [lambda u=u: out_read(t + 1, u) for u in (3, 4, 5)])
        put(12*BY + 2, [lambda u=u: out_read(t + 1, u) for u in (0, 1, 2)])
        assert put(pos.get(5, 0) + 1, part(sF[2])) < L2[0] and max(pos.values()) < 12*BX
        put(max(pos.values()) + 1, [f'  s_mov_b32 s{sSo[0]}, s{sF[1]}'])
        put(p2 + 1, part(sF[1]))
        for G_ in range(12):
            mt, kg = G_ // 6, G_ % 6
            if G_ in (BX, BY):
                g.wait(('L', 'bar', G_), lg=('OW', 1 if G_ == BX else 0, 2))
                e('  s_barrier')
            g.wait(('L', 'x', G_), lg=('X', t, 2*G_ + 1))
            for nt in range(6):
                for k in range(2):
                    ks = 2*kg + k
                    x = XF + 8*(G_ % 3) + 4*k
                    a = ACC + 24*mt + 4*nt
                    c = '0' if ks == 0 else f'v[{a}:{a+3}]'
                    e(f'  v_mfma_f32_16x16x32_bf16 v[{a}:{a+3}], {breg(ks, nt)}, a[{x}:{x+3}], {c}')
                    gap = 12*G_ + 2*nt + k
                    if gap % 12 in (0, 1) and 2*G_ + 4 + (gap % 12) < 24: rd(t, 2*G_ + 4 + (gap % 12))
                    run(F[gap])
        assert not any(F[144:])
        if DBG:
            e('  s_mov_b32 m0, s94'); e('  s_nop 0'); e('  v_writelane_b32 v0, s60, m0')
            e('  s_memrealtime s[60:61]'); e('  s_memtime s[88:89]')
        else: e('  s_nop 1')
        for u in range(3): run(epi(1, u, (t + 1) & 1))
        e('  s_waitcnt lgkmcnt(0)')
        e('  s_barrier')
        for u in range(3):
            e(f'  ds_read_b128 a[{XF+4*u}:{XF+4*u+3}], v{vOR[u]} offset:{((t + 1) & 1)*TILE_B + 12288}')
        for u in range(3):
            e(f'  s_waitcnt lgkmcnt({2-u})')
            e(f'  buffer_store_dwordx4 a[{XF+4*u}:{XF+4*u+3}], v{vTS if u == 1 else vST[u+3]}, s[{sO}:{sO+3}], s{sSo[u+1]} offen{NT_ST}')
    if FUSE: g.wait('ent', vm=('L', 1, 5), lg=('OW', 0, 2))
    if PEEL and unroll:
        for t in range(NTILE - 1): tile(t)
        last_tile(NTILE - 1)
    elif PEEL:
        e('L_loop:')
        tile(0)
        e(f'  s_cmp_ge_u32 s{sF[0]}, s{sOOB}')
        e(f'  s_cbranch_scc1 L_tail')
        tile(1)
        if DBG:
            e('  s_mov_b32 m0, s94'); e('  s_nop 0'); e('  v_writelane_b32 v0, s60, m0')
            e('  s_add_u32 s94, s94, 1')
            e('  s_memrealtime s[60:61]')
        e(f'  s_branch L_loop')
        e('L_tail:')
        last_tile(1)
        if DBG: e('  s_mov_b32 s94, 15')
    elif unroll:
        tile(0, 10 if FUSE else 0)
        for t in range(1, NTILE): tile(t)
        tail(NTILE)
    else:
        if FUSE: e('  s_branch L_ent')
        if opts.get('al'): e(f'  .p2align {opts["al"]}')
        e('L_loop:')
        tile(0)
        tile(1)
        if DBG:
            e('  s_mov_b32 m0, s94'); e('  s_nop 0'); e('  v_writelane_b32 v0, s60, m0')
            e('  s_add_u32 s94, s94, 1')
            e('  s_min_u32 s94, s94, 15')
            e('  s_memrealtime s[60:61]')
        e(f'  s_cmp_lt_u32 s{sF[1]}, s{sOOB}')
        e(f'  s_cbranch_scc1 L_loop')
        e('L_tail:')
        if DBG: e('  s_memtime s[88:89]')
        tail(0)
        if DBG: e('  s_mov_b32 s94, 15')
    if DBG:
        e('  s_mov_b32 m0, s94'); e('  s_nop 0'); e('  v_writelane_b32 v0, s60, m0')
        e('  s_add_u32 s94, s94, 1')
        e('  s_load_dwordx2 s[24:25], s[0:1], 40')
        e('  s_waitcnt vmcnt(0)')
        e('  s_memrealtime s[54:55]')
        e('  s_memtime s[98:99]')
        e('  s_waitcnt lgkmcnt(0)')
        e('  s_mov_b32 m0, s94'); e('  s_nop 0'); e('  v_writelane_b32 v0, s54, m0')
        e('  s_sub_u32 s98, s98, s96')
        e('  s_add_u32 s98, s98, s64')
        e('  v_writelane_b32 v0, s98, 31')
        e('  s_sub_u32 s88, s88, s86')
        e('  v_writelane_b32 v0, s88, 30')
        if DBG == 2:
            for i in range(6): e(f'  v_writelane_b32 v0, s{42+2*i}, {17+i}')
        e(f'  v_writelane_b32 v0, s{sPv}, 29')
        e(f'  v_writelane_b32 v0, s{sDec}, 28')
        e(f'  v_writelane_b32 v0, s3, 27')
        for i in range(sn[0]): e(f'  v_writelane_b32 v0, s{64+2*i}, {i}')
        e('  s_mov_b32 s56, s24'); e('  s_and_b32 s57, s25, 0xffff'); e('  s_mov_b32 s58, 452984832'); e('  s_mov_b32 s59, 0x00020000')
        e('  s_lshl_b32 s26, s2, 9'); e(f'  s_lshl_b32 s27, s{sW}, 7'); e('  s_add_u32 s26, s26, s27')
        e('  v_mbcnt_lo_u32_b32 v1, -1, 0')
        e('  v_lshlrev_b32 v1, 2, v1')
        e('  s_mov_b64 exec, 0xffffffff')
        e('  buffer_store_dword v0, v1, s[56:59], s26 offen')
    if AMP:
        e('  s_waitcnt vmcnt(0)')
        e('  s_memrealtime s[54:55]')
        e('  s_waitcnt lgkmcnt(0)')
        e(f'  s_cmp_lg_u32 s2, {int(opts.get("ampwg", 100))}')
        e('  s_cbranch_scc1 L_done')
        if AMP == 'c':
            e('  s_memtime s[98:99]')
            e('  s_waitcnt lgkmcnt(0)')
            e('  s_sub_u32 s27, s98, s96')
            e('  s_lshr_b32 s27, s27, 1')
        else:
            e(f'  s_sub_u32 s27, s{54 if AMP == "e" else 64 + 2*int(AMP)}, s64')
            e('  s_mul_i32 s27, s27, 10')
        e('L_spin:')
        e('  s_sleep 8')
        e('  s_memrealtime s[56:57]')
        e('  s_waitcnt lgkmcnt(0)')
        e('  s_sub_u32 s26, s56, s54')
        e('  s_cmp_lt_u32 s26, s27')
        e('  s_cbranch_scc1 L_spin')
    if NUMA:
        e('  s_endpgm')
        e('L_slow:')
        e(f'  v_mbcnt_lo_u32_b32 v253, -1, 0')
        e(f'  v_and_b32 v253, 3, v253')
        e(f'  v_lshl_add_u32 v{vTX}, v253, 2, s{sOf[0]}')
        e('  s_mov_b64 exec, 0xf0')
        e(f'  v_lshl_add_u32 v{vTX}, v253, 2, s{sOf[1]}')
        e('  s_mov_b64 exec, 0xf00')
        e(f'  v_lshl_add_u32 v{vTX}, v253, 2, s{sOf[2]}')
        e('  s_mov_b64 exec, -1')
        SP = ACC + 40 if DEC else (254 if DS <= 10 else FT)
        assert DS != 11
        e(f'  v_mov_b32 v{SP}, 1')
        e(f'  v_mov_b32 v{SP+1}, 0')
        e('  s_mov_b64 exec, 0xfff')
        e(f'  buffer_atomic_cmpswap v[{SP}:{SP+1}], v{vTX}, s[{sDS}:{sDS+3}], 0 offen sc0 sc1')
        e('  s_waitcnt vmcnt(0)')
        e(f'  v_max_u32 v{SP}, 1, v{SP}')
        e('  s_nop 0')
        for i in range(12): e(f'  v_readlane_b32 s{sEn[i // 4] + i % 4}, v{SP}, {i}')
        e('  s_nop 3')
        e('  s_mov_b64 exec, -1')
        if DBG: e('  s_mov_b32 s3, 1')
        e('  s_branch L_back')
    e('L_done:')
    e('  s_endpgm')
    e('.section .rodata,"a"')
    e('.p2align 6')
    e('.amdhsa_kernel standalone__depthwise_separable__vision_kernel')
    e('  .amdhsa_next_free_vgpr 512')
    e('  .amdhsa_next_free_sgpr 100')
    e('  .amdhsa_accum_offset 256')
    e('  .amdhsa_group_segment_fixed_size 0')
    e('  .amdhsa_kernarg_size 48')
    e('  .amdhsa_user_sgpr_count 2')
    e('  .amdhsa_user_sgpr_kernarg_segment_ptr 1')
    e('  .amdhsa_system_sgpr_workgroup_id_x 1')
    e('  .amdhsa_float_denorm_mode_32 3')
    e('.end_amdhsa_kernel')

if __name__ == '__main__':
    out = sys.argv[1]
    opts = dict(a.split('=', 1) for a in sys.argv[2:])
    for k in ('nt_ld', 'nt_st', 'nt_b'):
        if k in opts: opts[k] = (' ' + opts[k].replace('+', ' ')) if opts[k] != 'none' else ''
    open(out, 'w').write(gen(opts))
```

```python
import sys, re
from gen3 import G, HDR
from gen5 import regs_of

DOC = """
out[M,384] = x[M,384] @ (dw[:,None] * pw)   (1x1 depthwise scale folded into the pointwise weights, bf16 RNE, fp32 accumulate)
256 persistent workgroups x 4 waves; each wave keeps 96 output columns of the folded weights in registers.
Prologue : pw is streamed through LDS (LDS-DMA + transposing reads), scaled by dw with a diagonal MFMA and packed to bf16.
Main loop: 32-row tiles of x arrive by LDS-DMA into a 4-slot ring; 16x16x32 MFMAs; results go through LDS to full-line stores.
Placement: 4 workgroups share each 128-row period and split it into four row-gather tiles, one per 8 KB interleave class of memory.
           A few workgroups time one load per class (s_memtime) to find the class nearest to them and publish it with a
           first-wins compare-and-swap in d_debug; every workgroup uses the settled words, so each row is computed exactly once
           under any placement and the result does not depend on the timings (they only choose who computes which rows).
"""

def hazard_check(L):
    ins = [l.strip() for l in L if l.startswith('  ') and not l.strip().startswith(';')]
    hist = []; st = 0; last_valu = []; last_st = []; last_m0 = -9; last_sg = []; lastscc = ''
    for l in ins:
        op = l.split()[0]
        toks = [t.strip(',') for t in l.split()[1:]]
        allr = set()
        for t in toks: allr |= regs_of(t)
        if op.startswith('v_mfma'):
            d = regs_of(toks[0]); a = regs_of(toks[1]); b = regs_of(toks[2]); c = regs_of(toks[3])
            for (s0, r) in last_valu:
                if st - s0 - 1 < 2 and (r & (a | b | c)): raise Exception(f'VALU->MFMA hazard: {l}')
            for (s0, dd, cc) in hist:
                if st - s0 - 1 < 8 and (dd & (a | b)): raise Exception(f'MFMA D->A/B hazard: {l}')
                if st - s0 - 1 < 6 and (dd & c) and dd != c: raise Exception(f'MFMA D->C overlap hazard: {l}')
                if st - s0 - 1 < 6 and (dd & d) and dd != c: raise Exception(f'MFMA D->D WAW: {l}')
            for (s0, r) in last_st:
                if st - s0 - 1 < 8 and (r & d): raise Exception(f'store data WAR (mfma): {l}')
            hist.append((st, d, c))
        elif op.startswith('v_') or op.startswith('ds_') or op.startswith('buffer_'):
            for (s0, dd, cc) in hist:
                if st - s0 - 1 < 8 and (dd & allr): raise Exception(f'MFMA D->use hazard dist {st-s0-1}: {l}')
            if op.startswith('v_'):
                w = regs_of(toks[0])
                for (s0, dd, cc) in hist:
                    if st - s0 - 1 < 3 and (cc & w): raise Exception(f'MFMA C WAR hazard: {l}')
                for (s0, r) in last_st:
                    if st - s0 - 1 < 2 and (r & w): raise Exception(f'store data WAR: {l}')
                if op in ('v_readfirstlane_b32', 'v_readlane_b32'):
                    for (s0, r) in last_valu:
                        if st - s0 - 1 < 1 and (r & regs_of(toks[1])): raise Exception(f'readlane hazard: {l}')
                    last_sg.append((st, toks[0]))
                else:
                    for (s0, sg) in last_sg:
                        if st - s0 - 1 < 2 and sg in toks[1:]: raise Exception(f'VALU sgpr->VALU hazard: {l}')
                last_valu.append((st, w)); last_valu = last_valu[-4:]
            if op.startswith('buffer_store') or op.startswith('ds_write'):
                last_st.append((st, regs_of(toks[0] if op.startswith('buffer') else toks[1]))); last_st = last_st[-4:]
            if op.startswith('buffer_') and l.endswith('lds') and st - last_m0 - 1 < 1: raise Exception(f'm0 hazard: {l}')
            if op.startswith('buffer_'):
                for (s0, sg) in last_sg:
                    if st - s0 - 1 < 5 and sg in toks: raise Exception(f'VALU sgpr->VMEM hazard: {l}')
        elif op.startswith('s_') and toks and toks[0] == 'm0': last_m0 = st
        if op.startswith('s_cselect') or op.startswith('s_cbranch_scc'):
            if not (lastscc.startswith('s_cmp') or lastscc.startswith('s_bitcmp')): raise Exception(f'SCC clobbered by {lastscc}: {l}')
        elif re.match(r's_(add|sub|and|or|xor|min|max|lshl|lshr|cmp|bitcmp|andn2|ashr|bfe|not)', op): lastscc = op
        hist = [h for h in hist if st - h[0] < 24]
        st += int(toks[0]) + 1 if op == 's_nop' else 1

class G2(G):
    def __init__(self):
        self.need = {}
        super().__init__()
    def reset(self, mode):
        super().reset(mode); self.lgd = 0; self.vmd = 0
    def _cnt(self, lst, tag):
        if tag[:2] == ('O', 0) and tag not in lst: return len(lst)
        return super()._cnt(lst, tag)
    def wait(self, key, vm=None, lg=None, opt=False):
        if self.mode == 'collect2':
            nd = False
            if lg is not None and len(self.lg) - self._cnt(self.lg, lg) > self.lgd: nd = True
            if vm is not None and len(self.vm) - self._cnt(self.vm, vm) > self.vmd: nd = True
            self.need[key] = self.need.get(key, False) or nd or not opt
            v, l = self.sites[key]
            if not opt:
                if lg is not None: self.lgd = max(self.lgd, len(self.lg) - l)
                if vm is not None: self.vmd = max(self.vmd, len(self.vm) - v)
            return
        if self.mode in ('emit', 'check') and not self.need[key]: return
        super().wait(key, vm, lg)

def gen(opts):
    g = G2()
    g.reset('collect')
    build(g, opts, unroll=True)
    g.reset('collect2')
    build(g, opts, unroll=True)
    g.reset('check')
    build(g, opts, unroll=True)
    hazard_check(g.L)
    L2 = []; skip = None
    for l in g.L:
        if skip:
            if l == skip + ':': skip = None
            continue
        L2.append(l)
        m = re.match(r'  s_cbranch_scc1 (L_np\w*)', l)
        if m: skip = m.group(1)
    hazard_check(L2)
    g.reset('emit')
    build(g, opts, unroll=False)
    L = g.L
    if int(opts.get('iw', 0)):
        S = int(opts['iw'])
        i0 = L.index('L_tail:') + 1
        i1 = max(k for k, l in enumerate(L) if l == '  s_endpgm' and k < L.index('L_done:'))
        def size(l):
            t = l.strip()
            if not l.startswith('  '): return 0
            if re.match(r's_(waitcnt|barrier|nop|cbranch|branch|endpgm|cmp|mov_b32 s\d+, s|min_u32 s\d+, s\d+, s|cselect)', t): return 4
            return 8
        out = []; acc = S; n = 0
        for l in L[i0:i1]:
            if acc >= S and (l.startswith('  v_mfma') or l.startswith('  v_cvt') or l.startswith('  ds_') or l.startswith('  s_waitcnt')):
                out += [f'L_iw{n}:', f'@PAD{n}']; n += 1; acc = 4
            out.append(l); acc += size(l)
        seg = -(-n // 4)
        out = [(f'  s_cbranch_vccnz {"L_iwr" if (int(l[4:]) % seg == seg - 1 or int(l[4:]) == n - 1) else f"L_iw{int(l[4:]) + 1}"}' if l.startswith('@PAD') else l) for l in out]
        L = L[:i0] + out + L[i1:]
        h = L.index('@IWHOP')
        hop = ['  s_mov_b64 vcc, -1']
        for w in range(1, 4):
            if w * seg < n: hop += [f'  s_cmp_eq_u32 s20, {w}', f'  s_cbranch_scc1 L_iw{w*seg}']
        hop += ['  s_branch L_iw0', 'L_iwr:']
        L = L[:h] + hop + L[h+1:]
    L = [l for l in L if l != '@IWHOP']
    abl = opts.get('abl', '')
    if abl:
        i0 = L.index('L_loop:'); i1 = L.index('L_tail:')
        def keep(l):
            s = l.strip()
            if 'O' in abl and (s.startswith('ds_write_b128') or re.match(r'ds_read_b128 a\[(16[89]|17\d|18\d)', s)): return False
            if 'T' in abl and s.startswith('buffer_store'): return False
            if 'L' in abl and s.startswith('buffer_load'): return False
            if 'B' in abl and s.startswith('s_barrier'): return False
            if 'C' in abl and s.startswith('v_cvt'): return False
            if 'H' in abl and s.startswith('v_mfma') and int(re.search(r'v\[(\d+):', s).group(1)) % 8 == 4: return False
            return True
        L = L[:i0] + [l for l in L[i0:i1] if keep(l)] + L[i1:]
    return '\n'.join(L) + '\n'

def build(g, opts, unroll):
    NT_LD = opts.get('nt_ld', ' nt'); NT_ST = opts.get('nt_st', ' sc1'); NT_B = opts.get('nt_b', '')
    DBG = int(opts.get('dbg', 0)); AMP = opts.get('amp')
    DIR = int(opts.get('dir', 0))
    PD = int(opts.get('pd', 2))
    e = g.e
    TILE_B = 32 * 768; NTILE = 18; STRIDE = 256 * TILE_B
    LDS_O = 4 * TILE_B + 256; LDS_DW = 6 * TILE_B + 512; LDS_PR = LDS_DW + 4096; LDS_TOTAL = LDS_PR + 64
    AREA = [LDS_O, LDS_O + TILE_B + 64, 2 * TILE_B, 3 * TILE_B + 64]
    OOB = 113246208
    vLdsR = [1, 2, 3, 4]; vOR = [5, 6, 7]; vXS = [8, 9, 10]; vMk = [11, 12]; vTS2 = 13; vTS3 = 14; vTX = 15
    ACC = 16
    PT = 64
    vBL = [PT, PT+1, PT+2]; vTr = PT+3; vDW = PT+4; vM = [PT+5, PT+6]; vTr2 = PT+7
    DWR = [PT+8, PT+12]
    vST = [PT+16+i for i in range(3)]; vOW = [PT+22, PT+23]
    T = [ACC+i for i in range(12)]; vLane = ACC + 12
    FUSE = int(opts.get('fuse', 0))
    FT = 88 if FUSE else ACC; NFT = 6 if FUSE else (8 if opts.get('dec') else 12)
    BV = 112 if FUSE else 88
    NA = 6 if FUSE else 5
    ASLOTS = [int(c, 16) for c in opts.get('aslots', '012346' if FUSE else '13579')]
    NAR = 4 if FUSE else int(opts.get('nar', 4))
    if NAR == 5: AREA = [TILE_B + k * (TILE_B + 64) for k in range(5)]
    assert len(ASLOTS) == NA
    VSLOTS = [s for s in range(12) if s not in ASLOTS]
    XF = 144
    OB = 168
    RAW = [192, 216]
    sX, sO, sP, sD = 4, 8, 12, 16
    sW, sCnt = 20, 21
    sRing, sOOB = 39, 40
    sF = [76, 78, 80, 82]
    sBase, sVa, sDec, sEnd = 32, 33, 34, 21
    sP1, sP2 = 28, 30
    sEn = [44, 84, 12]; sOf = [88, 89, 95]
    sXa, sXb, sXd, sXe = 22, 56, 57, 90; sSd = 91
    sSo = [58, 59, 62, 63]; sSm = 90
    sDb = 92
    sDS = 16
    sRd = 88; sRd2 = 60; sVc = 61; sVb = 95; sEo = 36; sPa = 37; sPb = 38; sPr = 23; sPv = 41; sPT = 84
    KSTEP = 16 * 49152
    sG = [42, 43, 44]; sQ = [45, 46, 47, 48]; sBW = 49; sT = [50, 51, 52, 53]; sR1, sR2 = 54, 55

    def breg(s, nt, n=4, o=0):
        if s in ASLOTS:
            i = ASLOTS.index(s) * 24 + nt * 4 + o
            return f'a[{i}:{i+n-1}]' if n > 1 else f'a{i}'
        i = BV + VSLOTS.index(s) * 24 + nt * 4 + o
        return f'v[{i}:{i+n-1}]' if n > 1 else f'v{i}'
    sn = [0]
    def stamp():
        if DBG or AMP:
            e(f'  s_memrealtime s[{64+2*sn[0]}:{65+2*sn[0]}]'); sn[0] += 1
    def run(items):
        for it in items:
            if callable(it): it()
            else: e(it)

    e(HDR.rstrip('\n'))
    e(f'; @launch grid=(256,1,1) block=(256,1,1) lds={LDS_TOTAL}')
    e('.amdgcn_target "amdgcn-amd-amdhsa--gfx950"')
    e('.text')
    for l in DOC.strip().split('\n'): e('; ' + l)
    e('.globl standalone__depthwise_separable__vision_kernel')
    e('.p2align 8')
    e('.type standalone__depthwise_separable__vision_kernel,@function')
    e('standalone__depthwise_separable__vision_kernel:')
    e('  s_load_dwordx8 s[24:31], s[0:1], 0')
    e(f'  s_load_dwordx2 s[{sDb}:{sDb+1}], s[0:1], 32')
    e('  s_cmp_ge_u32 s2, 256')
    e('  s_cbranch_scc1 L_done')
    stamp()
    if AMP == 'c': e('  s_memtime s[96:97]')
    if DBG: e('  s_memtime s[96:97]'); e('  s_mov_b32 s3, 0'); e(f'  s_mov_b32 s{sPv}, 0')
    e(f'  v_lshrrev_b32 v{T[0]}, 6, v0')
    e(f'  v_and_b32 v{vLane}, 63, v0')
    e(f'  v_readfirstlane_b32 s{sW}, v{T[0]}')
    KICK = int(opts.get('kick', 0))
    def kick_a():
        e(f'  s_lshr_b32 s{sT[2]}, s2, 3')
        e(f'  s_mul_i32 s{sT[2]}, s{sT[2]}, 9216')
        if KICK == 2: e(f'  v_and_b32 v{T[5]}, 127, v0')
        e(f'  v_lshl_add_u32 v{T[5]}, v{T[5] if KICK == 2 else 0}, 7, s{sT[2]}')
        e(f'  v_min_u32 v{T[5]}, 294784, v{T[5]}')
    def kick_b():
        e('  s_waitcnt lgkmcnt(0)')
        g.vmop(f'  global_load_dword v{BV+1}, v{T[5]}, s[28:29]', ('K',))
    if KICK: kick_a()
    if KICK and opts.get('kf'): kick_b()
    CW = int(opts.get('cw', 128))
    if CW: e('; --- touch the code once so that later instruction fetches hit L2')
    if CW:
        e(f'  s_getpc_b64 s[{sT[0]}:{sT[1]}]')
        e('L_pc:')
        e(f'  v_mul_u32_u24 v{T[2]}, {CW}, v0')
        e(f'  v_min_u32 v{T[2]}, L_done-L_pc, v{T[2]}')
        e(f'  v_mov_b32 v{T[3]}, s{sT[1]}')
        e(f'  v_add_co_u32 v{T[2]}, vcc, s{sT[0]}, v{T[2]}')
        e(f'  s_nop 1')
        e(f'  v_addc_co_u32 v{T[3]}, vcc, 0, v{T[3]}, vcc')
        g.vmop(f'  global_load_dword v{BV}, v[{T[2]}:{T[3]}], off', ('CW',))
    if KICK and not opts.get('kf'): kick_b()
    e(f'  s_lshr_b32 s{sT[0]}, s2, 3')
    e(f'  s_and_b32 s{sR2}, s{sT[0]}, 3')
    e(f'  s_lshr_b32 s{sR1}, s{sT[0]}, 2')
    e(f'  s_mul_i32 s{sT[1]}, s{sR1}, 11')
    e(f'  s_lshr_b32 s{sT[1]}, s{sT[1]}, 5')
    e(f'  s_mul_i32 s{sT[1]}, s{sT[1]}, 3')
    e(f'  s_sub_u32 s{sR1}, s{sR1}, s{sT[1]}')
    if opts.get('norot'):
        e(f'  s_mov_b32 s{sR1}, 0'); e(f'  s_mov_b32 s{sR2}, 0')
    e(f'  s_mul_i32 s{sT[2]}, s{sW}, 192')
    for i in range(3):
        if i: e(f'  v_add_u32 v{T[1]}, {64*i}, v{vLane}')
        q = T[1] if i else vLane
        e(f'  v_mul_u32_u24 v{T[2]}, 0xaaab, v{q}')
        e(f'  v_lshrrev_b32 v{T[2]}, 19, v{T[2]}')
        e(f'  v_mul_u32_u24 v{T[3]}, 576, v{T[2]}')
        e(f'  v_lshl_add_u32 v{T[3]}, v{vLane}, 4, v{T[3]}')
        if i == 1:
            e(f'  v_lshrrev_b32 v{T[2]}, 3, v{T[2]}')
            e(f'  v_mul_u32_u24 v{T[2]}, 6144, v{T[2]}')
            e(f'  v_add_u32 v{T[3]}, v{T[3]}, v{T[2]}')
        if i == 2: e(f'  v_add_u32 v{T[3]}, 6144, v{T[3]}')
        e(f'  v_add_u32 v{vBL[i]}, s{sT[2]}, v{T[3]}')
    NUMA = int(opts.get('numa', 1))
    PRM = int(opts.get('prm', 28))
    def srd(sd, lo, nbytes):
        e(f'  s_mov_b32 s{sd}, s{lo}')
        e(f'  s_and_b32 s{sd+1}, s{lo+1}, 0xffff')
        e(f'  s_mov_b32 s{sd+2}, {nbytes}')
        e(f'  s_mov_b32 s{sd+3}, 0x00020000')
    def p_gb1():
        e(f'  s_add_u32 s{sG[1]}, s{sG[0]}, 98304')
        e(f'  s_cmp_eq_u32 s{sR1}, 2')
        e(f'  s_cselect_b32 s{sG[1]}, 0, s{sG[1]}')
        e(f'  s_add_u32 s{sG[2]}, s{sG[1]}, 98304')
        e(f'  s_cmp_eq_u32 s{sR1}, 1')
        e(f'  s_cselect_b32 s{sG[2]}, 0, s{sG[2]}')
        for q in range(1, 4):
            e(f'  s_xor_b32 s{sQ[q]}, s{sR2}, {q}')
            e(f'  s_mul_i32 s{sQ[q]}, s{sQ[q]}, {TILE_B}')
    def p_dws():
        e(f'  s_lshl_b32 s{sT[3]}, s{sR2}, 2')
        e(f'  v_lshrrev_b32 v{T[1]}, 4, v{vLane}')
        e(f'  v_add_u32 v{T[2]}, s{sR1}, v{T[1]}')
        e(f'  v_subrev_u32 v{T[3]}, 3, v{T[2]}')
        e(f'  v_min_u32 v{T[2]}, v{T[2]}, v{T[3]}')
        e(f'  v_and_b32 v{T[4]}, 15, v{vLane}')
        e(f'  v_xor_b32 v{T[3]}, s{sT[3]}, v{T[4]}')
        e(f'  v_lshlrev_b32 v{T[3]}, 4, v{T[3]}')
        e(f'  v_lshl_add_u32 v{T[3]}, v{T[2]}, 8, v{T[3]}')
        e(f'  v_cmp_lt_u32 vcc, 47, v{vLane}')
        e(f'  s_lshl_b32 s{sT[0]}, s{sW}, 10')
        e(f'  s_add_u32 m0, s{sT[0]}, {LDS_DW}')
        e(f'  v_cndmask_b32 v{T[3]}, v{T[3]}, v{vBL[2]}, vcc')
    def p_tl():
        e(f'  s_lshr_b32 s{sT[1]}, s2, 5')
        e(f'  s_and_b32 s{sT[2]}, s2, 3')
        e(f'  s_lshl2_add_u32 s{sEo}, s{sT[1]}, s{sT[2]}')
        e(f'  s_lshl_b32 s{sEo}, s{sEo}, 2')
        e(f'  s_mul_i32 s{sT[1]}, s{sT[1]}, 144')
        e(f'  s_lshr_b32 s{sT[2]}, s{sT[2]}, 1')
        e(f'  s_lshl1_add_u32 s{sT[2]}, s{sR2}, s{sT[2]}')
        e(f'  s_add_u32 s{sT[1]}, s{sT[1]}, s{sT[2]}')
        e(f'  s_mul_i32 s{sBase}, s{sT[1]}, 98304')
        e(f'  s_add_u32 s{sEnd}, s{sBase}, {NTILE*KSTEP}')
        if NUMA:
            e(f'  s_lshl_b32 s{sT[1]}, s{sW}, 11')
            e(f'  s_and_b32 s{sT[2]}, s2, 3')
            e(f'  s_lshl_b32 s{sT[2]}, s{sT[2]}, 8')
            e(f'  s_add_u32 s{sT[1]}, s{sT[1]}, s{sT[2]}')
            e(f'  s_lshr_b32 s{sT[2]}, s2, 5')
            e(f'  s_lshl_b32 s{sPa}, s{sT[2]}, 24')
            e(f'  s_add_u32 s{sPa}, s{sPa}, {(8 << 20) + 0x40000}')
            e(f'  s_mul_i32 s{sT[2]}, s{sT[2]}, {6 << 20}')
            e(f'  s_add_u32 s{sT[2]}, s{sT[2]}, {(64 << 20) + 0x40000}')
            e(f'  s_min_u32 s{sPa}, s{sPa}, s{sT[2]}')
            e(f'  s_add_u32 s{sPa}, s{sPa}, s{sT[1]}')
            e(f'  s_and_b32 s{sPr}, s2, {PRM}')
            e(f'  s_add_u32 s{sPb}, s{sPa}, 8192')
            e(f'  s_cmp_lg_u32 s{sPr}, 0')
    def p_warm():
        if NUMA:
            e(f'  s_cbranch_scc1 L_np0')
            e(f'  s_load_dword s{sPT}, s[24:25], s{sPa} glc')
            e(f'  s_load_dword s{sPT+1}, s[24:25], s{sPb} glc')
            if opts.get('dwm'):
                e(f'  v_mov_b32 v{T[10]}, {int(opts["dwm"])}')
                e(f'  global_load_dword v{BV+1}, v{T[10]}, s[{sDb}:{sDb+1}]{" sc1" if opts["dwm"] == "64" else ""}')
            e('L_np0:')
    def p_dwl():
        srd(sD, 26, 768)
        g.vmop(f'  buffer_load_dwordx4 v{T[3]}, s[{sD}:{sD+3}], 0 offen lds', ('W',))
    e(f'  s_mul_i32 s{sG[0]}, s{sR1}, 98304')
    e(f'  s_mul_i32 s{sQ[0]}, s{sR2}, {TILE_B}')
    e(f'  s_mul_i32 s{sBW}, s{sW}, 6160')
    LEAN = int(opts.get('lean', 2))
    if LEAN == 0: p_gb1(); p_dws()
    if LEAN <= 1: p_tl()
    e('  s_waitcnt lgkmcnt(0)')
    if LEAN <= 1: p_warm()
    if LEAN == 0: p_dwl()
    srd(sP, 28, 294912)
    def bload(s):
        it = []
        for h in range(2):
            it.append(f'  s_add_u32 m0, s{sBW}, {AREA[s % NAR] + h*3080}')
            it.append(f'  s_add_u32 s{sT[0]}, s{sG[s >> 2]}, s{sQ[s & 3]}' if h == 0 else f'  s_add_u32 s{sT[0]}, s{sT[0]}, 6144')
            for i in range(3):
                it.append(lambda h=h, i=i: g.vmop(f'  buffer_load_dwordx4 v{vBL[i]}, s[{sP}:{sP+3}], s{sT[0]} offen offset:{i*1024}{NT_B} lds', ('B', s, 3*h + i)))
        return it
    def halfA(f, o0, dl):
        return [f'  s_cmp_eq_u32 s{f+1}, 0', f'  s_cselect_b32 s{dl}, 73728, s26', f'  s_add_u32 s{o0}, s{f}, s{f+1}',
                f'  s_add_u32 s{o0}, s{o0}, s{dl}', f'  s_min_u32 s{o0}, s{o0}, s{sOOB}']
    def halfB(f, o2, dl, d1p):
        return [f'  s_cmp_eq_u32 s{f+1}, 73728', f'  s_cselect_b32 s{dl}, {-73728 & 0xffffffff}, s27', f'  s_add_u32 s{d1p}, s{f+1}, 12288',
                f'  s_add_u32 s{o2}, s{f}, s{d1p}', f'  s_add_u32 s{o2}, s{o2}, s{dl}', f'  s_min_u32 s{o2}, s{o2}, s{sOOB}']
    def mixv(dst, src, mk, dl, d1):
        return [f'  v_and_b32 v{dst}, s{dl}, v{mk}', f'  v_add3_u32 v{dst}, v{src}, v{dst}, s{d1}']
    def xdma(t, u):
        it = []
        a, b = sF[0], sF[0] + 1
        if u == 0:
            it += [f'  s_mov_b64 s[{sF[k]}:{sF[k]+1}], s[{sF[k-1]}:{sF[k-1]+1}]' for k in range(len(sF) - 1, 0, -1)]
            it += [f'  s_cmp_ge_u32 s{sBase}, s{sDec+1}', f'  s_cselect_b64 s[{sDec}:{sDec+1}], s[{sP1}:{sP1+1}], s[{sDec}:{sDec+1}]',
                   f'  s_cselect_b64 s[{sP1}:{sP1+1}], s[{sP2}:{sP2+1}], s[{sP1}:{sP1+1}]']
            it += [f'  s_add_u32 s{a}, s{sVa}, s{sBase}', f'  s_xor_b32 s{a}, s{a}, s{sDec}',
                   f'  s_bfe_u32 s{b}, s{a}, {21 | (1 << 16)}', f'  s_bfe_u32 s{a}, s{a}, {19 | (1 << 16)}', f'  s_lshl1_add_u32 s{b}, s{a}, s{b}',
                   f'  s_sub_u32 s{b}, 1, s{b}', f'  s_and_b32 s{b}, s{b}, 3', f'  s_mul_i32 s{b}, s{b}, {TILE_B}',
                   f'  s_cmp_lt_u32 s{sBase}, s{sEnd}', f'  s_cselect_b32 s{a}, s{sBase}, s{sOOB}', f'  s_add_u32 s{sBase}, s{sBase}, {KSTEP}']
            it += halfA(a, sXa, sXd)
        if u == 2: it += mixv(vTX, vXS[2], vMk[0], sXd, b)
        if u == 3: it += halfB(a, sXb, sXd, sXe) + mixv(vTX, vXS[0], vMk[1], sXd, sXe)
        it.append(f'  s_add_u32 m0, s{sRing}, {(t & 1)*TILE_B + u*4096}')
        if u == 5 and (t & 1): it.append(f'  s_xor_b32 s{sRing}, s{sRing}, {2*TILE_B}')
        else: it.append('NOP')
        it.append(lambda: g.vmop(f'  buffer_load_dwordx4 v{vTX if u in (2, 3) else vXS[u % 3]}, s[{sX}:{sX+3}], s{[sXa, sXa, a, a, sXb, sXb][u]} offen{NT_LD} lds', ('L', t, u)))
        return it
    PF = opts.get('pf')
    vPF = PT + 2; vPD = PT + 3; sPf0 = 21; sPfo = 37
    def pf_items():
        return [f'  s_add_u32 s{sPfo}, s{sVa}, s{sBase}', f'  s_xor_b32 s{sPfo}, s{sPfo}, s{sDec}', f'  s_lshr_b32 s{sPfo}, s{sPfo}, 8',
                f'  s_and_b32 s{sPfo}, s{sPfo}, 8192', f'  s_add_u32 s{sPfo}, s{sPfo}, s{sBase}',
                f'  s_cmp_lt_u32 s{sBase}, s{sEnd}', f'  s_cselect_b32 s{sPfo}, s{sPfo}, s{sOOB}',
                f'  s_cmp_ge_u32 s{sBase}, s{sPf0}', f'  s_cselect_b32 s{sPfo}, s{sPfo}, s{sOOB}',
                lambda: g.vmop(f'  buffer_load_dword v{vPD}, v{vPF}, s[{sX}:{sX+3}], s{sPfo} offen{opts.get("pfl", "")}', None)]
    def xdma_items(t):
        return ['  s_nop 0' if x == 'NOP' else x for u in range(6) for x in xdma(t, u)]
    NB0 = int(opts.get('nb0', 1)) if FUSE else 99
    NI = int(opts.get('ni', 1))
    run(bload(0))
    if LEAN == 2: p_tl(); p_warm()
    if LEAN: p_dws(); p_dwl(); p_gb1()
    for s in range(1, min(NB0, NI)): run(bload(s))
    if opts.get('tw'):
        e(f'  v_mov_b32 v{T[5]}, s{sBase}')
        g.vmop(f'  global_load_dword v{BV+2}, v{T[5]}, s[24:25]', ('K',))
        g.vmop(f'  global_load_dword v{BV+3}, v{T[5]}, s[30:31]', ('K',))
    if opts.get('st2') == '2': stamp()
    srd(sX, 24, 113246208)
    hi2, lo4 = T[1], T[4]
    e(f'  s_add_u32 s{sVa}, s24, 49152')
    e(f'  s_mov_b32 s{sOOB}, {OOB}')
    e(f'  s_mov_b32 s26, {-24576 & 0xffffffff}')
    e('  s_mov_b32 s27, 24576')
    e(f'  s_lshl_b32 s{sRing}, s{sW}, 10')
    for x in sF[:3]: e(f'  s_mov_b32 s{x}, s{sOOB}'); e(f'  s_mov_b32 s{x+1}, 0')
    e(f'  s_lshr_b32 s{sDec}, s2, 1')
    e(f'  s_xor_b32 s{sDec}, s{sDec}, s2')
    e(f'  s_and_b32 s{sDec}, s{sDec}, 4')
    e(f'  s_and_b32 s{sT[1]}, s2, 1')
    e(f'  s_or_b32 s{sDec}, s{sDec}, s{sT[1]}')
    e(f'  s_lshl_b32 s{sDec}, s{sDec}, 19')
    e(f'  s_mov_b32 s{sDec+1}, -1')
    ROW = [ACC+16, ACC+17, ACC+18]; GG = [ACC+19, ACC+20, ACC+21]
    def rowmap(dst, dst4b, base, u):
        if u == 0:
            e(f'  v_add_u32 v{dst[3]}, {26*768}, v{base}')
            if base != dst[0]: e(f'  v_mov_b32 v{dst[0]}, v{base}')
        if u == 1:
            e(f'  v_cmp_lt_u32 vcc, 5, v{ROW[1]}')
            e(f'  v_add_u32 v{T[8]}, {26*768}, v{base}')
            e(f'  v_add_u32 v{T[9]}, {37*768}, v{base}')
            e(f'  v_cndmask_b32 v{dst[4]}, v{T[8]}, v{T[9]}, vcc')
            if dst4b is not None:
                e(f'  v_add_u32 v{T[8]}, {58*768}, v{base}')
                e(f'  v_add_u32 v{T[9]}, {5*768}, v{base}')
                e(f'  v_cndmask_b32 v{dst4b}, v{T[8]}, v{T[9]}, vcc')
            if base != dst[1]: e(f'  v_mov_b32 v{dst[1]}, v{base}')
        if u == 2:
            e(f'  v_cmp_lt_u32 vcc, 10, v{ROW[2]}')
            e(f'  v_add_u32 v{T[8]}, 7680, v{base}')
            e(f'  v_add_u32 v{dst[5]}, {5*768}, v{base}')
            e(f'  v_cndmask_b32 v{dst[2]}, v{base}, v{T[8]}, vcc')
    e(f'  v_lshrrev_b32 v{GG[0]}, 4, v0')
    e(f'  v_xor_b32 v{T[6]}, s{sT[3]}, v{lo4}')
    for u in range(3):
        if u: e(f'  v_add_u32 v{GG[u]}, {16*u}, v{GG[0]}')
        e(f'  v_mul_u32_u24 v{ROW[u]}, 43, v{GG[u]}')
        e(f'  v_lshrrev_b32 v{ROW[u]}, 7, v{ROW[u]}')
        e(f'  v_mul_u32_u24 v{T[2]}, 3, v{ROW[u]}')
        e(f'  v_sub_u32 v{T[3]}, v{GG[u]}, v{T[2]}')
        e(f'  v_add_u32 v{T[3]}, s{sR1}, v{T[3]}')
        e(f'  v_subrev_u32 v{T[5]}, 3, v{T[3]}')
        e(f'  v_min_u32 v{T[3]}, v{T[3]}, v{T[5]}')
        e(f'  v_add_u32 v{T[3]}, v{T[3]}, v{T[2]}')
        e(f'  v_xor_b32 v{T[5]}, v{ROW[u]}, v{T[6]}')
        e(f'  v_lshlrev_b32 v{T[5]}, 4, v{T[5]}')
        e(f'  v_lshl_add_u32 v{vXS[u]}, v{T[3]}, 8, v{T[5]}')
        if u != 1:
            e(f'  v_cmp_eq_u32 vcc, {10 if u == 2 else 5}, v{ROW[u]}')
            e(f'  s_nop 1')
            e(f'  v_cndmask_b32 v{vMk[0 if u == 2 else 1]}, 0, -1, vcc')
    if NB0 <= 2: run(xdma_items(0))
    STG = int(opts.get('stg', 0))
    sS3 = [58, 59, 62]; sSR = 63
    def x0_site(early):
        it = []
        if early: it += [x for x in xdma(0, 0)[:-3]]
        it += [f'  s_and_b32 s{sSR}, s2, {STG}', f'  s_cmp_eq_u32 s{sSR}, 0' if early else f'  s_cmp_lg_u32 s{sSR}, 0']
        for r, src in zip(sS3, (sF[0], sX4, sF[0] + 1)): it.append(f'  s_cselect_b32 s{r}, s{src}, s{sOOB}')
        it += [f'  s_cselect_b32 s{sSR}, 0, {TILE_B}', f'  s_add_u32 s{sSR}, s{sSR}, s{sRing}']
        for u in range(6):
            if u == 4: it.append(f'  v_cndmask_b32 v{vTX}, v{vXS[4]}, v{vXS4b}, s[{sXm}:{sXm+1}]')
            it += [f'  s_add_u32 m0, s{sSR}, {u*4096}', '  s_nop 0',
                   lambda u=u: g.vmop(f'  buffer_load_dwordx4 v{vTX if u == 4 else vXS[u]}, s[{sX}:{sX+3}], s{sS3[max(0, u - 3)]} offen{NT_LD} lds', ('L', 0, u))]
        return it
    XE = int(opts.get('xe', -1))
    if STG and XE < 0: run(x0_site(True))
    for s in range(NB0, 2): run(bload(s))
    srd(sO, 30, 113246208)
    e(f'  v_lshlrev_b32 v{vST[0]}, 4, v0')
    for u in range(3):
        if u: e(f'  v_add_u32 v{vST[u]}, {4096*u}, v{vST[0]}')
        e(f'  v_and_b32 v{T[5]}, 7, v{ROW[u]}')
        e(f'  v_xor_b32 v{T[5]}, v{T[5]}, v{lo4}')
        e(f'  v_lshlrev_b32 v{T[5]}, 4, v{T[5]}')
        e(f'  v_lshl_add_u32 v{T[5]}, v{GG[u]}, 8, v{T[5]}')
        e(f'  v_add_u32 v{vOR[u]}, {LDS_O}, v{T[5]}')
    if opts.get('xlin'):
        for u in range(3): e(f'  v_mov_b32 v{vXS[u]}, v{vST[u]}')
    if opts.get('xlin') == '2':
        for u in range(2): e(f'  v_mov_b32 v{vMk[u]}, 0')
    e(f'  v_mul_u32_u24 v{T[0]}, 0x300, v{lo4}')
    e(f'  v_xor_b32 v{T[2]}, v{hi2}, v{lo4}')
    e(f'  v_lshl_add_u32 v{vLdsR[0]}, v{T[2]}, 4, v{T[0]}')
    for s in range(1, 4): e(f'  v_xor_b32 v{vLdsR[s]}, {s*64}, v{vLdsR[0]}')
    e(f'  s_mul_i32 s{sT[1]}, s{sW}, 12')
    e(f'  v_and_b32 v{T[2]}, 7, v{lo4}')
    for u in range(2):
        e(f'  v_add_u32 v{T[3]}, s{sT[1]}, v{hi2}')
        if u: e(f'  v_add_u32 v{T[3]}, {4*u}, v{T[3]}')
        e(f'  v_xor_b32 v{T[3]}, v{T[3]}, v{T[2]}')
        e(f'  v_lshl_add_u32 v{vOW[u]}, v{T[3]}, 4, v{T[0]}')
        e(f'  v_add_u32 v{vOW[u]}, {LDS_O}, v{vOW[u]}')
    e(f'  v_bfe_u32 v{T[2]}, v{vLane}, 2, 2')
    e(f'  v_and_b32 v{T[3]}, 3, v{vLane}')
    e(f'  v_lshrrev_b32 v{T[5]}, 1, v{hi2}')
    e(f'  v_lshl_add_u32 v{T[5]}, v{T[5]}, 3, v{T[2]}')
    e(f'  v_mul_u32_u24 v{T[5]}, 192, v{T[5]}')
    e(f'  v_and_b32 v{T[7]}, 1, v{hi2}')
    e(f'  v_mul_u32_u24 v{T[7]}, 3080, v{T[7]}')
    e(f'  v_add_u32 v{T[5]}, v{T[5]}, v{T[7]}')
    e(f'  v_lshl_add_u32 v{T[5]}, v{T[3]}, 4, v{T[5]}')
    e(f'  s_add_u32 s{sT[1]}, s{sBW}, {AREA[2]}')
    e(f'  v_add_u32 v{vTr2}, s{sT[1]}, v{T[5]}')
    e(f'  v_add_u32 v{vTr}, {(AREA[0] - AREA[2]) & 0xffffffff}, v{vTr2}')
    e(f'  s_add_u32 s{sT[1]}, s{sRing}, {LDS_DW}')
    e(f'  v_lshl_add_u32 v{vDW}, v{hi2}, 4, s{sT[1]}')
    e(f'  v_and_b32 v{T[5]}, 1, v{vLane}')
    e(f'  v_lshlrev_b32 v{T[5]}, 4, v{T[5]}')
    e(f'  v_mov_b32 v{T[7]}, 0xffff')
    e(f'  v_lshlrev_b32 v{T[5]}, v{T[5]}, v{T[7]}')
    e(f'  v_lshlrev_b32 v{T[0]}, 1, v{hi2}')
    e(f'  v_bfe_u32 v{T[7]}, v{vLane}, 1, 3')
    e(f'  v_cmp_eq_u32 vcc, v{T[0]}, v{T[7]}')
    e(f'  v_add_u32 v{T[0]}, 1, v{T[0]}')
    e(f'  s_nop 0')
    e(f'  v_cndmask_b32 v{vM[0]}, 0, v{T[5]}, vcc')
    e(f'  v_cmp_eq_u32 vcc, v{T[0]}, v{T[7]}')
    srd(sDS, sDb, 256)
    e(f'  v_cndmask_b32 v{vM[1]}, 0, v{T[5]}, vcc')
    NR = int(opts.get('nr', 2))
    def probe():
        e('; --- placement probe: latency of one line per interleave class')
        e(f'  s_cmp_lg_u32 s{sPr}, 0')
        e(f'  s_cbranch_scc1 L_npr')
        e(f'  s_mov_b32 s{sPv}, 0xffff')
        e(f'  s_mov_b32 s{sRd}, 0xffff')
        e(f'  s_lshl_b32 s{sT[2]}, s{sW}, 2')
        e(f'  s_add_u32 s{sT[2]}, s{sT[2]}, {LDS_PR}')
        e(f'  v_mov_b32 v{T[0]}, s{sT[2]}')
        if int(opts.get('pb', 0)):
            e('  s_waitcnt lgkmcnt(0)')
            for i in range(NR):
                e('  s_barrier')
                e(f'  s_memtime s[{sPT}:{sPT+1}]')
                e(f'  s_load_dword s{sT[2]}, s[24:25], s{sPb if i & 1 else sPa} glc')
                e('  s_waitcnt lgkmcnt(0)')
                e(f'  s_memtime s[{sPT+2}:{sPT+3}]')
                e('  s_waitcnt lgkmcnt(0)')
                e(f'  s_sub_u32 s{sT[1]}, s{sPT+2}, s{sPT}')
                e(f'  s_min_u32 s{sRd if i & 1 else sPv}, s{sRd if i & 1 else sPv}, s{sT[1]}')
        else:
            e('  s_waitcnt lgkmcnt(0)')
            e(f'  s_memtime s[{sPT}:{sPT+1}]')
            for i in range(NR):
                a, b = (sPT, sPT + 2) if i % 2 == 0 else (sPT + 2, sPT)
                e(f'  s_load_dword s{sT[2]}, s[24:25], s{sPb if i & 1 else sPa} glc')
                e('  s_waitcnt lgkmcnt(0)')
                if i:
                    e(f'  s_sub_u32 s{sT[1]}, s{a}, s{b}')
                e(f'  s_memtime s[{b}:{b+1}]')
                if i: e(f'  s_min_u32 s{sRd if (i - 1) & 1 else sPv}, s{sRd if (i - 1) & 1 else sPv}, s{sT[1]}')
            e('  s_waitcnt lgkmcnt(0)')
            e(f'  s_sub_u32 s{sT[1]}, s{sPT}, s{sPT+2}')
            e(f'  s_min_u32 s{sRd}, s{sRd}, s{sT[1]}')
        e(f'  s_lshl_b32 s{sPv}, s{sPv}, 16')
        e(f'  s_or_b32 s{sPv}, s{sPv}, s{sRd}')
        e(f'  v_mov_b32 v{T[2]}, s{sPv}')
        e(f'  ds_write_b32 v{T[0]}, v{T[2]}')
        e('  s_waitcnt lgkmcnt(0)')
        e(f'L_npr:')
    PQ = 248
    assert 11 not in ASLOTS
    def publish():
        e('; --- publish the nearest class (first writer wins)')
        if NB0 >= 2:
            e(f'  s_cmp_lg_u32 s{sPr}, 0')
            e(f'  s_cbranch_scc1 L_np1')
            e('  s_barrier')
        e(f'  s_or_b32 s{sT[1]}, s{sPr}, s{sW}')
        e(f'  s_cmp_lg_u32 s{sT[1]}, 0')
        e(f'  s_cbranch_scc1 L_np1')
        PR = 240
        e(f'  v_mov_b32 v{PR+8}, {LDS_PR}')
        e(f'  ds_read_b128 v[{PR}:{PR+3}], v{PR+8}')
        e(f'  s_add_u32 s{sT[1]}, s24, s{sPa}')
        e(f'  s_lshr_b32 s{sT[2]}, s{sT[1]}, 20')
        e(f'  s_lshr_b32 s{sT[0]}, s2, 1')
        e(f'  s_xor_b32 s{sT[2]}, s{sT[2]}, s{sT[0]}')
        e(f'  s_and_b32 s{sT[2]}, s{sT[2]}, 2')
        e(f'  s_lshr_b32 s{sT[1]}, s{sT[1]}, 17')
        e(f'  s_and_b32 s{sT[1]}, s{sT[1]}, 4')
        e(f'  s_or_b32 s{sT[1]}, s{sT[1]}, s{sT[2]}')
        e(f'  s_or_b32 s{sT[1]}, s{sT[1]}, 1')
        e(f'  v_mov_b32 v{PR+11}, 0')
        e(f'  v_mov_b32 v{PR+8}, s{sEo}')
        e('  s_waitcnt lgkmcnt(0)')
        for o in (0,):
            e(f'  v_pk_min_u16 v{PR+o}, v{PR+o}, v{PR+o+1}')
            e(f'  v_pk_min_u16 v{PR+o+2}, v{PR+o+2}, v{PR+o+3}')
            e(f'  v_pk_min_u16 v{PR+o}, v{PR+o}, v{PR+o+2}')
            e(f'  v_lshrrev_b32 v{PR+o+1}, 16, v{PR+o}')
            e(f'  v_and_b32 v{PR+o}, 0xffff, v{PR+o}')
        e(f'  v_cmp_gt_u32 vcc, v{PR+1}, v{PR}')
        e(f'  v_min_u32 v{PR+2}, v{PR}, v{PR+1}')
        e('  s_nop 0')
        e(f'  v_cndmask_b32 v{PR+10}, 0, 2, vcc')
        e(f'  v_xor_b32 v{PR+10}, s{sT[1]}, v{PR+10}')
        e('  s_mov_b64 exec, 1')
        e(f'  v_lshl_or_b32 v{PR+10}, v{PR+2}, 16, v{PR+10}')
        if opts.get('sat'):
            e(f'  s_mov_b32 s{sRd+1}, 0')
            e(f'  v_readfirstlane_b32 s{sRd}, v{PR+10}')
            e('  s_nop 4')
            e(f'  s_atomic_cmpswap s[{sRd}:{sRd+1}], s[{sDb}:{sDb+1}], s{sEo}{" glc" if opts["sat"] == "1" else ""}')
        else:
            e(f'  buffer_atomic_cmpswap v[{PR+10}:{PR+11}], v{PR+8}, s[{sDS}:{sDS+3}], 0 offen sc1')
        e('  s_mov_b64 exec, -1')
        e('L_np1:')
    if opts.get('st2') == '2': stamp()
    if int(opts.get('iw', 0)):
        for r in sSo: e(f'  s_mov_b32 s{r}, s{sOOB}')
        e(f'  s_mov_b64 s[{sSm}:{sSm+1}], 0')
        if opts.get('iwp', '0') == '0': e('@IWHOP')
    PP = int(opts.get('pp', 1))
    if NUMA and PP == -1: probe()
    for s in range(NI, 2): run(bload(s))
    if NUMA and PP == 0: probe()
    LA = int(opts.get('la', NAR))
    assert LA <= NAR
    if LA > 2: run(bload(2))
    if NUMA and PP == 1: probe()
    if NB0 == 3: run(xdma_items(0))
    if LA > 3: run(bload(3))
    if LA > 4: run(bload(4))
    if NUMA and PP == 2: probe()

    def trs(s):
        it = [lambda: g.wait(('b', s), vm=('W',) if (s == 0 and LEAN) else ('B', s, 5))]
        base = vTr if (s % NAR) < 2 else vTr2
        so = AREA[s % NAR] - AREA[0 if (s % NAR) < 2 else 2]
        it.append(lambda: g.lgop(f'  ds_read_b128 v[{DWR[s & 1]}:{DWR[s & 1]+3}], v{vDW} offset:{s*64}', ('TR', s)))
        for nt in range(6):
            for hh in range(2):
                r = RAW[s & 1] + nt*4 + 2*hh
                it.append(lambda r=r, nt=nt, hh=hh: g.lgop(f'  ds_read_b64_tr_b16 a[{r}:{r+1}], v{base} offset:{so + hh*768 + (nt >> 1)*64 + (nt & 1)*8}', ('TR', s)))
        return it
    def cvts(s, j, q=None):
        nt, hh = j // 2, j % 2
        if q is None: q = FT + 4*(j % NFT)
        if s in ASLOTS:
            return [f'  v_cvt_pk_bf16_f32 v{q}, v{q}, v{q+1}', f'  v_cvt_pk_bf16_f32 v{q+1}, v{q+2}, v{q+3}',
                    f'  v_accvgpr_write_b32 {breg(s, nt, 1, 2*hh)}, v{q}', f'  v_accvgpr_write_b32 {breg(s, nt, 1, 2*hh+1)}, v{q+1}']
        return [f'  v_cvt_pk_bf16_f32 {breg(s, nt, 1, 2*hh)}, v{q}, v{q+1}', f'  v_cvt_pk_bf16_f32 {breg(s, nt, 1, 2*hh+1)}, v{q+2}, v{q+3}']
    def rd(t, i):
        mt, ks = i // 12, i % 12
        x = XF + 8*((i // 2) % 3) + 4*(i & 1)
        g.lgop(f'  ds_read_b128 a[{x}:{x+3}], v{vLdsR[ks & 3]} offset:{(t & 1)*TILE_B + mt*12288 + (ks >> 2)*256}', ('X', t, i))
    TS = NB0 if FUSE else 13
    units = sorted([(0, k) for k in range(12)] + [(1, k) for k in range(8)], key=lambda u: (u[1] + 4*u[0], -u[0]))
    UPS = int(opts.get('ups', 2 if NB0 <= 2 else 3))
    SCH = {s: [] for s in range(13)}
    rem = list(units) if FUSE else []
    for s in range(12, TS - 1, -1):
        n = 2 if s == 12 else UPS
        take = [u for u in reversed(rem) if u[1] < s][:n]
        SCH[s] = sorted(take, key=lambda u: (u[1], u[0]))
        rem = [u for u in rem if u not in take]
    assert not rem, rem
    for mt in range(2 if FUSE else 0):
        seq = [u[1] for s in range(13) for u in SCH[s] if u[0] == mt]
        assert seq[0] == 0 and sorted(seq) == list(range(len(seq)))
    def tl(s): return SCH[s]
    def fx(s, mt, ks): return OB + 12*(s % 2) + 4*SCH[s].index((mt, ks))
    def prd(s):
        return [lambda mt=mt, ks=ks: g.lgop(f'  ds_read_b128 a[{fx(s, mt, ks)}:{fx(s, mt, ks)+3}], v{vLdsR[ks & 3]} offset:{mt*12288 + (ks >> 2)*256}', ('TR', s)) for (mt, ks) in tl(s)]
    def tm(s, mt, ks, nt):
        a = ACC + 24*mt + 4*nt; x = fx(s, mt, ks)
        return f'  v_mfma_f32_16x16x32_bf16 v[{a}:{a+3}], {breg(ks, nt)}, a[{x}:{x+3}], {"0" if ks == 0 else f"v[{a}:{a+3}]"}'
    if opts.get('iwp') == '1': e('@IWHOP')
    DEC = int(opts.get('dec', 0))
    def trd(s):
        it = [lambda: g.wait(('b', s), vm=('W',) if (s == 0 and LEAN) else ('B', s, 5))]
        base = vTr if (s % NAR) < 2 else vTr2
        so = AREA[s % NAR] - AREA[0 if (s % NAR) < 2 else 2]
        for nt in range(6):
            for hh in range(2):
                it.append(lambda nt=nt, hh=hh: g.lgop(f'  ds_read_b64_tr_b16 {breg(s, nt, 2, 2*hh)}, v{base} offset:{so + hh*768 + (nt >> 1)*64 + (nt & 1)*8}', ('TR', s)))
        return it
    def dwr(s): g.lgop(f'  ds_read_b128 v[{DWR[s & 1]}:{DWR[s & 1]+3}], v{vDW} offset:{s*64}', ('DW', s))
    if DEC:
        run(trd(0)); dwr(0)
    else: run(trs(0))
    stamp()
    LAG = int(opts.get('lag', 3))
    XA = int(opts.get('xa', 8)); XB = int(opts.get('xb', 12)); DS = int(opts.get('ds', XA)); BQ = 10
    X0 = int(opts.get('x0', 11 - LA)); X1 = int(opts.get('x1', 11))
    if not FUSE: XA = XB = BQ = 99; DS = int(opts.get('ds', 9)); LAG = int(opts.get('lag', 4))
    assert XB >= BQ
    pend = []
    def region(dst, src, tmp):
        return [f'  s_lshr_b32 s{tmp}, s{src}, 23', f'  s_sub_u32 s{tmp}, s{tmp}, 6', f'  s_lshr_b32 s{dst}, s{src}, 24', f'  s_max_i32 s{dst}, s{dst}, s{tmp}']
    def reader():
        it = [f'  s_add_u32 s{sT[1]}, s{sBase}, 49152'] + region(sOf[0], sT[1], sT[2])
        it += [f'  s_sub_u32 s{sT[1]}, s{sEnd}, {KSTEP - 49152}'] + region(sOf[2], sT[1], sT[2])
        for k, lim in ((1, sP2), (2, sP1 + 1)):
            it += [f'  s_add_u32 s{sT[1]}, s{sOf[0]}, {k}', f'  s_lshl_b32 s{lim}, s{sT[1]}, 24', f'  s_add_u32 s{sT[1]}, s{sT[1]}, 6',
                   f'  s_lshl_b32 s{sT[1]}, s{sT[1]}, 23', f'  s_min_u32 s{lim}, s{lim}, s{sT[1]}', f'  s_sub_u32 s{lim}, s{lim}, 49152']
        it += [f'  s_add_u32 s{sOf[1]}, s{sOf[0]}, 1', f'  s_min_u32 s{sOf[1]}, s{sOf[1]}, s{sOf[2]}']
        for i in range(3):
            it += [f'  s_lshl_b32 s{sOf[i]}, s{sOf[i]}, 4', f'  s_load_dwordx4 s[{sEn[i]}:{sEn[i]+3}], s[{sDb}:{sDb+1}], s{sOf[i]}']
        return it
    def decide():
        if NUMA:
            e(f'  s_min_u32 s{sT[1]}, s{sEn[0]}, s{sEn[0]+1}')
            for r in [sEn[0]+2, sEn[0]+3] + [sEn[i] + k for i in (1, 2) for k in range(4)]: e(f'  s_min_u32 s{sT[1]}, s{sT[1]}, s{r}')
            e(f'  s_cmp_eq_u32 s{sT[1]}, 0')
            e('  s_cbranch_scc1 L_slow')
            e('L_back:')
    def decide2():
        it = []
        it.append(f'  s_mov_b32 s{sDec+1}, s{sP2}')
        it.append(f'  s_mov_b32 s{sP2+1}, -1')
        it.append(f'  s_and_b32 s{sT[0]}, s2, 5')
        it.append(f'  s_lshl_b32 s{sT[0]}, s{sT[0]}, 19')
        for q, dst in zip(sEn, (sDec, sP1, sP2)):
            it.append(f'  s_min_u32 s{sT[1]}, s{q}, s{q+2}')
            it.append(f'  s_min_u32 s{sT[2]}, s{q+1}, s{q+3}')
            it.append(f'  s_cmp_gt_u32 s{sT[1]}, s{sT[2]}')
            it.append(f'  s_cselect_b32 s{sT[1]}, 4, 0')
            it.append(f'  s_xor_b32 s{sT[1]}, s{sT[1]}, s{q}')
            it.append(f'  s_and_b32 s{sT[1]}, s{sT[1]}, 4')
            it.append(f'  s_lshl_b32 s{sT[1]}, s{sT[1]}, 17')
            it.append(f'  s_bitcmp1_b32 s2, 1')
            it.append(f'  s_cselect_b64 s[{q}:{q+1}], s[{q+2}:{q+3}], s[{q}:{q+1}]')
            it.append(f'  s_bitcmp1_b32 s2, 0')
            it.append(f'  s_cselect_b32 s{dst}, s{q+1}, s{q}')
            it.append(f'  s_and_b32 s{dst}, s{dst}, 2')
            it.append(f'  s_lshl_b32 s{dst}, s{dst}, 20')
            it.append(f'  s_or_b32 s{dst}, s{dst}, s{sT[1]}')
            it.append(f'  s_xor_b32 s{dst}, s{dst}, s{sT[0]}')
        return it
    if DEC:
        QU = [[] for _ in range(145)]
        def spread(items, n0, n1):
            for i, it in enumerate(items): QU[n0 + (i * (n1 - n0)) // len(items)].append(it)
        for a in range(11):
            it = trd(a + 1)
            if a + LA < 12: it += [lambda a=a: g.wait(('trf', a), lg=('TR', a))] + bload(a + LA)
            if a == X0: it += xdma_items(0)
            spread(it, DEC * a, DEC * (a + 1))
        if NUMA: QU[12*DS - 8].append(f'  s_load_dword s{sRd}, s[{sDb}:{sDb+1}], s{sEo}')
        if X1 < 12: spread(xdma_items(1), 12*X1, 12*X1 + 12)
        assert DEC * (X0 + 1) <= 12*DS
        for n in range(144):
            k, j = n // 12, n % 12
            d = DWR[k & 1]
            if j == 0:
                if k == DS and NUMA: e('  s_waitcnt lgkmcnt(0)')
                else:
                    g.wait(('tr', k), lg=('TR', k)); g.wait(('dw', k), lg=('DW', k), opt=True)
                for i in range(4): e(f'  v_and_b32 v{d+i}, v{vM[i & 1]}, v{d+i}')
                if k == DS: decide()
                if k + 1 < 12: dwr(k + 1)
                else: e('  s_nop 0')
                e('  s_nop 0')
            nt, hh = j // 2, j % 2
            q = FT + 4*(n % NFT)
            e(f'  v_mfma_f32_16x16x16_bf16 v[{q}:{q+3}], v[{d+2*hh}:{d+2*hh+1}], {breg(k, nt, 2, 2*hh)}, 0')
            pend.append(cvts(k, j, q))
            run(QU[n])
            if len(pend) > LAG: run(pend.pop(0))
            if n in (47, 95): stamp()
            if n == 11 and NUMA: publish()
    for s in range(0 if DEC else 12):
        if s == DS and NUMA: e('  s_waitcnt lgkmcnt(0)')
        else: g.wait(('tr', s), lg=('TR', s))
        if s == BQ: e('  s_barrier')
        d = DWR[s & 1]
        for i in range(4): e(f'  v_and_b32 v{d+i}, v{vM[i & 1]}, v{d+i}')
        if s == DS: decide()
        Q = []
        if s + 4 == NB0: Q += xdma_items(0)
        if s + LA < 12: Q += bload(s + LA)
        nx = trs(s + 1) if s + 1 < 12 else []
        if s == NB0 - 1:
            nx = nx[:1] + ['  s_barrier'] + nx[1:]
        nx += prd(s + 1)
        Q = (Q + nx) if opts.get('qo', '1') == '0' else (nx + Q)
        if s == DS - 1 and NUMA:
            assert s > X0 and s + LA >= 12
            Q += reader()
        if s == DS and NUMA: Q += decide2()
        if STG and s == XE: Q += x0_site(True)
        if s == X0 and not FUSE: Q += (x0_site(False) if STG else xdma_items(0))
        if s == X1 and not FUSE: Q += xdma_items(1)
        if s == XA: Q += xdma_items(1)
        if s == XB: Q += xdma_items(2)
        if s == 11 and FUSE: Q += [lambda i=i: rd(0, i) for i in range(20, 24)]
        while len(Q) < 2: Q.append('  s_nop 0')
        M = []
        TL = [tm(s, mt, ks, nt) for nt in range(6) for (mt, ks) in tl(s)]
        for j in range(12):
            nt, hh = j // 2, j % 2
            r = RAW[s & 1] + nt*4 + 2*hh
            q = FT + 4*(j % NFT)
            M.append((f'  v_mfma_f32_16x16x16_bf16 v[{q}:{q+3}], v[{d+2*hh}:{d+2*hh+1}], a[{r}:{r+1}], 0', j))
            k0, k1 = (j*len(TL))//12, ((j+1)*len(TL))//12
            M += [(x, None) for x in TL[k0:k1]]
        run(Q[:2]); Q = Q[2:]
        front = int(opts.get('front', 2))
        cq = []
        for mi, (m, j) in enumerate(M):
            if j is not None:
                run(cq); cq = []
            e(m)
            if j is not None:
                pend.append(cvts(s, j))
                if len(pend) > LAG: cq = pend.pop(0)
            QE = (len(M) * int(opts.get('qe', 4))) // 4
            nq = -(-len(Q) // max(1, QE - mi)) if mi < QE else len(Q)
            run(Q[:nq]); Q = Q[nq:]
            nc = 2 if (mi + 1 < len(M) and M[mi + 1][1] is None) else len(cq)
            run(cq[:nc]); cq = cq[nc:]
        assert not Q and not cq
        if s in (3, 7) and not opts.get('st2'): stamp()
        if s == int(opts.get('pubs', 0)) and NUMA: publish()
    if FUSE:
        g.wait(('tr', 12), lg=('TR', 12))
        T0 = [tm(12, 0, 11, nt) for nt in range(6)]
        T1 = [tm(12, 1, ks, nt) for (mt, ks) in tl(12) if mt == 1 for nt in range(6)]
        for nt in range(4):
            e(T0[nt])
            if pend: run(pend.pop(0))
        if DS == 12:
            e('  s_waitcnt lgkmcnt(0)'); decide()
        e(f'  v_sub_u32 v{vST4b}, v{vXS4b}, v{vXS[4]}')
        e(f'  v_add_u32 v{vST4b}, v{vST4b}, v{vST[4]}')
        e(T0[4]); e(T0[5])
        stamp()
        FIN = (T1, XB)
    else:
        run(pend.pop(0)); run(pend.pop(0))
        stamp()
        e(f'  v_mov_b32 v{vTS2}, 0')
        e(f'  v_mov_b32 v{vTS3}, 0')
        for r in sSo: e(f'  s_mov_b32 s{r}, s{sOOB}')
        if PF:
            a_, m_ = [int(v) for v in PF.split(',')]
            e(f'  v_mbcnt_lo_u32_b32 v{vPF}, -1, 0')
            e(f'  v_mbcnt_hi_u32_b32 v{vPF}, -1, v{vPF}')
            e(f'  v_min_u32 v{vPF}, 47, v{vPF}')
            e(f'  s_mul_i32 s{sPf0}, s{sW}, 48')
            e(f'  v_add_u32 v{vPF}, s{sPf0}, v{vPF}')
            e(f'  v_lshrrev_b32 v{vPD}, 6, v{vPF}')
            e(f'  v_lshlrev_b32 v{vPD}, 13, v{vPD}')
            e(f'  v_lshl_add_u32 v{vPF}, v{vPF}, 7, v{vPD}')
            e(f'  s_lshr_b32 s{sPf0}, s2, 3')
            e(f'  s_and_b32 s{sPf0}, s{sPf0}, {m_}')
            e(f'  s_add_u32 s{sPf0}, s{sPf0}, {a_ - NTILE & 0xffffffff}')
            e(f'  s_mul_i32 s{sPf0}, s{sPf0}, {KSTEP}')
            e(f'  s_add_u32 s{sPf0}, s{sPf0}, s{sEnd}')
        if opts.get('iwp') == '2': e('@IWHOP')
        if int(opts.get('iw', 0)): e('  s_mov_b64 vcc, 0')
        g.wait('x0', vm=('L', 0, 5))
        e('  s_barrier')
        for i in range(4): rd(0, i)
        while pend: run(pend.pop(0))
        if X1 == 13: run(xdma_items(1))
        else: assert NAR == 4 and X1 >= DS

    def epi(mt, u, po):
        a = ACC + 24*mt + 8*u
        cv = [f'  v_cvt_pk_bf16_f32 v{a+i}, v{a+2*i}, v{a+2*i+1}' for i in range(4)]
        off = po*TILE_B + mt*12288 + (u >> 1)*128
        if DIR:
            return cv + [lambda: g.vmop(f'  buffer_store_dwordx4 v[{a}:{a+3}], v{vTS if mt else vST[0]}, s[{sO}:{sO+3}], s{sSo[2] if mt else sSo[0]} offen offset:{64*u}{NT_ST}', None)]
        if opts.get('w64'):
            return cv[:2] + [lambda: g.lgop(f'  ds_write_b64 v{vOW[u & 1]}, v[{a}:{a+1}] offset:{off}', ('OWa', mt, u))] + cv[2:] + \
                   [lambda: g.lgop(f'  ds_write_b64 v{vOW[u & 1]}, v[{a+2}:{a+3}] offset:{off+8}', ('OW', mt, u))]
        return cv + [lambda: g.lgop(f'  ds_write_b128 v{vOW[u & 1]}, v[{a}:{a+3}] offset:{off}', ('OW', mt, u))]
    OBT = 'a'
    def out_read(t, u):
        o = OB + 4*u
        g.lgop(f'  ds_read_b128 {OBT}[{o}:{o+3}], v{vOR[u % 3]} offset:{((t^1)&1)*TILE_B + (u // 3)*12288}', ('O', t, u))
    def out_store(t, u, key):
        o = OB + 4*u
        g.wait((key, 'o', u), lg=('O', t, u), opt=True)
        g.vmop(f'  buffer_store_dwordx4 {OBT}[{o}:{o+3}], v{[vST[0], vST[1], vTS2, vTS3, vST[1], vST[2]][u]}, s[{sO}:{sO+3}], s{sSo[[0, 0, 1, 2, 3, 3][u]]} offen{opts.get("mixf", " nt") if str(u) in opts.get("mix", "") else NT_ST}', None)
    def st_adv(d=0):
        p, q = sF[2 - d], sF[3 - d]
        return halfA(p, sSo[0], sSd) + [f'  s_mov_b32 s{sSo[1]}, s{p}'] + mixv(vTS2, vST[2], vMk[0], sSd, p + 1) + \
               halfB(q, sSo[3], sSd, sSo[2]) + mixv(vTS3, vST[0], vMk[1], sSd, sSo[2]) + [f'  s_mov_b32 s{sSo[2]}, s{q}']
    def ints(k, d): return [int(v) for v in opts.get(k, d).split(',')]
    OR_AT = ints('or', '2,3,4,5,6,7'); OS_AT = ints('os', '14,20,30,40,52,64')
    UORD = ints('uord', '3,4,5,0,1,2')
    XD_AT = ints('xd', '76,88,100,112,124,136')
    E1_AT = ints('e1', '27,39,61'); E0_AT = ints('e0', '99,106,123')
    SH_AT = int(opts.get('sh', 26)); CAP = int(opts.get('cap', 1)); HG = int(opts.get('hg', 0))
    def fillers(t):
        F = [[] for _ in range(144)]
        use = [0] * 150
        for r in range(144):
            if r % 12 in (0, 1, 11): use[r] = 1
        HP = opts.get('hp')
        def heavy(rho, it):
            while use[rho] or (HP and rho % 2 != int(HP)): rho += 1
            F[rho].append(it); use[rho] = 9
            for k in range(1, HG + 1): use[rho + k] = max(use[rho + k], 8)
            return rho
        def light(rho, items, cap=CAP, back=False):
            if back:
                for it in reversed(items):
                    while use[rho] >= cap: rho -= 1
                    F[rho].insert(0, it); use[rho] += 1
                return rho
            for it in items:
                while use[rho] >= cap: rho += 1
                F[rho].append(it); use[rho] += 1
            return rho
        kp = t & 1
        post = []
        vpos = []
        for k in range(0 if DIR else 6):
            u = UORD[k]
            lastst = heavy(OS_AT[k], lambda u=u: out_store(t, u, kp))
            vpos.append(lastst)
        xpos = []
        for u in range(6):
            it = [x for x in xdma(t + PD, u) if x != 'NOP']
            xpos.append((heavy(XD_AT[u], it[-1]), it[:-1]))
        for mt, AT in ((1, E1_AT), (0, E0_AT)):
            for u in range(3):
                r = AT[u]
                for it in epi(mt, u, t & 1):
                    r = (heavy(r, it) if callable(it) else light(r, [it], 1)) + 1
                if DIR:
                    vpos.append(r - 1)
                    if mt == 1: lastst = r - 1
        for k in range(0 if DIR else 6):
            light(OR_AT[k], [lambda u=UORD[k]: out_read(t, u)], 1)
        prevx = 0
        for (r, it) in xpos:
            r0 = light(r - 1, it, 2 if len(it) > 6 else CAP, back=True)
            assert r0 >= 24 and r0 > prevx, (r0, prevx)
            prevx = r
        if opts.get('xr'):
            a_, b_ = [int(v) for v in opts['xr'].split(',')]
            it = [f'  s_sub_u32 s37, s{sEnd}, s{sBase}', f'  s_sub_u32 s37, s37, {(NTILE - b_)*KSTEP + 1}', f'  s_cmp_lt_u32 s37, {(b_ - a_)*KSTEP}',
                  f'  s_cselect_b32 s37, s{sF[0]}, s{sOOB}', f'  s_xor_b32 s37, s37, 0x2000000']
            r1_ = heavy(104, lambda: g.vmop(f'  buffer_load_dwordx4 a[240:243], v{vXS[0]}, s[{sX}:{sX+3}], s37 offen nt', None))
            heavy(130, lambda: g.vmop(f'  buffer_load_dwordx4 a[244:247], v{vXS[1]}, s[{sX}:{sX+3}], s37 offen nt', None))
            light(94, it, 2, back=True)
        if PF:
            it = pf_items()
            rp = heavy(int(opts.get('pfa', 140)), it[-1])
            assert light(rp - 1, it[:-1], 2, back=True) > xpos[4][0]
        if opts.get('lim'):
            for r in vpos + [x[0] for x in xpos]:
                light(r - 1, [f'  s_waitcnt vmcnt({opts["lim"]})'], 2, back=True)
        for a, b in zip(xpos, xpos[1:]): assert b[0] - a[0] >= 5
        r1 = light(max(lastst, xpos[0][0]) + 1, [x for x in st_adv() if x != 'NOP'], 2)
        assert r1 < (E0_AT[0] + 4 if DIR else 144)
        return F
    def tile(t, G0=0):
        kp = t & 1
        F0 = fillers(t); F1 = fillers(t + 1)
        for G_ in range(G0, 12):
            mt, kg = G_ // 6, G_ % 6
            if DBG == 2 and G_ in (4, 10): e(f'  s_memrealtime s[{[42, 44, 48, 50][2*kp + (G_ == 10)]}:{[42, 44, 48, 50][2*kp + (G_ == 10)]+1}]')
            if G_ == 10:
                if G0 == 0 and kp == 1 and opts.get('skv'):
                    e(f'  s_cmp_ge_u32 s{sF[1]}, s{sOOB}')
                    e(f'  s_cbranch_scc1 L_npv{t}')
                    g.wait((kp, 'barv'), vm=('L', t + 1, 5))
                    e(f'L_npv{t}:')
                    g.wait((kp, 'bar'), lg=('OW', 0, 2))
                elif G0 == 0: g.wait((kp, 'bar'), vm=('L', t + 1, 5), lg=('OW', 0, 2))
                if kp == 0 and not unroll: e('L_ent:')
                e('  s_barrier')
                if DBG == 2: e(f'  s_memrealtime s[{[46, 52][kp]}:{[46, 52][kp]+1}]')
                if t & 1:
                    for r in vLdsR: e(f'  v_xor_b32 v{r}, {2*TILE_B}, v{r}')
            g.wait((kp, 'x', G_), lg=('X', t, 2*G_ + 1))
            for pd_ in (opts['pad'].split(',') if opts.get('pad') else []): e(f'  s_nop {pd_}')
            for nt in range(6):
                for k in range(2):
                    kk = k ^ (nt & 1) if opts.get('snake') else k
                    ks = 2*kg + kk; i = 12*mt + ks
                    x = XF + 8*(G_ % 3) + 4*kk
                    a = ACC + 24*mt + 4*nt
                    c = '0' if kg == 0 and k == 0 else f'v[{a}:{a+3}]'
                    e(f'  v_mfma_f32_16x16x32_bf16 v[{a}:{a+3}], {breg(ks, nt)}, a[{x}:{x+3}], {c}')
                    gap = 12*G_ + 2*nt + k
                    if gap % 12 in (0, 1):
                        j = 2*G_ + 4 + (gap % 12)
                        if j < 24: rd(t, j)
                        else: rd(t + 1, j - 24)
                    run(F0[gap + 24] if gap < 120 else F1[gap - 120])
    if FUSE:
        Q = (xdma_items(2) if XB == 12 else []) + [x if x != 'NOP' else '  s_nop 0' for x in st_adv()]
        E = epi(0, 0, 0) + epi(0, 1, 0) + epi(0, 2, 0)
        T1 = list(FIN[0])
        run(Q[:4]); Q = Q[4:]
        while T1 or E:
            if T1: e(T1.pop(0))
            run(E[:3]); E = E[3:]
        run(Q)
    stamp()
    if DBG:
        e(f'  s_mov_b32 s94, {sn[0]}')
        e('  s_mov_b32 s60, s64')
        e('  s_memtime s[38:39]') if 0 else e('  s_memtime s[86:87]')
    def tail(t):
        if DIR:
            e('  s_nop 3')
            for u in range(3): run(epi(1, u, t & 1))
            return
        done = [UORD[k] for k in range(6) if OS_AT[k] < 24]
        rdone = [UORD[k] for k in range(6) if OR_AT[k] < 24]
        for u in UORD:
            if u not in rdone: out_read(t, u)
        e('  s_nop 3')
        for u in range(3): run(epi(1, u, t & 1))
        for u in UORD:
            if u not in done: out_store(t, u, 'T')
        run([x if x != 'NOP' else '  s_nop 0' for x in st_adv(1)])
        e('  s_waitcnt lgkmcnt(0)')
        e('  s_barrier')
        for u in range(3):
            e(f'  ds_read_b128 a[{XF+4*u}:{XF+4*u+3}], v{vOR[u]} offset:{(t & 1)*TILE_B + 12288}')
        for u in range(3):
            e(f'  s_waitcnt lgkmcnt({2-u})')
            e(f'  buffer_store_dwordx4 a[{XF+4*u}:{XF+4*u+3}], v{[vTS3, vST[1], vST[2]][u]}, s[{sO}:{sO+3}], s{sSo[[2, 3, 3][u]]} offen{NT_ST}')
    PEEL = int(opts.get('peel', 0))
    def last_tile(t):
        F = [[] for _ in range(150)]
        use = [(1 if (r % 12 == 11 or (r % 12 in (0, 1) and r < 120)) else 0) for r in range(150)]
        def put(r, items):
            for it in items:
                if it == 'NOP': continue
                while use[r]: r += 1
                F[r].append(it); use[r] = 1
            return r
        def part(q):
            return [f'  s_mov_b32 s{sSo[1]}, s{q}', f'  s_mov_b32 s{sSo[3]}, s{q+1}', f'  s_min_u32 s{sSo[2]}, s{q}, s{q+1}',
                    f'  s_cmp_gt_u32 s{q}, s{q+1}', f'  s_cselect_b64 s[{sSm}:{sSm+1}], -1, 0', f'  v_cndmask_b32 v{vTS}, v{vST[4]}, v{vST4b}, s[{sSm}:{sSm+1}]']
        assert all(o < 24 for o in OR_AT) and UORD[:3] == [3, 4, 5]
        L1 = ints('l1', '6,16,28,40'); L2 = ints('l2', '62,74,88'); L3 = ints('l3', '120,128,136')
        BX, BY = int(opts.get('bx', 4)), int(opts.get('by', 9))
        rem = [UORD[k] for k in range(6) if OS_AT[k] >= 24]
        pos = {}
        for u, r in zip(rem, L1[-len(rem):]): pos[u] = put(r, [lambda u=u: out_store(t, u, 'L')])
        for u, r in zip((3, 4, 5), L2): p2 = put(r, [lambda u=u: out_store(t + 1, u, 'L2')])
        for u, r in zip((0, 1, 2), L3): put(r, [lambda u=u: out_store(t + 1, u, 'L2')])
        r = 3
        for u in range(3): r = put(r, epi(1, u, t & 1)) + 1
        assert r < 12*BX - 4
        r = 75
        for u in range(3): r = put(r, epi(0, u, t & 1)) + 1
        assert r < 12*BY - 4
        put(12*BX + 2, [lambda u=u: out_read(t + 1, u) for u in (3, 4, 5)])
        put(12*BY + 2, [lambda u=u: out_read(t + 1, u) for u in (0, 1, 2)])
        assert put(pos.get(5, 0) + 1, part(sF[2])) < L2[0] and max(pos.values()) < 12*BX
        put(max(pos.values()) + 1, [f'  s_mov_b32 s{sSo[0]}, s{sF[1]}'])
        put(p2 + 1, part(sF[1]))
        for G_ in range(12):
            mt, kg = G_ // 6, G_ % 6
            if G_ in (BX, BY):
                g.wait(('L', 'bar', G_), lg=('OW', 1 if G_ == BX else 0, 2))
                e('  s_barrier')
            g.wait(('L', 'x', G_), lg=('X', t, 2*G_ + 1))
            for nt in range(6):
                for k in range(2):
                    ks = 2*kg + k
                    x = XF + 8*(G_ % 3) + 4*k
                    a = ACC + 24*mt + 4*nt
                    c = '0' if ks == 0 else f'v[{a}:{a+3}]'
                    e(f'  v_mfma_f32_16x16x32_bf16 v[{a}:{a+3}], {breg(ks, nt)}, a[{x}:{x+3}], {c}')
                    gap = 12*G_ + 2*nt + k
                    if gap % 12 in (0, 1) and 2*G_ + 4 + (gap % 12) < 24: rd(t, 2*G_ + 4 + (gap % 12))
                    run(F[gap])
        assert not any(F[144:])
        if DBG:
            e('  s_mov_b32 m0, s94'); e('  s_nop 0'); e('  v_writelane_b32 v0, s60, m0')
            e('  s_memrealtime s[60:61]'); e('  s_memtime s[88:89]')
        else: e('  s_nop 1')
        for u in range(3): run(epi(1, u, (t + 1) & 1))
        e('  s_waitcnt lgkmcnt(0)')
        e('  s_barrier')
        for u in range(3):
            e(f'  ds_read_b128 a[{XF+4*u}:{XF+4*u+3}], v{vOR[u]} offset:{((t + 1) & 1)*TILE_B + 12288}')
        for u in range(3):
            e(f'  s_waitcnt lgkmcnt({2-u})')
            e(f'  buffer_store_dwordx4 a[{XF+4*u}:{XF+4*u+3}], v{vTS if u == 1 else vST[u+3]}, s[{sO}:{sO+3}], s{sSo[u+1]} offen{NT_ST}')
    if FUSE: g.wait('ent', vm=('L', 1, 5), lg=('OW', 0, 2))
    if PEEL and unroll:
        for t in range(NTILE - 1): tile(t)
        last_tile(NTILE - 1)
    elif PEEL:
        e('L_loop:')
        tile(0)
        e(f'  s_cmp_ge_u32 s{sF[0]}, s{sOOB}')
        e(f'  s_cbranch_scc1 L_tail')
        tile(1)
        if DBG:
            e('  s_mov_b32 m0, s94'); e('  s_nop 0'); e('  v_writelane_b32 v0, s60, m0')
            e('  s_add_u32 s94, s94, 1')
            e('  s_memrealtime s[60:61]')
        e(f'  s_branch L_loop')
        e('L_tail:')
        last_tile(1)
        if DBG: e('  s_mov_b32 s94, 15')
    elif unroll:
        tile(0, 10 if FUSE else 0)
        for t in range(1, NTILE): tile(t)
        tail(NTILE)
    else:
        if FUSE: e('  s_branch L_ent')
        if opts.get('al'): e(f'  .p2align {opts["al"]}')
        e('L_loop:')
        tile(0)
        tile(1)
        if DBG:
            e('  s_mov_b32 m0, s94'); e('  s_nop 0'); e('  v_writelane_b32 v0, s60, m0')
            e('  s_add_u32 s94, s94, 1')
            e('  s_min_u32 s94, s94, 15')
            e('  s_memrealtime s[60:61]')
        e(f'  s_cmp_lt_u32 s{sF[1]}, s{sOOB}')
        e(f'  s_cbranch_scc1 L_loop')
        e('L_tail:')
        if DBG: e('  s_memtime s[88:89]')
        tail(0)
        if DBG: e('  s_mov_b32 s94, 15')
    if DBG:
        e('  s_mov_b32 m0, s94'); e('  s_nop 0'); e('  v_writelane_b32 v0, s60, m0')
        e('  s_add_u32 s94, s94, 1')
        e('  s_load_dwordx2 s[24:25], s[0:1], 40')
        e('  s_waitcnt vmcnt(0)')
        e('  s_memrealtime s[54:55]')
        e('  s_memtime s[98:99]')
        e('  s_waitcnt lgkmcnt(0)')
        e('  s_mov_b32 m0, s94'); e('  s_nop 0'); e('  v_writelane_b32 v0, s54, m0')
        e('  s_sub_u32 s98, s98, s96')
        e('  s_add_u32 s98, s98, s64')
        e('  v_writelane_b32 v0, s98, 31')
        e('  s_sub_u32 s88, s88, s86')
        e('  v_writelane_b32 v0, s88, 30')
        if DBG == 2:
            for i in range(6): e(f'  v_writelane_b32 v0, s{42+2*i}, {17+i}')
        e(f'  v_writelane_b32 v0, s{sPv}, 29')
        e(f'  v_writelane_b32 v0, s{sDec}, 28')
        e(f'  v_writelane_b32 v0, s3, 27')
        for i in range(sn[0]): e(f'  v_writelane_b32 v0, s{64+2*i}, {i}')
        e('  s_mov_b32 s56, s24'); e('  s_and_b32 s57, s25, 0xffff'); e('  s_mov_b32 s58, 452984832'); e('  s_mov_b32 s59, 0x00020000')
        e('  s_lshl_b32 s26, s2, 9'); e(f'  s_lshl_b32 s27, s{sW}, 7'); e('  s_add_u32 s26, s26, s27')
        e('  v_mbcnt_lo_u32_b32 v1, -1, 0')
        e('  v_lshlrev_b32 v1, 2, v1')
        e('  s_mov_b64 exec, 0xffffffff')
        e('  buffer_store_dword v0, v1, s[56:59], s26 offen')
    if AMP:
        e('  s_waitcnt vmcnt(0)')
        e('  s_memrealtime s[54:55]')
        e('  s_waitcnt lgkmcnt(0)')
        e(f'  s_cmp_lg_u32 s2, {int(opts.get("ampwg", 100))}')
        e('  s_cbranch_scc1 L_done')
        if AMP == 'c':
            e('  s_memtime s[98:99]')
            e('  s_waitcnt lgkmcnt(0)')
            e('  s_sub_u32 s27, s98, s96')
            e('  s_lshr_b32 s27, s27, 1')
        else:
            e(f'  s_sub_u32 s27, s{54 if AMP == "e" else 64 + 2*int(AMP)}, s64')
            e('  s_mul_i32 s27, s27, 10')
        e('L_spin:')
        e('  s_sleep 8')
        e('  s_memrealtime s[56:57]')
        e('  s_waitcnt lgkmcnt(0)')
        e('  s_sub_u32 s26, s56, s54')
        e('  s_cmp_lt_u32 s26, s27')
        e('  s_cbranch_scc1 L_spin')
    if NUMA:
        e('  s_endpgm')
        e('L_slow:')
        e(f'  v_mbcnt_lo_u32_b32 v253, -1, 0')
        e(f'  v_and_b32 v253, 3, v253')
        e(f'  v_lshl_add_u32 v{vTX}, v253, 2, s{sOf[0]}')
        e('  s_mov_b64 exec, 0xf0')
        e(f'  v_lshl_add_u32 v{vTX}, v253, 2, s{sOf[1]}')
        e('  s_mov_b64 exec, 0xf00')
        e(f'  v_lshl_add_u32 v{vTX}, v253, 2, s{sOf[2]}')
        e('  s_mov_b64 exec, -1')
        SP = ACC + 40 if DEC else (254 if DS <= 10 else FT)
        assert DS != 11
        e(f'  v_mov_b32 v{SP}, 1')
        e(f'  v_mov_b32 v{SP+1}, 0')
        e('  s_mov_b64 exec, 0xfff')
        e(f'  buffer_atomic_cmpswap v[{SP}:{SP+1}], v{vTX}, s[{sDS}:{sDS+3}], 0 offen sc0 sc1')
        e('  s_waitcnt vmcnt(0)')
        e(f'  v_max_u32 v{SP}, 1, v{SP}')
        e('  s_nop 0')
        for i in range(12): e(f'  v_readlane_b32 s{sEn[i // 4] + i % 4}, v{SP}, {i}')
        e('  s_nop 3')
        e('  s_mov_b64 exec, -1')
        if DBG: e('  s_mov_b32 s3, 1')
        e('  s_branch L_back')
    e('L_done:')
    e('  s_endpgm')
    e('.section .rodata,"a"')
    e('.p2align 6')
    e('.amdhsa_kernel standalone__depthwise_separable__vision_kernel')
    e('  .amdhsa_next_free_vgpr 512')
    e('  .amdhsa_next_free_sgpr 100')
    e('  .amdhsa_accum_offset 256')
    e('  .amdhsa_group_segment_fixed_size 0')
    e('  .amdhsa_kernarg_size 48')
    e('  .amdhsa_user_sgpr_count 2')
    e('  .amdhsa_user_sgpr_kernarg_segment_ptr 1')
    e('  .amdhsa_system_sgpr_workgroup_id_x 1')
    e('  .amdhsa_float_denorm_mode_32 3')
    e('.end_amdhsa_kernel')

if __name__ == '__main__':
    out = sys.argv[1]
    opts = dict(a.split('=', 1) for a in sys.argv[2:])
    for k in ('nt_ld', 'nt_st', 'nt_b'):
        if k in opts: opts[k] = (' ' + opts[k].replace('+', ' ')) if opts[k] != 'none' else ''
    open(out, 'w').write(gen(opts))
```

```python
import sys, re
from gen3 import G, HDR
from gen5 import regs_of

def hazard_check(L):
    ins = [l.strip() for l in L if l.startswith('  ') and not l.strip().startswith(';')]
    hist = []; st = 0; last_valu = []; last_st = []; last_m0 = -9; last_sg = []; lastscc = ''
    for l in ins:
        op = l.split()[0]
        toks = [t.strip(',') for t in l.split()[1:]]
        allr = set()
        for t in toks: allr |= regs_of(t)
        if op.startswith('v_mfma'):
            d = regs_of(toks[0]); a = regs_of(toks[1]); b = regs_of(toks[2]); c = regs_of(toks[3])
            for (s0, r) in last_valu:
                if st - s0 - 1 < 2 and (r & (a | b | c)): raise Exception(f'VALU->MFMA hazard: {l}')
            for (s0, dd, cc) in hist:
                if st - s0 - 1 < 8 and (dd & (a | b)): raise Exception(f'MFMA D->A/B hazard: {l}')
                if st - s0 - 1 < 6 and (dd & c) and dd != c: raise Exception(f'MFMA D->C overlap hazard: {l}')
                if st - s0 - 1 < 6 and (dd & d) and dd != c: raise Exception(f'MFMA D->D WAW: {l}')
            for (s0, r) in last_st:
                if st - s0 - 1 < 8 and (r & d): raise Exception(f'store data WAR (mfma): {l}')
            hist.append((st, d, c))
        elif op.startswith('v_') or op.startswith('ds_') or op.startswith('buffer_'):
            for (s0, dd, cc) in hist:
                if st - s0 - 1 < 8 and (dd & allr): raise Exception(f'MFMA D->use hazard dist {st-s0-1}: {l}')
            if op.startswith('v_'):
                w = regs_of(toks[0])
                for (s0, dd, cc) in hist:
                    if st - s0 - 1 < 3 and (cc & w): raise Exception(f'MFMA C WAR hazard: {l}')
                for (s0, r) in last_st:
                    if st - s0 - 1 < 2 and (r & w): raise Exception(f'store data WAR: {l}')
                if op in ('v_readfirstlane_b32', 'v_readlane_b32'):
                    for (s0, r) in last_valu:
                        if st - s0 - 1 < 1 and (r & regs_of(toks[1])): raise Exception(f'readlane hazard: {l}')
                    last_sg.append((st, toks[0]))
                else:
                    for (s0, sg) in last_sg:
                        if st - s0 - 1 < 2 and sg in toks[1:]: raise Exception(f'VALU sgpr->VALU hazard: {l}')
                last_valu.append((st, w)); last_valu = last_valu[-4:]
            if op.startswith('buffer_store') or op.startswith('ds_write'):
                last_st.append((st, regs_of(toks[0] if op.startswith('buffer') else toks[1]))); last_st = last_st[-4:]
            if op.startswith('buffer_') and l.endswith('lds') and st - last_m0 - 1 < 1: raise Exception(f'm0 hazard: {l}')
            if op.startswith('buffer_'):
                for (s0, sg) in last_sg:
                    if st - s0 - 1 < 5 and sg in toks: raise Exception(f'VALU sgpr->VMEM hazard: {l}')
        elif op.startswith('s_') and toks and toks[0] == 'm0': last_m0 = st
        if op.startswith('s_cselect') or op.startswith('s_cbranch_scc'):
            if not (lastscc.startswith('s_cmp') or lastscc.startswith('s_bitcmp')): raise Exception(f'SCC clobbered by {lastscc}: {l}')
        elif re.match(r's_(add|sub|and|or|xor|min|max|lshl|lshr|cmp|bitcmp|andn2|ashr|bfe|not)', op): lastscc = op
        hist = [h for h in hist if st - h[0] < 24]
        st += int(toks[0]) + 1 if op == 's_nop' else 1

class G2(G):
    def __init__(self):
        self.need = {}
        super().__init__()
    def reset(self, mode):
        super().reset(mode); self.lgd = 0; self.vmd = 0
    def _cnt(self, lst, tag):
        if tag[:2] == ('O', 0) and tag not in lst: return len(lst)
        return super()._cnt(lst, tag)
    def wait(self, key, vm=None, lg=None, opt=False):
        if self.mode == 'collect2':
            nd = False
            if lg is not None and len(self.lg) - self._cnt(self.lg, lg) > self.lgd: nd = True
            if vm is not None and len(self.vm) - self._cnt(self.vm, vm) > self.vmd: nd = True
            self.need[key] = self.need.get(key, False) or nd or not opt
            v, l = self.sites[key]
            if not opt:
                if lg is not None: self.lgd = max(self.lgd, len(self.lg) - l)
                if vm is not None: self.vmd = max(self.vmd, len(self.vm) - v)
            return
        if self.mode in ('emit', 'check') and not self.need[key]: return
        super().wait(key, vm, lg)

def gen(opts):
    g = G2()
    g.reset('collect')
    build(g, opts, unroll=True)
    g.reset('collect2')
    build(g, opts, unroll=True)
    g.reset('check')
    build(g, opts, unroll=True)
    hazard_check(g.L)
    g.reset('emit')
    build(g, opts, unroll=False)
    L = g.L
    abl = opts.get('abl', '')
    if abl:
        i0 = L.index('L_loop:'); i1 = L.index('L_tail:')
        def keep(l):
            s = l.strip()
            if 'O' in abl and (s.startswith('ds_write_b128') or re.match(r'ds_read_b128 a\[(14[4-9]|1[5-6]\d)', s)): return False
            if 'T' in abl and s.startswith('buffer_store'): return False
            if 'L' in abl and s.startswith('buffer_load'): return False
            if 'B' in abl and s.startswith('s_barrier'): return False
            if 'C' in abl and s.startswith('v_cvt'): return False
            if 'H' in abl and s.startswith('v_mfma') and int(re.search(r'v\[(\d+):', s).group(1)) % 8 == 4: return False
            return True
        L = L[:i0] + [l for l in L[i0:i1] if keep(l)] + L[i1:]
    return '\n'.join(L) + '\n'

def build(g, opts, unroll):
    NT_LD = opts.get('nt_ld', ''); NT_ST = opts.get('nt_st', ' sc1'); NT_B = opts.get('nt_b', '')
    DBG = int(opts.get('dbg', 0))
    PD = int(opts.get('pd', 2))
    e = g.e
    TILE_B = 32 * 768; NTILE = 18; STRIDE = 256 * TILE_B
    LDS_O = 4 * TILE_B; LDS_DW = 6 * TILE_B; LDS_TOTAL = LDS_DW + 4096
    AREA = [2 * TILE_B, 3 * TILE_B, 4 * TILE_B, 5 * TILE_B]
    OOB = 113246208
    vLdsR = [1, 2, 3, 4]; vOR = [5, 6, 7]; vXS = [8, 9, 10, 11, 12, 13]; vXS4b = 14; vTX = 15
    ACC = 16
    PT = 64
    vBL = [PT, PT+1, PT+2]; vTr = PT+3; vDW = PT+4; vM = [PT+5, PT+6]; vTr2 = PT+7
    DWR = [PT+8, PT+12]
    vST = [PT+16+i for i in range(6)]; vOW = [PT+22, PT+23]; vST4b = PT; vTS = PT+1
    T = [ACC+i for i in range(12)]; vLane = ACC + 12
    BV = 88
    NA = 5
    ASLOTS = [int(c, 16) for c in opts.get('aslots', '13579')]
    assert len(ASLOTS) == NA
    VSLOTS = [s for s in range(12) if s not in ASLOTS]
    XF = 120
    OB = 144
    RAW = [168, 192]
    sX, sO, sP, sD = 4, 8, 12, 16
    sW, sCnt = 20, 21
    sRing, sOOB = 39, 40
    sE = [32, 33, 34, 35, 36]
    sNx = 37; sTab = 38
    sXo = [22, 23, 41]; sXm = 56
    sSo = [58, 59, 62, 63]; sSm = 90
    sWs = 92
    sG = [42, 43, 44]; sQ = [45, 46, 47, 48]; sBW = 49; sT = [50, 51, 52, 53]; sR1, sR2 = 54, 55

    def breg(s, nt, n=4, o=0):
        if s in ASLOTS:
            i = ASLOTS.index(s) * 24 + nt * 4 + o
            return f'a[{i}:{i+n-1}]' if n > 1 else f'a{i}'
        i = BV + VSLOTS.index(s) * 24 + nt * 4 + o
        return f'v[{i}:{i+n-1}]' if n > 1 else f'v{i}'
    sn = [0]
    def stamp():
        if DBG:
            e(f'  s_memrealtime s[{64+2*sn[0]}:{65+2*sn[0]}]'); sn[0] += 1
    def run(items):
        for it in items:
            if callable(it): it()
            else: e(it)

    e(HDR.rstrip('\n'))
    e(f'; @launch grid=(256,1,1) block=(256,1,1) lds={LDS_TOTAL}')
    e('.amdgcn_target "amdgcn-amd-amdhsa--gfx950"')
    e('.text')
    e('.globl standalone__depthwise_separable__vision_kernel')
    e('.p2align 8')
    e('.type standalone__depthwise_separable__vision_kernel,@function')
    e('standalone__depthwise_separable__vision_kernel:')
    e('  s_load_dwordx8 s[24:31], s[0:1], 0')
    e(f'  s_load_dwordx2 s[{sWs}:{sWs+1}], s[0:1], 40')
    e('  s_cmp_ge_u32 s2, 256')
    e('  s_cbranch_scc1 L_done')
    stamp()
    if DBG: e('  s_memtime s[96:97]')
    e(f'  v_lshrrev_b32 v{T[0]}, 6, v0')
    e(f'  v_and_b32 v{vLane}, 63, v0')
    e(f'  v_readfirstlane_b32 s{sW}, v{T[0]}')
    CW = int(opts.get('cw', 0))
    if CW:
        e(f'  s_getpc_b64 s[{sT[0]}:{sT[1]}]')
        e('L_pc:')
        e(f'  v_mul_u32_u24 v{T[2]}, {CW}, v0')
        e(f'  v_min_u32 v{T[2]}, L_done-L_pc, v{T[2]}')
        e(f'  v_mov_b32 v{T[3]}, s{sT[1]}')
        e(f'  v_add_co_u32 v{T[2]}, vcc, s{sT[0]}, v{T[2]}')
        e(f'  s_nop 1')
        e(f'  v_addc_co_u32 v{T[3]}, vcc, 0, v{T[3]}, vcc')
        g.vmop(f'  global_load_dword v{BV}, v[{T[2]}:{T[3]}], off', ('CW',))
    e(f'  s_lshr_b32 s{sT[0]}, s2, 3')
    e(f'  s_and_b32 s{sR2}, s{sT[0]}, 3')
    e(f'  s_lshr_b32 s{sR1}, s{sT[0]}, 2')
    e(f'  s_mul_i32 s{sT[1]}, s{sR1}, 11')
    e(f'  s_lshr_b32 s{sT[1]}, s{sT[1]}, 5')
    e(f'  s_mul_i32 s{sT[1]}, s{sT[1]}, 3')
    e(f'  s_sub_u32 s{sR1}, s{sR1}, s{sT[1]}')
    if opts.get('norot'):
        e(f'  s_mov_b32 s{sR1}, 0'); e(f'  s_mov_b32 s{sR2}, 0')
    e(f'  s_mul_i32 s{sT[2]}, s{sW}, 192')
    for i in range(3):
        if i: e(f'  v_add_u32 v{T[1]}, {64*i}, v{vLane}')
        q = T[1] if i else vLane
        e(f'  v_mul_u32_u24 v{T[2]}, 0xaaab, v{q}')
        e(f'  v_lshrrev_b32 v{T[2]}, 19, v{T[2]}')
        e(f'  v_mul_u32_u24 v{T[3]}, 576, v{T[2]}')
        e(f'  v_lshl_add_u32 v{T[3]}, v{vLane}, 4, v{T[3]}')
        e(f'  v_add_u32 v{vBL[i]}, s{sT[2]}, v{T[3]}')
    e(f'  s_mul_i32 s{sG[0]}, s{sR1}, 98304')
    e(f'  s_add_u32 s{sG[1]}, s{sG[0]}, 98304')
    e(f'  s_cmp_eq_u32 s{sR1}, 2')
    e(f'  s_cselect_b32 s{sG[1]}, 0, s{sG[1]}')
    e(f'  s_add_u32 s{sG[2]}, s{sG[1]}, 98304')
    e(f'  s_cmp_eq_u32 s{sR1}, 1')
    e(f'  s_cselect_b32 s{sG[2]}, 0, s{sG[2]}')
    for q in range(4):
        e(f'  s_xor_b32 s{sQ[q]}, s{sR2}, {q}')
        e(f'  s_mul_i32 s{sQ[q]}, s{sQ[q]}, {TILE_B}')
    e(f'  s_mul_i32 s{sBW}, s{sW}, 6144')
    e(f'  s_lshl_b32 s{sT[3]}, s{sR2}, 2')
    e(f'  v_lshrrev_b32 v{T[1]}, 4, v{vLane}')
    e(f'  v_add_u32 v{T[2]}, s{sR1}, v{T[1]}')
    e(f'  v_subrev_u32 v{T[3]}, 3, v{T[2]}')
    e(f'  v_min_u32 v{T[2]}, v{T[2]}, v{T[3]}')
    e(f'  v_and_b32 v{T[4]}, 15, v{vLane}')
    e(f'  v_xor_b32 v{T[3]}, s{sT[3]}, v{T[4]}')
    e(f'  v_lshlrev_b32 v{T[3]}, 4, v{T[3]}')
    e(f'  v_lshl_add_u32 v{T[3]}, v{T[2]}, 8, v{T[3]}')
    e(f'  v_cmp_lt_u32 vcc, 47, v{vLane}')
    e(f'  s_lshl_b32 s{sT[0]}, s{sW}, 10')
    e(f'  s_add_u32 m0, s{sT[0]}, {LDS_DW}')
    e(f'  v_cndmask_b32 v{T[3]}, v{T[3]}, v{vBL[2]}, vcc')
    e('  s_waitcnt lgkmcnt(0)')
    def srd(sd, lo, nbytes):
        e(f'  s_mov_b32 s{sd}, s{lo}')
        e(f'  s_and_b32 s{sd+1}, s{lo+1}, 0xffff')
        e(f'  s_mov_b32 s{sd+2}, {nbytes}')
        e(f'  s_mov_b32 s{sd+3}, 0x00020000')
    srd(sD, 26, 768); srd(sP, 28, 294912)
    g.vmop(f'  buffer_load_dwordx4 v{T[3]}, s[{sD}:{sD+3}], 0 offen lds', ('W',))
    def bload(s):
        it = []
        for h in range(2):
            it.append(f'  s_add_u32 m0, s{sBW}, {AREA[s % 4] + h*3072}')
            it.append(f'  s_add_u32 s{sT[0]}, s{sG[s >> 2]}, s{sQ[s & 3]}' if h == 0 else f'  s_add_u32 s{sT[0]}, s{sT[0]}, 12288')
            for i in range(3):
                it.append(lambda h=h, i=i: g.vmop(f'  buffer_load_dwordx4 v{vBL[i]}, s[{sP}:{sP+3}], s{sT[0]} offen offset:{i*1024}{NT_B} lds', ('B', s, 3*h + i)))
        return it
    NB0 = int(opts.get('nb0', 2))
    for s in range(NB0): run(bload(s))
    srd(sX, 24, 113246208); srd(sO, 30, 113246208)
    hi2, lo4 = T[1], T[4]
    e(f'  s_lshl_b32 s{sTab}, s2, 7')
    e(f'  s_add_u32 s{sTab}, s{sTab}, 0x100000')
    e(f'  s_load_dword s{sNx}, s[{sWs}:{sWs+1}], s{sTab}')
    e(f'  s_add_u32 s{sT[1]}, s{sTab}, 64')
    e(f'  s_load_dword s95, s[{sWs}:{sWs+1}], s{sT[1]}')
    e(f'  s_mov_b32 s{sOOB}, {OOB}')
    e(f'  s_lshl_b32 s{sRing}, s{sW}, 10')
    GATH = int(opts.get('gath', 1))
    for u in range(6):
        e(f'  v_lshrrev_b32 v{T[0]}, 4, v0')
        if u: e(f'  v_add_u32 v{T[0]}, {16*u}, v{T[0]}')
        e(f'  v_mul_u32_u24 v{T[2]}, 43, v{T[0]}')
        e(f'  v_lshrrev_b32 v{T[2]}, 7, v{T[2]}')
        e(f'  v_mul_u32_u24 v{T[3]}, 3, v{T[2]}')
        e(f'  v_sub_u32 v{T[3]}, v{T[0]}, v{T[3]}')
        if u < 3:
            e(f'  v_and_b32 v{T[5]}, 7, v{T[2]}')
            e(f'  v_xor_b32 v{T[5]}, v{T[5]}, v{lo4}')
            e(f'  v_lshlrev_b32 v{T[5]}, 4, v{T[5]}')
            e(f'  v_lshl_add_u32 v{T[5]}, v{T[0]}, 8, v{T[5]}')
            e(f'  v_add_u32 v{vOR[u]}, {LDS_O}, v{T[5]}')
        e(f'  v_mul_u32_u24 v{T[7]}, 0x300, v{T[2]}')
        if GATH:
            if u == 2:
                e(f'  v_cmp_lt_u32 vcc, 10, v{T[2]}')
                e(f'  v_add_u32 v{T[8]}, 7680, v{T[7]}')
                e(f'  s_nop 0')
                e(f'  v_cndmask_b32 v{T[7]}, v{T[7]}, v{T[8]}, vcc')
            if u == 3: e(f'  v_add_u32 v{T[7]}, 7680, v{T[7]}')
            if u == 4:
                e(f'  v_cmp_lt_u32 vcc, 21, v{T[2]}')
                e(f'  v_subrev_u32 v{T[8]}, {11*768}, v{T[7]}')
                e(f'  v_add_u32 v{T[9]}, {42*768}, v{T[7]}')
                e(f'  v_cndmask_b32 v{T[8]}, v{T[9]}, v{T[8]}, vcc')
                e(f'  v_add_u32 v{T[9]}, {21*768}, v{T[7]}')
                e(f'  v_add_u32 v{T[7]}, {10*768}, v{T[7]}')
                e(f'  v_cndmask_b32 v{T[7]}, v{T[7]}, v{T[9]}, vcc')
            if u == 5: e(f'  v_subrev_u32 v{T[7]}, {11*768}, v{T[7]}')
        elif u == 4: e(f'  v_add_u32 v{T[8]}, {TILE_B}, v{T[7]}')
        e(f'  v_lshlrev_b32 v{T[5]}, 4, v{lo4}')
        e(f'  v_lshl_add_u32 v{T[5]}, v{T[3]}, 8, v{T[5]}')
        e(f'  v_add_u32 v{vST[u]}, v{T[7]}, v{T[5]}')
        e(f'  v_add_u32 v{T[3]}, s{sR1}, v{T[3]}')
        e(f'  v_subrev_u32 v{T[5]}, 3, v{T[3]}')
        e(f'  v_min_u32 v{T[3]}, v{T[3]}, v{T[5]}')
        e(f'  v_xor_b32 v{T[5]}, v{T[2]}, v{lo4}')
        e(f'  v_xor_b32 v{T[5]}, s{sT[3]}, v{T[5]}')
        e(f'  v_and_b32 v{T[5]}, 15, v{T[5]}')
        e(f'  v_lshlrev_b32 v{T[5]}, 4, v{T[5]}')
        e(f'  v_lshl_add_u32 v{T[5]}, v{T[3]}, 8, v{T[5]}')
        e(f'  v_add_u32 v{vXS[u]}, v{T[7]}, v{T[5]}')
        if u == 4: e(f'  v_add_u32 v{vXS4b}, v{T[8]}, v{T[5]}')
    G3 = GATH == 3
    if GATH >= 2:
        GATH = 0
        for u in range(6):
            e(f'  v_lshlrev_b32 v{vXS[u]}, 4, v0')
            e(f'  v_add_u32 v{vXS[u]}, {u*32768 if G3 else (u & 1)*4096 + (u >> 1)*32768}, v{vXS[u]}')
            e(f'  v_mov_b32 v{vST[u]}, v{vXS[u]}')
        if opts.get('scat'):
            e(f'  v_lshrrev_b32 v{T[2]}, 3, v{vLane}')
            e(f'  v_lshlrev_b32 v{T[2]}, 10, v{T[2]}')
            e(f'  v_and_b32 v{T[3]}, 7, v{vLane}')
            e(f'  v_lshl_add_u32 v{T[2]}, v{T[3]}, 4, v{T[2]}')
            e(f'  s_lshl_b32 s{sT[1]}, s{sW}, {7 if opts["scat"] == "1" else 8}')
            e(f'  v_add_u32 v{T[2]}, s{sT[1]}, v{T[2]}')
            for u in range(6):
                e(f'  v_add_u32 v{vST[u]}, {(u & 1)*(512 if opts["scat"] == "1" else 128) + (u >> 1)*32768}, v{T[2]}')
    for s in range(NB0, 4): run(bload(s))
    e(f'  v_mul_u32_u24 v{T[0]}, 0x300, v{lo4}')
    e(f'  v_xor_b32 v{T[2]}, v{hi2}, v{lo4}')
    e(f'  v_lshl_add_u32 v{vLdsR[0]}, v{T[2]}, 4, v{T[0]}')
    for s in range(1, 4): e(f'  v_xor_b32 v{vLdsR[s]}, {s*64}, v{vLdsR[0]}')
    e(f'  s_mul_i32 s{sT[1]}, s{sW}, 12')
    e(f'  v_and_b32 v{T[2]}, 7, v{lo4}')
    for u in range(2):
        e(f'  v_add_u32 v{T[3]}, s{sT[1]}, v{hi2}')
        if u: e(f'  v_add_u32 v{T[3]}, {4*u}, v{T[3]}')
        e(f'  v_xor_b32 v{T[3]}, v{T[3]}, v{T[2]}')
        e(f'  v_lshl_add_u32 v{vOW[u]}, v{T[3]}, 4, v{T[0]}')
        e(f'  v_add_u32 v{vOW[u]}, {LDS_O}, v{vOW[u]}')
    e(f'  v_bfe_u32 v{T[2]}, v{vLane}, 2, 2')
    e(f'  v_and_b32 v{T[3]}, 3, v{vLane}')
    e(f'  v_lshl_add_u32 v{T[5]}, v{hi2}, 3, v{T[2]}')
    e(f'  v_mul_u32_u24 v{T[5]}, 192, v{T[5]}')
    e(f'  v_lshl_add_u32 v{T[5]}, v{T[3]}, 4, v{T[5]}')
    e(f'  s_add_u32 s{sT[1]}, s{sBW}, {AREA[0]}')
    e(f'  v_add_u32 v{vTr}, s{sT[1]}, v{T[5]}')
    e(f'  v_add_u32 v{vTr2}, {2*TILE_B}, v{vTr}')
    e(f'  s_add_u32 s{sT[1]}, s{sRing}, {LDS_DW}')
    e(f'  v_lshl_add_u32 v{vDW}, v{hi2}, 4, s{sT[1]}')
    e(f'  v_and_b32 v{T[5]}, 1, v{vLane}')
    e(f'  v_lshlrev_b32 v{T[5]}, 4, v{T[5]}')
    e(f'  v_mov_b32 v{T[7]}, 0xffff')
    e(f'  v_lshlrev_b32 v{T[5]}, v{T[5]}, v{T[7]}')
    e(f'  v_lshlrev_b32 v{T[0]}, 1, v{hi2}')
    e(f'  v_bfe_u32 v{T[7]}, v{vLane}, 1, 3')
    e(f'  v_cmp_eq_u32 vcc, v{T[0]}, v{T[7]}')
    e(f'  v_add_u32 v{T[0]}, 1, v{T[0]}')
    e(f'  s_nop 0')
    e(f'  v_cndmask_b32 v{vM[0]}, 0, v{T[5]}, vcc')
    e(f'  v_cmp_eq_u32 vcc, v{T[0]}, v{T[7]}')
    for r in sE + sSo: e(f'  s_mov_b32 s{r}, s{sOOB}')
    e(f'  v_cndmask_b32 v{vM[1]}, 0, v{T[5]}, vcc')
    e(f'  s_mov_b64 s[{sSm}:{sSm+1}], 0')
    e('  s_waitcnt lgkmcnt(0)')
    def derive(ent, o03, o4, o5, msk):
        return [f'  s_and_b32 s{o4}, s{ent}, -2', f'  s_add_u32 s{o5}, s{o4}, {TILE_B}', f'  s_min_u32 s{o5}, s{o5}, s{sOOB}',
                f'  s_bitcmp1_b32 s{ent}, 0', f'  s_cselect_b32 s{o03}, s{o5}, s{o4}'] + \
               ([f'  s_cselect_b32 s{o5}, s{o4}, s{o5}' if GATH else f'  s_mov_b32 s{o5}, s{o03}', f'  s_cselect_b64 s[{msk}:{msk+1}], -1, 0'] if msk else [])

    def xdma(t, u):
        it = []
        if u == 0:
            it += [f'  s_mov_b32 s{sE[k]}, s{sE[k-1]}' for k in range(len(sE) - 1, 0, -1)]
            it += [f'  s_mov_b32 s{sE[0]}, s{sNx}', f'  s_add_u32 s{sTab}, s{sTab}, 4', f'  s_load_dword s{sNx}, s[{sWs}:{sWs+1}], s{sTab}']
            it += derive(sE[0], sXo[0], sXo[1], sXo[2], sXm)
        if u == 4: it.append(f'  v_cndmask_b32 v{vTX}, v{vXS[4]}, v{vXS4b}, s[{sXm}:{sXm+1}]')
        it.append(f'  s_add_u32 m0, s{sRing}, {(t & 1)*TILE_B + u*4096}')
        if u == 5 and (t & 1): it.append(f'  s_xor_b32 s{sRing}, s{sRing}, {2*TILE_B}')
        else: it.append('NOP')
        it.append(lambda: g.vmop(f'  buffer_load_dwordx4 v{vTX if u == 4 else vXS[u]}, s[{sX}:{sX+3}], s{sXo[max(0, u - 3)]} offen{NT_LD} lds', ('L', t, u)))
        return it
    def xdma_burst(t, w=True):
        for u in range(6):
            if u == 0 and w: e('  s_waitcnt lgkmcnt(0)')
            run(['  s_nop 0' if x == 'NOP' else x for x in xdma(t, u)])

    def trs(s):
        it = [lambda: g.wait(('b', s), vm=('B', s, 5))]
        base = vTr if (s % 4) < 2 else vTr2
        so = (s % 2) * TILE_B
        it.append(lambda: g.lgop(f'  ds_read_b128 v[{DWR[s & 1]}:{DWR[s & 1]+3}], v{vDW} offset:{s*64}', ('TR', s)))
        for nt in range(6):
            for hh in range(2):
                r = RAW[s & 1] + nt*4 + 2*hh
                it.append(lambda r=r, nt=nt, hh=hh: g.lgop(f'  ds_read_b64_tr_b16 a[{r}:{r+1}], v{base} offset:{so + hh*768 + (nt >> 1)*64 + (nt & 1)*8}', ('TR', s)))
        return it
    def cvts(s, j):
        nt, hh = j // 2, j % 2
        q = ACC + 4*j
        if s in ASLOTS:
            return [f'  v_cvt_pk_bf16_f32 v{q}, v{q}, v{q+1}', f'  v_cvt_pk_bf16_f32 v{q+1}, v{q+2}, v{q+3}',
                    f'  v_accvgpr_write_b32 {breg(s, nt, 1, 2*hh)}, v{q}', f'  v_accvgpr_write_b32 {breg(s, nt, 1, 2*hh+1)}, v{q+1}']
        return [f'  v_cvt_pk_bf16_f32 {breg(s, nt, 1, 2*hh)}, v{q}, v{q+1}', f'  v_cvt_pk_bf16_f32 {breg(s, nt, 1, 2*hh+1)}, v{q+2}, v{q+3}']
    run(trs(0))
    stamp()
    pend = []
    LAG = 8
    XA = int(opts.get('xa', 8)); XB = int(opts.get('xb', 9))
    for s in range(12):
        if s + 1 < 12: run(trs(s + 1))
        g.wait(('tr', s), lg=('TR', s))
        d = DWR[s & 1]
        for i in range(4): e(f'  v_and_b32 v{d+i}, v{vM[i & 1]}, v{d+i}')
        if s == XA: xdma_burst(0)
        if s == XB: xdma_burst(1)
        if s + 4 < 12: run(bload(s + 4))
        elif s not in (XA, XB): e('  s_nop 1')
        for j in range(12):
            nt, hh = j // 2, j % 2
            r = RAW[s & 1] + nt*4 + 2*hh
            q = ACC + 4*j
            e(f'  v_mfma_f32_16x16x16_bf16 v[{q}:{q+3}], v[{d+2*hh}:{d+2*hh+1}], a[{r}:{r+1}], 0')
            pend.append(cvts(s, j))
            if len(pend) > LAG: run(pend.pop(0))
        if s in (3, 7): stamp()
    def rd(t, i):
        mt, ks = i // 12, i % 12
        x = XF + 8*((i // 2) % 3) + 4*(i & 1)
        g.lgop(f'  ds_read_b128 a[{x}:{x+3}], v{vLdsR[ks & 3]} offset:{(t & 1)*TILE_B + mt*12288 + (ks >> 2)*256}', ('X', t, i))
    for _ in range(4): run(pend.pop(0))
    stamp()
    if XB == 12: xdma_burst(1)
    g.wait('x0', vm=('L', 0, 5))
    e('  s_barrier')
    for i in range(4): rd(0, i)
    if XB == 13: xdma_burst(1, False)
    while pend: run(pend.pop(0))
    e(f'  v_sub_u32 v{vST4b}, v{vXS4b}, v{vXS[4]}')
    e(f'  v_add_u32 v{vST4b}, v{vST4b}, v{vST[4]}')
    if PD == 3: xdma_burst(2)
    stamp()

    def epi(mt, u, po):
        a = ACC + 24*mt + 8*u
        cv = [f'  v_cvt_pk_bf16_f32 v{a+i}, v{a+2*i}, v{a+2*i+1}' for i in range(4)]
        off = po*TILE_B + mt*12288 + (u >> 1)*128
        if opts.get('w64'):
            return cv[:2] + [lambda: g.lgop(f'  ds_write_b64 v{vOW[u & 1]}, v[{a}:{a+1}] offset:{off}', ('OWa', mt, u))] + cv[2:] + \
                   [lambda: g.lgop(f'  ds_write_b64 v{vOW[u & 1]}, v[{a+2}:{a+3}] offset:{off+8}', ('OW', mt, u))]
        return cv + [lambda: g.lgop(f'  ds_write_b128 v{vOW[u & 1]}, v[{a}:{a+3}] offset:{off}', ('OW', mt, u))]
    def out_read(t, u):
        o = OB + 4*u
        g.lgop(f'  ds_read_b128 a[{o}:{o+3}], v{vOR[u % 3]} offset:{((t^1)&1)*TILE_B + (u // 3)*12288}', ('O', t, u))
    def out_store(t, u, key):
        o = OB + 4*u
        g.wait((key, 'o', u), lg=('O', t, u), opt=True)
        g.vmop(f'  buffer_store_dwordx4 a[{o}:{o+3}], v{vTS if u == 4 else vST[u]}, s[{sO}:{sO+3}], s{sSo[max(0, u - 2)]} offen{NT_ST}', None)
    def st_adv(d=0):
        return derive(sE[PD - d], sSo[0], sSo[2], sSo[3], None) + derive(sE[PD + 1 - d], sSo[1], sSo[2], sSo[3], sSm) + \
               ['NOP', f'  v_cndmask_b32 v{vTS}, v{vST[4]}, v{vST4b}, s[{sSm}:{sSm+1}]']
    def ints(k, d): return [int(v) for v in opts.get(k, d).split(',')]
    OR_AT = ints('or', '2,3,26,50,74,98'); OS_AT = ints('os', '40,52,66,88,112,130')
    UORD = ints('uord', '3,4,5,0,1,2')
    XD_AT = ints('xd', '46,58,70,82,94,118')
    E1_AT = ints('e1', '27,39,61'); E0_AT = ints('e0', '99,106,123')
    SH_AT = int(opts.get('sh', 26)); CAP = int(opts.get('cap', 1)); HG = int(opts.get('hg', 0))
    def fillers(t):
        F = [[] for _ in range(144)]
        use = [0] * 150
        for r in range(144):
            if r % 12 in (0, 1, 11): use[r] = 1
        def heavy(rho, it):
            while use[rho]: rho += 1
            F[rho].append(it); use[rho] = 9
            for k in range(1, HG + 1): use[rho + k] = max(use[rho + k], 8)
            return rho
        def light(rho, items, cap=CAP, back=False):
            if back:
                for it in reversed(items):
                    while use[rho] >= cap: rho -= 1
                    F[rho].insert(0, it); use[rho] += 1
                return rho
            for it in items:
                while use[rho] >= cap: rho += 1
                F[rho].append(it); use[rho] += 1
            return rho
        kp = t & 1
        post = []
        vpos = []
        for k in range(6):
            u = UORD[k]
            lastst = heavy(OS_AT[k], lambda u=u: out_store(t, u, kp))
            vpos.append(lastst)
        xpos = []
        for u in range(6):
            it = [x for x in xdma(t + PD, u) if x != 'NOP']
            xpos.append((heavy(XD_AT[u], it[-1]), it[:-1]))
        for mt, AT in ((1, E1_AT), (0, E0_AT)):
            for u in range(3):
                r = AT[u]
                for it in epi(mt, u, t & 1):
                    r = (heavy(r, it) if callable(it) else light(r, [it], 1)) + 1
        for k in range(6):
            light(OR_AT[k], [lambda u=UORD[k]: out_read(t, u)], 1)
        for (r, it) in xpos:
            r0 = light(r - 1, it, 2 if len(it) > 6 else CAP, back=True)
            assert r0 >= 24
        if opts.get('lim'):
            for r in vpos + [x[0] for x in xpos]:
                light(r - 1, [f'  s_waitcnt vmcnt({opts["lim"]})'], 2, back=True)
        for a, b in zip(xpos, xpos[1:]): assert b[0] - a[0] >= 5
        r1 = light(lastst + 1, [x for x in st_adv() if x != 'NOP'], 2)
        assert r1 < 144
        return F
    def tile(t):
        kp = t & 1
        F0 = fillers(t); F1 = fillers(t + 1)
        for G_ in range(12):
            mt, kg = G_ // 6, G_ % 6
            if G_ == 10:
                g.wait((kp, 'bar'), vm=('L', t + 1, 5), lg=('X', t, 23))
                e('  s_barrier')
                if t & 1:
                    for r in vLdsR: e(f'  v_xor_b32 v{r}, {2*TILE_B}, v{r}')
            g.wait((kp, 'x', G_), lg=('X', t, 2*G_ + 1))
            for nt in range(6):
                for k in range(2):
                    ks = 2*kg + k; i = 12*mt + ks
                    x = XF + 8*(G_ % 3) + 4*k
                    a = ACC + 24*mt + 4*nt
                    c = '0' if ks == 0 else f'v[{a}:{a+3}]'
                    e(f'  v_mfma_f32_16x16x32_bf16 v[{a}:{a+3}], {breg(ks, nt)}, a[{x}:{x+3}], {c}')
                    gap = 12*G_ + 2*nt + k
                    if gap % 12 in (0, 1):
                        j = 2*G_ + 4 + (gap % 12)
                        if j < 24: rd(t, j)
                        else: rd(t + 1, j - 24)
                    run(F0[gap + 24] if gap < 120 else F1[gap - 120])
    if DBG:
        e(f'  s_mov_b32 s94, {sn[0]}')
        e('  s_mov_b32 s60, s64')
        e('  s_memtime s[86:87]')
    def tail(t):
        done = [UORD[k] for k in range(6) if OS_AT[k] < 24]
        rdone = [UORD[k] for k in range(6) if OR_AT[k] < 24]
        for u in UORD:
            if u not in rdone: out_read(t, u)
        e('  s_nop 3')
        for u in range(3): run(epi(1, u, t & 1))
        for u in UORD:
            if u not in done: out_store(t, u, 'T')
        run([x if x != 'NOP' else '  s_nop 0' for x in st_adv(1)])
        e('  s_waitcnt lgkmcnt(0)')
        e('  s_barrier')
        for u in range(3):
            e(f'  ds_read_b128 a[{XF+4*u}:{XF+4*u+3}], v{vOR[u]} offset:{(t & 1)*TILE_B + 12288}')
        for u in range(3):
            e(f'  s_waitcnt lgkmcnt({2-u})')
            e(f'  buffer_store_dwordx4 a[{XF+4*u}:{XF+4*u+3}], v{vTS if u == 1 else vST[u+3]}, s[{sO}:{sO+3}], s{sSo[u+1]} offen{NT_ST}')
    if unroll:
        for t in range(NTILE): tile(t)
        tail(NTILE)
    else:
        if opts.get('al'): e(f'  .p2align {opts["al"]}')
        e('L_loop:')
        tile(0)
        e(f'  s_cmp_ge_u32 s{sE[PD-1]}, s{sOOB}')
        e(f'  s_cbranch_scc1 L_tail1')
        tile(1)
        if DBG:
            e('  s_mov_b32 m0, s94'); e('  s_nop 0'); e('  v_writelane_b32 v0, s60, m0')
            e('  s_add_u32 s94, s94, 1')
            e('  s_min_u32 s94, s94, 15')
            e('  s_memrealtime s[60:61]')
        e(f'  s_cmp_lt_u32 s{sE[PD-1]}, s{sOOB}')
        e(f'  s_cbranch_scc1 L_loop')
        e('L_tail:')
        if DBG: e('  s_memtime s[88:89]')
        tail(0)
        e('  s_branch L_end' if DBG else '  s_endpgm')
        e('L_tail1:')
        if DBG: e('  s_memtime s[88:89]')
        tail(1)
        e('L_end:')
        if DBG: e('  s_mov_b32 s94, 15')
    if DBG:
        e('  s_mov_b32 m0, s94'); e('  s_nop 0'); e('  v_writelane_b32 v0, s60, m0')
        e('  s_add_u32 s94, s94, 1')
        e('  s_load_dwordx2 s[24:25], s[0:1], 40')
        e('  s_waitcnt vmcnt(0)')
        e('  s_memrealtime s[54:55]')
        e('  s_memtime s[98:99]')
        e('  s_waitcnt lgkmcnt(0)')
        e('  s_mov_b32 m0, s94'); e('  s_nop 0'); e('  v_writelane_b32 v0, s54, m0')
        e('  s_sub_u32 s98, s98, s96')
        e('  s_add_u32 s98, s98, s64')
        e('  v_writelane_b32 v0, s98, 31')
        e('  s_sub_u32 s88, s88, s86')
        e('  v_writelane_b32 v0, s88, 30')
        for i in range(sn[0]): e(f'  v_writelane_b32 v0, s{64+2*i}, {i}')
        e('  s_mov_b32 s56, s24'); e('  s_and_b32 s57, s25, 0xffff'); e('  s_mov_b32 s58, 452984832'); e('  s_mov_b32 s59, 0x00020000')
        e('  s_lshl_b32 s26, s2, 9'); e(f'  s_lshl_b32 s27, s{sW}, 7'); e('  s_add_u32 s26, s26, s27')
        e('  v_mbcnt_lo_u32_b32 v1, -1, 0')
        e('  v_lshlrev_b32 v1, 2, v1')
        e('  s_mov_b64 exec, 0xffffffff')
        e('  buffer_store_dword v0, v1, s[56:59], s26 offen')
    e('L_done:')
    e('  s_endpgm')
    e('.section .rodata,"a"')
    e('.p2align 6')
    e('.amdhsa_kernel standalone__depthwise_separable__vision_kernel')
    e('  .amdhsa_next_free_vgpr 512')
    e('  .amdhsa_next_free_sgpr 100')
    e('  .amdhsa_accum_offset 256')
    e('  .amdhsa_group_segment_fixed_size 0')
    e('  .amdhsa_kernarg_size 48')
    e('  .amdhsa_user_sgpr_count 2')
    e('  .amdhsa_user_sgpr_kernarg_segment_ptr 1')
    e('  .amdhsa_system_sgpr_workgroup_id_x 1')
    e('  .amdhsa_float_denorm_mode_32 3')
    e('.end_amdhsa_kernel')

if __name__ == '__main__':
    out = sys.argv[1]
    opts = dict(a.split('=', 1) for a in sys.argv[2:])
    for k in ('nt_ld', 'nt_st', 'nt_b'):
        if k in opts: opts[k] = (' ' + opts[k].replace('+', ' ')) if opts[k] != 'none' else ''
    open(out, 'w').write(gen(opts))
```

```python
import sys, re
from gen3 import G, HDR
from gen5 import regs_of

DOC = """
out[M,384] = x[M,384] @ (dw[:,None] * pw)   (1x1 depthwise scale folded into the pointwise weights, bf16 RNE, fp32 accumulate)
256 persistent workgroups x 4 waves; each wave keeps 96 output columns of the folded weights in registers.
Prologue : pw is streamed through LDS (LDS-DMA + transposing reads), scaled by dw with a diagonal MFMA and packed to bf16.
Main loop: 32-row tiles of x arrive by LDS-DMA into a 4-slot ring; 16x16x32 MFMAs; results go through LDS to full-line stores.
Placement: 4 workgroups share each 128-row period and split it into four row-gather tiles, one per 8 KB interleave class of memory.
           A few workgroups time one load per class (s_memtime) to find the class nearest to them and publish it with a
           first-wins compare-and-swap in d_debug; every workgroup uses the settled words, so each row is computed exactly once
           under any placement and the result does not depend on the timings (they only choose who computes which rows).
"""

def hazard_check(L):
    ins = [l.strip() for l in L if l.startswith('  ') and not l.strip().startswith(';')]
    hist = []; st = 0; last_valu = []; last_st = []; last_m0 = -9; last_sg = []; lastscc = ''
    for l in ins:
        op = l.split()[0]
        toks = [t.strip(',') for t in l.split()[1:]]
        allr = set()
        for t in toks: allr |= regs_of(t)
        if op.startswith('v_mfma'):
            d = regs_of(toks[0]); a = regs_of(toks[1]); b = regs_of(toks[2]); c = regs_of(toks[3])
            for (s0, r) in last_valu:
                if st - s0 - 1 < 2 and (r & (a | b | c)): raise Exception(f'VALU->MFMA hazard: {l}')
            for (s0, dd, cc) in hist:
                if st - s0 - 1 < 8 and (dd & (a | b)): raise Exception(f'MFMA D->A/B hazard: {l}')
                if st - s0 - 1 < 6 and (dd & c) and dd != c: raise Exception(f'MFMA D->C overlap hazard: {l}')
                if st - s0 - 1 < 6 and (dd & d) and dd != c: raise Exception(f'MFMA D->D WAW: {l}')
            for (s0, r) in last_st:
                if st - s0 - 1 < 8 and (r & d): raise Exception(f'store data WAR (mfma): {l}')
            hist.append((st, d, c))
        elif op.startswith('v_') or op.startswith('ds_') or op.startswith('buffer_'):
            for (s0, dd, cc) in hist:
                if st - s0 - 1 < 8 and (dd & allr): raise Exception(f'MFMA D->use hazard dist {st-s0-1}: {l}')
            if op.startswith('v_'):
                w = regs_of(toks[0])
                for (s0, dd, cc) in hist:
                    if st - s0 - 1 < 3 and (cc & w): raise Exception(f'MFMA C WAR hazard: {l}')
                for (s0, r) in last_st:
                    if st - s0 - 1 < 2 and (r & w): raise Exception(f'store data WAR: {l}')
                if op in ('v_readfirstlane_b32', 'v_readlane_b32'):
                    for (s0, r) in last_valu:
                        if st - s0 - 1 < 1 and (r & regs_of(toks[1])): raise Exception(f'readlane hazard: {l}')
                    last_sg.append((st, toks[0]))
                else:
                    for (s0, sg) in last_sg:
                        if st - s0 - 1 < 2 and sg in toks[1:]: raise Exception(f'VALU sgpr->VALU hazard: {l}')
                last_valu.append((st, w)); last_valu = last_valu[-4:]
            if op.startswith('buffer_store') or op.startswith('ds_write'):
                last_st.append((st, regs_of(toks[0] if op.startswith('buffer') else toks[1]))); last_st = last_st[-4:]
            if op.startswith('buffer_') and l.endswith('lds') and st - last_m0 - 1 < 1: raise Exception(f'm0 hazard: {l}')
            if op.startswith('buffer_'):
                for (s0, sg) in last_sg:
                    if st - s0 - 1 < 5 and sg in toks: raise Exception(f'VALU sgpr->VMEM hazard: {l}')
        elif op.startswith('s_') and toks and toks[0] == 'm0': last_m0 = st
        if op.startswith('s_cselect') or op.startswith('s_cbranch_scc'):
            if not (lastscc.startswith('s_cmp') or lastscc.startswith('s_bitcmp')): raise Exception(f'SCC clobbered by {lastscc}: {l}')
        elif re.match(r's_(add|sub|and|or|xor|min|max|lshl|lshr|cmp|bitcmp|andn2|ashr|bfe|not)', op): lastscc = op
        hist = [h for h in hist if st - h[0] < 24]
        st += int(toks[0]) + 1 if op == 's_nop' else 1

class G2(G):
    def __init__(self):
        self.need = {}
        super().__init__()
    def reset(self, mode):
        super().reset(mode); self.lgd = 0; self.vmd = 0
    def _cnt(self, lst, tag):
        if tag[:2] == ('O', 0) and tag not in lst: return len(lst)
        return super()._cnt(lst, tag)
    def wait(self, key, vm=None, lg=None, opt=False):
        if self.mode == 'collect2':
            nd = False
            if lg is not None and len(self.lg) - self._cnt(self.lg, lg) > self.lgd: nd = True
            if vm is not None and len(self.vm) - self._cnt(self.vm, vm) > self.vmd: nd = True
            self.need[key] = self.need.get(key, False) or nd or not opt
            v, l = self.sites[key]
            if not opt:
                if lg is not None: self.lgd = max(self.lgd, len(self.lg) - l)
                if vm is not None: self.vmd = max(self.vmd, len(self.vm) - v)
            return
        if self.mode in ('emit', 'check') and not self.need[key]: return
        super().wait(key, vm, lg)

def gen(opts):
    g = G2()
    g.reset('collect')
    build(g, opts, unroll=True)
    g.reset('collect2')
    build(g, opts, unroll=True)
    g.reset('check')
    build(g, opts, unroll=True)
    hazard_check(g.L)
    L2 = []; skip = None
    for l in g.L:
        if skip:
            if l == skip + ':': skip = None
            continue
        L2.append(l)
        m = re.match(r'  s_cbranch_scc1 (L_np\w*)', l)
        if m: skip = m.group(1)
    hazard_check(L2)
    g.reset('emit')
    build(g, opts, unroll=False)
    L = g.L
    if int(opts.get('iw', 0)):
        S = int(opts['iw'])
        i0 = L.index('L_tail:') + 1
        i1 = max(k for k, l in enumerate(L) if l == '  s_endpgm' and k < L.index('L_done:'))
        def size(l):
            t = l.strip()
            if not l.startswith('  '): return 0
            if re.match(r's_(waitcnt|barrier|nop|cbranch|branch|endpgm|cmp|mov_b32 s\d+, s|min_u32 s\d+, s\d+, s|cselect)', t): return 4
            return 8
        out = []; acc = S; n = 0
        for l in L[i0:i1]:
            if acc >= S and (l.startswith('  v_mfma') or l.startswith('  v_cvt') or l.startswith('  ds_') or l.startswith('  s_waitcnt')):
                out += [f'L_iw{n}:', f'@PAD{n}']; n += 1; acc = 4
            out.append(l); acc += size(l)
        seg = -(-n // 4)
        out = [(f'  s_cbranch_vccnz {"L_iwr" if (int(l[4:]) % seg == seg - 1 or int(l[4:]) == n - 1) else f"L_iw{int(l[4:]) + 1}"}' if l.startswith('@PAD') else l) for l in out]
        L = L[:i0] + out + L[i1:]
        h = L.index('@IWHOP')
        hop = ['  s_mov_b64 vcc, -1']
        for w in range(1, 4):
            if w * seg < n: hop += [f'  s_cmp_eq_u32 s20, {w}', f'  s_cbranch_scc1 L_iw{w*seg}']
        hop += ['  s_branch L_iw0', 'L_iwr:']
        L = L[:h] + hop + L[h+1:]
    L = [l for l in L if l != '@IWHOP']
    abl = opts.get('abl', '')
    if abl:
        i0 = L.index('L_loop:'); i1 = L.index('L_tail:')
        def keep(l):
            s = l.strip()
            if 'O' in abl and (s.startswith('ds_write_b128') or re.match(r'ds_read_b128 a\[(16[89]|17\d|18\d)', s)): return False
            if 'T' in abl and s.startswith('buffer_store'): return False
            if 'L' in abl and s.startswith('buffer_load'): return False
            if 'B' in abl and s.startswith('s_barrier'): return False
            if 'C' in abl and s.startswith('v_cvt'): return False
            if 'H' in abl and s.startswith('v_mfma') and int(re.search(r'v\[(\d+):', s).group(1)) % 8 == 4: return False
            return True
        L = L[:i0] + [l for l in L[i0:i1] if keep(l)] + L[i1:]
    return '\n'.join(L) + '\n'

def build(g, opts, unroll):
    NT_LD = opts.get('nt_ld', ' nt'); NT_ST = opts.get('nt_st', ' sc1'); NT_B = opts.get('nt_b', '')
    DBG = int(opts.get('dbg', 0)); AMP = opts.get('amp')
    DIR = int(opts.get('dir', 0))
    PD = int(opts.get('pd', 2))
    e = g.e
    TILE_B = 32 * 768; NTILE = 18; STRIDE = 256 * TILE_B
    LDS_O = 4 * TILE_B + 256; LDS_DW = 6 * TILE_B + 512; LDS_PR = LDS_DW + 4096; LDS_TOTAL = LDS_PR + 64
    AREA = [LDS_O, LDS_O + TILE_B + 64, 2 * TILE_B, 3 * TILE_B + 64]
    OOB = 113246208
    vLdsR = [1, 2, 3, 4]; vOR = [5, 6, 7]; vXS = [8, 9, 10]; vMk = [11, 12]; vTS2 = 13; vTS3 = 14; vTX = 15
    ACC = 16
    PT = 64
    vBL = [PT, PT+1, PT+2]; vTr = PT+3; vDW = PT+4; vM = [PT+5, PT+6]; vTr2 = PT+7
    DWR = [PT+8, PT+12]
    vST = [PT+16+i for i in range(3)]; vOW = [PT+22, PT+23]
    T = [ACC+i for i in range(12)]; vLane = ACC + 12
    FUSE = int(opts.get('fuse', 0))
    FT = 88 if FUSE else ACC; NFT = 6 if FUSE else (8 if opts.get('dec') else 12)
    BV = 112 if FUSE else 88
    NA = 6 if FUSE else 5
    ASLOTS = [int(c, 16) for c in opts.get('aslots', '012346' if FUSE else '13579')]
    NAR = 4 if FUSE else int(opts.get('nar', 4))
    if NAR == 5: AREA = [TILE_B + k * (TILE_B + 64) for k in range(5)]
    assert len(ASLOTS) == NA
    VSLOTS = [s for s in range(12) if s not in ASLOTS]
    XF = 144
    OB = 168
    RAW = [192, 216]
    sX, sO, sP, sD = 4, 8, 12, 16
    sW, sCnt = 20, 21
    sRing, sOOB = 39, 40
    sF = [76, 78, 80, 82]
    sBase, sVa, sDec, sEnd = 32, 33, 34, 21
    sP1, sP2 = 28, 30
    sEn = [44, 84, 12]; sOf = [88, 89, 95]
    sXa, sXb, sXd, sXe = 22, 56, 57, 90; sSd = 91
    sSo = [58, 59, 62, 63]; sSm = 90
    sDb = 92
    sDS = 16
    sRd = 88; sRd2 = 60; sVc = 61; sVb = 95; sEo = 36; sPa = 37; sPb = 38; sPr = 23; sPv = 41; sPT = 84
    KSTEP = 16 * 49152
    sG = [42, 43, 44]; sQ = [45, 46, 47, 48]; sBW = 49; sT = [50, 51, 52, 53]; sR1, sR2 = 54, 55

    def breg(s, nt, n=4, o=0):
        if s in ASLOTS:
            i = ASLOTS.index(s) * 24 + nt * 4 + o
            return f'a[{i}:{i+n-1}]' if n > 1 else f'a{i}'
        i = BV + VSLOTS.index(s) * 24 + nt * 4 + o
        return f'v[{i}:{i+n-1}]' if n > 1 else f'v{i}'
    sn = [0]
    def stamp():
        if DBG or AMP:
            e(f'  s_memrealtime s[{64+2*sn[0]}:{65+2*sn[0]}]'); sn[0] += 1
    def run(items):
        for it in items:
            if callable(it): it()
            else: e(it)

    e(HDR.rstrip('\n'))
    e(f'; @launch grid=(256,1,1) block=(256,1,1) lds={LDS_TOTAL}')
    e('.amdgcn_target "amdgcn-amd-amdhsa--gfx950"')
    e('.text')
    for l in DOC.strip().split('\n'): e('; ' + l)
    e('.globl standalone__depthwise_separable__vision_kernel')
    e('.p2align 8')
    e('.type standalone__depthwise_separable__vision_kernel,@function')
    e('standalone__depthwise_separable__vision_kernel:')
    e('  s_load_dwordx8 s[24:31], s[0:1], 0')
    e(f'  s_load_dwordx2 s[{sDb}:{sDb+1}], s[0:1], 32')
    e('  s_cmp_ge_u32 s2, 256')
    e('  s_cbranch_scc1 L_done')
    stamp()
    if AMP == 'c': e('  s_memtime s[96:97]')
    if DBG: e('  s_memtime s[96:97]'); e('  s_mov_b32 s3, 0'); e(f'  s_mov_b32 s{sPv}, 0')
    e(f'  v_lshrrev_b32 v{T[0]}, 6, v0')
    e(f'  v_and_b32 v{vLane}, 63, v0')
    e(f'  v_readfirstlane_b32 s{sW}, v{T[0]}')
    KICK = int(opts.get('kick', 0))
    def kick_a():
        e(f'  s_lshr_b32 s{sT[2]}, s2, 3')
        e(f'  s_mul_i32 s{sT[2]}, s{sT[2]}, 9216')
        if KICK == 2: e(f'  v_and_b32 v{T[5]}, 127, v0')
        e(f'  v_lshl_add_u32 v{T[5]}, v{T[5] if KICK == 2 else 0}, 7, s{sT[2]}')
        e(f'  v_min_u32 v{T[5]}, 294784, v{T[5]}')
    def kick_b():
        e('  s_waitcnt lgkmcnt(0)')
        g.vmop(f'  global_load_dword v{BV+1}, v{T[5]}, s[28:29]', ('K',))
    if KICK: kick_a()
    if KICK and opts.get('kf'): kick_b()
    CW = int(opts.get('cw', 128))
    if CW: e('; --- touch the code once so that later instruction fetches hit L2')
    if CW:
        e(f'  s_getpc_b64 s[{sT[0]}:{sT[1]}]')
        e('L_pc:')
        e(f'  v_mul_u32_u24 v{T[2]}, {CW}, v0')
        e(f'  v_min_u32 v{T[2]}, L_done-L_pc, v{T[2]}')
        e(f'  v_mov_b32 v{T[3]}, s{sT[1]}')
        e(f'  v_add_co_u32 v{T[2]}, vcc, s{sT[0]}, v{T[2]}')
        e(f'  s_nop 1')
        e(f'  v_addc_co_u32 v{T[3]}, vcc, 0, v{T[3]}, vcc')
        g.vmop(f'  global_load_dword v{BV}, v[{T[2]}:{T[3]}], off', ('CW',))
    if KICK and not opts.get('kf'): kick_b()
    e(f'  s_lshr_b32 s{sT[0]}, s2, 3')
    e(f'  s_and_b32 s{sR2}, s{sT[0]}, 3')
    e(f'  s_lshr_b32 s{sR1}, s{sT[0]}, 2')
    e(f'  s_mul_i32 s{sT[1]}, s{sR1}, 11')
    e(f'  s_lshr_b32 s{sT[1]}, s{sT[1]}, 5')
    e(f'  s_mul_i32 s{sT[1]}, s{sT[1]}, 3')
    e(f'  s_sub_u32 s{sR1}, s{sR1}, s{sT[1]}')
    if opts.get('norot'):
        e(f'  s_mov_b32 s{sR1}, 0'); e(f'  s_mov_b32 s{sR2}, 0')
    e(f'  s_mul_i32 s{sT[2]}, s{sW}, 192')
    for i in range(3):
        if i: e(f'  v_add_u32 v{T[1]}, {64*i}, v{vLane}')
        q = T[1] if i else vLane
        e(f'  v_mul_u32_u24 v{T[2]}, 0xaaab, v{q}')
        e(f'  v_lshrrev_b32 v{T[2]}, 19, v{T[2]}')
        e(f'  v_mul_u32_u24 v{T[3]}, 576, v{T[2]}')
        e(f'  v_lshl_add_u32 v{T[3]}, v{vLane}, 4, v{T[3]}')
        if i == 1:
            e(f'  v_lshrrev_b32 v{T[2]}, 3, v{T[2]}')
            e(f'  v_mul_u32_u24 v{T[2]}, 6144, v{T[2]}')
            e(f'  v_add_u32 v{T[3]}, v{T[3]}, v{T[2]}')
        if i == 2: e(f'  v_add_u32 v{T[3]}, 6144, v{T[3]}')
        e(f'  v_add_u32 v{vBL[i]}, s{sT[2]}, v{T[3]}')
    NUMA = int(opts.get('numa', 1))
    PRM = int(opts.get('prm', 28))
    def srd(sd, lo, nbytes):
        e(f'  s_mov_b32 s{sd}, s{lo}')
        e(f'  s_and_b32 s{sd+1}, s{lo+1}, 0xffff')
        e(f'  s_mov_b32 s{sd+2}, {nbytes}')
        e(f'  s_mov_b32 s{sd+3}, 0x00020000')
    def p_gb1():
        e(f'  s_add_u32 s{sG[1]}, s{sG[0]}, 98304')
        e(f'  s_cmp_eq_u32 s{sR1}, 2')
        e(f'  s_cselect_b32 s{sG[1]}, 0, s{sG[1]}')
        e(f'  s_add_u32 s{sG[2]}, s{sG[1]}, 98304')
        e(f'  s_cmp_eq_u32 s{sR1}, 1')
        e(f'  s_cselect_b32 s{sG[2]}, 0, s{sG[2]}')
        for q in range(1, 4):
            e(f'  s_xor_b32 s{sQ[q]}, s{sR2}, {q}')
            e(f'  s_mul_i32 s{sQ[q]}, s{sQ[q]}, {TILE_B}')
    def p_dws():
        e(f'  s_lshl_b32 s{sT[3]}, s{sR2}, 2')
        e(f'  v_lshrrev_b32 v{T[1]}, 4, v{vLane}')
        e(f'  v_add_u32 v{T[2]}, s{sR1}, v{T[1]}')
        e(f'  v_subrev_u32 v{T[3]}, 3, v{T[2]}')
        e(f'  v_min_u32 v{T[2]}, v{T[2]}, v{T[3]}')
        e(f'  v_and_b32 v{T[4]}, 15, v{vLane}')
        e(f'  v_xor_b32 v{T[3]}, s{sT[3]}, v{T[4]}')
        e(f'  v_lshlrev_b32 v{T[3]}, 4, v{T[3]}')
        e(f'  v_lshl_add_u32 v{T[3]}, v{T[2]}, 8, v{T[3]}')
        e(f'  v_cmp_lt_u32 vcc, 47, v{vLane}')
        e(f'  s_lshl_b32 s{sT[0]}, s{sW}, 10')
        e(f'  s_add_u32 m0, s{sT[0]}, {LDS_DW}')
        e(f'  v_cndmask_b32 v{T[3]}, v{T[3]}, v{vBL[2]}, vcc')
    def p_tl():
        e(f'  s_lshr_b32 s{sT[1]}, s2, 5')
        e(f'  s_and_b32 s{sT[2]}, s2, 3')
        e(f'  s_lshl2_add_u32 s{sEo}, s{sT[1]}, s{sT[2]}')
        e(f'  s_lshl_b32 s{sEo}, s{sEo}, 2')
        e(f'  s_mul_i32 s{sT[1]}, s{sT[1]}, 144')
        e(f'  s_lshr_b32 s{sT[2]}, s{sT[2]}, 1')
        e(f'  s_lshl1_add_u32 s{sT[2]}, s{sR2}, s{sT[2]}')
        e(f'  s_add_u32 s{sT[1]}, s{sT[1]}, s{sT[2]}')
        e(f'  s_mul_i32 s{sBase}, s{sT[1]}, 98304')
        e(f'  s_add_u32 s{sEnd}, s{sBase}, {NTILE*KSTEP}')
        if NUMA:
            e(f'  s_lshl_b32 s{sT[1]}, s{sW}, 11')
            e(f'  s_and_b32 s{sT[2]}, s2, 3')
            e(f'  s_lshl_b32 s{sT[2]}, s{sT[2]}, 8')
            e(f'  s_add_u32 s{sT[1]}, s{sT[1]}, s{sT[2]}')
            e(f'  s_lshr_b32 s{sT[2]}, s2, 5')
            e(f'  s_lshl_b32 s{sPa}, s{sT[2]}, 24')
            e(f'  s_add_u32 s{sPa}, s{sPa}, {(8 << 20) + 0x40000}')
            e(f'  s_mul_i32 s{sT[2]}, s{sT[2]}, {6 << 20}')
            e(f'  s_add_u32 s{sT[2]}, s{sT[2]}, {(64 << 20) + 0x40000}')
            e(f'  s_min_u32 s{sPa}, s{sPa}, s{sT[2]}')
            e(f'  s_add_u32 s{sPa}, s{sPa}, s{sT[1]}')
            e(f'  s_and_b32 s{sPr}, s2, {PRM}')
            e(f'  s_add_u32 s{sPb}, s{sPa}, 8192')
            e(f'  s_cmp_lg_u32 s{sPr}, 0')
    def p_warm():
        if NUMA:
            e(f'  s_cbranch_scc1 L_np0')
            e(f'  s_load_dword s{sPT}, s[24:25], s{sPa} glc')
            e(f'  s_load_dword s{sPT+1}, s[24:25], s{sPb} glc')
            if opts.get('dwm'):
                e(f'  v_mov_b32 v{T[10]}, {int(opts["dwm"])}')
                e(f'  global_load_dword v{BV+1}, v{T[10]}, s[{sDb}:{sDb+1}]{" sc1" if opts["dwm"] == "64" else ""}')
            e('L_np0:')
    def p_dwl():
        srd(sD, 26, 768)
        g.vmop(f'  buffer_load_dwordx4 v{T[3]}, s[{sD}:{sD+3}], 0 offen lds', ('W',))
    e(f'  s_mul_i32 s{sG[0]}, s{sR1}, 98304')
    e(f'  s_mul_i32 s{sQ[0]}, s{sR2}, {TILE_B}')
    e(f'  s_mul_i32 s{sBW}, s{sW}, 6160')
    LEAN = int(opts.get('lean', 2))
    if LEAN == 0: p_gb1(); p_dws()
    if LEAN <= 1: p_tl()
    e('  s_waitcnt lgkmcnt(0)')
    if LEAN <= 1: p_warm()
    if LEAN == 0: p_dwl()
    srd(sP, 28, 294912)
    def bload(s):
        it = []
        for h in range(2):
            it.append(f'  s_add_u32 m0, s{sBW}, {AREA[s % NAR] + h*3080}')
            it.append(f'  s_add_u32 s{sT[0]}, s{sG[s >> 2]}, s{sQ[s & 3]}' if h == 0 else f'  s_add_u32 s{sT[0]}, s{sT[0]}, 6144')
            for i in range(3):
                it.append(lambda h=h, i=i: g.vmop(f'  buffer_load_dwordx4 v{vBL[i]}, s[{sP}:{sP+3}], s{sT[0]} offen offset:{i*1024}{NT_B} lds', ('B', s, 3*h + i)))
        return it
    def halfA(f, o0, dl):
        return [f'  s_cmp_eq_u32 s{f+1}, 0', f'  s_cselect_b32 s{dl}, 73728, s26', f'  s_add_u32 s{o0}, s{f}, s{f+1}',
                f'  s_add_u32 s{o0}, s{o0}, s{dl}', f'  s_min_u32 s{o0}, s{o0}, s{sOOB}']
    def halfB(f, o2, dl, d1p):
        return [f'  s_cmp_eq_u32 s{f+1}, 73728', f'  s_cselect_b32 s{dl}, {-73728 & 0xffffffff}, s27', f'  s_add_u32 s{d1p}, s{f+1}, 12288',
                f'  s_add_u32 s{o2}, s{f}, s{d1p}', f'  s_add_u32 s{o2}, s{o2}, s{dl}', f'  s_min_u32 s{o2}, s{o2}, s{sOOB}']
    def mixv(dst, src, mk, dl, d1):
        return [f'  v_and_b32 v{dst}, s{dl}, v{mk}', f'  v_add3_u32 v{dst}, v{src}, v{dst}, s{d1}']
    def xdma(t, u):
        it = []
        a, b = sF[0], sF[0] + 1
        if u == 0:
            it += [f'  s_mov_b64 s[{sF[k]}:{sF[k]+1}], s[{sF[k-1]}:{sF[k-1]+1}]' for k in range(len(sF) - 1, 0, -1)]
            it += [f'  s_cmp_ge_u32 s{sBase}, s{sDec+1}', f'  s_cselect_b64 s[{sDec}:{sDec+1}], s[{sP1}:{sP1+1}], s[{sDec}:{sDec+1}]',
                   f'  s_cselect_b64 s[{sP1}:{sP1+1}], s[{sP2}:{sP2+1}], s[{sP1}:{sP1+1}]']
            it += [f'  s_add_u32 s{a}, s{sVa}, s{sBase}', f'  s_xor_b32 s{a}, s{a}, s{sDec}',
                   f'  s_bfe_u32 s{b}, s{a}, {21 | (1 << 16)}', f'  s_bfe_u32 s{a}, s{a}, {19 | (1 << 16)}', f'  s_lshl1_add_u32 s{b}, s{a}, s{b}',
                   f'  s_sub_u32 s{b}, 1, s{b}', f'  s_and_b32 s{b}, s{b}, 3', f'  s_mul_i32 s{b}, s{b}, {TILE_B}',
                   f'  s_cmp_lt_u32 s{sBase}, s{sEnd}', f'  s_cselect_b32 s{a}, s{sBase}, s{sOOB}', f'  s_add_u32 s{sBase}, s{sBase}, {KSTEP}']
            it += halfA(a, sXa, sXd)
        if u == 2: it += mixv(vTX, vXS[2], vMk[0], sXd, b)
        if u == 3: it += halfB(a, sXb, sXd, sXe) + mixv(vTX, vXS[0], vMk[1], sXd, sXe)
        it.append(f'  s_add_u32 m0, s{sRing}, {(t & 1)*TILE_B + u*4096}')
        if u == 5 and (t & 1): it.append(f'  s_xor_b32 s{sRing}, s{sRing}, {2*TILE_B}')
        else: it.append('NOP')
        it.append(lambda: g.vmop(f'  buffer_load_dwordx4 v{vTX if u in (2, 3) else vXS[u % 3]}, s[{sX}:{sX+3}], s{[sXa, sXa, a, a, sXb, sXb][u]} offen{NT_LD} lds', ('L', t, u)))
        return it
    PF = opts.get('pf')
    vPF = PT + 2; vPD = PT + 3; sPf0 = 21; sPfo = 37
    def pf_items():
        return [f'  s_add_u32 s{sPfo}, s{sVa}, s{sBase}', f'  s_xor_b32 s{sPfo}, s{sPfo}, s{sDec}', f'  s_lshr_b32 s{sPfo}, s{sPfo}, 8',
                f'  s_and_b32 s{sPfo}, s{sPfo}, 8192', f'  s_add_u32 s{sPfo}, s{sPfo}, s{sBase}',
                f'  s_cmp_lt_u32 s{sBase}, s{sEnd}', f'  s_cselect_b32 s{sPfo}, s{sPfo}, s{sOOB}',
                f'  s_cmp_ge_u32 s{sBase}, s{sPf0}', f'  s_cselect_b32 s{sPfo}, s{sPfo}, s{sOOB}',
                lambda: g.vmop(f'  buffer_load_dword v{vPD}, v{vPF}, s[{sX}:{sX+3}], s{sPfo} offen{opts.get("pfl", "")}', None)]
    def xdma_items(t):
        return ['  s_nop 0' if x == 'NOP' else x for u in range(6) for x in xdma(t, u)]
    NB0 = int(opts.get('nb0', 1)) if FUSE else 99
    NI = int(opts.get('ni', 1))
    run(bload(0))
    if LEAN == 2: p_tl(); p_warm()
    if LEAN: p_dws(); p_dwl(); p_gb1()
    for s in range(1, min(NB0, NI)): run(bload(s))
    if opts.get('tw'):
        e(f'  v_mov_b32 v{T[5]}, s{sBase}')
        g.vmop(f'  global_load_dword v{BV+2}, v{T[5]}, s[24:25]', ('K',))
        g.vmop(f'  global_load_dword v{BV+3}, v{T[5]}, s[30:31]', ('K',))
    if opts.get('st2') == '2': stamp()
    srd(sX, 24, 113246208)
    hi2, lo4 = T[1], T[4]
    e(f'  s_add_u32 s{sVa}, s24, 49152')
    e(f'  s_mov_b32 s{sOOB}, {OOB}')
    e(f'  s_mov_b32 s26, {-24576 & 0xffffffff}')
    e('  s_mov_b32 s27, 24576')
    e(f'  s_lshl_b32 s{sRing}, s{sW}, 10')
    for x in sF[:3]: e(f'  s_mov_b32 s{x}, s{sOOB}'); e(f'  s_mov_b32 s{x+1}, 0')
    e(f'  s_lshr_b32 s{sDec}, s2, 1')
    e(f'  s_xor_b32 s{sDec}, s{sDec}, s2')
    e(f'  s_and_b32 s{sDec}, s{sDec}, 4')
    e(f'  s_and_b32 s{sT[1]}, s2, 1')
    e(f'  s_or_b32 s{sDec}, s{sDec}, s{sT[1]}')
    e(f'  s_lshl_b32 s{sDec}, s{sDec}, 19')
    e(f'  s_mov_b32 s{sDec+1}, -1')
    ROW = [ACC+16, ACC+17, ACC+18]; GG = [ACC+19, ACC+20, ACC+21]
    def rowmap(dst, dst4b, base, u):
        if u == 0:
            e(f'  v_add_u32 v{dst[3]}, {26*768}, v{base}')
            if base != dst[0]: e(f'  v_mov_b32 v{dst[0]}, v{base}')
        if u == 1:
            e(f'  v_cmp_lt_u32 vcc, 5, v{ROW[1]}')
            e(f'  v_add_u32 v{T[8]}, {26*768}, v{base}')
            e(f'  v_add_u32 v{T[9]}, {37*768}, v{base}')
            e(f'  v_cndmask_b32 v{dst[4]}, v{T[8]}, v{T[9]}, vcc')
            if dst4b is not None:
                e(f'  v_add_u32 v{T[8]}, {58*768}, v{base}')
                e(f'  v_add_u32 v{T[9]}, {5*768}, v{base}')
                e(f'  v_cndmask_b32 v{dst4b}, v{T[8]}, v{T[9]}, vcc')
            if base != dst[1]: e(f'  v_mov_b32 v{dst[1]}, v{base}')
        if u == 2:
            e(f'  v_cmp_lt_u32 vcc, 10, v{ROW[2]}')
            e(f'  v_add_u32 v{T[8]}, 7680, v{base}')
            e(f'  v_add_u32 v{dst[5]}, {5*768}, v{base}')
            e(f'  v_cndmask_b32 v{dst[2]}, v{base}, v{T[8]}, vcc')
    e(f'  v_lshrrev_b32 v{GG[0]}, 4, v0')
    e(f'  v_xor_b32 v{T[6]}, s{sT[3]}, v{lo4}')
    for u in range(3):
        if u: e(f'  v_add_u32 v{GG[u]}, {16*u}, v{GG[0]}')
        e(f'  v_mul_u32_u24 v{ROW[u]}, 43, v{GG[u]}')
        e(f'  v_lshrrev_b32 v{ROW[u]}, 7, v{ROW[u]}')
        e(f'  v_mul_u32_u24 v{T[2]}, 3, v{ROW[u]}')
        e(f'  v_sub_u32 v{T[3]}, v{GG[u]}, v{T[2]}')
        e(f'  v_add_u32 v{T[3]}, s{sR1}, v{T[3]}')
        e(f'  v_subrev_u32 v{T[5]}, 3, v{T[3]}')
        e(f'  v_min_u32 v{T[3]}, v{T[3]}, v{T[5]}')
        e(f'  v_add_u32 v{T[3]}, v{T[3]}, v{T[2]}')
        e(f'  v_xor_b32 v{T[5]}, v{ROW[u]}, v{T[6]}')
        e(f'  v_lshlrev_b32 v{T[5]}, 4, v{T[5]}')
        e(f'  v_lshl_add_u32 v{vXS[u]}, v{T[3]}, 8, v{T[5]}')
        if u != 1:
            e(f'  v_cmp_eq_u32 vcc, {10 if u == 2 else 5}, v{ROW[u]}')
            e(f'  s_nop 1')
            e(f'  v_cndmask_b32 v{vMk[0 if u == 2 else 1]}, 0, -1, vcc')
    if NB0 <= 2: run(xdma_items(0))
    STG = int(opts.get('stg', 0))
    sS3 = [58, 59, 62]; sSR = 63
    def x0_site(early):
        it = []
        if early: it += [x for x in xdma(0, 0)[:-3]]
        it += [f'  s_and_b32 s{sSR}, s2, {STG}', f'  s_cmp_eq_u32 s{sSR}, 0' if early else f'  s_cmp_lg_u32 s{sSR}, 0']
        for r, src in zip(sS3, (sF[0], sX4, sF[0] + 1)): it.append(f'  s_cselect_b32 s{r}, s{src}, s{sOOB}')
        it += [f'  s_cselect_b32 s{sSR}, 0, {TILE_B}', f'  s_add_u32 s{sSR}, s{sSR}, s{sRing}']
        for u in range(6):
            if u == 4: it.append(f'  v_cndmask_b32 v{vTX}, v{vXS[4]}, v{vXS4b}, s[{sXm}:{sXm+1}]')
            it += [f'  s_add_u32 m0, s{sSR}, {u*4096}', '  s_nop 0',
                   lambda u=u: g.vmop(f'  buffer_load_dwordx4 v{vTX if u == 4 else vXS[u]}, s[{sX}:{sX+3}], s{sS3[max(0, u - 3)]} offen{NT_LD} lds', ('L', 0, u))]
        return it
    XE = int(opts.get('xe', -1))
    if STG and XE < 0: run(x0_site(True))
    for s in range(NB0, 2): run(bload(s))
    srd(sO, 30, 113246208)
    e(f'  v_lshlrev_b32 v{vST[0]}, 4, v0')
    for u in range(3):
        if u: e(f'  v_add_u32 v{vST[u]}, {4096*u}, v{vST[0]}')
        e(f'  v_and_b32 v{T[5]}, 7, v{ROW[u]}')
        e(f'  v_xor_b32 v{T[5]}, v{T[5]}, v{lo4}')
        e(f'  v_lshlrev_b32 v{T[5]}, 4, v{T[5]}')
        e(f'  v_lshl_add_u32 v{T[5]}, v{GG[u]}, 8, v{T[5]}')
        e(f'  v_add_u32 v{vOR[u]}, {LDS_O}, v{T[5]}')
    if opts.get('xlin'):
        for u in range(3): e(f'  v_mov_b32 v{vXS[u]}, v{vST[u]}')
    if opts.get('xlin') == '2':
        for u in range(2): e(f'  v_mov_b32 v{vMk[u]}, 0')
    e(f'  v_mul_u32_u24 v{T[0]}, 0x300, v{lo4}')
    e(f'  v_xor_b32 v{T[2]}, v{hi2}, v{lo4}')
    e(f'  v_lshl_add_u32 v{vLdsR[0]}, v{T[2]}, 4, v{T[0]}')
    for s in range(1, 4): e(f'  v_xor_b32 v{vLdsR[s]}, {s*64}, v{vLdsR[0]}')
    e(f'  s_mul_i32 s{sT[1]}, s{sW}, 12')
    e(f'  v_and_b32 v{T[2]}, 7, v{lo4}')
    for u in range(2):
        e(f'  v_add_u32 v{T[3]}, s{sT[1]}, v{hi2}')
        if u: e(f'  v_add_u32 v{T[3]}, {4*u}, v{T[3]}')
        e(f'  v_xor_b32 v{T[3]}, v{T[3]}, v{T[2]}')
        e(f'  v_lshl_add_u32 v{vOW[u]}, v{T[3]}, 4, v{T[0]}')
        e(f'  v_add_u32 v{vOW[u]}, {LDS_O}, v{vOW[u]}')
    e(f'  v_bfe_u32 v{T[2]}, v{vLane}, 2, 2')
    e(f'  v_and_b32 v{T[3]}, 3, v{vLane}')
    e(f'  v_lshrrev_b32 v{T[5]}, 1, v{hi2}')
    e(f'  v_lshl_add_u32 v{T[5]}, v{T[5]}, 3, v{T[2]}')
    e(f'  v_mul_u32_u24 v{T[5]}, 192, v{T[5]}')
    e(f'  v_and_b32 v{T[7]}, 1, v{hi2}')
    e(f'  v_mul_u32_u24 v{T[7]}, 3080, v{T[7]}')
    e(f'  v_add_u32 v{T[5]}, v{T[5]}, v{T[7]}')
    e(f'  v_lshl_add_u32 v{T[5]}, v{T[3]}, 4, v{T[5]}')
    e(f'  s_add_u32 s{sT[1]}, s{sBW}, {AREA[2]}')
    e(f'  v_add_u32 v{vTr2}, s{sT[1]}, v{T[5]}')
    e(f'  v_add_u32 v{vTr}, {(AREA[0] - AREA[2]) & 0xffffffff}, v{vTr2}')
    e(f'  s_add_u32 s{sT[1]}, s{sRing}, {LDS_DW}')
    e(f'  v_lshl_add_u32 v{vDW}, v{hi2}, 4, s{sT[1]}')
    e(f'  v_and_b32 v{T[5]}, 1, v{vLane}')
    e(f'  v_lshlrev_b32 v{T[5]}, 4, v{T[5]}')
    e(f'  v_mov_b32 v{T[7]}, 0xffff')
    e(f'  v_lshlrev_b32 v{T[5]}, v{T[5]}, v{T[7]}')
    e(f'  v_lshlrev_b32 v{T[0]}, 1, v{hi2}')
    e(f'  v_bfe_u32 v{T[7]}, v{vLane}, 1, 3')
    e(f'  v_cmp_eq_u32 vcc, v{T[0]}, v{T[7]}')
    e(f'  v_add_u32 v{T[0]}, 1, v{T[0]}')
    e(f'  s_nop 0')
    e(f'  v_cndmask_b32 v{vM[0]}, 0, v{T[5]}, vcc')
    e(f'  v_cmp_eq_u32 vcc, v{T[0]}, v{T[7]}')
    srd(sDS, sDb, 256)
    e(f'  v_cndmask_b32 v{vM[1]}, 0, v{T[5]}, vcc')
    NR = int(opts.get('nr', 2))
    def probe():
        e('; --- placement probe: latency of one line per interleave class')
        e(f'  s_cmp_lg_u32 s{sPr}, 0')
        e(f'  s_cbranch_scc1 L_npr')
        e(f'  s_mov_b32 s{sPv}, 0xffff')
        e(f'  s_mov_b32 s{sRd}, 0xffff')
        e(f'  s_lshl_b32 s{sT[2]}, s{sW}, 2')
        e(f'  s_add_u32 s{sT[2]}, s{sT[2]}, {LDS_PR}')
        e(f'  v_mov_b32 v{T[0]}, s{sT[2]}')
        if int(opts.get('pb', 0)):
            e('  s_waitcnt lgkmcnt(0)')
            for i in range(NR):
                e('  s_barrier')
                e(f'  s_memtime s[{sPT}:{sPT+1}]')
                e(f'  s_load_dword s{sT[2]}, s[24:25], s{sPb if i & 1 else sPa} glc')
                e('  s_waitcnt lgkmcnt(0)')
                e(f'  s_memtime s[{sPT+2}:{sPT+3}]')
                e('  s_waitcnt lgkmcnt(0)')
                e(f'  s_sub_u32 s{sT[1]}, s{sPT+2}, s{sPT}')
                e(f'  s_min_u32 s{sRd if i & 1 else sPv}, s{sRd if i & 1 else sPv}, s{sT[1]}')
        else:
            e('  s_waitcnt lgkmcnt(0)')
            e(f'  s_memtime s[{sPT}:{sPT+1}]')
            for i in range(NR):
                a, b = (sPT, sPT + 2) if i % 2 == 0 else (sPT + 2, sPT)
                e(f'  s_load_dword s{sT[2]}, s[24:25], s{sPb if i & 1 else sPa} glc')
                e('  s_waitcnt lgkmcnt(0)')
                if i:
                    e(f'  s_sub_u32 s{sT[1]}, s{a}, s{b}')
                e(f'  s_memtime s[{b}:{b+1}]')
                if i: e(f'  s_min_u32 s{sRd if (i - 1) & 1 else sPv}, s{sRd if (i - 1) & 1 else sPv}, s{sT[1]}')
            e('  s_waitcnt lgkmcnt(0)')
            e(f'  s_sub_u32 s{sT[1]}, s{sPT}, s{sPT+2}')
            e(f'  s_min_u32 s{sRd}, s{sRd}, s{sT[1]}')
        e(f'  s_lshl_b32 s{sPv}, s{sPv}, 16')
        e(f'  s_or_b32 s{sPv}, s{sPv}, s{sRd}')
        e(f'  v_mov_b32 v{T[2]}, s{sPv}')
        e(f'  ds_write_b32 v{T[0]}, v{T[2]}')
        e('  s_waitcnt lgkmcnt(0)')
        e(f'L_npr:')
    PQ = 248
    assert 11 not in ASLOTS
    def publish():
        e('; --- publish the nearest class (first writer wins)')
        if NB0 >= 2:
            e(f'  s_cmp_lg_u32 s{sPr}, 0')
            e(f'  s_cbranch_scc1 L_np1')
            e('  s_barrier')
        e(f'  s_or_b32 s{sT[1]}, s{sPr}, s{sW}')
        e(f'  s_cmp_lg_u32 s{sT[1]}, 0')
        e(f'  s_cbranch_scc1 L_np1')
        PR = 240
        e(f'  v_mov_b32 v{PR+8}, {LDS_PR}')
        e(f'  ds_read_b128 v[{PR}:{PR+3}], v{PR+8}')
        e(f'  s_add_u32 s{sT[1]}, s24, s{sPa}')
        e(f'  s_lshr_b32 s{sT[2]}, s{sT[1]}, 20')
        e(f'  s_lshr_b32 s{sT[0]}, s2, 1')
        e(f'  s_xor_b32 s{sT[2]}, s{sT[2]}, s{sT[0]}')
        e(f'  s_and_b32 s{sT[2]}, s{sT[2]}, 2')
        e(f'  s_lshr_b32 s{sT[1]}, s{sT[1]}, 17')
        e(f'  s_and_b32 s{sT[1]}, s{sT[1]}, 4')
        e(f'  s_or_b32 s{sT[1]}, s{sT[1]}, s{sT[2]}')
        e(f'  s_or_b32 s{sT[1]}, s{sT[1]}, 1')
        e(f'  v_mov_b32 v{PR+11}, 0')
        e(f'  v_mov_b32 v{PR+8}, s{sEo}')
        e('  s_waitcnt lgkmcnt(0)')
        for o in (0,):
            e(f'  v_pk_min_u16 v{PR+o}, v{PR+o}, v{PR+o+1}')
            e(f'  v_pk_min_u16 v{PR+o+2}, v{PR+o+2}, v{PR+o+3}')
            e(f'  v_pk_min_u16 v{PR+o}, v{PR+o}, v{PR+o+2}')
            e(f'  v_lshrrev_b32 v{PR+o+1}, 16, v{PR+o}')
            e(f'  v_and_b32 v{PR+o}, 0xffff, v{PR+o}')
        e(f'  v_cmp_gt_u32 vcc, v{PR+1}, v{PR}')
        e(f'  v_min_u32 v{PR+2}, v{PR}, v{PR+1}')
        e('  s_nop 0')
        e(f'  v_cndmask_b32 v{PR+10}, 0, 2, vcc')
        e(f'  v_xor_b32 v{PR+10}, s{sT[1]}, v{PR+10}')
        e('  s_mov_b64 exec, 1')
        e(f'  v_lshl_or_b32 v{PR+10}, v{PR+2}, 16, v{PR+10}')
        if opts.get('sat'):
            e(f'  s_mov_b32 s{sRd+1}, 0')
            e(f'  v_readfirstlane_b32 s{sRd}, v{PR+10}')
            e('  s_nop 4')
            e(f'  s_atomic_cmpswap s[{sRd}:{sRd+1}], s[{sDb}:{sDb+1}], s{sEo}{" glc" if opts["sat"] == "1" else ""}')
        else:
            e(f'  buffer_atomic_cmpswap v[{PR+10}:{PR+11}], v{PR+8}, s[{sDS}:{sDS+3}], 0 offen sc1')
        e('  s_mov_b64 exec, -1')
        e('L_np1:')
    if opts.get('st2') == '2': stamp()
    if int(opts.get('iw', 0)):
        for r in sSo: e(f'  s_mov_b32 s{r}, s{sOOB}')
        e(f'  s_mov_b64 s[{sSm}:{sSm+1}], 0')
        if opts.get('iwp', '0') == '0': e('@IWHOP')
    PP = int(opts.get('pp', 1))
    if NUMA and PP == -1: probe()
    for s in range(NI, 2): run(bload(s))
    if NUMA and PP == 0: probe()
    LA = int(opts.get('la', NAR))
    assert LA <= NAR
    if LA > 2: run(bload(2))
    if NUMA and PP == 1: probe()
    if NB0 == 3: run(xdma_items(0))
    if LA > 3: run(bload(3))
    if LA > 4: run(bload(4))
    if NUMA and PP == 2: probe()

    def trs(s):
        it = [lambda: g.wait(('b', s), vm=('W',) if (s == 0 and LEAN) else ('B', s, 5))]
        base = vTr if (s % NAR) < 2 else vTr2
        so = AREA[s % NAR] - AREA[0 if (s % NAR) < 2 else 2]
        it.append(lambda: g.lgop(f'  ds_read_b128 v[{DWR[s & 1]}:{DWR[s & 1]+3}], v{vDW} offset:{s*64}', ('TR', s)))
        for nt in range(6):
            for hh in range(2):
                r = RAW[s & 1] + nt*4 + 2*hh
                it.append(lambda r=r, nt=nt, hh=hh: g.lgop(f'  ds_read_b64_tr_b16 a[{r}:{r+1}], v{base} offset:{so + hh*768 + (nt >> 1)*64 + (nt & 1)*8}', ('TR', s)))
        return it
    def cvts(s, j, q=None):
        nt, hh = j // 2, j % 2
        if q is None: q = FT + 4*(j % NFT)
        if s in ASLOTS:
            return [f'  v_cvt_pk_bf16_f32 v{q}, v{q}, v{q+1}', f'  v_cvt_pk_bf16_f32 v{q+1}, v{q+2}, v{q+3}',
                    f'  v_accvgpr_write_b32 {breg(s, nt, 1, 2*hh)}, v{q}', f'  v_accvgpr_write_b32 {breg(s, nt, 1, 2*hh+1)}, v{q+1}']
        return [f'  v_cvt_pk_bf16_f32 {breg(s, nt, 1, 2*hh)}, v{q}, v{q+1}', f'  v_cvt_pk_bf16_f32 {breg(s, nt, 1, 2*hh+1)}, v{q+2}, v{q+3}']
    def rd(t, i):
        mt, ks = i // 12, i % 12
        x = XF + 8*((i // 2) % 3) + 4*(i & 1)
        g.lgop(f'  ds_read_b128 a[{x}:{x+3}], v{vLdsR[ks & 3]} offset:{(t & 1)*TILE_B + mt*12288 + (ks >> 2)*256}', ('X', t, i))
    TS = NB0 if FUSE else 13
    units = sorted([(0, k) for k in range(12)] + [(1, k) for k in range(8)], key=lambda u: (u[1] + 4*u[0], -u[0]))
    UPS = int(opts.get('ups', 2 if NB0 <= 2 else 3))
    SCH = {s: [] for s in range(13)}
    rem = list(units) if FUSE else []
    for s in range(12, TS - 1, -1):
        n = 2 if s == 12 else UPS
        take = [u for u in reversed(rem) if u[1] < s][:n]
        SCH[s] = sorted(take, key=lambda u: (u[1], u[0]))
        rem = [u for u in rem if u not in take]
    assert not rem, rem
    for mt in range(2 if FUSE else 0):
        seq = [u[1] for s in range(13) for u in SCH[s] if u[0] == mt]
        assert seq[0] == 0 and sorted(seq) == list(range(len(seq)))
    def tl(s): return SCH[s]
    def fx(s, mt, ks): return OB + 12*(s % 2) + 4*SCH[s].index((mt, ks))
    def prd(s):
        return [lambda mt=mt, ks=ks: g.lgop(f'  ds_read_b128 a[{fx(s, mt, ks)}:{fx(s, mt, ks)+3}], v{vLdsR[ks & 3]} offset:{mt*12288 + (ks >> 2)*256}', ('TR', s)) for (mt, ks) in tl(s)]
    def tm(s, mt, ks, nt):
        a = ACC + 24*mt + 4*nt; x = fx(s, mt, ks)
        return f'  v_mfma_f32_16x16x32_bf16 v[{a}:{a+3}], {breg(ks, nt)}, a[{x}:{x+3}], {"0" if ks == 0 else f"v[{a}:{a+3}]"}'
    if opts.get('iwp') == '1': e('@IWHOP')
    DEC = int(opts.get('dec', 0))
    def trd(s):
        it = [lambda: g.wait(('b', s), vm=('W',) if (s == 0 and LEAN) else ('B', s, 5))]
        base = vTr if (s % NAR) < 2 else vTr2
        so = AREA[s % NAR] - AREA[0 if (s % NAR) < 2 else 2]
        for nt in range(6):
            for hh in range(2):
                it.append(lambda nt=nt, hh=hh: g.lgop(f'  ds_read_b64_tr_b16 {breg(s, nt, 2, 2*hh)}, v{base} offset:{so + hh*768 + (nt >> 1)*64 + (nt & 1)*8}', ('TR', s)))
        return it
    def dwr(s): g.lgop(f'  ds_read_b128 v[{DWR[s & 1]}:{DWR[s & 1]+3}], v{vDW} offset:{s*64}', ('DW', s))
    if DEC:
        run(trd(0)); dwr(0)
    else: run(trs(0))
    stamp()
    LAG = int(opts.get('lag', 3))
    XA = int(opts.get('xa', 8)); XB = int(opts.get('xb', 12)); DS = int(opts.get('ds', XA)); BQ = 10
    X0 = int(opts.get('x0', 11 - LA)); X1 = int(opts.get('x1', 11))
    if not FUSE: XA = XB = BQ = 99; DS = int(opts.get('ds', 9)); LAG = int(opts.get('lag', 4))
    assert XB >= BQ
    pend = []
    def region(dst, src, tmp):
        return [f'  s_lshr_b32 s{tmp}, s{src}, 23', f'  s_sub_u32 s{tmp}, s{tmp}, 6', f'  s_lshr_b32 s{dst}, s{src}, 24', f'  s_max_i32 s{dst}, s{dst}, s{tmp}']
    def reader():
        it = [f'  s_add_u32 s{sT[1]}, s{sBase}, 49152'] + region(sOf[0], sT[1], sT[2])
        it += [f'  s_sub_u32 s{sT[1]}, s{sEnd}, {KSTEP - 49152}'] + region(sOf[2], sT[1], sT[2])
        for k, lim in ((1, sP2), (2, sP1 + 1)):
            it += [f'  s_add_u32 s{sT[1]}, s{sOf[0]}, {k}', f'  s_lshl_b32 s{lim}, s{sT[1]}, 24', f'  s_add_u32 s{sT[1]}, s{sT[1]}, 6',
                   f'  s_lshl_b32 s{sT[1]}, s{sT[1]}, 23', f'  s_min_u32 s{lim}, s{lim}, s{sT[1]}', f'  s_sub_u32 s{lim}, s{lim}, 49152']
        it += [f'  s_add_u32 s{sOf[1]}, s{sOf[0]}, 1', f'  s_min_u32 s{sOf[1]}, s{sOf[1]}, s{sOf[2]}']
        for i in range(3):
            it += [f'  s_lshl_b32 s{sOf[i]}, s{sOf[i]}, 4', f'  s_load_dwordx4 s[{sEn[i]}:{sEn[i]+3}], s[{sDb}:{sDb+1}], s{sOf[i]}']
        return it
    def decide():
        if NUMA:
            e(f'  s_min_u32 s{sT[1]}, s{sEn[0]}, s{sEn[0]+1}')
            for r in [sEn[0]+2, sEn[0]+3] + [sEn[i] + k for i in (1, 2) for k in range(4)]: e(f'  s_min_u32 s{sT[1]}, s{sT[1]}, s{r}')
            e(f'  s_cmp_eq_u32 s{sT[1]}, 0')
            e('  s_cbranch_scc1 L_slow')
            e('L_back:')
    def decide2():
        it = []
        it.append(f'  s_mov_b32 s{sDec+1}, s{sP2}')
        it.append(f'  s_mov_b32 s{sP2+1}, -1')
        it.append(f'  s_and_b32 s{sT[0]}, s2, 5')
        it.append(f'  s_lshl_b32 s{sT[0]}, s{sT[0]}, 19')
        for q, dst in zip(sEn, (sDec, sP1, sP2)):
            it.append(f'  s_min_u32 s{sT[1]}, s{q}, s{q+2}')
            it.append(f'  s_min_u32 s{sT[2]}, s{q+1}, s{q+3}')
            it.append(f'  s_cmp_gt_u32 s{sT[1]}, s{sT[2]}')
            it.append(f'  s_cselect_b32 s{sT[1]}, 4, 0')
            it.append(f'  s_xor_b32 s{sT[1]}, s{sT[1]}, s{q}')
            it.append(f'  s_and_b32 s{sT[1]}, s{sT[1]}, 4')
            it.append(f'  s_lshl_b32 s{sT[1]}, s{sT[1]}, 17')
            it.append(f'  s_bitcmp1_b32 s2, 1')
            it.append(f'  s_cselect_b64 s[{q}:{q+1}], s[{q+2}:{q+3}], s[{q}:{q+1}]')
            it.append(f'  s_bitcmp1_b32 s2, 0')
            it.append(f'  s_cselect_b32 s{dst}, s{q+1}, s{q}')
            it.append(f'  s_and_b32 s{dst}, s{dst}, 2')
            it.append(f'  s_lshl_b32 s{dst}, s{dst}, 20')
            it.append(f'  s_or_b32 s{dst}, s{dst}, s{sT[1]}')
            it.append(f'  s_xor_b32 s{dst}, s{dst}, s{sT[0]}')
        return it
    if DEC:
        QU = [[] for _ in range(145)]
        def spread(items, n0, n1):
            for i, it in enumerate(items): QU[n0 + (i * (n1 - n0)) // len(items)].append(it)
        for a in range(11):
            it = trd(a + 1)
            if a + LA < 12: it += [lambda a=a: g.wait(('trf', a), lg=('TR', a))] + bload(a + LA)
            if a == X0: it += xdma_items(0)
            spread(it, DEC * a, DEC * (a + 1))
        if NUMA: QU[12*DS - 8].append(f'  s_load_dword s{sRd}, s[{sDb}:{sDb+1}], s{sEo}')
        if X1 < 12: spread(xdma_items(1), 12*X1, 12*X1 + 12)
        assert DEC * (X0 + 1) <= 12*DS
        for n in range(144):
            k, j = n // 12, n % 12
            d = DWR[k & 1]
            if j == 0:
                if k == DS and NUMA: e('  s_waitcnt lgkmcnt(0)')
                else:
                    g.wait(('tr', k), lg=('TR', k)); g.wait(('dw', k), lg=('DW', k), opt=True)
                for i in range(4): e(f'  v_and_b32 v{d+i}, v{vM[i & 1]}, v{d+i}')
                if k == DS: decide()
                if k + 1 < 12: dwr(k + 1)
                else: e('  s_nop 0')
                e('  s_nop 0')
            nt, hh = j // 2, j % 2
            q = FT + 4*(n % NFT)
            e(f'  v_mfma_f32_16x16x16_bf16 v[{q}:{q+3}], v[{d+2*hh}:{d+2*hh+1}], {breg(k, nt, 2, 2*hh)}, 0')
            pend.append(cvts(k, j, q))
            run(QU[n])
            if len(pend) > LAG: run(pend.pop(0))
            if n in (47, 95): stamp()
            if n == 11 and NUMA: publish()
    for s in range(0 if DEC else 12):
        if s == DS and NUMA: e('  s_waitcnt lgkmcnt(0)')
        else: g.wait(('tr', s), lg=('TR', s))
        if s == BQ: e('  s_barrier')
        d = DWR[s & 1]
        for i in range(4): e(f'  v_and_b32 v{d+i}, v{vM[i & 1]}, v{d+i}')
        if s == DS: decide()
        Q = []
        if s + 4 == NB0: Q += xdma_items(0)
        if s + LA < 12: Q += bload(s + LA)
        nx = trs(s + 1) if s + 1 < 12 else []
        if s == NB0 - 1:
            nx = nx[:1] + ['  s_barrier'] + nx[1:]
        nx += prd(s + 1)
        Q = (Q + nx) if opts.get('qo', '1') == '0' else (nx + Q)
        if s == DS - 1 and NUMA:
            assert s > X0 and s + LA >= 12
            Q += reader()
        if s == DS and NUMA: Q += decide2()
        if STG and s == XE: Q += x0_site(True)
        if s == X0 and not FUSE: Q += (x0_site(False) if STG else xdma_items(0))
        if s == X1 and not FUSE: Q += xdma_items(1)
        if s == XA: Q += xdma_items(1)
        if s == XB: Q += xdma_items(2)
        if s == 11 and FUSE: Q += [lambda i=i: rd(0, i) for i in range(20, 24)]
        while len(Q) < 2: Q.append('  s_nop 0')
        M = []
        TL = [tm(s, mt, ks, nt) for nt in range(6) for (mt, ks) in tl(s)]
        for j in range(12):
            nt, hh = j // 2, j % 2
            r = RAW[s & 1] + nt*4 + 2*hh
            q = FT + 4*(j % NFT)
            M.append((f'  v_mfma_f32_16x16x16_bf16 v[{q}:{q+3}], v[{d+2*hh}:{d+2*hh+1}], a[{r}:{r+1}], 0', j))
            k0, k1 = (j*len(TL))//12, ((j+1)*len(TL))//12
            M += [(x, None) for x in TL[k0:k1]]
        run(Q[:2]); Q = Q[2:]
        front = int(opts.get('front', 2))
        cq = []
        for mi, (m, j) in enumerate(M):
            if j is not None:
                run(cq); cq = []
            e(m)
            if j is not None:
                pend.append(cvts(s, j))
                if len(pend) > LAG: cq = pend.pop(0)
            QE = (len(M) * int(opts.get('qe', 4))) // 4
            nq = -(-len(Q) // max(1, QE - mi)) if mi < QE else len(Q)
            run(Q[:nq]); Q = Q[nq:]
            nc = 2 if (mi + 1 < len(M) and M[mi + 1][1] is None) else len(cq)
            run(cq[:nc]); cq = cq[nc:]
        assert not Q and not cq
        if s in (3, 7) and not opts.get('st2'): stamp()
        if s == int(opts.get('pubs', 0)) and NUMA: publish()
    if FUSE:
        g.wait(('tr', 12), lg=('TR', 12))
        T0 = [tm(12, 0, 11, nt) for nt in range(6)]
        T1 = [tm(12, 1, ks, nt) for (mt, ks) in tl(12) if mt == 1 for nt in range(6)]
        for nt in range(4):
            e(T0[nt])
            if pend: run(pend.pop(0))
        if DS == 12:
            e('  s_waitcnt lgkmcnt(0)'); decide()
        e(f'  v_sub_u32 v{vST4b}, v{vXS4b}, v{vXS[4]}')
        e(f'  v_add_u32 v{vST4b}, v{vST4b}, v{vST[4]}')
        e(T0[4]); e(T0[5])
        stamp()
        FIN = (T1, XB)
    else:
        run(pend.pop(0)); run(pend.pop(0))
        stamp()
        e(f'  v_mov_b32 v{vTS2}, 0')
        e(f'  v_mov_b32 v{vTS3}, 0')
        for r in sSo: e(f'  s_mov_b32 s{r}, s{sOOB}')
        if PF:
            a_, m_ = [int(v) for v in PF.split(',')]
            e(f'  v_mbcnt_lo_u32_b32 v{vPF}, -1, 0')
            e(f'  v_mbcnt_hi_u32_b32 v{vPF}, -1, v{vPF}')
            e(f'  v_min_u32 v{vPF}, 47, v{vPF}')
            e(f'  s_mul_i32 s{sPf0}, s{sW}, 48')
            e(f'  v_add_u32 v{vPF}, s{sPf0}, v{vPF}')
            e(f'  v_lshrrev_b32 v{vPD}, 6, v{vPF}')
            e(f'  v_lshlrev_b32 v{vPD}, 13, v{vPD}')
            e(f'  v_lshl_add_u32 v{vPF}, v{vPF}, 7, v{vPD}')
            e(f'  s_lshr_b32 s{sPf0}, s2, 3')
            e(f'  s_and_b32 s{sPf0}, s{sPf0}, {m_}')
            e(f'  s_add_u32 s{sPf0}, s{sPf0}, {a_ - NTILE & 0xffffffff}')
            e(f'  s_mul_i32 s{sPf0}, s{sPf0}, {KSTEP}')
            e(f'  s_add_u32 s{sPf0}, s{sPf0}, s{sEnd}')
        if opts.get('iwp') == '2': e('@IWHOP')
        if int(opts.get('iw', 0)): e('  s_mov_b64 vcc, 0')
        if opts.get('lpad'): e('  s_mov_b64 vcc, 0')
        g.wait('x0', vm=('L', 0, 5))
        e('  s_barrier')
        for i in range(4): rd(0, i)
        while pend: run(pend.pop(0))
        if X1 == 13: run(xdma_items(1))
        else: assert NAR == 4 and X1 >= DS

    def epi(mt, u, po):
        a = ACC + 24*mt + 8*u
        cv = [f'  v_cvt_pk_bf16_f32 v{a+i}, v{a+2*i}, v{a+2*i+1}' for i in range(4)]
        off = po*TILE_B + mt*12288 + (u >> 1)*128
        if DIR:
            return cv + [lambda: g.vmop(f'  buffer_store_dwordx4 v[{a}:{a+3}], v{vTS if mt else vST[0]}, s[{sO}:{sO+3}], s{sSo[2] if mt else sSo[0]} offen offset:{64*u}{NT_ST}', None)]
        if opts.get('w64'):
            return cv[:2] + [lambda: g.lgop(f'  ds_write_b64 v{vOW[u & 1]}, v[{a}:{a+1}] offset:{off}', ('OWa', mt, u))] + cv[2:] + \
                   [lambda: g.lgop(f'  ds_write_b64 v{vOW[u & 1]}, v[{a+2}:{a+3}] offset:{off+8}', ('OW', mt, u))]
        return cv + [lambda: g.lgop(f'  ds_write_b128 v{vOW[u & 1]}, v[{a}:{a+3}] offset:{off}', ('OW', mt, u))]
    OBT = 'a'
    def out_read(t, u):
        o = OB + 4*u
        g.lgop(f'  ds_read_b128 {OBT}[{o}:{o+3}], v{vOR[u % 3]} offset:{((t^1)&1)*TILE_B + (u // 3)*12288}', ('O', t, u))
    def out_store(t, u, key):
        o = OB + 4*u
        g.wait((key, 'o', u), lg=('O', t, u), opt=True)
        g.vmop(f'  buffer_store_dwordx4 {OBT}[{o}:{o+3}], v{[vST[0], vST[1], vTS2, vTS3, vST[1], vST[2]][u]}, s[{sO}:{sO+3}], s{sSo[[0, 0, 1, 2, 3, 3][u]]} offen{opts.get("mixf", " nt") if str(u) in opts.get("mix", "") else NT_ST}', None)
    def st_adv(d=0):
        p, q = sF[2 - d], sF[3 - d]
        return halfA(p, sSo[0], sSd) + [f'  s_mov_b32 s{sSo[1]}, s{p}'] + mixv(vTS2, vST[2], vMk[0], sSd, p + 1) + \
               halfB(q, sSo[3], sSd, sSo[2]) + mixv(vTS3, vST[0], vMk[1], sSd, sSo[2]) + [f'  s_mov_b32 s{sSo[2]}, s{q}']
    def ints(k, d): return [int(v) for v in opts.get(k, d).split(',')]
    OR_AT = ints('or', '2,3,4,5,6,7'); OS_AT = ints('os', '14,20,30,40,52,64')
    UORD = ints('uord', '3,4,5,0,1,2')
    XD_AT = ints('xd', '76,88,100,112,124,136')
    E1_AT = ints('e1', '27,39,61'); E0_AT = ints('e0', '99,106,123')
    SH_AT = int(opts.get('sh', 26)); CAP = int(opts.get('cap', 1)); HG = int(opts.get('hg', 0))
    def fillers(t):
        F = [[] for _ in range(144)]
        use = [0] * 150
        for r in range(144):
            if r % 12 in (0, 1, 11): use[r] = 1
        HP = opts.get('hp')
        def heavy(rho, it):
            while use[rho] or (HP and rho % 2 != int(HP)): rho += 1
            F[rho].append(it); use[rho] = 9
            for k in range(1, HG + 1): use[rho + k] = max(use[rho + k], 8)
            return rho
        def light(rho, items, cap=CAP, back=False):
            if back:
                for it in reversed(items):
                    while use[rho] >= cap: rho -= 1
                    F[rho].insert(0, it); use[rho] += 1
                return rho
            for it in items:
                while use[rho] >= cap: rho += 1
                F[rho].append(it); use[rho] += 1
            return rho
        kp = t & 1
        post = []
        vpos = []
        for k in range(0 if DIR else 6):
            u = UORD[k]
            lastst = heavy(OS_AT[k], lambda u=u: out_store(t, u, kp))
            vpos.append(lastst)
        xpos = []
        for u in range(6):
            it = [x for x in xdma(t + PD, u) if x != 'NOP']
            xpos.append((heavy(XD_AT[u], it[-1]), it[:-1]))
        for mt, AT in ((1, E1_AT), (0, E0_AT)):
            for u in range(3):
                r = AT[u]
                for it in epi(mt, u, t & 1):
                    r = (heavy(r, it) if callable(it) else light(r, [it], 1)) + 1
                if DIR:
                    vpos.append(r - 1)
                    if mt == 1: lastst = r - 1
        for k in range(0 if DIR else 6):
            light(OR_AT[k], [lambda u=UORD[k]: out_read(t, u)], 1)
        prevx = 0
        for (r, it) in xpos:
            r0 = light(r - 1, it, 2 if len(it) > 6 else CAP, back=True)
            assert r0 >= 24 and r0 > prevx, (r0, prevx)
            prevx = r
        if opts.get('xr'):
            a_, b_ = [int(v) for v in opts['xr'].split(',')]
            it = [f'  s_sub_u32 s37, s{sEnd}, s{sBase}', f'  s_sub_u32 s37, s37, {(NTILE - b_)*KSTEP + 1}', f'  s_cmp_lt_u32 s37, {(b_ - a_)*KSTEP}',
                  f'  s_cselect_b32 s37, s{sF[0]}, s{sOOB}', f'  s_xor_b32 s37, s37, 0x2000000']
            r1_ = heavy(104, lambda: g.vmop(f'  buffer_load_dwordx4 a[240:243], v{vXS[0]}, s[{sX}:{sX+3}], s37 offen nt', None))
            heavy(130, lambda: g.vmop(f'  buffer_load_dwordx4 a[244:247], v{vXS[1]}, s[{sX}:{sX+3}], s37 offen nt', None))
            light(94, it, 2, back=True)
        if PF:
            it = pf_items()
            rp = heavy(int(opts.get('pfa', 140)), it[-1])
            assert light(rp - 1, it[:-1], 2, back=True) > xpos[4][0]
        if opts.get('lim'):
            for r in vpos + [x[0] for x in xpos]:
                light(r - 1, [f'  s_waitcnt vmcnt({opts["lim"]})'], 2, back=True)
        for a, b in zip(xpos, xpos[1:]): assert b[0] - a[0] >= 5
        r1 = light(max(lastst, xpos[0][0]) + 1, [x for x in st_adv() if x != 'NOP'], 2)
        assert r1 < (E0_AT[0] + 4 if DIR else 144)
        return F
    def tile(t, G0=0):
        kp = t & 1
        F0 = fillers(t); F1 = fillers(t + 1)
        for G_ in range(G0, 12):
            mt, kg = G_ // 6, G_ % 6
            if DBG == 2 and G_ in (4, 10): e(f'  s_memrealtime s[{[42, 44, 48, 50][2*kp + (G_ == 10)]}:{[42, 44, 48, 50][2*kp + (G_ == 10)]+1}]')
            if G_ == 10:
                if G0 == 0 and kp == 1 and opts.get('skv'):
                    e(f'  s_cmp_ge_u32 s{sF[1]}, s{sOOB}')
                    e(f'  s_cbranch_scc1 L_npv{t}')
                    g.wait((kp, 'barv'), vm=('L', t + 1, 5))
                    e(f'L_npv{t}:')
                    g.wait((kp, 'bar'), lg=('OW', 0, 2))
                elif G0 == 0: g.wait((kp, 'bar'), vm=('L', t + 1, 5), lg=('OW', 0, 2))
                if kp == 0 and not unroll: e('L_ent:')
                e('  s_barrier')
                if DBG == 2: e(f'  s_memrealtime s[{[46, 52][kp]}:{[46, 52][kp]+1}]')
                if t & 1:
                    for r in vLdsR: e(f'  v_xor_b32 v{r}, {2*TILE_B}, v{r}')
            g.wait((kp, 'x', G_), lg=('X', t, 2*G_ + 1))
            if opts.get('lpad') and G_ % 2 == 0:
                e(f'  s_cbranch_vccz L_lp{t}_{G_}'); e(f'  s_nop {opts["lpad"].split(",")[0]}'); e(f'L_lp{t}_{G_}:')
            if opts.get('lpad') and G_ == 11:
                e(f'  s_add_u32 s37, s{sBase}, {(NTILE - 2 - int(opts["lpad"].split(",")[1]))*KSTEP}'); e(f'  s_cmp_ge_u32 s37, s{sEnd}'); e('  s_cselect_b64 vcc, -1, 0')
            for pd_ in (opts['pad'].split(',') if opts.get('pad') else []): e(f'  s_nop {pd_}')
            for nt in range(6):
                for k in range(2):
                    kk = k ^ (nt & 1) if opts.get('snake') else k
                    ks = 2*kg + kk; i = 12*mt + ks
                    x = XF + 8*(G_ % 3) + 4*kk
                    a = ACC + 24*mt + 4*nt
                    c = '0' if kg == 0 and k == 0 else f'v[{a}:{a+3}]'
                    e(f'  v_mfma_f32_16x16x32_bf16 v[{a}:{a+3}], {breg(ks, nt)}, a[{x}:{x+3}], {c}')
                    gap = 12*G_ + 2*nt + k
                    if gap % 12 in (0, 1):
                        j = 2*G_ + 4 + (gap % 12)
                        if j < 24: rd(t, j)
                        else: rd(t + 1, j - 24)
                    run(F0[gap + 24] if gap < 120 else F1[gap - 120])
    if FUSE:
        Q = (xdma_items(2) if XB == 12 else []) + [x if x != 'NOP' else '  s_nop 0' for x in st_adv()]
        E = epi(0, 0, 0) + epi(0, 1, 0) + epi(0, 2, 0)
        T1 = list(FIN[0])
        run(Q[:4]); Q = Q[4:]
        while T1 or E:
            if T1: e(T1.pop(0))
            run(E[:3]); E = E[3:]
        run(Q)
    stamp()
    if DBG:
        e(f'  s_mov_b32 s94, {sn[0]}')
        e('  s_mov_b32 s60, s64')
        e('  s_memtime s[38:39]') if 0 else e('  s_memtime s[86:87]')
    def tail(t):
        if DIR:
            e('  s_nop 3')
            for u in range(3): run(epi(1, u, t & 1))
            return
        done = [UORD[k] for k in range(6) if OS_AT[k] < 24]
        rdone = [UORD[k] for k in range(6) if OR_AT[k] < 24]
        for u in UORD:
            if u not in rdone: out_read(t, u)
        e('  s_nop 3')
        for u in range(3): run(epi(1, u, t & 1))
        for u in UORD:
            if u not in done: out_store(t, u, 'T')
        run([x if x != 'NOP' else '  s_nop 0' for x in st_adv(1)])
        e('  s_waitcnt lgkmcnt(0)')
        e('  s_barrier')
        for u in range(3):
            e(f'  ds_read_b128 a[{XF+4*u}:{XF+4*u+3}], v{vOR[u]} offset:{(t & 1)*TILE_B + 12288}')
        for u in range(3):
            e(f'  s_waitcnt lgkmcnt({2-u})')
            e(f'  buffer_store_dwordx4 a[{XF+4*u}:{XF+4*u+3}], v{[vTS3, vST[1], vST[2]][u]}, s[{sO}:{sO+3}], s{sSo[[2, 3, 3][u]]} offen{NT_ST}')
    PEEL = int(opts.get('peel', 0))
    def last_tile(t):
        F = [[] for _ in range(150)]
        use = [(1 if (r % 12 == 11 or (r % 12 in (0, 1) and r < 120)) else 0) for r in range(150)]
        def put(r, items):
            for it in items:
                if it == 'NOP': continue
                while use[r]: r += 1
                F[r].append(it); use[r] = 1
            return r
        def part(q):
            return [f'  s_mov_b32 s{sSo[1]}, s{q}', f'  s_mov_b32 s{sSo[3]}, s{q+1}', f'  s_min_u32 s{sSo[2]}, s{q}, s{q+1}',
                    f'  s_cmp_gt_u32 s{q}, s{q+1}', f'  s_cselect_b64 s[{sSm}:{sSm+1}], -1, 0', f'  v_cndmask_b32 v{vTS}, v{vST[4]}, v{vST4b}, s[{sSm}:{sSm+1}]']
        assert all(o < 24 for o in OR_AT) and UORD[:3] == [3, 4, 5]
        L1 = ints('l1', '6,16,28,40'); L2 = ints('l2', '62,74,88'); L3 = ints('l3', '120,128,136')
        BX, BY = int(opts.get('bx', 4)), int(opts.get('by', 9))
        rem = [UORD[k] for k in range(6) if OS_AT[k] >= 24]
        pos = {}
        for u, r in zip(rem, L1[-len(rem):]): pos[u] = put(r, [lambda u=u: out_store(t, u, 'L')])
        for u, r in zip((3, 4, 5), L2): p2 = put(r, [lambda u=u: out_store(t + 1, u, 'L2')])
        for u, r in zip((0, 1, 2), L3): put(r, [lambda u=u: out_store(t + 1, u, 'L2')])
        r = 3
        for u in range(3): r = put(r, epi(1, u, t & 1)) + 1
        assert r < 12*BX - 4
        r = 75
        for u in range(3): r = put(r, epi(0, u, t & 1)) + 1
        assert r < 12*BY - 4
        put(12*BX + 2, [lambda u=u: out_read(t + 1, u) for u in (3, 4, 5)])
        put(12*BY + 2, [lambda u=u: out_read(t + 1, u) for u in (0, 1, 2)])
        assert put(pos.get(5, 0) + 1, part(sF[2])) < L2[0] and max(pos.values()) < 12*BX
        put(max(pos.values()) + 1, [f'  s_mov_b32 s{sSo[0]}, s{sF[1]}'])
        put(p2 + 1, part(sF[1]))
        for G_ in range(12):
            mt, kg = G_ // 6, G_ % 6
            if G_ in (BX, BY):
                g.wait(('L', 'bar', G_), lg=('OW', 1 if G_ == BX else 0, 2))
                e('  s_barrier')
            g.wait(('L', 'x', G_), lg=('X', t, 2*G_ + 1))
            for nt in range(6):
                for k in range(2):
                    ks = 2*kg + k
                    x = XF + 8*(G_ % 3) + 4*k
                    a = ACC + 24*mt + 4*nt
                    c = '0' if ks == 0 else f'v[{a}:{a+3}]'
                    e(f'  v_mfma_f32_16x16x32_bf16 v[{a}:{a+3}], {breg(ks, nt)}, a[{x}:{x+3}], {c}')
                    gap = 12*G_ + 2*nt + k
                    if gap % 12 in (0, 1) and 2*G_ + 4 + (gap % 12) < 24: rd(t, 2*G_ + 4 + (gap % 12))
                    run(F[gap])
        assert not any(F[144:])
        if DBG:
            e('  s_mov_b32 m0, s94'); e('  s_nop 0'); e('  v_writelane_b32 v0, s60, m0')
            e('  s_memrealtime s[60:61]'); e('  s_memtime s[88:89]')
        else: e('  s_nop 1')
        for u in range(3): run(epi(1, u, (t + 1) & 1))
        e('  s_waitcnt lgkmcnt(0)')
        e('  s_barrier')
        for u in range(3):
            e(f'  ds_read_b128 a[{XF+4*u}:{XF+4*u+3}], v{vOR[u]} offset:{((t + 1) & 1)*TILE_B + 12288}')
        for u in range(3):
            e(f'  s_waitcnt lgkmcnt({2-u})')
            e(f'  buffer_store_dwordx4 a[{XF+4*u}:{XF+4*u+3}], v{vTS if u == 1 else vST[u+3]}, s[{sO}:{sO+3}], s{sSo[u+1]} offen{NT_ST}')
    if FUSE: g.wait('ent', vm=('L', 1, 5), lg=('OW', 0, 2))
    if PEEL and unroll:
        for t in range(NTILE - 1): tile(t)
        last_tile(NTILE - 1)
    elif PEEL:
        e('L_loop:')
        tile(0)
        e(f'  s_cmp_ge_u32 s{sF[0]}, s{sOOB}')
        e(f'  s_cbranch_scc1 L_tail')
        tile(1)
        if DBG:
            e('  s_mov_b32 m0, s94'); e('  s_nop 0'); e('  v_writelane_b32 v0, s60, m0')
            e('  s_add_u32 s94, s94, 1')
            e('  s_memrealtime s[60:61]')
        e(f'  s_branch L_loop')
        e('L_tail:')
        last_tile(1)
        if DBG: e('  s_mov_b32 s94, 15')
    elif unroll:
        tile(0, 10 if FUSE else 0)
        for t in range(1, NTILE): tile(t)
        tail(NTILE)
    else:
        if FUSE: e('  s_branch L_ent')
        if opts.get('al'): e(f'  .p2align {opts["al"]}')
        e('L_loop:')
        tile(0)
        tile(1)
        if DBG:
            e('  s_mov_b32 m0, s94'); e('  s_nop 0'); e('  v_writelane_b32 v0, s60, m0')
            e('  s_add_u32 s94, s94, 1')
            e('  s_min_u32 s94, s94, 15')
            e('  s_memrealtime s[60:61]')
        e(f'  s_cmp_lt_u32 s{sF[1]}, s{sOOB}')
        e(f'  s_cbranch_scc1 L_loop')
        e('L_tail:')
        if DBG: e('  s_memtime s[88:89]')
        tail(0)
        if DBG: e('  s_mov_b32 s94, 15')
    if DBG:
        e('  s_mov_b32 m0, s94'); e('  s_nop 0'); e('  v_writelane_b32 v0, s60, m0')
        e('  s_add_u32 s94, s94, 1')
        e('  s_load_dwordx2 s[24:25], s[0:1], 40')
        e('  s_waitcnt vmcnt(0)')
        e('  s_memrealtime s[54:55]')
        e('  s_memtime s[98:99]')
        e('  s_waitcnt lgkmcnt(0)')
        e('  s_mov_b32 m0, s94'); e('  s_nop 0'); e('  v_writelane_b32 v0, s54, m0')
        e('  s_sub_u32 s98, s98, s96')
        e('  s_add_u32 s98, s98, s64')
        e('  v_writelane_b32 v0, s98, 31')
        e('  s_sub_u32 s88, s88, s86')
        e('  v_writelane_b32 v0, s88, 30')
        if DBG == 2:
            for i in range(6): e(f'  v_writelane_b32 v0, s{42+2*i}, {17+i}')
        e(f'  v_writelane_b32 v0, s{sPv}, 29')
        e(f'  v_writelane_b32 v0, s{sDec}, 28')
        e(f'  v_writelane_b32 v0, s3, 27')
        for i in range(sn[0]): e(f'  v_writelane_b32 v0, s{64+2*i}, {i}')
        e('  s_mov_b32 s56, s24'); e('  s_and_b32 s57, s25, 0xffff'); e('  s_mov_b32 s58, 452984832'); e('  s_mov_b32 s59, 0x00020000')
        e('  s_lshl_b32 s26, s2, 9'); e(f'  s_lshl_b32 s27, s{sW}, 7'); e('  s_add_u32 s26, s26, s27')
        e('  v_mbcnt_lo_u32_b32 v1, -1, 0')
        e('  v_lshlrev_b32 v1, 2, v1')
        e('  s_mov_b64 exec, 0xffffffff')
        e('  buffer_store_dword v0, v1, s[56:59], s26 offen')
    if AMP:
        e('  s_waitcnt vmcnt(0)')
        e('  s_memrealtime s[54:55]')
        e('  s_waitcnt lgkmcnt(0)')
        e(f'  s_cmp_lg_u32 s2, {int(opts.get("ampwg", 100))}')
        e('  s_cbranch_scc1 L_done')
        if AMP == 'c':
            e('  s_memtime s[98:99]')
            e('  s_waitcnt lgkmcnt(0)')
            e('  s_sub_u32 s27, s98, s96')
            e('  s_lshr_b32 s27, s27, 1')
        else:
            e(f'  s_sub_u32 s27, s{54 if AMP == "e" else 64 + 2*int(AMP)}, s64')
            e('  s_mul_i32 s27, s27, 10')
        e('L_spin:')
        e('  s_sleep 8')
        e('  s_memrealtime s[56:57]')
        e('  s_waitcnt lgkmcnt(0)')
        e('  s_sub_u32 s26, s56, s54')
        e('  s_cmp_lt_u32 s26, s27')
        e('  s_cbranch_scc1 L_spin')
    if NUMA:
        e('  s_endpgm')
        e('L_slow:')
        e(f'  v_mbcnt_lo_u32_b32 v253, -1, 0')
        e(f'  v_and_b32 v253, 3, v253')
        e(f'  v_lshl_add_u32 v{vTX}, v253, 2, s{sOf[0]}')
        e('  s_mov_b64 exec, 0xf0')
        e(f'  v_lshl_add_u32 v{vTX}, v253, 2, s{sOf[1]}')
        e('  s_mov_b64 exec, 0xf00')
        e(f'  v_lshl_add_u32 v{vTX}, v253, 2, s{sOf[2]}')
        e('  s_mov_b64 exec, -1')
        SP = ACC + 40 if DEC else (254 if DS <= 10 else FT)
        assert DS != 11
        e(f'  v_mov_b32 v{SP}, 1')
        e(f'  v_mov_b32 v{SP+1}, 0')
        e('  s_mov_b64 exec, 0xfff')
        e(f'  buffer_atomic_cmpswap v[{SP}:{SP+1}], v{vTX}, s[{sDS}:{sDS+3}], 0 offen sc0 sc1')
        e('  s_waitcnt vmcnt(0)')
        e(f'  v_max_u32 v{SP}, 1, v{SP}')
        e('  s_nop 0')
        for i in range(12): e(f'  v_readlane_b32 s{sEn[i // 4] + i % 4}, v{SP}, {i}')
        e('  s_nop 3')
        e('  s_mov_b64 exec, -1')
        if DBG: e('  s_mov_b32 s3, 1')
        e('  s_branch L_back')
    e('L_done:')
    e('  s_endpgm')
    e('.section .rodata,"a"')
    e('.p2align 6')
    e('.amdhsa_kernel standalone__depthwise_separable__vision_kernel')
    e('  .amdhsa_next_free_vgpr 512')
    e('  .amdhsa_next_free_sgpr 100')
    e('  .amdhsa_accum_offset 256')
    e('  .amdhsa_group_segment_fixed_size 0')
    e('  .amdhsa_kernarg_size 48')
    e('  .amdhsa_user_sgpr_count 2')
    e('  .amdhsa_user_sgpr_kernarg_segment_ptr 1')
    e('  .amdhsa_system_sgpr_workgroup_id_x 1')
    e('  .amdhsa_float_denorm_mode_32 3')
    e('.end_amdhsa_kernel')

if __name__ == '__main__':
    out = sys.argv[1]
    opts = dict(a.split('=', 1) for a in sys.argv[2:])
    for k in ('nt_ld', 'nt_st', 'nt_b'):
        if k in opts: opts[k] = (' ' + opts[k].replace('+', ' ')) if opts[k] != 'none' else ''
    open(out, 'w').write(gen(opts))
```

```python
import sys, re
from gen3 import G, HDR
from gen5 import regs_of

DOC = """
out[M,384] = x[M,384] @ (dw[:,None] * pw)   (1x1 depthwise scale folded into the pointwise weights, bf16 RNE, fp32 accumulate)
256 persistent workgroups x 4 waves; each wave keeps 96 output columns of the folded weights in registers.
Prologue : pw is streamed through LDS (LDS-DMA + transposing reads), scaled by dw with a diagonal MFMA and packed to bf16.
Main loop: 32-row tiles of x arrive by LDS-DMA into a 4-slot ring; 16x16x32 MFMAs; results go through LDS to full-line stores.
Placement: 4 workgroups share each 128-row period and split it into four row-gather tiles, one per 8 KB interleave class of memory.
           A few workgroups time one load per class (s_memtime) to find the class nearest to them and publish it with a
           first-wins compare-and-swap in d_debug; every workgroup uses the settled words, so each row is computed exactly once
           under any placement and the result does not depend on the timings (they only choose who computes which rows).
Flow ctl : at most 9 memory ops per wave stay in flight, fewer in a few tiles; this keeps the memory system out of its throttled state.
"""

def hazard_check(L):
    ins = [l.strip() for l in L if l.startswith('  ') and not l.strip().startswith(';')]
    hist = []; st = 0; last_valu = []; last_st = []; last_m0 = -9; last_sg = []; lastscc = ''
    for l in ins:
        op = l.split()[0]
        toks = [t.strip(',') for t in l.split()[1:]]
        allr = set()
        for t in toks: allr |= regs_of(t)
        if op.startswith('v_mfma'):
            d = regs_of(toks[0]); a = regs_of(toks[1]); b = regs_of(toks[2]); c = regs_of(toks[3])
            for (s0, r) in last_valu:
                if st - s0 - 1 < 2 and (r & (a | b | c)): raise Exception(f'VALU->MFMA hazard: {l}')
            for (s0, dd, cc) in hist:
                if st - s0 - 1 < 8 and (dd & (a | b)): raise Exception(f'MFMA D->A/B hazard: {l}')
                if st - s0 - 1 < 6 and (dd & c) and dd != c: raise Exception(f'MFMA D->C overlap hazard: {l}')
                if st - s0 - 1 < 6 and (dd & d) and dd != c: raise Exception(f'MFMA D->D WAW: {l}')
            for (s0, r) in last_st:
                if st - s0 - 1 < 8 and (r & d): raise Exception(f'store data WAR (mfma): {l}')
            hist.append((st, d, c))
        elif op.startswith('v_') or op.startswith('ds_') or op.startswith('buffer_'):
            for (s0, dd, cc) in hist:
                if st - s0 - 1 < 8 and (dd & allr): raise Exception(f'MFMA D->use hazard dist {st-s0-1}: {l}')
            if op.startswith('v_'):
                w = regs_of(toks[0])
                for (s0, dd, cc) in hist:
                    if st - s0 - 1 < 3 and (cc & w): raise Exception(f'MFMA C WAR hazard: {l}')
                for (s0, r) in last_st:
                    if st - s0 - 1 < 2 and (r & w): raise Exception(f'store data WAR: {l}')
                if op in ('v_readfirstlane_b32', 'v_readlane_b32'):
                    for (s0, r) in last_valu:
                        if st - s0 - 1 < 1 and (r & regs_of(toks[1])): raise Exception(f'readlane hazard: {l}')
                    last_sg.append((st, toks[0]))
                else:
                    for (s0, sg) in last_sg:
                        if st - s0 - 1 < 2 and sg in toks[1:]: raise Exception(f'VALU sgpr->VALU hazard: {l}')
                last_valu.append((st, w)); last_valu = last_valu[-4:]
            if op.startswith('buffer_store') or op.startswith('ds_write'):
                last_st.append((st, regs_of(toks[0] if op.startswith('buffer') else toks[1]))); last_st = last_st[-4:]
            if op.startswith('buffer_') and l.endswith('lds') and st - last_m0 - 1 < 1: raise Exception(f'm0 hazard: {l}')
            if op.startswith('buffer_'):
                for (s0, sg) in last_sg:
                    if st - s0 - 1 < 5 and sg in toks: raise Exception(f'VALU sgpr->VMEM hazard: {l}')
        elif op.startswith('s_') and toks and toks[0] == 'm0': last_m0 = st
        if op.startswith('s_cselect') or op.startswith('s_cbranch_scc'):
            if not (lastscc.startswith('s_cmp') or lastscc.startswith('s_bitcmp')): raise Exception(f'SCC clobbered by {lastscc}: {l}')
        elif re.match(r's_(add|sub|and|or|xor|min|max|lshl|lshr|cmp|bitcmp|andn2|ashr|bfe|not)', op): lastscc = op
        hist = [h for h in hist if st - h[0] < 24]
        st += int(toks[0]) + 1 if op == 's_nop' else 1

class G2(G):
    def __init__(self):
        self.need = {}
        super().__init__()
    def reset(self, mode):
        super().reset(mode); self.lgd = 0; self.vmd = 0
    def _cnt(self, lst, tag):
        if tag[:2] == ('O', 0) and tag not in lst: return len(lst)
        return super()._cnt(lst, tag)
    def wait(self, key, vm=None, lg=None, opt=False):
        if self.mode == 'collect2':
            nd = False
            if lg is not None and len(self.lg) - self._cnt(self.lg, lg) > self.lgd: nd = True
            if vm is not None and len(self.vm) - self._cnt(self.vm, vm) > self.vmd: nd = True
            self.need[key] = self.need.get(key, False) or nd or not opt
            v, l = self.sites[key]
            if not opt:
                if lg is not None: self.lgd = max(self.lgd, len(self.lg) - l)
                if vm is not None: self.vmd = max(self.vmd, len(self.vm) - v)
            return
        if self.mode in ('emit', 'check') and not self.need[key]: return
        super().wait(key, vm, lg)

def gen(opts):
    g = G2()
    g.reset('collect')
    build(g, opts, unroll=True)
    g.reset('collect2')
    build(g, opts, unroll=True)
    g.reset('check')
    build(g, opts, unroll=True)
    hazard_check(g.L)
    L2 = []; skip = None
    for l in g.L:
        if skip:
            if l == skip + ':': skip = None
            continue
        L2.append(l)
        m = re.match(r'  s_cbranch_scc1 (L_np\w*)', l)
        if m: skip = m.group(1)
    hazard_check(L2)
    g.reset('emit')
    build(g, opts, unroll=False)
    L = g.L
    if int(opts.get('iw', 0)):
        S = int(opts['iw'])
        i0 = L.index('L_tail:') + 1
        i1 = max(k for k, l in enumerate(L) if l == '  s_endpgm' and k < L.index('L_done:'))
        def size(l):
            t = l.strip()
            if not l.startswith('  '): return 0
            if re.match(r's_(waitcnt|barrier|nop|cbranch|branch|endpgm|cmp|mov_b32 s\d+, s|min_u32 s\d+, s\d+, s|cselect)', t): return 4
            return 8
        out = []; acc = S; n = 0
        for l in L[i0:i1]:
            if acc >= S and (l.startswith('  v_mfma') or l.startswith('  v_cvt') or l.startswith('  ds_') or l.startswith('  s_waitcnt')):
                out += [f'L_iw{n}:', f'@PAD{n}']; n += 1; acc = 4
            out.append(l); acc += size(l)
        seg = -(-n // 4)
        out = [(f'  s_cbranch_vccnz {"L_iwr" if (int(l[4:]) % seg == seg - 1 or int(l[4:]) == n - 1) else f"L_iw{int(l[4:]) + 1}"}' if l.startswith('@PAD') else l) for l in out]
        L = L[:i0] + out + L[i1:]
        h = L.index('@IWHOP')
        hop = ['  s_mov_b64 vcc, -1']
        for w in range(1, 4):
            if w * seg < n: hop += [f'  s_cmp_eq_u32 s20, {w}', f'  s_cbranch_scc1 L_iw{w*seg}']
        hop += ['  s_branch L_iw0', 'L_iwr:']
        L = L[:h] + hop + L[h+1:]
    L = [l for l in L if l != '@IWHOP']
    abl = opts.get('abl', '')
    if abl:
        i0 = L.index('L_loop:'); i1 = L.index('L_tail:')
        def keep(l):
            s = l.strip()
            if 'O' in abl and (s.startswith('ds_write_b128') or re.match(r'ds_read_b128 a\[(16[89]|17\d|18\d)', s)): return False
            if 'T' in abl and s.startswith('buffer_store'): return False
            if 'L' in abl and s.startswith('buffer_load'): return False
            if 'B' in abl and s.startswith('s_barrier'): return False
            if 'C' in abl and s.startswith('v_cvt'): return False
            if 'H' in abl and s.startswith('v_mfma') and int(re.search(r'v\[(\d+):', s).group(1)) % 8 == 4: return False
            return True
        L = L[:i0] + [l for l in L[i0:i1] if keep(l)] + L[i1:]
    return '\n'.join(L) + '\n'

def build(g, opts, unroll):
    NT_LD = opts.get('nt_ld', ' nt'); NT_ST = opts.get('nt_st', ' sc1'); NT_B = opts.get('nt_b', '')
    DBG = int(opts.get('dbg', 0)); AMP = opts.get('amp')
    DIR = int(opts.get('dir', 0))
    PD = int(opts.get('pd', 2))
    e = g.e
    TILE_B = 32 * 768; NTILE = 18; STRIDE = 256 * TILE_B
    LDS_O = 4 * TILE_B + 256; LDS_DW = 6 * TILE_B + 512; LDS_PR = LDS_DW + 4096; LDS_TOTAL = LDS_PR + 64
    AREA = [LDS_O, LDS_O + TILE_B + 64, 2 * TILE_B, 3 * TILE_B + 64]
    OOB = 113246208
    vLdsR = [1, 2, 3, 4]; vOR = [5, 6, 7]; vXS = [8, 9, 10]; vMk = [11, 12]; vTS2 = 13; vTS3 = 14; vTX = 15
    ACC = 16
    PT = 64
    vBL = [PT, PT+1, PT+2]; vTr = PT+3; vDW = PT+4; vM = [PT+5, PT+6]; vTr2 = PT+7
    DWR = [PT+8, PT+12]
    vST = [PT+16+i for i in range(3)]; vOW = [PT+22, PT+23]
    T = [ACC+i for i in range(12)]; vLane = ACC + 12
    FUSE = int(opts.get('fuse', 0))
    FT = 88 if FUSE else ACC; NFT = 6 if FUSE else (8 if opts.get('dec') else 12)
    BV = 112 if FUSE else 88
    NA = 6 if FUSE else 5
    ASLOTS = [int(c, 16) for c in opts.get('aslots', '012346' if FUSE else '13579')]
    NAR = 4 if FUSE else int(opts.get('nar', 4))
    if NAR == 5: AREA = [TILE_B + k * (TILE_B + 64) for k in range(5)]
    assert len(ASLOTS) == NA
    VSLOTS = [s for s in range(12) if s not in ASLOTS]
    XF = 144
    OB = 168
    RAW = [192, 216]
    sX, sO, sP, sD = 4, 8, 12, 16
    sW, sCnt = 20, 21
    sRing, sOOB = 39, 40
    sF = [76, 78, 80, 82]
    sBase, sVa, sDec, sEnd = 32, 33, 34, 21
    sP1, sP2 = 28, 30
    sEn = [44, 84, 12]; sOf = [88, 89, 95]
    sXa, sXb, sXd, sXe = 22, 56, 57, 90; sSd = 91
    sSo = [58, 59, 62, 63]; sSm = 90
    sDb = 92
    sDS = 16
    sRd = 88; sRd2 = 60; sVc = 61; sVb = 95; sEo = 36; sPa = 37; sPb = 38; sPr = 23; sPv = 41; sPT = 84
    KSTEP = 16 * 49152
    sG = [42, 43, 44]; sQ = [45, 46, 47, 48]; sBW = 49; sT = [50, 51, 52, 53]; sR1, sR2 = 54, 55

    def breg(s, nt, n=4, o=0):
        if s in ASLOTS:
            i = ASLOTS.index(s) * 24 + nt * 4 + o
            return f'a[{i}:{i+n-1}]' if n > 1 else f'a{i}'
        i = BV + VSLOTS.index(s) * 24 + nt * 4 + o
        return f'v[{i}:{i+n-1}]' if n > 1 else f'v{i}'
    sn = [0]
    def stamp():
        if DBG or AMP:
            e(f'  s_memrealtime s[{64+2*sn[0]}:{65+2*sn[0]}]'); sn[0] += 1
    def run(items):
        for it in items:
            if callable(it): it()
            else: e(it)

    e(HDR.rstrip('\n'))
    e(f'; @launch grid=(256,1,1) block=(256,1,1) lds={LDS_TOTAL}')
    e('.amdgcn_target "amdgcn-amd-amdhsa--gfx950"')
    e('.text')
    for l in DOC.strip().split('\n'): e('; ' + l)
    e('.globl standalone__depthwise_separable__vision_kernel')
    e('.p2align 8')
    e('.type standalone__depthwise_separable__vision_kernel,@function')
    e('standalone__depthwise_separable__vision_kernel:')
    e('  s_load_dwordx8 s[24:31], s[0:1], 0')
    e(f'  s_load_dwordx2 s[{sDb}:{sDb+1}], s[0:1], 32')
    e('  s_cmp_ge_u32 s2, 256')
    e('  s_cbranch_scc1 L_done')
    stamp()
    if AMP == 'c': e('  s_memtime s[96:97]')
    if DBG: e('  s_memtime s[96:97]'); e('  s_mov_b32 s3, 0'); e(f'  s_mov_b32 s{sPv}, 0')
    e(f'  v_lshrrev_b32 v{T[0]}, 6, v0')
    e(f'  v_and_b32 v{vLane}, 63, v0')
    e(f'  v_readfirstlane_b32 s{sW}, v{T[0]}')
    KICK = int(opts.get('kick', 0))
    def kick_a():
        e(f'  s_lshr_b32 s{sT[2]}, s2, 3')
        e(f'  s_mul_i32 s{sT[2]}, s{sT[2]}, 9216')
        if KICK == 2: e(f'  v_and_b32 v{T[5]}, 127, v0')
        e(f'  v_lshl_add_u32 v{T[5]}, v{T[5] if KICK == 2 else 0}, 7, s{sT[2]}')
        e(f'  v_min_u32 v{T[5]}, 294784, v{T[5]}')
    def kick_b():
        e('  s_waitcnt lgkmcnt(0)')
        g.vmop(f'  global_load_dword v{BV+1}, v{T[5]}, s[28:29]', ('K',))
    if KICK: kick_a()
    if KICK and opts.get('kf'): kick_b()
    CW = int(opts.get('cw', 128))
    if CW: e('; --- touch the code once so that later instruction fetches hit L2')
    if CW:
        e(f'  s_getpc_b64 s[{sT[0]}:{sT[1]}]')
        e('L_pc:')
        e(f'  v_mul_u32_u24 v{T[2]}, {CW}, v0')
        e(f'  v_min_u32 v{T[2]}, L_done-L_pc, v{T[2]}')
        e(f'  v_mov_b32 v{T[3]}, s{sT[1]}')
        e(f'  v_add_co_u32 v{T[2]}, vcc, s{sT[0]}, v{T[2]}')
        e(f'  s_nop 1')
        e(f'  v_addc_co_u32 v{T[3]}, vcc, 0, v{T[3]}, vcc')
        g.vmop(f'  global_load_dword v{BV}, v[{T[2]}:{T[3]}], off', ('CW',))
    if KICK and not opts.get('kf'): kick_b()
    e(f'  s_lshr_b32 s{sT[0]}, s2, 3')
    e(f'  s_and_b32 s{sR2}, s{sT[0]}, 3')
    e(f'  s_lshr_b32 s{sR1}, s{sT[0]}, 2')
    e(f'  s_mul_i32 s{sT[1]}, s{sR1}, 11')
    e(f'  s_lshr_b32 s{sT[1]}, s{sT[1]}, 5')
    e(f'  s_mul_i32 s{sT[1]}, s{sT[1]}, 3')
    e(f'  s_sub_u32 s{sR1}, s{sR1}, s{sT[1]}')
    if opts.get('norot'):
        e(f'  s_mov_b32 s{sR1}, 0'); e(f'  s_mov_b32 s{sR2}, 0')
    e(f'  s_mul_i32 s{sT[2]}, s{sW}, 192')
    for i in range(3):
        if i: e(f'  v_add_u32 v{T[1]}, {64*i}, v{vLane}')
        q = T[1] if i else vLane
        e(f'  v_mul_u32_u24 v{T[2]}, 0xaaab, v{q}')
        e(f'  v_lshrrev_b32 v{T[2]}, 19, v{T[2]}')
        e(f'  v_mul_u32_u24 v{T[3]}, 576, v{T[2]}')
        e(f'  v_lshl_add_u32 v{T[3]}, v{vLane}, 4, v{T[3]}')
        if i == 1:
            e(f'  v_lshrrev_b32 v{T[2]}, 3, v{T[2]}')
            e(f'  v_mul_u32_u24 v{T[2]}, 6144, v{T[2]}')
            e(f'  v_add_u32 v{T[3]}, v{T[3]}, v{T[2]}')
        if i == 2: e(f'  v_add_u32 v{T[3]}, 6144, v{T[3]}')
        e(f'  v_add_u32 v{vBL[i]}, s{sT[2]}, v{T[3]}')
    NUMA = int(opts.get('numa', 1))
    PRM = int(opts.get('prm', 28))
    def srd(sd, lo, nbytes):
        e(f'  s_mov_b32 s{sd}, s{lo}')
        e(f'  s_and_b32 s{sd+1}, s{lo+1}, 0xffff')
        e(f'  s_mov_b32 s{sd+2}, {nbytes}')
        e(f'  s_mov_b32 s{sd+3}, 0x00020000')
    def p_gb1():
        e(f'  s_add_u32 s{sG[1]}, s{sG[0]}, 98304')
        e(f'  s_cmp_eq_u32 s{sR1}, 2')
        e(f'  s_cselect_b32 s{sG[1]}, 0, s{sG[1]}')
        e(f'  s_add_u32 s{sG[2]}, s{sG[1]}, 98304')
        e(f'  s_cmp_eq_u32 s{sR1}, 1')
        e(f'  s_cselect_b32 s{sG[2]}, 0, s{sG[2]}')
        for q in range(1, 4):
            e(f'  s_xor_b32 s{sQ[q]}, s{sR2}, {q}')
            e(f'  s_mul_i32 s{sQ[q]}, s{sQ[q]}, {TILE_B}')
    def p_dws():
        e(f'  s_lshl_b32 s{sT[3]}, s{sR2}, 2')
        e(f'  v_lshrrev_b32 v{T[1]}, 4, v{vLane}')
        e(f'  v_add_u32 v{T[2]}, s{sR1}, v{T[1]}')
        e(f'  v_subrev_u32 v{T[3]}, 3, v{T[2]}')
        e(f'  v_min_u32 v{T[2]}, v{T[2]}, v{T[3]}')
        e(f'  v_and_b32 v{T[4]}, 15, v{vLane}')
        e(f'  v_xor_b32 v{T[3]}, s{sT[3]}, v{T[4]}')
        e(f'  v_lshlrev_b32 v{T[3]}, 4, v{T[3]}')
        e(f'  v_lshl_add_u32 v{T[3]}, v{T[2]}, 8, v{T[3]}')
        e(f'  v_cmp_lt_u32 vcc, 47, v{vLane}')
        e(f'  s_lshl_b32 s{sT[0]}, s{sW}, 10')
        e(f'  s_add_u32 m0, s{sT[0]}, {LDS_DW}')
        e(f'  v_cndmask_b32 v{T[3]}, v{T[3]}, v{vBL[2]}, vcc')
    def p_tl():
        e(f'  s_lshr_b32 s{sT[1]}, s2, 5')
        e(f'  s_and_b32 s{sT[2]}, s2, 3')
        e(f'  s_lshl2_add_u32 s{sEo}, s{sT[1]}, s{sT[2]}')
        e(f'  s_lshl_b32 s{sEo}, s{sEo}, 2')
        e(f'  s_mul_i32 s{sT[1]}, s{sT[1]}, 144')
        e(f'  s_lshr_b32 s{sT[2]}, s{sT[2]}, 1')
        e(f'  s_lshl1_add_u32 s{sT[2]}, s{sR2}, s{sT[2]}')
        e(f'  s_add_u32 s{sT[1]}, s{sT[1]}, s{sT[2]}')
        e(f'  s_mul_i32 s{sBase}, s{sT[1]}, 98304')
        e(f'  s_add_u32 s{sEnd}, s{sBase}, {NTILE*KSTEP}')
        if NUMA:
            e(f'  s_lshl_b32 s{sT[1]}, s{sW}, 11')
            e(f'  s_and_b32 s{sT[2]}, s2, 3')
            e(f'  s_lshl_b32 s{sT[2]}, s{sT[2]}, 8')
            e(f'  s_add_u32 s{sT[1]}, s{sT[1]}, s{sT[2]}')
            e(f'  s_lshr_b32 s{sT[2]}, s2, 5')
            e(f'  s_lshl_b32 s{sPa}, s{sT[2]}, 24')
            e(f'  s_add_u32 s{sPa}, s{sPa}, {(8 << 20) + 0x40000}')
            e(f'  s_mul_i32 s{sT[2]}, s{sT[2]}, {6 << 20}')
            e(f'  s_add_u32 s{sT[2]}, s{sT[2]}, {(64 << 20) + 0x40000}')
            e(f'  s_min_u32 s{sPa}, s{sPa}, s{sT[2]}')
            e(f'  s_add_u32 s{sPa}, s{sPa}, s{sT[1]}')
            e(f'  s_and_b32 s{sPr}, s2, {PRM}')
            e(f'  s_add_u32 s{sPb}, s{sPa}, 8192')
            e(f'  s_cmp_lg_u32 s{sPr}, 0')
    def p_warm():
        if NUMA:
            e(f'  s_cbranch_scc1 L_np0')
            e(f'  s_load_dword s{sPT}, s[24:25], s{sPa} glc')
            e(f'  s_load_dword s{sPT+1}, s[24:25], s{sPb} glc')
            if opts.get('dwm'):
                e(f'  v_mov_b32 v{T[10]}, {int(opts["dwm"])}')
                e(f'  global_load_dword v{BV+1}, v{T[10]}, s[{sDb}:{sDb+1}]{" sc1" if opts["dwm"] == "64" else ""}')
            e('L_np0:')
    def p_dwl():
        srd(sD, 26, 768)
        g.vmop(f'  buffer_load_dwordx4 v{T[3]}, s[{sD}:{sD+3}], 0 offen lds', ('W',))
    e(f'  s_mul_i32 s{sG[0]}, s{sR1}, 98304')
    e(f'  s_mul_i32 s{sQ[0]}, s{sR2}, {TILE_B}')
    e(f'  s_mul_i32 s{sBW}, s{sW}, 6160')
    LEAN = int(opts.get('lean', 2))
    if LEAN == 0: p_gb1(); p_dws()
    if LEAN <= 1: p_tl()
    e('  s_waitcnt lgkmcnt(0)')
    if LEAN <= 1: p_warm()
    if LEAN == 0: p_dwl()
    srd(sP, 28, 294912)
    def bload(s):
        it = []
        for h in range(2):
            it.append(f'  s_add_u32 m0, s{sBW}, {AREA[s % NAR] + h*3080}')
            it.append(f'  s_add_u32 s{sT[0]}, s{sG[s >> 2]}, s{sQ[s & 3]}' if h == 0 else f'  s_add_u32 s{sT[0]}, s{sT[0]}, 6144')
            for i in range(3):
                it.append(lambda h=h, i=i: g.vmop(f'  buffer_load_dwordx4 v{vBL[i]}, s[{sP}:{sP+3}], s{sT[0]} offen offset:{i*1024}{NT_B} lds', ('B', s, 3*h + i)))
        return it
    def halfA(f, o0, dl):
        return [f'  s_cmp_eq_u32 s{f+1}, 0', f'  s_cselect_b32 s{dl}, 73728, s26', f'  s_add_u32 s{o0}, s{f}, s{f+1}',
                f'  s_add_u32 s{o0}, s{o0}, s{dl}', f'  s_min_u32 s{o0}, s{o0}, s{sOOB}']
    def halfB(f, o2, dl, d1p):
        return [f'  s_cmp_eq_u32 s{f+1}, 73728', f'  s_cselect_b32 s{dl}, {-73728 & 0xffffffff}, s27', f'  s_add_u32 s{d1p}, s{f+1}, 12288',
                f'  s_add_u32 s{o2}, s{f}, s{d1p}', f'  s_add_u32 s{o2}, s{o2}, s{dl}', f'  s_min_u32 s{o2}, s{o2}, s{sOOB}']
    def mixv(dst, src, mk, dl, d1):
        return [f'  v_and_b32 v{dst}, s{dl}, v{mk}', f'  v_add3_u32 v{dst}, v{src}, v{dst}, s{d1}']
    def xdma(t, u):
        it = []
        a, b = sF[0], sF[0] + 1
        if u == 0:
            it += [f'  s_mov_b64 s[{sF[k]}:{sF[k]+1}], s[{sF[k-1]}:{sF[k-1]+1}]' for k in range(len(sF) - 1, 0, -1)]
            it += [f'  s_cmp_ge_u32 s{sBase}, s{sDec+1}', f'  s_cselect_b64 s[{sDec}:{sDec+1}], s[{sP1}:{sP1+1}], s[{sDec}:{sDec+1}]',
                   f'  s_cselect_b64 s[{sP1}:{sP1+1}], s[{sP2}:{sP2+1}], s[{sP1}:{sP1+1}]']
            it += [f'  s_add_u32 s{a}, s{sVa}, s{sBase}', f'  s_xor_b32 s{a}, s{a}, s{sDec}',
                   f'  s_bfe_u32 s{b}, s{a}, {21 | (1 << 16)}', f'  s_bfe_u32 s{a}, s{a}, {19 | (1 << 16)}', f'  s_lshl1_add_u32 s{b}, s{a}, s{b}',
                   f'  s_sub_u32 s{b}, 1, s{b}', f'  s_and_b32 s{b}, s{b}, 3', f'  s_mul_i32 s{b}, s{b}, {TILE_B}',
                   f'  s_cmp_lt_u32 s{sBase}, s{sEnd}', f'  s_cselect_b32 s{a}, s{sBase}, s{sOOB}', f'  s_add_u32 s{sBase}, s{sBase}, {KSTEP}']
            it += halfA(a, sXa, sXd)
        if u == 2: it += mixv(vTX, vXS[2], vMk[0], sXd, b)
        if u == 3: it += halfB(a, sXb, sXd, sXe) + mixv(vTX, vXS[0], vMk[1], sXd, sXe)
        it.append(f'  s_add_u32 m0, s{sRing}, {(t & 1)*TILE_B + u*4096}')
        if u == 5 and (t & 1): it.append(f'  s_xor_b32 s{sRing}, s{sRing}, {2*TILE_B}')
        else: it.append('NOP')
        it.append(lambda: g.vmop(f'  buffer_load_dwordx4 v{vTX if u in (2, 3) else vXS[u % 3]}, s[{sX}:{sX+3}], s{[sXa, sXa, a, a, sXb, sXb][u]} offen{NT_LD} lds', ('L', t, u)))
        return it
    PF = opts.get('pf')
    vPF = PT + 2; vPD = PT + 3; sPf0 = 21; sPfo = 37
    def pf_items():
        return [f'  s_add_u32 s{sPfo}, s{sVa}, s{sBase}', f'  s_xor_b32 s{sPfo}, s{sPfo}, s{sDec}', f'  s_lshr_b32 s{sPfo}, s{sPfo}, 8',
                f'  s_and_b32 s{sPfo}, s{sPfo}, 8192', f'  s_add_u32 s{sPfo}, s{sPfo}, s{sBase}',
                f'  s_cmp_lt_u32 s{sBase}, s{sEnd}', f'  s_cselect_b32 s{sPfo}, s{sPfo}, s{sOOB}',
                f'  s_cmp_ge_u32 s{sBase}, s{sPf0}', f'  s_cselect_b32 s{sPfo}, s{sPfo}, s{sOOB}',
                lambda: g.vmop(f'  buffer_load_dword v{vPD}, v{vPF}, s[{sX}:{sX+3}], s{sPfo} offen{opts.get("pfl", "")}', None)]
    def xdma_items(t):
        return ['  s_nop 0' if x == 'NOP' else x for u in range(6) for x in xdma(t, u)]
    NB0 = int(opts.get('nb0', 1)) if FUSE else 99
    NI = int(opts.get('ni', 1))
    run(bload(0))
    if LEAN == 2: p_tl(); p_warm()
    if LEAN: p_dws(); p_dwl(); p_gb1()
    for s in range(1, min(NB0, NI)): run(bload(s))
    if opts.get('tw'):
        e(f'  v_mov_b32 v{T[5]}, s{sBase}')
        g.vmop(f'  global_load_dword v{BV+2}, v{T[5]}, s[24:25]', ('K',))
        g.vmop(f'  global_load_dword v{BV+3}, v{T[5]}, s[30:31]', ('K',))
    if opts.get('st2') == '2': stamp()
    srd(sX, 24, 113246208)
    hi2, lo4 = T[1], T[4]
    e(f'  s_add_u32 s{sVa}, s24, 49152')
    e(f'  s_mov_b32 s{sOOB}, {OOB}')
    e(f'  s_mov_b32 s26, {-24576 & 0xffffffff}')
    e('  s_mov_b32 s27, 24576')
    e(f'  s_lshl_b32 s{sRing}, s{sW}, 10')
    for x in sF[:3]: e(f'  s_mov_b32 s{x}, s{sOOB}'); e(f'  s_mov_b32 s{x+1}, 0')
    e(f'  s_lshr_b32 s{sDec}, s2, 1')
    e(f'  s_xor_b32 s{sDec}, s{sDec}, s2')
    e(f'  s_and_b32 s{sDec}, s{sDec}, 4')
    e(f'  s_and_b32 s{sT[1]}, s2, 1')
    e(f'  s_or_b32 s{sDec}, s{sDec}, s{sT[1]}')
    e(f'  s_lshl_b32 s{sDec}, s{sDec}, 19')
    e(f'  s_mov_b32 s{sDec+1}, -1')
    ROW = [ACC+16, ACC+17, ACC+18]; GG = [ACC+19, ACC+20, ACC+21]
    def rowmap(dst, dst4b, base, u):
        if u == 0:
            e(f'  v_add_u32 v{dst[3]}, {26*768}, v{base}')
            if base != dst[0]: e(f'  v_mov_b32 v{dst[0]}, v{base}')
        if u == 1:
            e(f'  v_cmp_lt_u32 vcc, 5, v{ROW[1]}')
            e(f'  v_add_u32 v{T[8]}, {26*768}, v{base}')
            e(f'  v_add_u32 v{T[9]}, {37*768}, v{base}')
            e(f'  v_cndmask_b32 v{dst[4]}, v{T[8]}, v{T[9]}, vcc')
            if dst4b is not None:
                e(f'  v_add_u32 v{T[8]}, {58*768}, v{base}')
                e(f'  v_add_u32 v{T[9]}, {5*768}, v{base}')
                e(f'  v_cndmask_b32 v{dst4b}, v{T[8]}, v{T[9]}, vcc')
            if base != dst[1]: e(f'  v_mov_b32 v{dst[1]}, v{base}')
        if u == 2:
            e(f'  v_cmp_lt_u32 vcc, 10, v{ROW[2]}')
            e(f'  v_add_u32 v{T[8]}, 7680, v{base}')
            e(f'  v_add_u32 v{dst[5]}, {5*768}, v{base}')
            e(f'  v_cndmask_b32 v{dst[2]}, v{base}, v{T[8]}, vcc')
    e(f'  v_lshrrev_b32 v{GG[0]}, 4, v0')
    e(f'  v_xor_b32 v{T[6]}, s{sT[3]}, v{lo4}')
    for u in range(3):
        if u: e(f'  v_add_u32 v{GG[u]}, {16*u}, v{GG[0]}')
        e(f'  v_mul_u32_u24 v{ROW[u]}, 43, v{GG[u]}')
        e(f'  v_lshrrev_b32 v{ROW[u]}, 7, v{ROW[u]}')
        e(f'  v_mul_u32_u24 v{T[2]}, 3, v{ROW[u]}')
        e(f'  v_sub_u32 v{T[3]}, v{GG[u]}, v{T[2]}')
        e(f'  v_add_u32 v{T[3]}, s{sR1}, v{T[3]}')
        e(f'  v_subrev_u32 v{T[5]}, 3, v{T[3]}')
        e(f'  v_min_u32 v{T[3]}, v{T[3]}, v{T[5]}')
        e(f'  v_add_u32 v{T[3]}, v{T[3]}, v{T[2]}')
        e(f'  v_xor_b32 v{T[5]}, v{ROW[u]}, v{T[6]}')
        e(f'  v_lshlrev_b32 v{T[5]}, 4, v{T[5]}')
        e(f'  v_lshl_add_u32 v{vXS[u]}, v{T[3]}, 8, v{T[5]}')
        if u != 1:
            e(f'  v_cmp_eq_u32 vcc, {10 if u == 2 else 5}, v{ROW[u]}')
            e(f'  s_nop 1')
            e(f'  v_cndmask_b32 v{vMk[0 if u == 2 else 1]}, 0, -1, vcc')
    if NB0 <= 2: run(xdma_items(0))
    STG = int(opts.get('stg', 0))
    sS3 = [58, 59, 62]; sSR = 63
    def x0_site(early):
        it = []
        if early: it += [x for x in xdma(0, 0)[:-3]]
        it += [f'  s_and_b32 s{sSR}, s2, {STG}', f'  s_cmp_eq_u32 s{sSR}, 0' if early else f'  s_cmp_lg_u32 s{sSR}, 0']
        for r, src in zip(sS3, (sF[0], sX4, sF[0] + 1)): it.append(f'  s_cselect_b32 s{r}, s{src}, s{sOOB}')
        it += [f'  s_cselect_b32 s{sSR}, 0, {TILE_B}', f'  s_add_u32 s{sSR}, s{sSR}, s{sRing}']
        for u in range(6):
            if u == 4: it.append(f'  v_cndmask_b32 v{vTX}, v{vXS[4]}, v{vXS4b}, s[{sXm}:{sXm+1}]')
            it += [f'  s_add_u32 m0, s{sSR}, {u*4096}', '  s_nop 0',
                   lambda u=u: g.vmop(f'  buffer_load_dwordx4 v{vTX if u == 4 else vXS[u]}, s[{sX}:{sX+3}], s{sS3[max(0, u - 3)]} offen{NT_LD} lds', ('L', 0, u))]
        return it
    XE = int(opts.get('xe', -1))
    if STG and XE < 0: run(x0_site(True))
    for s in range(NB0, 2): run(bload(s))
    srd(sO, 30, 113246208)
    e(f'  v_lshlrev_b32 v{vST[0]}, 4, v0')
    for u in range(3):
        if u: e(f'  v_add_u32 v{vST[u]}, {4096*u}, v{vST[0]}')
        e(f'  v_and_b32 v{T[5]}, 7, v{ROW[u]}')
        e(f'  v_xor_b32 v{T[5]}, v{T[5]}, v{lo4}')
        e(f'  v_lshlrev_b32 v{T[5]}, 4, v{T[5]}')
        e(f'  v_lshl_add_u32 v{T[5]}, v{GG[u]}, 8, v{T[5]}')
        e(f'  v_add_u32 v{vOR[u]}, {LDS_O}, v{T[5]}')
    if opts.get('xlin'):
        for u in range(3): e(f'  v_mov_b32 v{vXS[u]}, v{vST[u]}')
    if opts.get('xlin') == '2':
        for u in range(2): e(f'  v_mov_b32 v{vMk[u]}, 0')
    e(f'  v_mul_u32_u24 v{T[0]}, 0x300, v{lo4}')
    e(f'  v_xor_b32 v{T[2]}, v{hi2}, v{lo4}')
    e(f'  v_lshl_add_u32 v{vLdsR[0]}, v{T[2]}, 4, v{T[0]}')
    for s in range(1, 4): e(f'  v_xor_b32 v{vLdsR[s]}, {s*64}, v{vLdsR[0]}')
    e(f'  s_mul_i32 s{sT[1]}, s{sW}, 12')
    e(f'  v_and_b32 v{T[2]}, 7, v{lo4}')
    for u in range(2):
        e(f'  v_add_u32 v{T[3]}, s{sT[1]}, v{hi2}')
        if u: e(f'  v_add_u32 v{T[3]}, {4*u}, v{T[3]}')
        e(f'  v_xor_b32 v{T[3]}, v{T[3]}, v{T[2]}')
        e(f'  v_lshl_add_u32 v{vOW[u]}, v{T[3]}, 4, v{T[0]}')
        e(f'  v_add_u32 v{vOW[u]}, {LDS_O}, v{vOW[u]}')
    e(f'  v_bfe_u32 v{T[2]}, v{vLane}, 2, 2')
    e(f'  v_and_b32 v{T[3]}, 3, v{vLane}')
    e(f'  v_lshrrev_b32 v{T[5]}, 1, v{hi2}')
    e(f'  v_lshl_add_u32 v{T[5]}, v{T[5]}, 3, v{T[2]}')
    e(f'  v_mul_u32_u24 v{T[5]}, 192, v{T[5]}')
    e(f'  v_and_b32 v{T[7]}, 1, v{hi2}')
    e(f'  v_mul_u32_u24 v{T[7]}, 3080, v{T[7]}')
    e(f'  v_add_u32 v{T[5]}, v{T[5]}, v{T[7]}')
    e(f'  v_lshl_add_u32 v{T[5]}, v{T[3]}, 4, v{T[5]}')
    e(f'  s_add_u32 s{sT[1]}, s{sBW}, {AREA[2]}')
    e(f'  v_add_u32 v{vTr2}, s{sT[1]}, v{T[5]}')
    e(f'  v_add_u32 v{vTr}, {(AREA[0] - AREA[2]) & 0xffffffff}, v{vTr2}')
    e(f'  s_add_u32 s{sT[1]}, s{sRing}, {LDS_DW}')
    e(f'  v_lshl_add_u32 v{vDW}, v{hi2}, 4, s{sT[1]}')
    e(f'  v_and_b32 v{T[5]}, 1, v{vLane}')
    e(f'  v_lshlrev_b32 v{T[5]}, 4, v{T[5]}')
    e(f'  v_mov_b32 v{T[7]}, 0xffff')
    e(f'  v_lshlrev_b32 v{T[5]}, v{T[5]}, v{T[7]}')
    e(f'  v_lshlrev_b32 v{T[0]}, 1, v{hi2}')
    e(f'  v_bfe_u32 v{T[7]}, v{vLane}, 1, 3')
    e(f'  v_cmp_eq_u32 vcc, v{T[0]}, v{T[7]}')
    e(f'  v_add_u32 v{T[0]}, 1, v{T[0]}')
    e(f'  s_nop 0')
    e(f'  v_cndmask_b32 v{vM[0]}, 0, v{T[5]}, vcc')
    e(f'  v_cmp_eq_u32 vcc, v{T[0]}, v{T[7]}')
    srd(sDS, sDb, 256)
    e(f'  v_cndmask_b32 v{vM[1]}, 0, v{T[5]}, vcc')
    NR = int(opts.get('nr', 2))
    def probe():
        e('; --- placement probe: latency of one line per interleave class')
        e(f'  s_cmp_lg_u32 s{sPr}, 0')
        e(f'  s_cbranch_scc1 L_npr')
        e(f'  s_mov_b32 s{sPv}, 0xffff')
        e(f'  s_mov_b32 s{sRd}, 0xffff')
        e(f'  s_lshl_b32 s{sT[2]}, s{sW}, 2')
        e(f'  s_add_u32 s{sT[2]}, s{sT[2]}, {LDS_PR}')
        e(f'  v_mov_b32 v{T[0]}, s{sT[2]}')
        if int(opts.get('pb', 0)):
            e('  s_waitcnt lgkmcnt(0)')
            for i in range(NR):
                e('  s_barrier')
                e(f'  s_memtime s[{sPT}:{sPT+1}]')
                e(f'  s_load_dword s{sT[2]}, s[24:25], s{sPb if i & 1 else sPa} glc')
                e('  s_waitcnt lgkmcnt(0)')
                e(f'  s_memtime s[{sPT+2}:{sPT+3}]')
                e('  s_waitcnt lgkmcnt(0)')
                e(f'  s_sub_u32 s{sT[1]}, s{sPT+2}, s{sPT}')
                e(f'  s_min_u32 s{sRd if i & 1 else sPv}, s{sRd if i & 1 else sPv}, s{sT[1]}')
        else:
            e('  s_waitcnt lgkmcnt(0)')
            e(f'  s_memtime s[{sPT}:{sPT+1}]')
            for i in range(NR):
                a, b = (sPT, sPT + 2) if i % 2 == 0 else (sPT + 2, sPT)
                e(f'  s_load_dword s{sT[2]}, s[24:25], s{sPb if i & 1 else sPa} glc')
                e('  s_waitcnt lgkmcnt(0)')
                if i:
                    e(f'  s_sub_u32 s{sT[1]}, s{a}, s{b}')
                e(f'  s_memtime s[{b}:{b+1}]')
                if i: e(f'  s_min_u32 s{sRd if (i - 1) & 1 else sPv}, s{sRd if (i - 1) & 1 else sPv}, s{sT[1]}')
            e('  s_waitcnt lgkmcnt(0)')
            e(f'  s_sub_u32 s{sT[1]}, s{sPT}, s{sPT+2}')
            e(f'  s_min_u32 s{sRd}, s{sRd}, s{sT[1]}')
        e(f'  s_lshl_b32 s{sPv}, s{sPv}, 16')
        e(f'  s_or_b32 s{sPv}, s{sPv}, s{sRd}')
        e(f'  v_mov_b32 v{T[2]}, s{sPv}')
        e(f'  ds_write_b32 v{T[0]}, v{T[2]}')
        e('  s_waitcnt lgkmcnt(0)')
        e(f'L_npr:')
    PQ = 248
    assert 11 not in ASLOTS
    def publish():
        e('; --- publish the nearest class (first writer wins)')
        if NB0 >= 2:
            e(f'  s_cmp_lg_u32 s{sPr}, 0')
            e(f'  s_cbranch_scc1 L_np1')
            e('  s_barrier')
        e(f'  s_or_b32 s{sT[1]}, s{sPr}, s{sW}')
        e(f'  s_cmp_lg_u32 s{sT[1]}, 0')
        e(f'  s_cbranch_scc1 L_np1')
        PR = 240
        e(f'  v_mov_b32 v{PR+8}, {LDS_PR}')
        e(f'  ds_read_b128 v[{PR}:{PR+3}], v{PR+8}')
        e(f'  s_add_u32 s{sT[1]}, s24, s{sPa}')
        e(f'  s_lshr_b32 s{sT[2]}, s{sT[1]}, 20')
        e(f'  s_lshr_b32 s{sT[0]}, s2, 1')
        e(f'  s_xor_b32 s{sT[2]}, s{sT[2]}, s{sT[0]}')
        e(f'  s_and_b32 s{sT[2]}, s{sT[2]}, 2')
        e(f'  s_lshr_b32 s{sT[1]}, s{sT[1]}, 17')
        e(f'  s_and_b32 s{sT[1]}, s{sT[1]}, 4')
        e(f'  s_or_b32 s{sT[1]}, s{sT[1]}, s{sT[2]}')
        e(f'  s_or_b32 s{sT[1]}, s{sT[1]}, 1')
        e(f'  v_mov_b32 v{PR+11}, 0')
        e(f'  v_mov_b32 v{PR+8}, s{sEo}')
        e('  s_waitcnt lgkmcnt(0)')
        for o in (0,):
            e(f'  v_pk_min_u16 v{PR+o}, v{PR+o}, v{PR+o+1}')
            e(f'  v_pk_min_u16 v{PR+o+2}, v{PR+o+2}, v{PR+o+3}')
            e(f'  v_pk_min_u16 v{PR+o}, v{PR+o}, v{PR+o+2}')
            e(f'  v_lshrrev_b32 v{PR+o+1}, 16, v{PR+o}')
            e(f'  v_and_b32 v{PR+o}, 0xffff, v{PR+o}')
        e(f'  v_cmp_gt_u32 vcc, v{PR+1}, v{PR}')
        e(f'  v_min_u32 v{PR+2}, v{PR}, v{PR+1}')
        e('  s_nop 0')
        e(f'  v_cndmask_b32 v{PR+10}, 0, 2, vcc')
        e(f'  v_xor_b32 v{PR+10}, s{sT[1]}, v{PR+10}')
        e('  s_mov_b64 exec, 1')
        e(f'  v_lshl_or_b32 v{PR+10}, v{PR+2}, 16, v{PR+10}')
        if opts.get('sat'):
            e(f'  s_mov_b32 s{sRd+1}, 0')
            e(f'  v_readfirstlane_b32 s{sRd}, v{PR+10}')
            e('  s_nop 4')
            e(f'  s_atomic_cmpswap s[{sRd}:{sRd+1}], s[{sDb}:{sDb+1}], s{sEo}{" glc" if opts["sat"] == "1" else ""}')
        else:
            e(f'  buffer_atomic_cmpswap v[{PR+10}:{PR+11}], v{PR+8}, s[{sDS}:{sDS+3}], 0 offen sc1')
        e('  s_mov_b64 exec, -1')
        e('L_np1:')
    if opts.get('st2') == '2': stamp()
    if int(opts.get('iw', 0)):
        for r in sSo: e(f'  s_mov_b32 s{r}, s{sOOB}')
        e(f'  s_mov_b64 s[{sSm}:{sSm+1}], 0')
        if opts.get('iwp', '0') == '0': e('@IWHOP')
    PP = int(opts.get('pp', 1))
    if NUMA and PP == -1: probe()
    for s in range(NI, 2): run(bload(s))
    if NUMA and PP == 0: probe()
    LA = int(opts.get('la', NAR))
    assert LA <= NAR
    if LA > 2: run(bload(2))
    if NUMA and PP == 1: probe()
    if NB0 == 3: run(xdma_items(0))
    if LA > 3: run(bload(3))
    if LA > 4: run(bload(4))
    if NUMA and PP == 2: probe()

    def trs(s):
        it = [lambda: g.wait(('b', s), vm=('W',) if (s == 0 and LEAN) else ('B', s, 5))]
        base = vTr if (s % NAR) < 2 else vTr2
        so = AREA[s % NAR] - AREA[0 if (s % NAR) < 2 else 2]
        it.append(lambda: g.lgop(f'  ds_read_b128 v[{DWR[s & 1]}:{DWR[s & 1]+3}], v{vDW} offset:{s*64}', ('TR', s)))
        for nt in range(6):
            for hh in range(2):
                r = RAW[s & 1] + nt*4 + 2*hh
                it.append(lambda r=r, nt=nt, hh=hh: g.lgop(f'  ds_read_b64_tr_b16 a[{r}:{r+1}], v{base} offset:{so + hh*768 + (nt >> 1)*64 + (nt & 1)*8}', ('TR', s)))
        return it
    def cvts(s, j, q=None):
        nt, hh = j // 2, j % 2
        if q is None: q = FT + 4*(j % NFT)
        if s in ASLOTS:
            return [f'  v_cvt_pk_bf16_f32 v{q}, v{q}, v{q+1}', f'  v_cvt_pk_bf16_f32 v{q+1}, v{q+2}, v{q+3}',
                    f'  v_accvgpr_write_b32 {breg(s, nt, 1, 2*hh)}, v{q}', f'  v_accvgpr_write_b32 {breg(s, nt, 1, 2*hh+1)}, v{q+1}']
        return [f'  v_cvt_pk_bf16_f32 {breg(s, nt, 1, 2*hh)}, v{q}, v{q+1}', f'  v_cvt_pk_bf16_f32 {breg(s, nt, 1, 2*hh+1)}, v{q+2}, v{q+3}']
    def rd(t, i):
        mt, ks = i // 12, i % 12
        x = XF + 8*((i // 2) % 3) + 4*(i & 1)
        g.lgop(f'  ds_read_b128 a[{x}:{x+3}], v{vLdsR[ks & 3]} offset:{(t & 1)*TILE_B + mt*12288 + (ks >> 2)*256}', ('X', t, i))
    TS = NB0 if FUSE else 13
    units = sorted([(0, k) for k in range(12)] + [(1, k) for k in range(8)], key=lambda u: (u[1] + 4*u[0], -u[0]))
    UPS = int(opts.get('ups', 2 if NB0 <= 2 else 3))
    SCH = {s: [] for s in range(13)}
    rem = list(units) if FUSE else []
    for s in range(12, TS - 1, -1):
        n = 2 if s == 12 else UPS
        take = [u for u in reversed(rem) if u[1] < s][:n]
        SCH[s] = sorted(take, key=lambda u: (u[1], u[0]))
        rem = [u for u in rem if u not in take]
    assert not rem, rem
    for mt in range(2 if FUSE else 0):
        seq = [u[1] for s in range(13) for u in SCH[s] if u[0] == mt]
        assert seq[0] == 0 and sorted(seq) == list(range(len(seq)))
    def tl(s): return SCH[s]
    def fx(s, mt, ks): return OB + 12*(s % 2) + 4*SCH[s].index((mt, ks))
    def prd(s):
        return [lambda mt=mt, ks=ks: g.lgop(f'  ds_read_b128 a[{fx(s, mt, ks)}:{fx(s, mt, ks)+3}], v{vLdsR[ks & 3]} offset:{mt*12288 + (ks >> 2)*256}', ('TR', s)) for (mt, ks) in tl(s)]
    def tm(s, mt, ks, nt):
        a = ACC + 24*mt + 4*nt; x = fx(s, mt, ks)
        return f'  v_mfma_f32_16x16x32_bf16 v[{a}:{a+3}], {breg(ks, nt)}, a[{x}:{x+3}], {"0" if ks == 0 else f"v[{a}:{a+3}]"}'
    if opts.get('iwp') == '1': e('@IWHOP')
    DEC = int(opts.get('dec', 0))
    def trd(s):
        it = [lambda: g.wait(('b', s), vm=('W',) if (s == 0 and LEAN) else ('B', s, 5))]
        base = vTr if (s % NAR) < 2 else vTr2
        so = AREA[s % NAR] - AREA[0 if (s % NAR) < 2 else 2]
        for nt in range(6):
            for hh in range(2):
                it.append(lambda nt=nt, hh=hh: g.lgop(f'  ds_read_b64_tr_b16 {breg(s, nt, 2, 2*hh)}, v{base} offset:{so + hh*768 + (nt >> 1)*64 + (nt & 1)*8}', ('TR', s)))
        return it
    def dwr(s): g.lgop(f'  ds_read_b128 v[{DWR[s & 1]}:{DWR[s & 1]+3}], v{vDW} offset:{s*64}', ('DW', s))
    if DEC:
        run(trd(0)); dwr(0)
    else: run(trs(0))
    stamp()
    LAG = int(opts.get('lag', 3))
    XA = int(opts.get('xa', 8)); XB = int(opts.get('xb', 12)); DS = int(opts.get('ds', XA)); BQ = 10
    X0 = int(opts.get('x0', 11 - LA)); X1 = int(opts.get('x1', 11))
    if not FUSE: XA = XB = BQ = 99; DS = int(opts.get('ds', 9)); LAG = int(opts.get('lag', 4))
    assert XB >= BQ
    pend = []
    def region(dst, src, tmp):
        return [f'  s_lshr_b32 s{tmp}, s{src}, 23', f'  s_sub_u32 s{tmp}, s{tmp}, 6', f'  s_lshr_b32 s{dst}, s{src}, 24', f'  s_max_i32 s{dst}, s{dst}, s{tmp}']
    def reader():
        it = [f'  s_add_u32 s{sT[1]}, s{sBase}, 49152'] + region(sOf[0], sT[1], sT[2])
        it += [f'  s_sub_u32 s{sT[1]}, s{sEnd}, {KSTEP - 49152}'] + region(sOf[2], sT[1], sT[2])
        for k, lim in ((1, sP2), (2, sP1 + 1)):
            it += [f'  s_add_u32 s{sT[1]}, s{sOf[0]}, {k}', f'  s_lshl_b32 s{lim}, s{sT[1]}, 24', f'  s_add_u32 s{sT[1]}, s{sT[1]}, 6',
                   f'  s_lshl_b32 s{sT[1]}, s{sT[1]}, 23', f'  s_min_u32 s{lim}, s{lim}, s{sT[1]}', f'  s_sub_u32 s{lim}, s{lim}, 49152']
        it += [f'  s_add_u32 s{sOf[1]}, s{sOf[0]}, 1', f'  s_min_u32 s{sOf[1]}, s{sOf[1]}, s{sOf[2]}']
        for i in range(3):
            it += [f'  s_lshl_b32 s{sOf[i]}, s{sOf[i]}, 4', f'  s_load_dwordx4 s[{sEn[i]}:{sEn[i]+3}], s[{sDb}:{sDb+1}], s{sOf[i]}']
        return it
    def decide():
        if NUMA:
            e(f'  s_min_u32 s{sT[1]}, s{sEn[0]}, s{sEn[0]+1}')
            for r in [sEn[0]+2, sEn[0]+3] + [sEn[i] + k for i in (1, 2) for k in range(4)]: e(f'  s_min_u32 s{sT[1]}, s{sT[1]}, s{r}')
            e(f'  s_cmp_eq_u32 s{sT[1]}, 0')
            e('  s_cbranch_scc1 L_slow')
            e('L_back:')
    def decide2():
        it = []
        it.append(f'  s_mov_b32 s{sDec+1}, s{sP2}')
        it.append(f'  s_mov_b32 s{sP2+1}, -1')
        it.append(f'  s_and_b32 s{sT[0]}, s2, 5')
        it.append(f'  s_lshl_b32 s{sT[0]}, s{sT[0]}, 19')
        for q, dst in zip(sEn, (sDec, sP1, sP2)):
            it.append(f'  s_min_u32 s{sT[1]}, s{q}, s{q+2}')
            it.append(f'  s_min_u32 s{sT[2]}, s{q+1}, s{q+3}')
            it.append(f'  s_cmp_gt_u32 s{sT[1]}, s{sT[2]}')
            it.append(f'  s_cselect_b32 s{sT[1]}, 4, 0')
            it.append(f'  s_xor_b32 s{sT[1]}, s{sT[1]}, s{q}')
            it.append(f'  s_and_b32 s{sT[1]}, s{sT[1]}, 4')
            it.append(f'  s_lshl_b32 s{sT[1]}, s{sT[1]}, 17')
            it.append(f'  s_bitcmp1_b32 s2, 1')
            it.append(f'  s_cselect_b64 s[{q}:{q+1}], s[{q+2}:{q+3}], s[{q}:{q+1}]')
            it.append(f'  s_bitcmp1_b32 s2, 0')
            it.append(f'  s_cselect_b32 s{dst}, s{q+1}, s{q}')
            it.append(f'  s_and_b32 s{dst}, s{dst}, 2')
            it.append(f'  s_lshl_b32 s{dst}, s{dst}, 20')
            it.append(f'  s_or_b32 s{dst}, s{dst}, s{sT[1]}')
            it.append(f'  s_xor_b32 s{dst}, s{dst}, s{sT[0]}')
        return it
    if DEC:
        QU = [[] for _ in range(145)]
        def spread(items, n0, n1):
            for i, it in enumerate(items): QU[n0 + (i * (n1 - n0)) // len(items)].append(it)
        for a in range(11):
            it = trd(a + 1)
            if a + LA < 12: it += [lambda a=a: g.wait(('trf', a), lg=('TR', a))] + bload(a + LA)
            if a == X0: it += xdma_items(0)
            spread(it, DEC * a, DEC * (a + 1))
        if NUMA: QU[12*DS - 8].append(f'  s_load_dword s{sRd}, s[{sDb}:{sDb+1}], s{sEo}')
        if X1 < 12: spread(xdma_items(1), 12*X1, 12*X1 + 12)
        assert DEC * (X0 + 1) <= 12*DS
        for n in range(144):
            k, j = n // 12, n % 12
            d = DWR[k & 1]
            if j == 0:
                if k == DS and NUMA: e('  s_waitcnt lgkmcnt(0)')
                else:
                    g.wait(('tr', k), lg=('TR', k)); g.wait(('dw', k), lg=('DW', k), opt=True)
                for i in range(4): e(f'  v_and_b32 v{d+i}, v{vM[i & 1]}, v{d+i}')
                if k == DS: decide()
                if k + 1 < 12: dwr(k + 1)
                else: e('  s_nop 0')
                e('  s_nop 0')
            nt, hh = j // 2, j % 2
            q = FT + 4*(n % NFT)
            e(f'  v_mfma_f32_16x16x16_bf16 v[{q}:{q+3}], v[{d+2*hh}:{d+2*hh+1}], {breg(k, nt, 2, 2*hh)}, 0')
            pend.append(cvts(k, j, q))
            run(QU[n])
            if len(pend) > LAG: run(pend.pop(0))
            if n in (47, 95): stamp()
            if n == 11 and NUMA: publish()
    for s in range(0 if DEC else 12):
        if s == DS and NUMA: e('  s_waitcnt lgkmcnt(0)')
        else: g.wait(('tr', s), lg=('TR', s))
        if s == BQ: e('  s_barrier')
        d = DWR[s & 1]
        for i in range(4): e(f'  v_and_b32 v{d+i}, v{vM[i & 1]}, v{d+i}')
        if s == DS: decide()
        Q = []
        if s + 4 == NB0: Q += xdma_items(0)
        if s + LA < 12: Q += bload(s + LA)
        nx = trs(s + 1) if s + 1 < 12 else []
        if s == NB0 - 1:
            nx = nx[:1] + ['  s_barrier'] + nx[1:]
        nx += prd(s + 1)
        Q = (Q + nx) if opts.get('qo', '1') == '0' else (nx + Q)
        if s == DS - 1 and NUMA:
            assert s > X0 and s + LA >= 12
            Q += reader()
        if s == DS and NUMA: Q += decide2()
        if STG and s == XE: Q += x0_site(True)
        if s == X0 and not FUSE: Q += (x0_site(False) if STG else xdma_items(0))
        if s == X1 and not FUSE: Q += xdma_items(1)
        if s == XA: Q += xdma_items(1)
        if s == XB: Q += xdma_items(2)
        if s == 11 and FUSE: Q += [lambda i=i: rd(0, i) for i in range(20, 24)]
        while len(Q) < 2: Q.append('  s_nop 0')
        M = []
        TL = [tm(s, mt, ks, nt) for nt in range(6) for (mt, ks) in tl(s)]
        for j in range(12):
            nt, hh = j // 2, j % 2
            r = RAW[s & 1] + nt*4 + 2*hh
            q = FT + 4*(j % NFT)
            M.append((f'  v_mfma_f32_16x16x16_bf16 v[{q}:{q+3}], v[{d+2*hh}:{d+2*hh+1}], a[{r}:{r+1}], 0', j))
            k0, k1 = (j*len(TL))//12, ((j+1)*len(TL))//12
            M += [(x, None) for x in TL[k0:k1]]
        run(Q[:2]); Q = Q[2:]
        front = int(opts.get('front', 2))
        cq = []
        for mi, (m, j) in enumerate(M):
            if j is not None:
                run(cq); cq = []
            e(m)
            if j is not None:
                pend.append(cvts(s, j))
                if len(pend) > LAG: cq = pend.pop(0)
            QE = (len(M) * int(opts.get('qe', 4))) // 4
            nq = -(-len(Q) // max(1, QE - mi)) if mi < QE else len(Q)
            run(Q[:nq]); Q = Q[nq:]
            nc = 2 if (mi + 1 < len(M) and M[mi + 1][1] is None) else len(cq)
            run(cq[:nc]); cq = cq[nc:]
        assert not Q and not cq
        if s in (3, 7) and not opts.get('st2'): stamp()
        if s == int(opts.get('pubs', 0)) and NUMA: publish()
    if FUSE:
        g.wait(('tr', 12), lg=('TR', 12))
        T0 = [tm(12, 0, 11, nt) for nt in range(6)]
        T1 = [tm(12, 1, ks, nt) for (mt, ks) in tl(12) if mt == 1 for nt in range(6)]
        for nt in range(4):
            e(T0[nt])
            if pend: run(pend.pop(0))
        if DS == 12:
            e('  s_waitcnt lgkmcnt(0)'); decide()
        e(f'  v_sub_u32 v{vST4b}, v{vXS4b}, v{vXS[4]}')
        e(f'  v_add_u32 v{vST4b}, v{vST4b}, v{vST[4]}')
        e(T0[4]); e(T0[5])
        stamp()
        FIN = (T1, XB)
    else:
        run(pend.pop(0)); run(pend.pop(0))
        stamp()
        e(f'  v_mov_b32 v{vTS2}, 0')
        e(f'  v_mov_b32 v{vTS3}, 0')
        for r in sSo: e(f'  s_mov_b32 s{r}, s{sOOB}')
        if PF:
            a_, m_ = [int(v) for v in PF.split(',')]
            e(f'  v_mbcnt_lo_u32_b32 v{vPF}, -1, 0')
            e(f'  v_mbcnt_hi_u32_b32 v{vPF}, -1, v{vPF}')
            e(f'  v_min_u32 v{vPF}, 47, v{vPF}')
            e(f'  s_mul_i32 s{sPf0}, s{sW}, 48')
            e(f'  v_add_u32 v{vPF}, s{sPf0}, v{vPF}')
            e(f'  v_lshrrev_b32 v{vPD}, 6, v{vPF}')
            e(f'  v_lshlrev_b32 v{vPD}, 13, v{vPD}')
            e(f'  v_lshl_add_u32 v{vPF}, v{vPF}, 7, v{vPD}')
            e(f'  s_lshr_b32 s{sPf0}, s2, 3')
            e(f'  s_and_b32 s{sPf0}, s{sPf0}, {m_}')
            e(f'  s_add_u32 s{sPf0}, s{sPf0}, {a_ - NTILE & 0xffffffff}')
            e(f'  s_mul_i32 s{sPf0}, s{sPf0}, {KSTEP}')
            e(f'  s_add_u32 s{sPf0}, s{sPf0}, s{sEnd}')
        if opts.get('iwp') == '2': e('@IWHOP')
        if int(opts.get('iw', 0)): e('  s_mov_b64 vcc, 0')
        if opts.get('lpad'): e('  s_mov_b64 vcc, 0')
        if opts.get('ss'): e('  s_mov_b64 vcc, -1'); e(f'  s_add_u32 s37, s{sBase}, {int(opts["ss"].split(",")[1])*KSTEP}')
        if opts.get('ssm'):
            m_ = int(opts['ssm'][::-1], 2)
            e(f'  s_mov_b32 s37, {m_}'); e(f'  s_mov_b64 vcc, {-1 if m_ & 1 else 0}')
        if opts.get('dr'):
            m_ = int(opts['dr'].split(',')[1][::-1], 2)
            e(f'  s_mov_b32 s37, {m_}'); e(f'  s_mov_b64 vcc, {-1 if m_ & 1 else 0}')
        g.wait('x0', vm=('L', 1, int(opts['w1'])) if opts.get('w1') else ('L', 0, 5))
        e('  s_barrier')
        for i in range(4): rd(0, i)
        while pend: run(pend.pop(0))
        if X1 == 13: run(xdma_items(1))
        else: assert NAR == 4 and X1 >= DS

    def epi(mt, u, po):
        a = ACC + 24*mt + 8*u
        cv = [f'  v_cvt_pk_bf16_f32 v{a+i}, v{a+2*i}, v{a+2*i+1}' for i in range(4)]
        off = po*TILE_B + mt*12288 + (u >> 1)*128
        if DIR:
            return cv + [lambda: g.vmop(f'  buffer_store_dwordx4 v[{a}:{a+3}], v{vTS if mt else vST[0]}, s[{sO}:{sO+3}], s{sSo[2] if mt else sSo[0]} offen offset:{64*u}{NT_ST}', None)]
        if opts.get('w64'):
            return cv[:2] + [lambda: g.lgop(f'  ds_write_b64 v{vOW[u & 1]}, v[{a}:{a+1}] offset:{off}', ('OWa', mt, u))] + cv[2:] + \
                   [lambda: g.lgop(f'  ds_write_b64 v{vOW[u & 1]}, v[{a+2}:{a+3}] offset:{off+8}', ('OW', mt, u))]
        return cv + [lambda: g.lgop(f'  ds_write_b128 v{vOW[u & 1]}, v[{a}:{a+3}] offset:{off}', ('OW', mt, u))]
    OBT = 'a'
    def out_read(t, u):
        o = OB + 4*u
        g.lgop(f'  ds_read_b128 {OBT}[{o}:{o+3}], v{vOR[u % 3]} offset:{((t^1)&1)*TILE_B + (u // 3)*12288}', ('O', t, u))
    def out_store(t, u, key):
        o = OB + 4*u
        g.wait((key, 'o', u), lg=('O', t, u), opt=True)
        g.vmop(f'  buffer_store_dwordx4 {OBT}[{o}:{o+3}], v{[vST[0], vST[1], vTS2, vTS3, vST[1], vST[2]][u]}, s[{sO}:{sO+3}], s{sSo[[0, 0, 1, 2, 3, 3][u]]} offen{opts.get("mixf", " nt") if str(u) in opts.get("mix", "") else NT_ST}', None)
    def st_adv(d=0):
        p, q = sF[2 - d], sF[3 - d]
        return halfA(p, sSo[0], sSd) + [f'  s_mov_b32 s{sSo[1]}, s{p}'] + mixv(vTS2, vST[2], vMk[0], sSd, p + 1) + \
               halfB(q, sSo[3], sSd, sSo[2]) + mixv(vTS3, vST[0], vMk[1], sSd, sSo[2]) + [f'  s_mov_b32 s{sSo[2]}, s{q}']
    def ints(k, d): return [int(v) for v in opts.get(k, d).split(',')]
    OR_AT = ints('or', '2,3,4,5,6,7'); OS_AT = ints('os', '14,20,30,40,52,64')
    UORD = ints('uord', '3,4,5,0,1,2')
    XD_AT = ints('xd', '76,88,100,112,124,136')
    E1_AT = ints('e1', '27,39,61'); E0_AT = ints('e0', '99,106,123')
    SH_AT = int(opts.get('sh', 26)); CAP = int(opts.get('cap', 1)); HG = int(opts.get('hg', 0))
    DR = opts['dr'].split(',') if opts.get('dr') else None
    def fillers(t):
        F = [[] for _ in range(144)]
        use = [0] * 150
        for r in range(144):
            if r % 12 in (0, 1, 11): use[r] = 1
        HP = opts.get('hp')
        def heavy(rho, it):
            while use[rho] or (HP and rho % 2 != int(HP)): rho += 1
            F[rho].append(it); use[rho] = 9
            for k in range(1, HG + 1): use[rho + k] = max(use[rho + k], 8)
            return rho
        def light(rho, items, cap=CAP, back=False):
            if back:
                for it in reversed(items):
                    while use[rho] >= cap: rho -= 1
                    F[rho].insert(0, it); use[rho] += 1
                return rho
            for it in items:
                while use[rho] >= cap: rho += 1
                F[rho].append(it); use[rho] += 1
            return rho
        kp = t & 1
        post = []
        vpos = []
        for k in range(0 if DIR else 6):
            u = UORD[k]
            lastst = heavy(OS_AT[k], lambda u=u: out_store(t, u, kp))
            vpos.append(lastst)
        xpos = []
        for u in range(6):
            it = [x for x in xdma(t + PD, u) if x != 'NOP']
            xpos.append((heavy(XD_AT[u], it[-1]), it[:-1]))
        for mt, AT in ((1, E1_AT), (0, E0_AT)):
            for u in range(3):
                r = AT[u]
                for it in epi(mt, u, t & 1):
                    r = (heavy(r, it) if callable(it) else light(r, [it], 1)) + 1
                if DIR:
                    vpos.append(r - 1)
                    if mt == 1: lastst = r - 1
        for k in range(0 if DIR else 6):
            light(OR_AT[k], [lambda u=UORD[k]: out_read(t, u)], 1)
        prevx = 0
        for (r, it) in xpos:
            r0 = light(r - 1, it, 2 if len(it) > 6 else CAP, back=True)
            assert r0 >= 24 and r0 > prevx, (r0, prevx)
            prevx = r
        if opts.get('xr'):
            a_, b_ = [int(v) for v in opts['xr'].split(',')]
            it = [f'  s_sub_u32 s37, s{sEnd}, s{sBase}', f'  s_sub_u32 s37, s37, {(NTILE - b_)*KSTEP + 1}', f'  s_cmp_lt_u32 s37, {(b_ - a_)*KSTEP}',
                  f'  s_cselect_b32 s37, s{sF[0]}, s{sOOB}', f'  s_xor_b32 s37, s37, 0x2000000']
            r1_ = heavy(104, lambda: g.vmop(f'  buffer_load_dwordx4 a[240:243], v{vXS[0]}, s[{sX}:{sX+3}], s37 offen nt', None))
            heavy(130, lambda: g.vmop(f'  buffer_load_dwordx4 a[244:247], v{vXS[1]}, s[{sX}:{sX+3}], s37 offen nt', None))
            light(94, it, 2, back=True)
        if PF:
            it = pf_items()
            rp = heavy(int(opts.get('pfa', 140)), it[-1])
            assert light(rp - 1, it[:-1], 2, back=True) > xpos[4][0]
        if opts.get('lim'):
            for r in vpos + [x[0] for x in xpos]:
                light(r - 1, [f'  s_waitcnt vmcnt({opts["lim"]})'], 2, back=True)
        if opts.get('ss'):
            n_, _, sites = opts['ss'].split(',')
            for c in sites:
                r = xpos[int(c)][0]
                lab = f'L_ss{t}_{c}_{len(g.L)}'
                def blk(lab=lab): e(f'  s_cbranch_vccz {lab}'); e(f'  s_waitcnt vmcnt({n_})'); e(lab + ':')
                light(r - 1, [blk], 2, back=True)
        if DR:
            def blk(t=t):
                if unroll: e('  s_nop 0')
                else: e(f'  s_cbranch_vccnz L_dr{t & 1}'); e(f'L_drb{t & 1}:')
            light(int(DR[2]), [blk], 2)
            if (t & 1) or len(DR) > 3:
                light(138, ['  s_lshr_b32 s37, s37, 1', '  s_bitcmp1_b32 s37, 0', '  s_cselect_b64 vcc, -1, 0'], 1)
        for key, pos in (('lims', vpos), ('liml', [x[0] for x in xpos])):
            for r, v in zip(pos, opts.get(key, '').split(',')):
                if v not in ('', '-'): light(r - 1, [f'  s_waitcnt vmcnt({v})'], 2, back=True)
        for a, b in zip(xpos, xpos[1:]): assert b[0] - a[0] >= 5
        r1 = light(max(lastst, xpos[0][0]) + 1, [x for x in st_adv() if x != 'NOP'], 2)
        assert r1 < (E0_AT[0] + 4 if DIR else 144)
        return F
    def tile(t, G0=0):
        kp = t & 1
        F0 = fillers(t); F1 = fillers(t + 1)
        for G_ in range(G0, 12):
            mt, kg = G_ // 6, G_ % 6
            if DBG == 2 and G_ in (4, 10): e(f'  s_memrealtime s[{[42, 44, 48, 50][2*kp + (G_ == 10)]}:{[42, 44, 48, 50][2*kp + (G_ == 10)]+1}]')
            if G_ == 10:
                if G0 == 0 and kp == 1 and opts.get('skv'):
                    e(f'  s_cmp_ge_u32 s{sF[1]}, s{sOOB}')
                    e(f'  s_cbranch_scc1 L_npv{t}')
                    g.wait((kp, 'barv'), vm=('L', t + 1, 5))
                    e(f'L_npv{t}:')
                    g.wait((kp, 'bar'), lg=('OW', 0, 2))
                elif G0 == 0: g.wait((kp, 'bar'), vm=('L', t + 1, 5), lg=('OW', 0, 2))
                if kp == 0 and not unroll: e('L_ent:')
                e('  s_barrier')
                if DBG == 2: e(f'  s_memrealtime s[{[46, 52][kp]}:{[46, 52][kp]+1}]')
                if t & 1:
                    for r in vLdsR: e(f'  v_xor_b32 v{r}, {2*TILE_B}, v{r}')
            g.wait((kp, 'x', G_), lg=('X', t, 2*G_ + 1))
            if opts.get('lpad') and G_ % 2 == 0:
                e(f'  s_cbranch_vccz L_lp{t}_{G_}'); e(f'  s_nop {opts["lpad"].split(",")[0]}'); e(f'L_lp{t}_{G_}:')
            if opts.get('ss') and G_ == 11 and (kp == 1 or opts.get('sst')):
                if opts.get('ssm'): e('  s_lshr_b32 s37, s37, 1'); e('  s_bitcmp1_b32 s37, 0'); e('  s_cselect_b64 vcc, -1, 0')
                else: e(f'  s_cmp_lt_u32 s{sBase}, s37'); e('  s_cselect_b64 vcc, -1, 0')
            if opts.get('lpad') and G_ == 11:
                e(f'  s_add_u32 s37, s{sBase}, {(NTILE - 2 - int(opts["lpad"].split(",")[1]))*KSTEP}'); e(f'  s_cmp_ge_u32 s37, s{sEnd}'); e('  s_cselect_b64 vcc, -1, 0')
            for pd_ in (opts['pad'].split(',') if opts.get('pad') else []): e(f'  s_nop {pd_}')
            for nt in range(6):
                for k in range(2):
                    kk = k ^ (nt & 1) if opts.get('snake') else k
                    ks = 2*kg + kk; i = 12*mt + ks
                    x = XF + 8*(G_ % 3) + 4*kk
                    a = ACC + 24*mt + 4*nt
                    c = '0' if kg == 0 and k == 0 else f'v[{a}:{a+3}]'
                    e(f'  v_mfma_f32_16x16x32_bf16 v[{a}:{a+3}], {breg(ks, nt)}, a[{x}:{x+3}], {c}')
                    gap = 12*G_ + 2*nt + k
                    if gap % 12 in (0, 1):
                        j = 2*G_ + 4 + (gap % 12)
                        if j < 24: rd(t, j)
                        else: rd(t + 1, j - 24)
                    run(F0[gap + 24] if gap < 120 else F1[gap - 120])
    if FUSE:
        Q = (xdma_items(2) if XB == 12 else []) + [x if x != 'NOP' else '  s_nop 0' for x in st_adv()]
        E = epi(0, 0, 0) + epi(0, 1, 0) + epi(0, 2, 0)
        T1 = list(FIN[0])
        run(Q[:4]); Q = Q[4:]
        while T1 or E:
            if T1: e(T1.pop(0))
            run(E[:3]); E = E[3:]
        run(Q)
    stamp()
    if DBG:
        e(f'  s_mov_b32 s94, {sn[0]}')
        e('  s_mov_b32 s60, s64')
        e('  s_memtime s[38:39]') if 0 else e('  s_memtime s[86:87]')
    def tail(t):
        if DIR:
            e('  s_nop 3')
            for u in range(3): run(epi(1, u, t & 1))
            return
        done = [UORD[k] for k in range(6) if OS_AT[k] < 24]
        rdone = [UORD[k] for k in range(6) if OR_AT[k] < 24]
        for u in UORD:
            if u not in rdone: out_read(t, u)
        e('  s_nop 3')
        for u in range(3): run(epi(1, u, t & 1))
        for u in UORD:
            if u not in done: out_store(t, u, 'T')
        run([x if x != 'NOP' else '  s_nop 0' for x in st_adv(1)])
        e('  s_waitcnt lgkmcnt(0)')
        e('  s_barrier')
        for u in range(3):
            e(f'  ds_read_b128 a[{XF+4*u}:{XF+4*u+3}], v{vOR[u]} offset:{(t & 1)*TILE_B + 12288}')
        for u in range(3):
            e(f'  s_waitcnt lgkmcnt({2-u})')
            e(f'  buffer_store_dwordx4 a[{XF+4*u}:{XF+4*u+3}], v{[vTS3, vST[1], vST[2]][u]}, s[{sO}:{sO+3}], s{sSo[[2, 3, 3][u]]} offen{NT_ST}')
    PEEL = int(opts.get('peel', 0))
    def last_tile(t):
        F = [[] for _ in range(150)]
        use = [(1 if (r % 12 == 11 or (r % 12 in (0, 1) and r < 120)) else 0) for r in range(150)]
        def put(r, items):
            for it in items:
                if it == 'NOP': continue
                while use[r]: r += 1
                F[r].append(it); use[r] = 1
            return r
        def part(q):
            return [f'  s_mov_b32 s{sSo[1]}, s{q}', f'  s_mov_b32 s{sSo[3]}, s{q+1}', f'  s_min_u32 s{sSo[2]}, s{q}, s{q+1}',
                    f'  s_cmp_gt_u32 s{q}, s{q+1}', f'  s_cselect_b64 s[{sSm}:{sSm+1}], -1, 0', f'  v_cndmask_b32 v{vTS}, v{vST[4]}, v{vST4b}, s[{sSm}:{sSm+1}]']
        assert all(o < 24 for o in OR_AT) and UORD[:3] == [3, 4, 5]
        L1 = ints('l1', '6,16,28,40'); L2 = ints('l2', '62,74,88'); L3 = ints('l3', '120,128,136')
        BX, BY = int(opts.get('bx', 4)), int(opts.get('by', 9))
        rem = [UORD[k] for k in range(6) if OS_AT[k] >= 24]
        pos = {}
        for u, r in zip(rem, L1[-len(rem):]): pos[u] = put(r, [lambda u=u: out_store(t, u, 'L')])
        for u, r in zip((3, 4, 5), L2): p2 = put(r, [lambda u=u: out_store(t + 1, u, 'L2')])
        for u, r in zip((0, 1, 2), L3): put(r, [lambda u=u: out_store(t + 1, u, 'L2')])
        r = 3
        for u in range(3): r = put(r, epi(1, u, t & 1)) + 1
        assert r < 12*BX - 4
        r = 75
        for u in range(3): r = put(r, epi(0, u, t & 1)) + 1
        assert r < 12*BY - 4
        put(12*BX + 2, [lambda u=u: out_read(t + 1, u) for u in (3, 4, 5)])
        put(12*BY + 2, [lambda u=u: out_read(t + 1, u) for u in (0, 1, 2)])
        assert put(pos.get(5, 0) + 1, part(sF[2])) < L2[0] and max(pos.values()) < 12*BX
        put(max(pos.values()) + 1, [f'  s_mov_b32 s{sSo[0]}, s{sF[1]}'])
        put(p2 + 1, part(sF[1]))
        for G_ in range(12):
            mt, kg = G_ // 6, G_ % 6
            if G_ in (BX, BY):
                g.wait(('L', 'bar', G_), lg=('OW', 1 if G_ == BX else 0, 2))
                e('  s_barrier')
            g.wait(('L', 'x', G_), lg=('X', t, 2*G_ + 1))
            for nt in range(6):
                for k in range(2):
                    ks = 2*kg + k
                    x = XF + 8*(G_ % 3) + 4*k
                    a = ACC + 24*mt + 4*nt
                    c = '0' if ks == 0 else f'v[{a}:{a+3}]'
                    e(f'  v_mfma_f32_16x16x32_bf16 v[{a}:{a+3}], {breg(ks, nt)}, a[{x}:{x+3}], {c}')
                    gap = 12*G_ + 2*nt + k
                    if gap % 12 in (0, 1) and 2*G_ + 4 + (gap % 12) < 24: rd(t, 2*G_ + 4 + (gap % 12))
                    run(F[gap])
        assert not any(F[144:])
        if DBG:
            e('  s_mov_b32 m0, s94'); e('  s_nop 0'); e('  v_writelane_b32 v0, s60, m0')
            e('  s_memrealtime s[60:61]'); e('  s_memtime s[88:89]')
        else: e('  s_nop 1')
        for u in range(3): run(epi(1, u, (t + 1) & 1))
        e('  s_waitcnt lgkmcnt(0)')
        e('  s_barrier')
        for u in range(3):
            e(f'  ds_read_b128 a[{XF+4*u}:{XF+4*u+3}], v{vOR[u]} offset:{((t + 1) & 1)*TILE_B + 12288}')
        for u in range(3):
            e(f'  s_waitcnt lgkmcnt({2-u})')
            e(f'  buffer_store_dwordx4 a[{XF+4*u}:{XF+4*u+3}], v{vTS if u == 1 else vST[u+3]}, s[{sO}:{sO+3}], s{sSo[u+1]} offen{NT_ST}')
    if FUSE: g.wait('ent', vm=('L', 1, 5), lg=('OW', 0, 2))
    if PEEL and unroll:
        for t in range(NTILE - 1): tile(t)
        last_tile(NTILE - 1)
    elif PEEL:
        e('L_loop:')
        tile(0)
        e(f'  s_cmp_ge_u32 s{sF[0]}, s{sOOB}')
        e(f'  s_cbranch_scc1 L_tail')
        tile(1)
        if DBG:
            e('  s_mov_b32 m0, s94'); e('  s_nop 0'); e('  v_writelane_b32 v0, s60, m0')
            e('  s_add_u32 s94, s94, 1')
            e('  s_memrealtime s[60:61]')
        e(f'  s_branch L_loop')
        e('L_tail:')
        last_tile(1)
        if DBG: e('  s_mov_b32 s94, 15')
    elif unroll:
        tile(0, 10 if FUSE else 0)
        for t in range(1, NTILE): tile(t)
        tail(NTILE)
    else:
        if FUSE: e('  s_branch L_ent')
        if opts.get('al'): e(f'  .p2align {opts["al"]}')
        e('L_loop:')
        tile(0)
        tile(1)
        if DBG:
            e('  s_mov_b32 m0, s94'); e('  s_nop 0'); e('  v_writelane_b32 v0, s60, m0')
            e('  s_add_u32 s94, s94, 1')
            e('  s_min_u32 s94, s94, 15')
            e('  s_memrealtime s[60:61]')
        e(f'  s_cmp_lt_u32 s{sF[1]}, s{sOOB}')
        e(f'  s_cbranch_scc1 L_loop')
        e('L_tail:')
        if DBG: e('  s_memtime s[88:89]')
        tail(0)
        if DBG: e('  s_mov_b32 s94, 15')
    if DBG:
        e('  s_mov_b32 m0, s94'); e('  s_nop 0'); e('  v_writelane_b32 v0, s60, m0')
        e('  s_add_u32 s94, s94, 1')
        e('  s_load_dwordx2 s[24:25], s[0:1], 40')
        e('  s_waitcnt vmcnt(0)')
        e('  s_memrealtime s[54:55]')
        e('  s_memtime s[98:99]')
        e('  s_waitcnt lgkmcnt(0)')
        e('  s_mov_b32 m0, s94'); e('  s_nop 0'); e('  v_writelane_b32 v0, s54, m0')
        e('  s_sub_u32 s98, s98, s96')
        e('  s_add_u32 s98, s98, s64')
        e('  v_writelane_b32 v0, s98, 31')
        e('  s_sub_u32 s88, s88, s86')
        e('  v_writelane_b32 v0, s88, 30')
        if DBG == 2:
            for i in range(6): e(f'  v_writelane_b32 v0, s{42+2*i}, {17+i}')
        e(f'  v_writelane_b32 v0, s{sPv}, 29')
        e(f'  v_writelane_b32 v0, s{sDec}, 28')
        e(f'  v_writelane_b32 v0, s3, 27')
        for i in range(sn[0]): e(f'  v_writelane_b32 v0, s{64+2*i}, {i}')
        e('  s_mov_b32 s56, s24'); e('  s_and_b32 s57, s25, 0xffff'); e('  s_mov_b32 s58, 452984832'); e('  s_mov_b32 s59, 0x00020000')
        e('  s_lshl_b32 s26, s2, 9'); e(f'  s_lshl_b32 s27, s{sW}, 7'); e('  s_add_u32 s26, s26, s27')
        e('  v_mbcnt_lo_u32_b32 v1, -1, 0')
        e('  v_lshlrev_b32 v1, 2, v1')
        e('  s_mov_b64 exec, 0xffffffff')
        e('  buffer_store_dword v0, v1, s[56:59], s26 offen')
    if AMP:
        e('  s_waitcnt vmcnt(0)')
        e('  s_memrealtime s[54:55]')
        e('  s_waitcnt lgkmcnt(0)')
        e(f'  s_cmp_lg_u32 s2, {int(opts.get("ampwg", 100))}')
        e('  s_cbranch_scc1 L_done')
        if AMP == 'c':
            e('  s_memtime s[98:99]')
            e('  s_waitcnt lgkmcnt(0)')
            e('  s_sub_u32 s27, s98, s96')
            e('  s_lshr_b32 s27, s27, 1')
        else:
            e(f'  s_sub_u32 s27, s{54 if AMP == "e" else 64 + 2*int(AMP)}, s64')
            e('  s_mul_i32 s27, s27, 10')
        e('L_spin:')
        e('  s_sleep 8')
        e('  s_memrealtime s[56:57]')
        e('  s_waitcnt lgkmcnt(0)')
        e('  s_sub_u32 s26, s56, s54')
        e('  s_cmp_lt_u32 s26, s27')
        e('  s_cbranch_scc1 L_spin')
    if NUMA:
        e('  s_endpgm')
        e('L_slow:')
        e(f'  v_mbcnt_lo_u32_b32 v253, -1, 0')
        e(f'  v_and_b32 v253, 3, v253')
        e(f'  v_lshl_add_u32 v{vTX}, v253, 2, s{sOf[0]}')
        e('  s_mov_b64 exec, 0xf0')
        e(f'  v_lshl_add_u32 v{vTX}, v253, 2, s{sOf[1]}')
        e('  s_mov_b64 exec, 0xf00')
        e(f'  v_lshl_add_u32 v{vTX}, v253, 2, s{sOf[2]}')
        e('  s_mov_b64 exec, -1')
        SP = ACC + 40 if DEC else (254 if DS <= 10 else FT)
        assert DS != 11
        e(f'  v_mov_b32 v{SP}, 1')
        e(f'  v_mov_b32 v{SP+1}, 0')
        e('  s_mov_b64 exec, 0xfff')
        e(f'  buffer_atomic_cmpswap v[{SP}:{SP+1}], v{vTX}, s[{sDS}:{sDS+3}], 0 offen sc0 sc1')
        e('  s_waitcnt vmcnt(0)')
        e(f'  v_max_u32 v{SP}, 1, v{SP}')
        e('  s_nop 0')
        for i in range(12): e(f'  v_readlane_b32 s{sEn[i // 4] + i % 4}, v{SP}, {i}')
        e('  s_nop 3')
        e('  s_mov_b64 exec, -1')
        if DBG: e('  s_mov_b32 s3, 1')
        e('  s_branch L_back')
    if DR and not unroll:
        e('; --- flow control: in the tiles selected by s37 let the queued loads/stores drain before issuing more')
        for p_ in range(2):
            e(f'L_dr{p_}:'); e(f'  s_waitcnt vmcnt({DR[0]})'); e(f'  s_branch L_drb{p_}')
    e('L_done:')
    e('  s_endpgm')
    e('.section .rodata,"a"')
    e('.p2align 6')
    e('.amdhsa_kernel standalone__depthwise_separable__vision_kernel')
    e('  .amdhsa_next_free_vgpr 512')
    e('  .amdhsa_next_free_sgpr 100')
    e('  .amdhsa_accum_offset 256')
    e('  .amdhsa_group_segment_fixed_size 0')
    e('  .amdhsa_kernarg_size 48')
    e('  .amdhsa_user_sgpr_count 2')
    e('  .amdhsa_user_sgpr_kernarg_segment_ptr 1')
    e('  .amdhsa_system_sgpr_workgroup_id_x 1')
    e('  .amdhsa_float_denorm_mode_32 3')
    e('.end_amdhsa_kernel')

if __name__ == '__main__':
    out = sys.argv[1]
    opts = dict(a.split('=', 1) for a in sys.argv[2:])
    opts.setdefault('dr', '1,0110000000000111,56,t'); opts.setdefault('liml', '8,8,8,8,8,8')
    for k in ('nt_ld', 'nt_st', 'nt_b'):
        if k in opts: opts[k] = (' ' + opts[k].replace('+', ' ')) if opts[k] != 'none' else ''
    open(out, 'w').write(gen(opts))
```

```python
import sys, re
from gen3 import G, HDR
from gen5 import regs_of

DOC = """
out[M,384] = x[M,384] @ (dw[:,None] * pw)   (1x1 depthwise scale folded into the pointwise weights, bf16 RNE, fp32 accumulate)
256 persistent workgroups x 4 waves; each wave keeps 96 output columns of the folded weights in registers.
Prologue : pw is streamed through LDS (LDS-DMA + transposing reads), scaled by dw with a diagonal MFMA and packed to bf16.
Main loop: 32-row tiles of x arrive by LDS-DMA into a 4-slot ring; 16x16x32 MFMAs; results go through LDS to full-line stores.
Placement: 4 workgroups share each 128-row period and split it into four row-gather tiles, one per 8 KB interleave class of memory.
           A few workgroups time one load per class (s_memtime) to find the class nearest to them and publish it with a
           first-wins compare-and-swap in d_debug; every workgroup uses the settled words, so each row is computed exactly once
           under any placement and the result does not depend on the timings (they only choose who computes which rows).
Flow ctl : at most 9 memory ops per wave stay in flight, fewer in a few tiles; this keeps the memory system out of its throttled state.
"""

def hazard_check(L):
    ins = [l.strip() for l in L if l.startswith('  ') and not l.strip().startswith(';')]
    hist = []; st = 0; last_valu = []; last_st = []; last_m0 = -9; last_sg = []; lastscc = ''
    for l in ins:
        op = l.split()[0]
        toks = [t.strip(',') for t in l.split()[1:]]
        allr = set()
        for t in toks: allr |= regs_of(t)
        if op.startswith('v_mfma'):
            d = regs_of(toks[0]); a = regs_of(toks[1]); b = regs_of(toks[2]); c = regs_of(toks[3])
            for (s0, r) in last_valu:
                if st - s0 - 1 < 2 and (r & (a | b | c)): raise Exception(f'VALU->MFMA hazard: {l}')
            for (s0, dd, cc) in hist:
                if st - s0 - 1 < 8 and (dd & (a | b)): raise Exception(f'MFMA D->A/B hazard: {l}')
                if st - s0 - 1 < 6 and (dd & c) and dd != c: raise Exception(f'MFMA D->C overlap hazard: {l}')
                if st - s0 - 1 < 6 and (dd & d) and dd != c: raise Exception(f'MFMA D->D WAW: {l}')
            for (s0, r) in last_st:
                if st - s0 - 1 < 8 and (r & d): raise Exception(f'store data WAR (mfma): {l}')
            hist.append((st, d, c))
        elif op.startswith('v_') or op.startswith('ds_') or op.startswith('buffer_'):
            for (s0, dd, cc) in hist:
                if st - s0 - 1 < 8 and (dd & allr): raise Exception(f'MFMA D->use hazard dist {st-s0-1}: {l}')
            if op.startswith('v_'):
                w = regs_of(toks[0])
                for (s0, dd, cc) in hist:
                    if st - s0 - 1 < 3 and (cc & w): raise Exception(f'MFMA C WAR hazard: {l}')
                for (s0, r) in last_st:
                    if st - s0 - 1 < 2 and (r & w): raise Exception(f'store data WAR: {l}')
                if op in ('v_readfirstlane_b32', 'v_readlane_b32'):
                    for (s0, r) in last_valu:
                        if st - s0 - 1 < 1 and (r & regs_of(toks[1])): raise Exception(f'readlane hazard: {l}')
                    last_sg.append((st, toks[0]))
                else:
                    for (s0, sg) in last_sg:
                        if st - s0 - 1 < 2 and sg in toks[1:]: raise Exception(f'VALU sgpr->VALU hazard: {l}')
                last_valu.append((st, w)); last_valu = last_valu[-4:]
            if op.startswith('buffer_store') or op.startswith('ds_write'):
                last_st.append((st, regs_of(toks[0] if op.startswith('buffer') else toks[1]))); last_st = last_st[-4:]
            if op.startswith('buffer_') and l.endswith('lds') and st - last_m0 - 1 < 1: raise Exception(f'm0 hazard: {l}')
            if op.startswith('buffer_'):
                for (s0, sg) in last_sg:
                    if st - s0 - 1 < 5 and sg in toks: raise Exception(f'VALU sgpr->VMEM hazard: {l}')
        elif op.startswith('s_') and toks and toks[0] == 'm0': last_m0 = st
        if op.startswith('s_cselect') or op.startswith('s_cbranch_scc'):
            if not (lastscc.startswith('s_cmp') or lastscc.startswith('s_bitcmp')): raise Exception(f'SCC clobbered by {lastscc}: {l}')
        elif re.match(r's_(add|sub|and|or|xor|min|max|lshl|lshr|cmp|bitcmp|andn2|ashr|bfe|not)', op): lastscc = op
        hist = [h for h in hist if st - h[0] < 24]
        st += int(toks[0]) + 1 if op == 's_nop' else 1

class G2(G):
    def __init__(self):
        self.need = {}
        super().__init__()
    def reset(self, mode):
        super().reset(mode); self.lgd = 0; self.vmd = 0
    def _cnt(self, lst, tag):
        if tag[:2] == ('O', 0) and tag not in lst: return len(lst)
        return super()._cnt(lst, tag)
    def wait(self, key, vm=None, lg=None, opt=False):
        if self.mode == 'collect2':
            nd = False
            if lg is not None and len(self.lg) - self._cnt(self.lg, lg) > self.lgd: nd = True
            if vm is not None and len(self.vm) - self._cnt(self.vm, vm) > self.vmd: nd = True
            self.need[key] = self.need.get(key, False) or nd or not opt
            v, l = self.sites[key]
            if not opt:
                if lg is not None: self.lgd = max(self.lgd, len(self.lg) - l)
                if vm is not None: self.vmd = max(self.vmd, len(self.vm) - v)
            return
        if self.mode in ('emit', 'check') and not self.need[key]: return
        super().wait(key, vm, lg)

def gen(opts):
    g = G2()
    g.reset('collect')
    build(g, opts, unroll=True)
    g.reset('collect2')
    build(g, opts, unroll=True)
    g.reset('check')
    build(g, opts, unroll=True)
    hazard_check(g.L)
    L2 = []; skip = None
    for l in g.L:
        if skip:
            if l == skip + ':': skip = None
            continue
        L2.append(l)
        m = re.match(r'  s_cbranch_scc1 (L_np\w*)', l)
        if m: skip = m.group(1)
    hazard_check(L2)
    g.reset('emit')
    build(g, opts, unroll=False)
    L = g.L
    if int(opts.get('iw', 0)):
        S = int(opts['iw'])
        i0 = L.index('L_tail:') + 1
        i1 = max(k for k, l in enumerate(L) if l == '  s_endpgm' and k < L.index('L_done:'))
        def size(l):
            t = l.strip()
            if not l.startswith('  '): return 0
            if re.match(r's_(waitcnt|barrier|nop|cbranch|branch|endpgm|cmp|mov_b32 s\d+, s|min_u32 s\d+, s\d+, s|cselect)', t): return 4
            return 8
        out = []; acc = S; n = 0
        for l in L[i0:i1]:
            if acc >= S and (l.startswith('  v_mfma') or l.startswith('  v_cvt') or l.startswith('  ds_') or l.startswith('  s_waitcnt')):
                out += [f'L_iw{n}:', f'@PAD{n}']; n += 1; acc = 4
            out.append(l); acc += size(l)
        seg = -(-n // 4)
        out = [(f'  s_cbranch_vccnz {"L_iwr" if (int(l[4:]) % seg == seg - 1 or int(l[4:]) == n - 1) else f"L_iw{int(l[4:]) + 1}"}' if l.startswith('@PAD') else l) for l in out]
        L = L[:i0] + out + L[i1:]
        h = L.index('@IWHOP')
        hop = ['  s_mov_b64 vcc, -1']
        for w in range(1, 4):
            if w * seg < n: hop += [f'  s_cmp_eq_u32 s20, {w}', f'  s_cbranch_scc1 L_iw{w*seg}']
        hop += ['  s_branch L_iw0', 'L_iwr:']
        L = L[:h] + hop + L[h+1:]
    L = [l for l in L if l != '@IWHOP']
    abl = opts.get('abl', '')
    if abl:
        i0 = L.index('L_loop:'); i1 = L.index('L_tail:')
        def keep(l):
            s = l.strip()
            if 'O' in abl and (s.startswith('ds_write_b128') or re.match(r'ds_read_b128 a\[(16[89]|17\d|18\d)', s)): return False
            if 'T' in abl and s.startswith('buffer_store'): return False
            if 'L' in abl and s.startswith('buffer_load'): return False
            if 'B' in abl and s.startswith('s_barrier'): return False
            if 'C' in abl and s.startswith('v_cvt'): return False
            if 'H' in abl and s.startswith('v_mfma') and int(re.search(r'v\[(\d+):', s).group(1)) % 8 == 4: return False
            return True
        L = L[:i0] + [l for l in L[i0:i1] if keep(l)] + L[i1:]
    return '\n'.join(L) + '\n'

def build(g, opts, unroll):
    NT_LD = opts.get('nt_ld', ' nt'); NT_ST = opts.get('nt_st', ' sc1'); NT_B = opts.get('nt_b', '')
    DBG = int(opts.get('dbg', 0)); AMP = opts.get('amp')
    DIR = int(opts.get('dir', 0))
    PD = int(opts.get('pd', 2))
    e = g.e
    TILE_B = 32 * 768; NTILE = 18; STRIDE = 256 * TILE_B
    LDS_O = 4 * TILE_B + 256; LDS_DW = 6 * TILE_B + 512; LDS_PR = LDS_DW + 4096; LDS_TOTAL = LDS_PR + 64
    AREA = [LDS_O, LDS_O + TILE_B + 64, 2 * TILE_B, 3 * TILE_B + 64]
    OOB = 113246208
    vLdsR = [1, 2, 3, 4]; vOR = [5, 6, 7]; vXS = [8, 9, 10]; vMk = [11, 12]; vTS2 = 13; vTS3 = 14; vTX = 15
    ACC = 16
    PT = 64
    vBL = [PT, PT+1, PT+2]; vTr = PT+3; vDW = PT+4; vM = [PT+5, PT+6]; vTr2 = PT+7
    DWR = [PT+8, PT+12]
    vST = [PT+16+i for i in range(3)]; vOW = [PT+22, PT+23]
    T = [ACC+i for i in range(12)]; vLane = ACC + 12
    FUSE = int(opts.get('fuse', 0))
    FT = 88 if FUSE else ACC; NFT = 6 if FUSE else (8 if opts.get('dec') else 12)
    BV = 112 if FUSE else 88
    NA = 6 if FUSE else 5
    ASLOTS = [int(c, 16) for c in opts.get('aslots', '012346' if FUSE else '13579')]
    NAR = 4 if FUSE else int(opts.get('nar', 4))
    if NAR == 5: AREA = [TILE_B + k * (TILE_B + 64) for k in range(5)]
    assert len(ASLOTS) == NA
    VSLOTS = [s for s in range(12) if s not in ASLOTS]
    XF = 144
    OB = 168
    RAW = [192, 216]
    sX, sO, sP, sD = 4, 8, 12, 16
    sW, sCnt = 20, 21
    sRing, sOOB = 39, 40
    sF = [76, 78, 80, 82]
    sBase, sVa, sDec, sEnd = 32, 33, 34, 21
    sP1, sP2 = 28, 30
    sEn = [44, 84, 12]; sOf = [88, 89, 95]
    sXa, sXb, sXd, sXe = 22, 56, 57, 90; sSd = 91
    sSo = [58, 59, 62, 63]; sSm = 90
    sDb = 92
    sDS = 16
    sRd = 88; sRd2 = 60; sVc = 61; sVb = 95; sEo = 36; sPa = 37; sPb = 38; sPr = 23; sPv = 41; sPT = 84
    GS = int(opts.get('gs', 3))
    KSTEP = 98304 << GS
    sG = [42, 43, 44]; sQ = [45, 46, 47, 48]; sBW = 49; sT = [50, 51, 52, 53]; sR1, sR2 = 54, 55

    def breg(s, nt, n=4, o=0):
        if s in ASLOTS:
            i = ASLOTS.index(s) * 24 + nt * 4 + o
            return f'a[{i}:{i+n-1}]' if n > 1 else f'a{i}'
        i = BV + VSLOTS.index(s) * 24 + nt * 4 + o
        return f'v[{i}:{i+n-1}]' if n > 1 else f'v{i}'
    sn = [0]
    def stamp():
        if DBG or AMP:
            e(f'  s_memrealtime s[{64+2*sn[0]}:{65+2*sn[0]}]'); sn[0] += 1
    def run(items):
        for it in items:
            if callable(it): it()
            else: e(it)

    e(HDR.rstrip('\n'))
    e(f'; @launch grid=(256,1,1) block=(256,1,1) lds={LDS_TOTAL}')
    e('.amdgcn_target "amdgcn-amd-amdhsa--gfx950"')
    e('.text')
    for l in DOC.strip().split('\n'): e('; ' + l)
    e('.globl standalone__depthwise_separable__vision_kernel')
    e('.p2align 8')
    e('.type standalone__depthwise_separable__vision_kernel,@function')
    e('standalone__depthwise_separable__vision_kernel:')
    e('  s_load_dwordx8 s[24:31], s[0:1], 0')
    e(f'  s_load_dwordx2 s[{sDb}:{sDb+1}], s[0:1], 32')
    e('  s_cmp_ge_u32 s2, 256')
    e('  s_cbranch_scc1 L_done')
    stamp()
    if AMP == 'c': e('  s_memtime s[96:97]')
    if DBG: e('  s_memtime s[96:97]'); e('  s_mov_b32 s3, 0'); e(f'  s_mov_b32 s{sPv}, 0')
    e(f'  v_lshrrev_b32 v{T[0]}, 6, v0')
    e(f'  v_and_b32 v{vLane}, 63, v0')
    e(f'  v_readfirstlane_b32 s{sW}, v{T[0]}')
    KICK = int(opts.get('kick', 0))
    def kick_a():
        e(f'  s_lshr_b32 s{sT[2]}, s2, 3')
        e(f'  s_mul_i32 s{sT[2]}, s{sT[2]}, 9216')
        if KICK == 2: e(f'  v_and_b32 v{T[5]}, 127, v0')
        e(f'  v_lshl_add_u32 v{T[5]}, v{T[5] if KICK == 2 else 0}, 7, s{sT[2]}')
        e(f'  v_min_u32 v{T[5]}, 294784, v{T[5]}')
    def kick_b():
        e('  s_waitcnt lgkmcnt(0)')
        g.vmop(f'  global_load_dword v{BV+1}, v{T[5]}, s[28:29]', ('K',))
    if KICK: kick_a()
    if KICK and opts.get('kf'): kick_b()
    CW = int(opts.get('cw', 128))
    if CW: e('; --- touch the code once so that later instruction fetches hit L2')
    if CW:
        e(f'  s_getpc_b64 s[{sT[0]}:{sT[1]}]')
        e('L_pc:')
        e(f'  v_mul_u32_u24 v{T[2]}, {CW}, v0')
        e(f'  v_min_u32 v{T[2]}, L_done-L_pc, v{T[2]}')
        e(f'  v_mov_b32 v{T[3]}, s{sT[1]}')
        e(f'  v_add_co_u32 v{T[2]}, vcc, s{sT[0]}, v{T[2]}')
        e(f'  s_nop 1')
        e(f'  v_addc_co_u32 v{T[3]}, vcc, 0, v{T[3]}, vcc')
        g.vmop(f'  global_load_dword v{BV}, v[{T[2]}:{T[3]}], off', ('CW',))
    if KICK and not opts.get('kf'): kick_b()
    e(f'  s_lshr_b32 s{sT[0]}, s2, 3')
    e(f'  s_and_b32 s{sR2}, s{sT[0]}, 3')
    e(f'  s_lshr_b32 s{sR1}, s{sT[0]}, 2')
    e(f'  s_mul_i32 s{sT[1]}, s{sR1}, 11')
    e(f'  s_lshr_b32 s{sT[1]}, s{sT[1]}, 5')
    e(f'  s_mul_i32 s{sT[1]}, s{sT[1]}, 3')
    e(f'  s_sub_u32 s{sR1}, s{sR1}, s{sT[1]}')
    if opts.get('norot'):
        e(f'  s_mov_b32 s{sR1}, 0'); e(f'  s_mov_b32 s{sR2}, 0')
    e(f'  s_mul_i32 s{sT[2]}, s{sW}, 192')
    for i in range(3):
        if i: e(f'  v_add_u32 v{T[1]}, {64*i}, v{vLane}')
        q = T[1] if i else vLane
        e(f'  v_mul_u32_u24 v{T[2]}, 0xaaab, v{q}')
        e(f'  v_lshrrev_b32 v{T[2]}, 19, v{T[2]}')
        e(f'  v_mul_u32_u24 v{T[3]}, 576, v{T[2]}')
        e(f'  v_lshl_add_u32 v{T[3]}, v{vLane}, 4, v{T[3]}')
        if i == 1:
            e(f'  v_lshrrev_b32 v{T[2]}, 3, v{T[2]}')
            e(f'  v_mul_u32_u24 v{T[2]}, 6144, v{T[2]}')
            e(f'  v_add_u32 v{T[3]}, v{T[3]}, v{T[2]}')
        if i == 2: e(f'  v_add_u32 v{T[3]}, 6144, v{T[3]}')
        e(f'  v_add_u32 v{vBL[i]}, s{sT[2]}, v{T[3]}')
    NUMA = int(opts.get('numa', 1))
    PRM = int(opts.get('prm', 28))
    def srd(sd, lo, nbytes):
        e(f'  s_mov_b32 s{sd}, s{lo}')
        e(f'  s_and_b32 s{sd+1}, s{lo+1}, 0xffff')
        e(f'  s_mov_b32 s{sd+2}, {nbytes}')
        e(f'  s_mov_b32 s{sd+3}, 0x00020000')
    def p_gb1():
        e(f'  s_add_u32 s{sG[1]}, s{sG[0]}, 98304')
        e(f'  s_cmp_eq_u32 s{sR1}, 2')
        e(f'  s_cselect_b32 s{sG[1]}, 0, s{sG[1]}')
        e(f'  s_add_u32 s{sG[2]}, s{sG[1]}, 98304')
        e(f'  s_cmp_eq_u32 s{sR1}, 1')
        e(f'  s_cselect_b32 s{sG[2]}, 0, s{sG[2]}')
        for q in range(1, 4):
            e(f'  s_xor_b32 s{sQ[q]}, s{sR2}, {q}')
            e(f'  s_mul_i32 s{sQ[q]}, s{sQ[q]}, {TILE_B}')
    def p_dws():
        e(f'  s_lshl_b32 s{sT[3]}, s{sR2}, 2')
        e(f'  v_lshrrev_b32 v{T[1]}, 4, v{vLane}')
        e(f'  v_add_u32 v{T[2]}, s{sR1}, v{T[1]}')
        e(f'  v_subrev_u32 v{T[3]}, 3, v{T[2]}')
        e(f'  v_min_u32 v{T[2]}, v{T[2]}, v{T[3]}')
        e(f'  v_and_b32 v{T[4]}, 15, v{vLane}')
        e(f'  v_xor_b32 v{T[3]}, s{sT[3]}, v{T[4]}')
        e(f'  v_lshlrev_b32 v{T[3]}, 4, v{T[3]}')
        e(f'  v_lshl_add_u32 v{T[3]}, v{T[2]}, 8, v{T[3]}')
        e(f'  v_cmp_lt_u32 vcc, 47, v{vLane}')
        e(f'  s_lshl_b32 s{sT[0]}, s{sW}, 10')
        e(f'  s_add_u32 m0, s{sT[0]}, {LDS_DW}')
        e(f'  v_cndmask_b32 v{T[3]}, v{T[3]}, v{vBL[2]}, vcc')
    def p_tl():
        e(f'  s_lshr_b32 s{sT[1]}, s2, 5')
        e(f'  s_and_b32 s{sT[2]}, s2, 3')
        e(f'  s_lshl2_add_u32 s{sEo}, s{sT[1]}, s{sT[2]}')
        e(f'  s_lshl_b32 s{sEo}, s{sEo}, 2')
        if GS == 3:
            e(f'  s_mul_i32 s{sT[1]}, s{sT[1]}, 144')
            e(f'  s_lshr_b32 s{sT[2]}, s{sT[2]}, 1')
            e(f'  s_lshl1_add_u32 s{sT[2]}, s{sR2}, s{sT[2]}')
        else:
            e(f'  s_lshr_b32 s{sT[1]}, s2, 6')
            e(f'  s_mul_i32 s{sT[1]}, s{sT[1]}, 288')
            e(f'  s_lshr_b32 s{sT[2]}, s{sT[2]}, 1')
            e(f'  s_bfe_u32 s{sBase}, s2, {3 | (3 << 16)}')
            if opts.get('gb'): e(f'  s_lshl3_add_u32 s{sT[2]}, s{sT[2]}, s{sBase}')
            else: e(f'  s_lshl1_add_u32 s{sT[2]}, s{sBase}, s{sT[2]}')
        e(f'  s_add_u32 s{sT[1]}, s{sT[1]}, s{sT[2]}')
        e(f'  s_mul_i32 s{sBase}, s{sT[1]}, 98304')
        e(f'  s_add_u32 s{sEnd}, s{sBase}, {NTILE*KSTEP}')
        if NUMA:
            e(f'  s_lshl_b32 s{sT[1]}, s{sW}, 11')
            e(f'  s_and_b32 s{sT[2]}, s2, 3')
            e(f'  s_lshl_b32 s{sT[2]}, s{sT[2]}, 8')
            e(f'  s_add_u32 s{sT[1]}, s{sT[1]}, s{sT[2]}')
            e(f'  s_lshr_b32 s{sT[2]}, s2, 5')
            e(f'  s_lshl_b32 s{sPa}, s{sT[2]}, 24')
            e(f'  s_add_u32 s{sPa}, s{sPa}, {(8 << 20) + 0x40000}')
            e(f'  s_mul_i32 s{sT[2]}, s{sT[2]}, {6 << 20}')
            e(f'  s_add_u32 s{sT[2]}, s{sT[2]}, {(64 << 20) + 0x40000}')
            e(f'  s_min_u32 s{sPa}, s{sPa}, s{sT[2]}')
            e(f'  s_add_u32 s{sPa}, s{sPa}, s{sT[1]}')
            e(f'  s_and_b32 s{sPr}, s2, {PRM}')
            e(f'  s_add_u32 s{sPb}, s{sPa}, 8192')
            e(f'  s_cmp_lg_u32 s{sPr}, 0')
    def p_warm():
        if NUMA:
            e(f'  s_cbranch_scc1 L_np0')
            e(f'  s_load_dword s{sPT}, s[24:25], s{sPa} glc')
            e(f'  s_load_dword s{sPT+1}, s[24:25], s{sPb} glc')
            if opts.get('dwm'):
                e(f'  v_mov_b32 v{T[10]}, {int(opts["dwm"])}')
                e(f'  global_load_dword v{BV+1}, v{T[10]}, s[{sDb}:{sDb+1}]{" sc1" if opts["dwm"] == "64" else ""}')
            e('L_np0:')
    def p_dwl():
        srd(sD, 26, 768)
        g.vmop(f'  buffer_load_dwordx4 v{T[3]}, s[{sD}:{sD+3}], 0 offen lds', ('W',))
    e(f'  s_mul_i32 s{sG[0]}, s{sR1}, 98304')
    e(f'  s_mul_i32 s{sQ[0]}, s{sR2}, {TILE_B}')
    e(f'  s_mul_i32 s{sBW}, s{sW}, 6160')
    LEAN = int(opts.get('lean', 2))
    if LEAN == 0: p_gb1(); p_dws()
    if LEAN <= 1: p_tl()
    e('  s_waitcnt lgkmcnt(0)')
    if LEAN <= 1: p_warm()
    if LEAN == 0: p_dwl()
    srd(sP, 28, 294912)
    def bload(s):
        it = []
        for h in range(2):
            it.append(f'  s_add_u32 m0, s{sBW}, {AREA[s % NAR] + h*3080}')
            it.append(f'  s_add_u32 s{sT[0]}, s{sG[s >> 2]}, s{sQ[s & 3]}' if h == 0 else f'  s_add_u32 s{sT[0]}, s{sT[0]}, 6144')
            for i in range(3):
                it.append(lambda h=h, i=i: g.vmop(f'  buffer_load_dwordx4 v{vBL[i]}, s[{sP}:{sP+3}], s{sT[0]} offen offset:{i*1024}{NT_B} lds', ('B', s, 3*h + i)))
        return it
    def halfA(f, o0, dl):
        return [f'  s_cmp_eq_u32 s{f+1}, 0', f'  s_cselect_b32 s{dl}, 73728, s26', f'  s_add_u32 s{o0}, s{f}, s{f+1}',
                f'  s_add_u32 s{o0}, s{o0}, s{dl}', f'  s_min_u32 s{o0}, s{o0}, s{sOOB}']
    def halfB(f, o2, dl, d1p):
        return [f'  s_cmp_eq_u32 s{f+1}, 73728', f'  s_cselect_b32 s{dl}, {-73728 & 0xffffffff}, s27', f'  s_add_u32 s{d1p}, s{f+1}, 12288',
                f'  s_add_u32 s{o2}, s{f}, s{d1p}', f'  s_add_u32 s{o2}, s{o2}, s{dl}', f'  s_min_u32 s{o2}, s{o2}, s{sOOB}']
    def mixv(dst, src, mk, dl, d1):
        return [f'  v_and_b32 v{dst}, s{dl}, v{mk}', f'  v_add3_u32 v{dst}, v{src}, v{dst}, s{d1}']
    def xdma(t, u):
        it = []
        a, b = sF[0], sF[0] + 1
        if u == 0:
            it += [f'  s_mov_b64 s[{sF[k]}:{sF[k]+1}], s[{sF[k-1]}:{sF[k-1]+1}]' for k in range(len(sF) - 1, 0, -1)]
            it += [f'  s_cmp_ge_u32 s{sBase}, s{sDec+1}', f'  s_cselect_b64 s[{sDec}:{sDec+1}], s[{sP1}:{sP1+1}], s[{sDec}:{sDec+1}]',
                   f'  s_cselect_b64 s[{sP1}:{sP1+1}], s[{sP2}:{sP2+1}], s[{sP1}:{sP1+1}]']
            it += [f'  s_add_u32 s{a}, s{sVa}, s{sBase}', f'  s_xor_b32 s{a}, s{a}, s{sDec}',
                   f'  s_bfe_u32 s{b}, s{a}, {21 | (1 << 16)}', f'  s_bfe_u32 s{a}, s{a}, {19 | (1 << 16)}', f'  s_lshl1_add_u32 s{b}, s{a}, s{b}',
                   f'  s_sub_u32 s{b}, 1, s{b}', f'  s_and_b32 s{b}, s{b}, 3', f'  s_mul_i32 s{b}, s{b}, {TILE_B}',
                   f'  s_cmp_lt_u32 s{sBase}, s{sEnd}', f'  s_cselect_b32 s{a}, s{sBase}, s{sOOB}', f'  s_add_u32 s{sBase}, s{sBase}, {KSTEP}']
            it += halfA(a, sXa, sXd)
        if u == 2: it += mixv(vTX, vXS[2], vMk[0], sXd, b)
        if u == 3: it += halfB(a, sXb, sXd, sXe) + mixv(vTX, vXS[0], vMk[1], sXd, sXe)
        it.append(f'  s_add_u32 m0, s{sRing}, {(t & 1)*TILE_B + u*4096}')
        if u == 5 and (t & 1): it.append(f'  s_xor_b32 s{sRing}, s{sRing}, {2*TILE_B}')
        else: it.append('NOP')
        it.append(lambda: g.vmop(f'  buffer_load_dwordx4 v{vTX if u in (2, 3) else vXS[u % 3]}, s[{sX}:{sX+3}], s{[sXa, sXa, a, a, sXb, sXb][u]} offen{NT_LD} lds', ('L', t, u)))
        return it
    PF = opts.get('pf')
    vPF = PT + 2; vPD = PT + 3; sPf0 = 21; sPfo = 37
    def pf_items():
        return [f'  s_add_u32 s{sPfo}, s{sVa}, s{sBase}', f'  s_xor_b32 s{sPfo}, s{sPfo}, s{sDec}', f'  s_lshr_b32 s{sPfo}, s{sPfo}, 8',
                f'  s_and_b32 s{sPfo}, s{sPfo}, 8192', f'  s_add_u32 s{sPfo}, s{sPfo}, s{sBase}',
                f'  s_cmp_lt_u32 s{sBase}, s{sEnd}', f'  s_cselect_b32 s{sPfo}, s{sPfo}, s{sOOB}',
                f'  s_cmp_ge_u32 s{sBase}, s{sPf0}', f'  s_cselect_b32 s{sPfo}, s{sPfo}, s{sOOB}',
                lambda: g.vmop(f'  buffer_load_dword v{vPD}, v{vPF}, s[{sX}:{sX+3}], s{sPfo} offen{opts.get("pfl", "")}', None)]
    def xdma_items(t):
        return ['  s_nop 0' if x == 'NOP' else x for u in range(6) for x in xdma(t, u)]
    NB0 = int(opts.get('nb0', 1)) if FUSE else 99
    NI = int(opts.get('ni', 1))
    run(bload(0))
    if LEAN == 2: p_tl(); p_warm()
    if LEAN: p_dws(); p_dwl(); p_gb1()
    for s in range(1, min(NB0, NI)): run(bload(s))
    if opts.get('tw'):
        e(f'  v_mov_b32 v{T[5]}, s{sBase}')
        g.vmop(f'  global_load_dword v{BV+2}, v{T[5]}, s[24:25]', ('K',))
        g.vmop(f'  global_load_dword v{BV+3}, v{T[5]}, s[30:31]', ('K',))
    if opts.get('st2') == '2': stamp()
    srd(sX, 24, 113246208)
    hi2, lo4 = T[1], T[4]
    e(f'  s_add_u32 s{sVa}, s24, 49152')
    e(f'  s_mov_b32 s{sOOB}, {OOB}')
    e(f'  s_mov_b32 s26, {-24576 & 0xffffffff}')
    e('  s_mov_b32 s27, 24576')
    e(f'  s_lshl_b32 s{sRing}, s{sW}, 10')
    for x in sF[:3]: e(f'  s_mov_b32 s{x}, s{sOOB}'); e(f'  s_mov_b32 s{x+1}, 0')
    e(f'  s_lshr_b32 s{sDec}, s2, 1')
    e(f'  s_xor_b32 s{sDec}, s{sDec}, s2')
    e(f'  s_and_b32 s{sDec}, s{sDec}, 4')
    e(f'  s_and_b32 s{sT[1]}, s2, 1')
    e(f'  s_or_b32 s{sDec}, s{sDec}, s{sT[1]}')
    e(f'  s_lshl_b32 s{sDec}, s{sDec}, 19')
    e(f'  s_mov_b32 s{sDec+1}, -1')
    ROW = [ACC+16, ACC+17, ACC+18]; GG = [ACC+19, ACC+20, ACC+21]
    def rowmap(dst, dst4b, base, u):
        if u == 0:
            e(f'  v_add_u32 v{dst[3]}, {26*768}, v{base}')
            if base != dst[0]: e(f'  v_mov_b32 v{dst[0]}, v{base}')
        if u == 1:
            e(f'  v_cmp_lt_u32 vcc, 5, v{ROW[1]}')
            e(f'  v_add_u32 v{T[8]}, {26*768}, v{base}')
            e(f'  v_add_u32 v{T[9]}, {37*768}, v{base}')
            e(f'  v_cndmask_b32 v{dst[4]}, v{T[8]}, v{T[9]}, vcc')
            if dst4b is not None:
                e(f'  v_add_u32 v{T[8]}, {58*768}, v{base}')
                e(f'  v_add_u32 v{T[9]}, {5*768}, v{base}')
                e(f'  v_cndmask_b32 v{dst4b}, v{T[8]}, v{T[9]}, vcc')
            if base != dst[1]: e(f'  v_mov_b32 v{dst[1]}, v{base}')
        if u == 2:
            e(f'  v_cmp_lt_u32 vcc, 10, v{ROW[2]}')
            e(f'  v_add_u32 v{T[8]}, 7680, v{base}')
            e(f'  v_add_u32 v{dst[5]}, {5*768}, v{base}')
            e(f'  v_cndmask_b32 v{dst[2]}, v{base}, v{T[8]}, vcc')
    e(f'  v_lshrrev_b32 v{GG[0]}, 4, v0')
    e(f'  v_xor_b32 v{T[6]}, s{sT[3]}, v{lo4}')
    for u in range(3):
        if u: e(f'  v_add_u32 v{GG[u]}, {16*u}, v{GG[0]}')
        e(f'  v_mul_u32_u24 v{ROW[u]}, 43, v{GG[u]}')
        e(f'  v_lshrrev_b32 v{ROW[u]}, 7, v{ROW[u]}')
        e(f'  v_mul_u32_u24 v{T[2]}, 3, v{ROW[u]}')
        e(f'  v_sub_u32 v{T[3]}, v{GG[u]}, v{T[2]}')
        e(f'  v_add_u32 v{T[3]}, s{sR1}, v{T[3]}')
        e(f'  v_subrev_u32 v{T[5]}, 3, v{T[3]}')
        e(f'  v_min_u32 v{T[3]}, v{T[3]}, v{T[5]}')
        e(f'  v_add_u32 v{T[3]}, v{T[3]}, v{T[2]}')
        e(f'  v_xor_b32 v{T[5]}, v{ROW[u]}, v{T[6]}')
        e(f'  v_lshlrev_b32 v{T[5]}, 4, v{T[5]}')
        e(f'  v_lshl_add_u32 v{vXS[u]}, v{T[3]}, 8, v{T[5]}')
        if u != 1:
            e(f'  v_cmp_eq_u32 vcc, {10 if u == 2 else 5}, v{ROW[u]}')
            e(f'  s_nop 1')
            e(f'  v_cndmask_b32 v{vMk[0 if u == 2 else 1]}, 0, -1, vcc')
    if NB0 <= 2: run(xdma_items(0))
    STG = int(opts.get('stg', 0))
    sS3 = [58, 59, 62]; sSR = 63
    def x0_site(early):
        it = []
        if early: it += [x for x in xdma(0, 0)[:-3]]
        it += [f'  s_and_b32 s{sSR}, s2, {STG}', f'  s_cmp_eq_u32 s{sSR}, 0' if early else f'  s_cmp_lg_u32 s{sSR}, 0']
        for r, src in zip(sS3, (sF[0], sX4, sF[0] + 1)): it.append(f'  s_cselect_b32 s{r}, s{src}, s{sOOB}')
        it += [f'  s_cselect_b32 s{sSR}, 0, {TILE_B}', f'  s_add_u32 s{sSR}, s{sSR}, s{sRing}']
        for u in range(6):
            if u == 4: it.append(f'  v_cndmask_b32 v{vTX}, v{vXS[4]}, v{vXS4b}, s[{sXm}:{sXm+1}]')
            it += [f'  s_add_u32 m0, s{sSR}, {u*4096}', '  s_nop 0',
                   lambda u=u: g.vmop(f'  buffer_load_dwordx4 v{vTX if u == 4 else vXS[u]}, s[{sX}:{sX+3}], s{sS3[max(0, u - 3)]} offen{NT_LD} lds', ('L', 0, u))]
        return it
    XE = int(opts.get('xe', -1))
    if STG and XE < 0: run(x0_site(True))
    for s in range(NB0, 2): run(bload(s))
    srd(sO, 30, 113246208)
    e(f'  v_lshlrev_b32 v{vST[0]}, 4, v0')
    for u in range(3):
        if u: e(f'  v_add_u32 v{vST[u]}, {4096*u}, v{vST[0]}')
        e(f'  v_and_b32 v{T[5]}, 7, v{ROW[u]}')
        e(f'  v_xor_b32 v{T[5]}, v{T[5]}, v{lo4}')
        e(f'  v_lshlrev_b32 v{T[5]}, 4, v{T[5]}')
        e(f'  v_lshl_add_u32 v{T[5]}, v{GG[u]}, 8, v{T[5]}')
        e(f'  v_add_u32 v{vOR[u]}, {LDS_O}, v{T[5]}')
    if opts.get('xlin'):
        for u in range(3): e(f'  v_mov_b32 v{vXS[u]}, v{vST[u]}')
    if opts.get('xlin') == '2':
        for u in range(2): e(f'  v_mov_b32 v{vMk[u]}, 0')
    e(f'  v_mul_u32_u24 v{T[0]}, 0x300, v{lo4}')
    e(f'  v_xor_b32 v{T[2]}, v{hi2}, v{lo4}')
    e(f'  v_lshl_add_u32 v{vLdsR[0]}, v{T[2]}, 4, v{T[0]}')
    for s in range(1, 4): e(f'  v_xor_b32 v{vLdsR[s]}, {s*64}, v{vLdsR[0]}')
    e(f'  s_mul_i32 s{sT[1]}, s{sW}, 12')
    e(f'  v_and_b32 v{T[2]}, 7, v{lo4}')
    for u in range(2):
        e(f'  v_add_u32 v{T[3]}, s{sT[1]}, v{hi2}')
        if u: e(f'  v_add_u32 v{T[3]}, {4*u}, v{T[3]}')
        e(f'  v_xor_b32 v{T[3]}, v{T[3]}, v{T[2]}')
        e(f'  v_lshl_add_u32 v{vOW[u]}, v{T[3]}, 4, v{T[0]}')
        e(f'  v_add_u32 v{vOW[u]}, {LDS_O}, v{vOW[u]}')
    e(f'  v_bfe_u32 v{T[2]}, v{vLane}, 2, 2')
    e(f'  v_and_b32 v{T[3]}, 3, v{vLane}')
    e(f'  v_lshrrev_b32 v{T[5]}, 1, v{hi2}')
    e(f'  v_lshl_add_u32 v{T[5]}, v{T[5]}, 3, v{T[2]}')
    e(f'  v_mul_u32_u24 v{T[5]}, 192, v{T[5]}')
    e(f'  v_and_b32 v{T[7]}, 1, v{hi2}')
    e(f'  v_mul_u32_u24 v{T[7]}, 3080, v{T[7]}')
    e(f'  v_add_u32 v{T[5]}, v{T[5]}, v{T[7]}')
    e(f'  v_lshl_add_u32 v{T[5]}, v{T[3]}, 4, v{T[5]}')
    e(f'  s_add_u32 s{sT[1]}, s{sBW}, {AREA[2]}')
    e(f'  v_add_u32 v{vTr2}, s{sT[1]}, v{T[5]}')
    e(f'  v_add_u32 v{vTr}, {(AREA[0] - AREA[2]) & 0xffffffff}, v{vTr2}')
    e(f'  s_add_u32 s{sT[1]}, s{sRing}, {LDS_DW}')
    e(f'  v_lshl_add_u32 v{vDW}, v{hi2}, 4, s{sT[1]}')
    e(f'  v_and_b32 v{T[5]}, 1, v{vLane}')
    e(f'  v_lshlrev_b32 v{T[5]}, 4, v{T[5]}')
    e(f'  v_mov_b32 v{T[7]}, 0xffff')
    e(f'  v_lshlrev_b32 v{T[5]}, v{T[5]}, v{T[7]}')
    e(f'  v_lshlrev_b32 v{T[0]}, 1, v{hi2}')
    e(f'  v_bfe_u32 v{T[7]}, v{vLane}, 1, 3')
    e(f'  v_cmp_eq_u32 vcc, v{T[0]}, v{T[7]}')
    e(f'  v_add_u32 v{T[0]}, 1, v{T[0]}')
    e(f'  s_nop 0')
    e(f'  v_cndmask_b32 v{vM[0]}, 0, v{T[5]}, vcc')
    e(f'  v_cmp_eq_u32 vcc, v{T[0]}, v{T[7]}')
    srd(sDS, sDb, 256)
    e(f'  v_cndmask_b32 v{vM[1]}, 0, v{T[5]}, vcc')
    NR = int(opts.get('nr', 2))
    def probe():
        e('; --- placement probe: latency of one line per interleave class')
        e(f'  s_cmp_lg_u32 s{sPr}, 0')
        e(f'  s_cbranch_scc1 L_npr')
        e(f'  s_mov_b32 s{sPv}, 0xffff')
        e(f'  s_mov_b32 s{sRd}, 0xffff')
        e(f'  s_lshl_b32 s{sT[2]}, s{sW}, 2')
        e(f'  s_add_u32 s{sT[2]}, s{sT[2]}, {LDS_PR}')
        e(f'  v_mov_b32 v{T[0]}, s{sT[2]}')
        if int(opts.get('pb', 0)):
            e('  s_waitcnt lgkmcnt(0)')
            for i in range(NR):
                e('  s_barrier')
                e(f'  s_memtime s[{sPT}:{sPT+1}]')
                e(f'  s_load_dword s{sT[2]}, s[24:25], s{sPb if i & 1 else sPa} glc')
                e('  s_waitcnt lgkmcnt(0)')
                e(f'  s_memtime s[{sPT+2}:{sPT+3}]')
                e('  s_waitcnt lgkmcnt(0)')
                e(f'  s_sub_u32 s{sT[1]}, s{sPT+2}, s{sPT}')
                e(f'  s_min_u32 s{sRd if i & 1 else sPv}, s{sRd if i & 1 else sPv}, s{sT[1]}')
        else:
            e('  s_waitcnt lgkmcnt(0)')
            e(f'  s_memtime s[{sPT}:{sPT+1}]')
            for i in range(NR):
                a, b = (sPT, sPT + 2) if i % 2 == 0 else (sPT + 2, sPT)
                e(f'  s_load_dword s{sT[2]}, s[24:25], s{sPb if i & 1 else sPa} glc')
                e('  s_waitcnt lgkmcnt(0)')
                if i:
                    e(f'  s_sub_u32 s{sT[1]}, s{a}, s{b}')
                e(f'  s_memtime s[{b}:{b+1}]')
                if i: e(f'  s_min_u32 s{sRd if (i - 1) & 1 else sPv}, s{sRd if (i - 1) & 1 else sPv}, s{sT[1]}')
            e('  s_waitcnt lgkmcnt(0)')
            e(f'  s_sub_u32 s{sT[1]}, s{sPT}, s{sPT+2}')
            e(f'  s_min_u32 s{sRd}, s{sRd}, s{sT[1]}')
        e(f'  s_lshl_b32 s{sPv}, s{sPv}, 16')
        e(f'  s_or_b32 s{sPv}, s{sPv}, s{sRd}')
        e(f'  v_mov_b32 v{T[2]}, s{sPv}')
        e(f'  ds_write_b32 v{T[0]}, v{T[2]}')
        e('  s_waitcnt lgkmcnt(0)')
        e(f'L_npr:')
    PQ = 248
    assert 11 not in ASLOTS
    def publish():
        e('; --- publish the nearest class (first writer wins)')
        if NB0 >= 2:
            e(f'  s_cmp_lg_u32 s{sPr}, 0')
            e(f'  s_cbranch_scc1 L_np1')
            e('  s_barrier')
        e(f'  s_or_b32 s{sT[1]}, s{sPr}, s{sW}')
        e(f'  s_cmp_lg_u32 s{sT[1]}, 0')
        e(f'  s_cbranch_scc1 L_np1')
        PR = 240
        e(f'  v_mov_b32 v{PR+8}, {LDS_PR}')
        e(f'  ds_read_b128 v[{PR}:{PR+3}], v{PR+8}')
        e(f'  s_add_u32 s{sT[1]}, s24, s{sPa}')
        e(f'  s_lshr_b32 s{sT[2]}, s{sT[1]}, 20')
        e(f'  s_lshr_b32 s{sT[0]}, s2, 1')
        e(f'  s_xor_b32 s{sT[2]}, s{sT[2]}, s{sT[0]}')
        e(f'  s_and_b32 s{sT[2]}, s{sT[2]}, 2')
        e(f'  s_lshr_b32 s{sT[1]}, s{sT[1]}, 17')
        e(f'  s_and_b32 s{sT[1]}, s{sT[1]}, 4')
        e(f'  s_or_b32 s{sT[1]}, s{sT[1]}, s{sT[2]}')
        e(f'  s_or_b32 s{sT[1]}, s{sT[1]}, 1')
        e(f'  v_mov_b32 v{PR+11}, 0')
        e(f'  v_mov_b32 v{PR+8}, s{sEo}')
        e('  s_waitcnt lgkmcnt(0)')
        for o in (0,):
            e(f'  v_pk_min_u16 v{PR+o}, v{PR+o}, v{PR+o+1}')
            e(f'  v_pk_min_u16 v{PR+o+2}, v{PR+o+2}, v{PR+o+3}')
            e(f'  v_pk_min_u16 v{PR+o}, v{PR+o}, v{PR+o+2}')
            e(f'  v_lshrrev_b32 v{PR+o+1}, 16, v{PR+o}')
            e(f'  v_and_b32 v{PR+o}, 0xffff, v{PR+o}')
        e(f'  v_cmp_gt_u32 vcc, v{PR+1}, v{PR}')
        e(f'  v_min_u32 v{PR+2}, v{PR}, v{PR+1}')
        e('  s_nop 0')
        e(f'  v_cndmask_b32 v{PR+10}, 0, 2, vcc')
        e(f'  v_xor_b32 v{PR+10}, s{sT[1]}, v{PR+10}')
        e('  s_mov_b64 exec, 1')
        e(f'  v_lshl_or_b32 v{PR+10}, v{PR+2}, 16, v{PR+10}')
        if opts.get('sat'):
            e(f'  s_mov_b32 s{sRd+1}, 0')
            e(f'  v_readfirstlane_b32 s{sRd}, v{PR+10}')
            e('  s_nop 4')
            e(f'  s_atomic_cmpswap s[{sRd}:{sRd+1}], s[{sDb}:{sDb+1}], s{sEo}{" glc" if opts["sat"] == "1" else ""}')
        else:
            e(f'  buffer_atomic_cmpswap v[{PR+10}:{PR+11}], v{PR+8}, s[{sDS}:{sDS+3}], 0 offen sc1')
        e('  s_mov_b64 exec, -1')
        e('L_np1:')
    if opts.get('st2') == '2': stamp()
    if int(opts.get('iw', 0)):
        for r in sSo: e(f'  s_mov_b32 s{r}, s{sOOB}')
        e(f'  s_mov_b64 s[{sSm}:{sSm+1}], 0')
        if opts.get('iwp', '0') == '0': e('@IWHOP')
    PP = int(opts.get('pp', 1))
    if NUMA and PP == -1: probe()
    for s in range(NI, 2): run(bload(s))
    if NUMA and PP == 0: probe()
    LA = int(opts.get('la', NAR))
    assert LA <= NAR
    if LA > 2: run(bload(2))
    if NUMA and PP == 1: probe()
    if NB0 == 3: run(xdma_items(0))
    if LA > 3: run(bload(3))
    if LA > 4: run(bload(4))
    if NUMA and PP == 2: probe()

    def trs(s):
        it = [lambda: g.wait(('b', s), vm=('W',) if (s == 0 and LEAN) else ('B', s, 5))]
        base = vTr if (s % NAR) < 2 else vTr2
        so = AREA[s % NAR] - AREA[0 if (s % NAR) < 2 else 2]
        it.append(lambda: g.lgop(f'  ds_read_b128 v[{DWR[s & 1]}:{DWR[s & 1]+3}], v{vDW} offset:{s*64}', ('TR', s)))
        for nt in range(6):
            for hh in range(2):
                r = RAW[s & 1] + nt*4 + 2*hh
                it.append(lambda r=r, nt=nt, hh=hh: g.lgop(f'  ds_read_b64_tr_b16 a[{r}:{r+1}], v{base} offset:{so + hh*768 + (nt >> 1)*64 + (nt & 1)*8}', ('TR', s)))
        return it
    def cvts(s, j, q=None):
        nt, hh = j // 2, j % 2
        if q is None: q = FT + 4*(j % NFT)
        if s in ASLOTS:
            return [f'  v_cvt_pk_bf16_f32 v{q}, v{q}, v{q+1}', f'  v_cvt_pk_bf16_f32 v{q+1}, v{q+2}, v{q+3}',
                    f'  v_accvgpr_write_b32 {breg(s, nt, 1, 2*hh)}, v{q}', f'  v_accvgpr_write_b32 {breg(s, nt, 1, 2*hh+1)}, v{q+1}']
        return [f'  v_cvt_pk_bf16_f32 {breg(s, nt, 1, 2*hh)}, v{q}, v{q+1}', f'  v_cvt_pk_bf16_f32 {breg(s, nt, 1, 2*hh+1)}, v{q+2}, v{q+3}']
    def rd(t, i):
        mt, ks = i // 12, i % 12
        x = XF + 8*((i // 2) % 3) + 4*(i & 1)
        g.lgop(f'  ds_read_b128 a[{x}:{x+3}], v{vLdsR[ks & 3]} offset:{(t & 1)*TILE_B + mt*12288 + (ks >> 2)*256}', ('X', t, i))
    TS = NB0 if FUSE else 13
    units = sorted([(0, k) for k in range(12)] + [(1, k) for k in range(8)], key=lambda u: (u[1] + 4*u[0], -u[0]))
    UPS = int(opts.get('ups', 2 if NB0 <= 2 else 3))
    SCH = {s: [] for s in range(13)}
    rem = list(units) if FUSE else []
    for s in range(12, TS - 1, -1):
        n = 2 if s == 12 else UPS
        take = [u for u in reversed(rem) if u[1] < s][:n]
        SCH[s] = sorted(take, key=lambda u: (u[1], u[0]))
        rem = [u for u in rem if u not in take]
    assert not rem, rem
    for mt in range(2 if FUSE else 0):
        seq = [u[1] for s in range(13) for u in SCH[s] if u[0] == mt]
        assert seq[0] == 0 and sorted(seq) == list(range(len(seq)))
    def tl(s): return SCH[s]
    def fx(s, mt, ks): return OB + 12*(s % 2) + 4*SCH[s].index((mt, ks))
    def prd(s):
        return [lambda mt=mt, ks=ks: g.lgop(f'  ds_read_b128 a[{fx(s, mt, ks)}:{fx(s, mt, ks)+3}], v{vLdsR[ks & 3]} offset:{mt*12288 + (ks >> 2)*256}', ('TR', s)) for (mt, ks) in tl(s)]
    def tm(s, mt, ks, nt):
        a = ACC + 24*mt + 4*nt; x = fx(s, mt, ks)
        return f'  v_mfma_f32_16x16x32_bf16 v[{a}:{a+3}], {breg(ks, nt)}, a[{x}:{x+3}], {"0" if ks == 0 else f"v[{a}:{a+3}]"}'
    if opts.get('iwp') == '1': e('@IWHOP')
    DEC = int(opts.get('dec', 0))
    def trd(s):
        it = [lambda: g.wait(('b', s), vm=('W',) if (s == 0 and LEAN) else ('B', s, 5))]
        base = vTr if (s % NAR) < 2 else vTr2
        so = AREA[s % NAR] - AREA[0 if (s % NAR) < 2 else 2]
        for nt in range(6):
            for hh in range(2):
                it.append(lambda nt=nt, hh=hh: g.lgop(f'  ds_read_b64_tr_b16 {breg(s, nt, 2, 2*hh)}, v{base} offset:{so + hh*768 + (nt >> 1)*64 + (nt & 1)*8}', ('TR', s)))
        return it
    def dwr(s): g.lgop(f'  ds_read_b128 v[{DWR[s & 1]}:{DWR[s & 1]+3}], v{vDW} offset:{s*64}', ('DW', s))
    if DEC:
        run(trd(0)); dwr(0)
    else: run(trs(0))
    stamp()
    LAG = int(opts.get('lag', 3))
    XA = int(opts.get('xa', 8)); XB = int(opts.get('xb', 12)); DS = int(opts.get('ds', XA)); BQ = 10
    X0 = int(opts.get('x0', 11 - LA)); X1 = int(opts.get('x1', 11))
    if not FUSE: XA = XB = BQ = 99; DS = int(opts.get('ds', 9)); LAG = int(opts.get('lag', 4))
    assert XB >= BQ
    pend = []
    def region(dst, src, tmp):
        return [f'  s_lshr_b32 s{tmp}, s{src}, 23', f'  s_sub_u32 s{tmp}, s{tmp}, 6', f'  s_lshr_b32 s{dst}, s{src}, 24', f'  s_max_i32 s{dst}, s{dst}, s{tmp}']
    def reader():
        it = [f'  s_add_u32 s{sT[1]}, s{sBase}, 49152'] + region(sOf[0], sT[1], sT[2])
        it += [f'  s_sub_u32 s{sT[1]}, s{sEnd}, {KSTEP - 49152}'] + region(sOf[2], sT[1], sT[2])
        for k, lim in ((1, sP2), (2, sP1 + 1)):
            it += [f'  s_add_u32 s{sT[1]}, s{sOf[0]}, {k}', f'  s_lshl_b32 s{lim}, s{sT[1]}, 24', f'  s_add_u32 s{sT[1]}, s{sT[1]}, 6',
                   f'  s_lshl_b32 s{sT[1]}, s{sT[1]}, 23', f'  s_min_u32 s{lim}, s{lim}, s{sT[1]}', f'  s_sub_u32 s{lim}, s{lim}, 49152']
        it += [f'  s_add_u32 s{sOf[1]}, s{sOf[0]}, 1', f'  s_min_u32 s{sOf[1]}, s{sOf[1]}, s{sOf[2]}']
        for i in range(3):
            it += [f'  s_lshl_b32 s{sOf[i]}, s{sOf[i]}, 4', f'  s_load_dwordx4 s[{sEn[i]}:{sEn[i]+3}], s[{sDb}:{sDb+1}], s{sOf[i]}']
        return it
    def decide():
        if NUMA:
            e(f'  s_min_u32 s{sT[1]}, s{sEn[0]}, s{sEn[0]+1}')
            for r in [sEn[0]+2, sEn[0]+3] + [sEn[i] + k for i in (1, 2) for k in range(4)]: e(f'  s_min_u32 s{sT[1]}, s{sT[1]}, s{r}')
            e(f'  s_cmp_eq_u32 s{sT[1]}, 0')
            e('  s_cbranch_scc1 L_slow')
            e('L_back:')
    def decide2():
        it = []
        it.append(f'  s_mov_b32 s{sDec+1}, s{sP2}')
        it.append(f'  s_mov_b32 s{sP2+1}, -1')
        it.append(f'  s_and_b32 s{sT[0]}, s2, 5')
        it.append(f'  s_lshl_b32 s{sT[0]}, s{sT[0]}, 19')
        for q, dst in zip(sEn, (sDec, sP1, sP2)):
            it.append(f'  s_min_u32 s{sT[1]}, s{q}, s{q+2}')
            it.append(f'  s_min_u32 s{sT[2]}, s{q+1}, s{q+3}')
            it.append(f'  s_cmp_gt_u32 s{sT[1]}, s{sT[2]}')
            it.append(f'  s_cselect_b32 s{sT[1]}, 4, 0')
            it.append(f'  s_xor_b32 s{sT[1]}, s{sT[1]}, s{q}')
            it.append(f'  s_and_b32 s{sT[1]}, s{sT[1]}, 4')
            it.append(f'  s_lshl_b32 s{sT[1]}, s{sT[1]}, 17')
            it.append(f'  s_bitcmp1_b32 s2, 1')
            it.append(f'  s_cselect_b64 s[{q}:{q+1}], s[{q+2}:{q+3}], s[{q}:{q+1}]')
            it.append(f'  s_bitcmp1_b32 s2, 0')
            it.append(f'  s_cselect_b32 s{dst}, s{q+1}, s{q}')
            it.append(f'  s_and_b32 s{dst}, s{dst}, 2')
            it.append(f'  s_lshl_b32 s{dst}, s{dst}, 20')
            it.append(f'  s_or_b32 s{dst}, s{dst}, s{sT[1]}')
            it.append(f'  s_xor_b32 s{dst}, s{dst}, s{sT[0]}')
        return it
    if DEC:
        QU = [[] for _ in range(145)]
        def spread(items, n0, n1):
            for i, it in enumerate(items): QU[n0 + (i * (n1 - n0)) // len(items)].append(it)
        for a in range(11):
            it = trd(a + 1)
            if a + LA < 12: it += [lambda a=a: g.wait(('trf', a), lg=('TR', a))] + bload(a + LA)
            if a == X0: it += xdma_items(0)
            spread(it, DEC * a, DEC * (a + 1))
        if NUMA: QU[12*DS - 8].append(f'  s_load_dword s{sRd}, s[{sDb}:{sDb+1}], s{sEo}')
        if X1 < 12: spread(xdma_items(1), 12*X1, 12*X1 + 12)
        assert DEC * (X0 + 1) <= 12*DS
        for n in range(144):
            k, j = n // 12, n % 12
            d = DWR[k & 1]
            if j == 0:
                if k == DS and NUMA: e('  s_waitcnt lgkmcnt(0)')
                else:
                    g.wait(('tr', k), lg=('TR', k)); g.wait(('dw', k), lg=('DW', k), opt=True)
                for i in range(4): e(f'  v_and_b32 v{d+i}, v{vM[i & 1]}, v{d+i}')
                if k == DS: decide()
                if k + 1 < 12: dwr(k + 1)
                else: e('  s_nop 0')
                e('  s_nop 0')
            nt, hh = j // 2, j % 2
            q = FT + 4*(n % NFT)
            e(f'  v_mfma_f32_16x16x16_bf16 v[{q}:{q+3}], v[{d+2*hh}:{d+2*hh+1}], {breg(k, nt, 2, 2*hh)}, 0')
            pend.append(cvts(k, j, q))
            run(QU[n])
            if len(pend) > LAG: run(pend.pop(0))
            if n in (47, 95): stamp()
            if n == 11 and NUMA: publish()
    for s in range(0 if DEC else 12):
        if s == DS and NUMA: e('  s_waitcnt lgkmcnt(0)')
        else: g.wait(('tr', s), lg=('TR', s))
        if s == BQ: e('  s_barrier')
        d = DWR[s & 1]
        for i in range(4): e(f'  v_and_b32 v{d+i}, v{vM[i & 1]}, v{d+i}')
        if s == DS: decide()
        Q = []
        if s + 4 == NB0: Q += xdma_items(0)
        if s + LA < 12: Q += bload(s + LA)
        nx = trs(s + 1) if s + 1 < 12 else []
        if s == NB0 - 1:
            nx = nx[:1] + ['  s_barrier'] + nx[1:]
        nx += prd(s + 1)
        Q = (Q + nx) if opts.get('qo', '1') == '0' else (nx + Q)
        if s == DS - 1 and NUMA:
            assert s > X0 and s + LA >= 12
            Q += reader()
        if s == DS and NUMA: Q += decide2()
        if STG and s == XE: Q += x0_site(True)
        if s == X0 and not FUSE: Q += (x0_site(False) if STG else xdma_items(0))
        if s == X1 and not FUSE: Q += xdma_items(1)
        if s == XA: Q += xdma_items(1)
        if s == XB: Q += xdma_items(2)
        if s == 11 and FUSE: Q += [lambda i=i: rd(0, i) for i in range(20, 24)]
        while len(Q) < 2: Q.append('  s_nop 0')
        M = []
        TL = [tm(s, mt, ks, nt) for nt in range(6) for (mt, ks) in tl(s)]
        for j in range(12):
            nt, hh = j // 2, j % 2
            r = RAW[s & 1] + nt*4 + 2*hh
            q = FT + 4*(j % NFT)
            M.append((f'  v_mfma_f32_16x16x16_bf16 v[{q}:{q+3}], v[{d+2*hh}:{d+2*hh+1}], a[{r}:{r+1}], 0', j))
            k0, k1 = (j*len(TL))//12, ((j+1)*len(TL))//12
            M += [(x, None) for x in TL[k0:k1]]
        run(Q[:2]); Q = Q[2:]
        front = int(opts.get('front', 2))
        cq = []
        for mi, (m, j) in enumerate(M):
            if j is not None:
                run(cq); cq = []
            e(m)
            if j is not None:
                pend.append(cvts(s, j))
                if len(pend) > LAG: cq = pend.pop(0)
            QE = (len(M) * int(opts.get('qe', 4))) // 4
            nq = -(-len(Q) // max(1, QE - mi)) if mi < QE else len(Q)
            run(Q[:nq]); Q = Q[nq:]
            nc = 2 if (mi + 1 < len(M) and M[mi + 1][1] is None) else len(cq)
            run(cq[:nc]); cq = cq[nc:]
        assert not Q and not cq
        if s in (3, 7) and not opts.get('st2'): stamp()
        if s == int(opts.get('pubs', 0)) and NUMA: publish()
    if FUSE:
        g.wait(('tr', 12), lg=('TR', 12))
        T0 = [tm(12, 0, 11, nt) for nt in range(6)]
        T1 = [tm(12, 1, ks, nt) for (mt, ks) in tl(12) if mt == 1 for nt in range(6)]
        for nt in range(4):
            e(T0[nt])
            if pend: run(pend.pop(0))
        if DS == 12:
            e('  s_waitcnt lgkmcnt(0)'); decide()
        e(f'  v_sub_u32 v{vST4b}, v{vXS4b}, v{vXS[4]}')
        e(f'  v_add_u32 v{vST4b}, v{vST4b}, v{vST[4]}')
        e(T0[4]); e(T0[5])
        stamp()
        FIN = (T1, XB)
    else:
        run(pend.pop(0)); run(pend.pop(0))
        stamp()
        e(f'  v_mov_b32 v{vTS2}, 0')
        e(f'  v_mov_b32 v{vTS3}, 0')
        for r in sSo: e(f'  s_mov_b32 s{r}, s{sOOB}')
        if PF:
            a_, m_ = [int(v) for v in PF.split(',')]
            e(f'  v_mbcnt_lo_u32_b32 v{vPF}, -1, 0')
            e(f'  v_mbcnt_hi_u32_b32 v{vPF}, -1, v{vPF}')
            e(f'  v_min_u32 v{vPF}, 47, v{vPF}')
            e(f'  s_mul_i32 s{sPf0}, s{sW}, 48')
            e(f'  v_add_u32 v{vPF}, s{sPf0}, v{vPF}')
            e(f'  v_lshrrev_b32 v{vPD}, 6, v{vPF}')
            e(f'  v_lshlrev_b32 v{vPD}, 13, v{vPD}')
            e(f'  v_lshl_add_u32 v{vPF}, v{vPF}, 7, v{vPD}')
            e(f'  s_lshr_b32 s{sPf0}, s2, 3')
            e(f'  s_and_b32 s{sPf0}, s{sPf0}, {m_}')
            e(f'  s_add_u32 s{sPf0}, s{sPf0}, {a_ - NTILE & 0xffffffff}')
            e(f'  s_mul_i32 s{sPf0}, s{sPf0}, {KSTEP}')
            e(f'  s_add_u32 s{sPf0}, s{sPf0}, s{sEnd}')
        if opts.get('iwp') == '2': e('@IWHOP')
        if int(opts.get('iw', 0)): e('  s_mov_b64 vcc, 0')
        if opts.get('lpad'): e('  s_mov_b64 vcc, 0')
        if opts.get('ss'): e('  s_mov_b64 vcc, -1'); e(f'  s_add_u32 s37, s{sBase}, {int(opts["ss"].split(",")[1])*KSTEP}')
        if opts.get('ssm'):
            m_ = int(opts['ssm'][::-1], 2)
            e(f'  s_mov_b32 s37, {m_}'); e(f'  s_mov_b64 vcc, {-1 if m_ & 1 else 0}')
        if opts.get('dr'):
            m_ = int(opts['dr'].split(',')[1][::-1], 2)
            e(f'  s_mov_b32 s37, {m_}'); e(f'  s_mov_b64 vcc, {-1 if m_ & 1 else 0}')
        g.wait('x0', vm=('L', 1, int(opts['w1'])) if opts.get('w1') else ('L', 0, 5))
        e('  s_barrier')
        for i in range(4): rd(0, i)
        while pend: run(pend.pop(0))
        if X1 == 13: run(xdma_items(1))
        else: assert NAR == 4 and X1 >= DS

    def epi(mt, u, po):
        a = ACC + 24*mt + 8*u
        cv = [f'  v_cvt_pk_bf16_f32 v{a+i}, v{a+2*i}, v{a+2*i+1}' for i in range(4)]
        off = po*TILE_B + mt*12288 + (u >> 1)*128
        if DIR:
            return cv + [lambda: g.vmop(f'  buffer_store_dwordx4 v[{a}:{a+3}], v{vTS if mt else vST[0]}, s[{sO}:{sO+3}], s{sSo[2] if mt else sSo[0]} offen offset:{64*u}{NT_ST}', None)]
        if opts.get('w64'):
            return cv[:2] + [lambda: g.lgop(f'  ds_write_b64 v{vOW[u & 1]}, v[{a}:{a+1}] offset:{off}', ('OWa', mt, u))] + cv[2:] + \
                   [lambda: g.lgop(f'  ds_write_b64 v{vOW[u & 1]}, v[{a+2}:{a+3}] offset:{off+8}', ('OW', mt, u))]
        return cv + [lambda: g.lgop(f'  ds_write_b128 v{vOW[u & 1]}, v[{a}:{a+3}] offset:{off}', ('OW', mt, u))]
    OBT = 'a'
    def out_read(t, u):
        o = OB + 4*u
        g.lgop(f'  ds_read_b128 {OBT}[{o}:{o+3}], v{vOR[u % 3]} offset:{((t^1)&1)*TILE_B + (u // 3)*12288}', ('O', t, u))
    def out_store(t, u, key):
        o = OB + 4*u
        g.wait((key, 'o', u), lg=('O', t, u), opt=True)
        g.vmop(f'  buffer_store_dwordx4 {OBT}[{o}:{o+3}], v{[vST[0], vST[1], vTS2, vTS3, vST[1], vST[2]][u]}, s[{sO}:{sO+3}], s{sSo[[0, 0, 1, 2, 3, 3][u]]} offen{opts.get("mixf", " nt") if str(u) in opts.get("mix", "") else NT_ST}', None)
    def st_adv(d=0):
        p, q = sF[2 - d], sF[3 - d]
        return halfA(p, sSo[0], sSd) + [f'  s_mov_b32 s{sSo[1]}, s{p}'] + mixv(vTS2, vST[2], vMk[0], sSd, p + 1) + \
               halfB(q, sSo[3], sSd, sSo[2]) + mixv(vTS3, vST[0], vMk[1], sSd, sSo[2]) + [f'  s_mov_b32 s{sSo[2]}, s{q}']
    def ints(k, d): return [int(v) for v in opts.get(k, d).split(',')]
    OR_AT = ints('or', '2,3,4,5,6,7'); OS_AT = ints('os', '14,20,30,40,52,64')
    UORD = ints('uord', '3,4,5,0,1,2')
    XD_AT = ints('xd', '76,88,100,112,124,136')
    E1_AT = ints('e1', '27,39,61'); E0_AT = ints('e0', '99,106,123')
    SH_AT = int(opts.get('sh', 26)); CAP = int(opts.get('cap', 1)); HG = int(opts.get('hg', 0))
    DR = opts['dr'].split(',') if opts.get('dr') else None
    def fillers(t):
        F = [[] for _ in range(144)]
        use = [0] * 150
        for r in range(144):
            if r % 12 in (0, 1, 11): use[r] = 1
        HP = opts.get('hp')
        def heavy(rho, it):
            while use[rho] or (HP and rho % 2 != int(HP)): rho += 1
            F[rho].append(it); use[rho] = 9
            for k in range(1, HG + 1): use[rho + k] = max(use[rho + k], 8)
            return rho
        def light(rho, items, cap=CAP, back=False):
            if back:
                for it in reversed(items):
                    while use[rho] >= cap: rho -= 1
                    F[rho].insert(0, it); use[rho] += 1
                return rho
            for it in items:
                while use[rho] >= cap: rho += 1
                F[rho].append(it); use[rho] += 1
            return rho
        kp = t & 1
        post = []
        vpos = []
        for k in range(0 if DIR else 6):
            u = UORD[k]
            lastst = heavy(OS_AT[k], lambda u=u: out_store(t, u, kp))
            vpos.append(lastst)
        xpos = []
        for u in range(6):
            it = [x for x in xdma(t + PD, u) if x != 'NOP']
            xpos.append((heavy(XD_AT[u], it[-1]), it[:-1]))
        for mt, AT in ((1, E1_AT), (0, E0_AT)):
            for u in range(3):
                r = AT[u]
                for it in epi(mt, u, t & 1):
                    r = (heavy(r, it) if callable(it) else light(r, [it], 1)) + 1
                if DIR:
                    vpos.append(r - 1)
                    if mt == 1: lastst = r - 1
        for k in range(0 if DIR else 6):
            light(OR_AT[k], [lambda u=UORD[k]: out_read(t, u)], 1)
        prevx = 0
        for (r, it) in xpos:
            r0 = light(r - 1, it, 2 if len(it) > 6 else CAP, back=True)
            assert r0 >= 24 and r0 > prevx, (r0, prevx)
            prevx = r
        if opts.get('xr'):
            a_, b_ = [int(v) for v in opts['xr'].split(',')]
            it = [f'  s_sub_u32 s37, s{sEnd}, s{sBase}', f'  s_sub_u32 s37, s37, {(NTILE - b_)*KSTEP + 1}', f'  s_cmp_lt_u32 s37, {(b_ - a_)*KSTEP}',
                  f'  s_cselect_b32 s37, s{sF[0]}, s{sOOB}', f'  s_xor_b32 s37, s37, 0x2000000']
            r1_ = heavy(104, lambda: g.vmop(f'  buffer_load_dwordx4 a[240:243], v{vXS[0]}, s[{sX}:{sX+3}], s37 offen nt', None))
            heavy(130, lambda: g.vmop(f'  buffer_load_dwordx4 a[244:247], v{vXS[1]}, s[{sX}:{sX+3}], s37 offen nt', None))
            light(94, it, 2, back=True)
        if PF:
            it = pf_items()
            rp = heavy(int(opts.get('pfa', 140)), it[-1])
            assert light(rp - 1, it[:-1], 2, back=True) > xpos[4][0]
        if opts.get('lim'):
            for r in vpos + [x[0] for x in xpos]:
                light(r - 1, [f'  s_waitcnt vmcnt({opts["lim"]})'], 2, back=True)
        if opts.get('ss'):
            n_, _, sites = opts['ss'].split(',')
            for c in sites:
                r = xpos[int(c)][0]
                lab = f'L_ss{t}_{c}_{len(g.L)}'
                def blk(lab=lab): e(f'  s_cbranch_vccz {lab}'); e(f'  s_waitcnt vmcnt({n_})'); e(lab + ':')
                light(r - 1, [blk], 2, back=True)
        if DR:
            def blk(t=t):
                if unroll: e('  s_nop 0')
                else: e(f'  s_cbranch_vccnz L_dr{t & 1}'); e(f'L_drb{t & 1}:')
            light(int(DR[2]), [blk], 2)
            if (t & 1) or len(DR) > 3:
                light(138, ['  s_lshr_b32 s37, s37, 1', '  s_bitcmp1_b32 s37, 0', '  s_cselect_b64 vcc, -1, 0'], 1)
        for key, pos in (('lims', vpos), ('liml', [x[0] for x in xpos])):
            for r, v in zip(pos, opts.get(key, '').split(',')):
                if v not in ('', '-'): light(r - 1, [f'  s_waitcnt vmcnt({v})'], 2, back=True)
        for a, b in zip(xpos, xpos[1:]): assert b[0] - a[0] >= 5
        r1 = light(max(lastst, xpos[0][0]) + 1, [x for x in st_adv() if x != 'NOP'], 2)
        assert r1 < (E0_AT[0] + 4 if DIR else 144)
        return F
    def tile(t, G0=0):
        kp = t & 1
        F0 = fillers(t); F1 = fillers(t + 1)
        for G_ in range(G0, 12):
            mt, kg = G_ // 6, G_ % 6
            if DBG == 2 and G_ in (4, 10): e(f'  s_memrealtime s[{[42, 44, 48, 50][2*kp + (G_ == 10)]}:{[42, 44, 48, 50][2*kp + (G_ == 10)]+1}]')
            if G_ == 10:
                if G0 == 0 and kp == 1 and opts.get('skv'):
                    e(f'  s_cmp_ge_u32 s{sF[1]}, s{sOOB}')
                    e(f'  s_cbranch_scc1 L_npv{t}')
                    g.wait((kp, 'barv'), vm=('L', t + 1, 5))
                    e(f'L_npv{t}:')
                    g.wait((kp, 'bar'), lg=('OW', 0, 2))
                elif G0 == 0: g.wait((kp, 'bar'), vm=('L', t + 1, 5), lg=('OW', 0, 2))
                if kp == 0 and not unroll: e('L_ent:')
                e('  s_barrier')
                if DBG == 2: e(f'  s_memrealtime s[{[46, 52][kp]}:{[46, 52][kp]+1}]')
                if t & 1:
                    for r in vLdsR: e(f'  v_xor_b32 v{r}, {2*TILE_B}, v{r}')
            g.wait((kp, 'x', G_), lg=('X', t, 2*G_ + 1))
            if opts.get('lpad') and G_ % 2 == 0:
                e(f'  s_cbranch_vccz L_lp{t}_{G_}'); e(f'  s_nop {opts["lpad"].split(",")[0]}'); e(f'L_lp{t}_{G_}:')
            if opts.get('ss') and G_ == 11 and (kp == 1 or opts.get('sst')):
                if opts.get('ssm'): e('  s_lshr_b32 s37, s37, 1'); e('  s_bitcmp1_b32 s37, 0'); e('  s_cselect_b64 vcc, -1, 0')
                else: e(f'  s_cmp_lt_u32 s{sBase}, s37'); e('  s_cselect_b64 vcc, -1, 0')
            if opts.get('lpad') and G_ == 11:
                e(f'  s_add_u32 s37, s{sBase}, {(NTILE - 2 - int(opts["lpad"].split(",")[1]))*KSTEP}'); e(f'  s_cmp_ge_u32 s37, s{sEnd}'); e('  s_cselect_b64 vcc, -1, 0')
            for pd_ in (opts['pad'].split(',') if opts.get('pad') else []): e(f'  s_nop {pd_}')
            for nt in range(6):
                for k in range(2):
                    kk = k ^ (nt & 1) if opts.get('snake') else k
                    ks = 2*kg + kk; i = 12*mt + ks
                    x = XF + 8*(G_ % 3) + 4*kk
                    a = ACC + 24*mt + 4*nt
                    c = '0' if kg == 0 and k == 0 else f'v[{a}:{a+3}]'
                    e(f'  v_mfma_f32_16x16x32_bf16 v[{a}:{a+3}], {breg(ks, nt)}, a[{x}:{x+3}], {c}')
                    gap = 12*G_ + 2*nt + k
                    if gap % 12 in (0, 1):
                        j = 2*G_ + 4 + (gap % 12)
                        if j < 24: rd(t, j)
                        else: rd(t + 1, j - 24)
                    run(F0[gap + 24] if gap < 120 else F1[gap - 120])
    if FUSE:
        Q = (xdma_items(2) if XB == 12 else []) + [x if x != 'NOP' else '  s_nop 0' for x in st_adv()]
        E = epi(0, 0, 0) + epi(0, 1, 0) + epi(0, 2, 0)
        T1 = list(FIN[0])
        run(Q[:4]); Q = Q[4:]
        while T1 or E:
            if T1: e(T1.pop(0))
            run(E[:3]); E = E[3:]
        run(Q)
    stamp()
    if DBG:
        e(f'  s_mov_b32 s94, {sn[0]}')
        e('  s_mov_b32 s60, s64')
        e('  s_memtime s[38:39]') if 0 else e('  s_memtime s[86:87]')
    def tail(t):
        if DIR:
            e('  s_nop 3')
            for u in range(3): run(epi(1, u, t & 1))
            return
        done = [UORD[k] for k in range(6) if OS_AT[k] < 24]
        rdone = [UORD[k] for k in range(6) if OR_AT[k] < 24]
        for u in UORD:
            if u not in rdone: out_read(t, u)
        e('  s_nop 3')
        for u in range(3): run(epi(1, u, t & 1))
        for u in UORD:
            if u not in done: out_store(t, u, 'T')
        run([x if x != 'NOP' else '  s_nop 0' for x in st_adv(1)])
        e('  s_waitcnt lgkmcnt(0)')
        e('  s_barrier')
        for u in range(3):
            e(f'  ds_read_b128 a[{XF+4*u}:{XF+4*u+3}], v{vOR[u]} offset:{(t & 1)*TILE_B + 12288}')
        for u in range(3):
            e(f'  s_waitcnt lgkmcnt({2-u})')
            e(f'  buffer_store_dwordx4 a[{XF+4*u}:{XF+4*u+3}], v{[vTS3, vST[1], vST[2]][u]}, s[{sO}:{sO+3}], s{sSo[[2, 3, 3][u]]} offen{NT_ST}')
    PEEL = int(opts.get('peel', 0))
    def last_tile(t):
        F = [[] for _ in range(150)]
        use = [(1 if (r % 12 == 11 or (r % 12 in (0, 1) and r < 120)) else 0) for r in range(150)]
        def put(r, items):
            for it in items:
                if it == 'NOP': continue
                while use[r]: r += 1
                F[r].append(it); use[r] = 1
            return r
        def part(q):
            return [f'  s_mov_b32 s{sSo[1]}, s{q}', f'  s_mov_b32 s{sSo[3]}, s{q+1}', f'  s_min_u32 s{sSo[2]}, s{q}, s{q+1}',
                    f'  s_cmp_gt_u32 s{q}, s{q+1}', f'  s_cselect_b64 s[{sSm}:{sSm+1}], -1, 0', f'  v_cndmask_b32 v{vTS}, v{vST[4]}, v{vST4b}, s[{sSm}:{sSm+1}]']
        assert all(o < 24 for o in OR_AT) and UORD[:3] == [3, 4, 5]
        L1 = ints('l1', '6,16,28,40'); L2 = ints('l2', '62,74,88'); L3 = ints('l3', '120,128,136')
        BX, BY = int(opts.get('bx', 4)), int(opts.get('by', 9))
        rem = [UORD[k] for k in range(6) if OS_AT[k] >= 24]
        pos = {}
        for u, r in zip(rem, L1[-len(rem):]): pos[u] = put(r, [lambda u=u: out_store(t, u, 'L')])
        for u, r in zip((3, 4, 5), L2): p2 = put(r, [lambda u=u: out_store(t + 1, u, 'L2')])
        for u, r in zip((0, 1, 2), L3): put(r, [lambda u=u: out_store(t + 1, u, 'L2')])
        r = 3
        for u in range(3): r = put(r, epi(1, u, t & 1)) + 1
        assert r < 12*BX - 4
        r = 75
        for u in range(3): r = put(r, epi(0, u, t & 1)) + 1
        assert r < 12*BY - 4
        put(12*BX + 2, [lambda u=u: out_read(t + 1, u) for u in (3, 4, 5)])
        put(12*BY + 2, [lambda u=u: out_read(t + 1, u) for u in (0, 1, 2)])
        assert put(pos.get(5, 0) + 1, part(sF[2])) < L2[0] and max(pos.values()) < 12*BX
        put(max(pos.values()) + 1, [f'  s_mov_b32 s{sSo[0]}, s{sF[1]}'])
        put(p2 + 1, part(sF[1]))
        for G_ in range(12):
            mt, kg = G_ // 6, G_ % 6
            if G_ in (BX, BY):
                g.wait(('L', 'bar', G_), lg=('OW', 1 if G_ == BX else 0, 2))
                e('  s_barrier')
            g.wait(('L', 'x', G_), lg=('X', t, 2*G_ + 1))
            for nt in range(6):
                for k in range(2):
                    ks = 2*kg + k
                    x = XF + 8*(G_ % 3) + 4*k
                    a = ACC + 24*mt + 4*nt
                    c = '0' if ks == 0 else f'v[{a}:{a+3}]'
                    e(f'  v_mfma_f32_16x16x32_bf16 v[{a}:{a+3}], {breg(ks, nt)}, a[{x}:{x+3}], {c}')
                    gap = 12*G_ + 2*nt + k
                    if gap % 12 in (0, 1) and 2*G_ + 4 + (gap % 12) < 24: rd(t, 2*G_ + 4 + (gap % 12))
                    run(F[gap])
        assert not any(F[144:])
        if DBG:
            e('  s_mov_b32 m0, s94'); e('  s_nop 0'); e('  v_writelane_b32 v0, s60, m0')
            e('  s_memrealtime s[60:61]'); e('  s_memtime s[88:89]')
        else: e('  s_nop 1')
        for u in range(3): run(epi(1, u, (t + 1) & 1))
        e('  s_waitcnt lgkmcnt(0)')
        e('  s_barrier')
        for u in range(3):
            e(f'  ds_read_b128 a[{XF+4*u}:{XF+4*u+3}], v{vOR[u]} offset:{((t + 1) & 1)*TILE_B + 12288}')
        for u in range(3):
            e(f'  s_waitcnt lgkmcnt({2-u})')
            e(f'  buffer_store_dwordx4 a[{XF+4*u}:{XF+4*u+3}], v{vTS if u == 1 else vST[u+3]}, s[{sO}:{sO+3}], s{sSo[u+1]} offen{NT_ST}')
    if FUSE: g.wait('ent', vm=('L', 1, 5), lg=('OW', 0, 2))
    if PEEL and unroll:
        for t in range(NTILE - 1): tile(t)
        last_tile(NTILE - 1)
    elif PEEL:
        e('L_loop:')
        tile(0)
        e(f'  s_cmp_ge_u32 s{sF[0]}, s{sOOB}')
        e(f'  s_cbranch_scc1 L_tail')
        tile(1)
        if DBG:
            e('  s_mov_b32 m0, s94'); e('  s_nop 0'); e('  v_writelane_b32 v0, s60, m0')
            e('  s_add_u32 s94, s94, 1')
            e('  s_memrealtime s[60:61]')
        e(f'  s_branch L_loop')
        e('L_tail:')
        last_tile(1)
        if DBG: e('  s_mov_b32 s94, 15')
    elif unroll:
        tile(0, 10 if FUSE else 0)
        for t in range(1, NTILE): tile(t)
        tail(NTILE)
    else:
        if FUSE: e('  s_branch L_ent')
        if opts.get('al'): e(f'  .p2align {opts["al"]}')
        e('L_loop:')
        tile(0)
        tile(1)
        if DBG:
            e('  s_mov_b32 m0, s94'); e('  s_nop 0'); e('  v_writelane_b32 v0, s60, m0')
            e('  s_add_u32 s94, s94, 1')
            e('  s_min_u32 s94, s94, 15')
            e('  s_memrealtime s[60:61]')
        e(f'  s_cmp_lt_u32 s{sF[1]}, s{sOOB}')
        e(f'  s_cbranch_scc1 L_loop')
        e('L_tail:')
        if DBG: e('  s_memtime s[88:89]')
        tail(0)
        if DBG: e('  s_mov_b32 s94, 15')
    if DBG:
        e('  s_mov_b32 m0, s94'); e('  s_nop 0'); e('  v_writelane_b32 v0, s60, m0')
        e('  s_add_u32 s94, s94, 1')
        e('  s_load_dwordx2 s[24:25], s[0:1], 40')
        e('  s_waitcnt vmcnt(0)')
        e('  s_memrealtime s[54:55]')
        e('  s_memtime s[98:99]')
        e('  s_waitcnt lgkmcnt(0)')
        e('  s_mov_b32 m0, s94'); e('  s_nop 0'); e('  v_writelane_b32 v0, s54, m0')
        e('  s_sub_u32 s98, s98, s96')
        e('  s_add_u32 s98, s98, s64')
        e('  v_writelane_b32 v0, s98, 31')
        e('  s_sub_u32 s88, s88, s86')
        e('  v_writelane_b32 v0, s88, 30')
        if DBG == 2:
            for i in range(6): e(f'  v_writelane_b32 v0, s{42+2*i}, {17+i}')
        e(f'  v_writelane_b32 v0, s{sPv}, 29')
        e(f'  v_writelane_b32 v0, s{sDec}, 28')
        e(f'  v_writelane_b32 v0, s3, 27')
        for i in range(sn[0]): e(f'  v_writelane_b32 v0, s{64+2*i}, {i}')
        e('  s_mov_b32 s56, s24'); e('  s_and_b32 s57, s25, 0xffff'); e('  s_mov_b32 s58, 452984832'); e('  s_mov_b32 s59, 0x00020000')
        e('  s_lshl_b32 s26, s2, 9'); e(f'  s_lshl_b32 s27, s{sW}, 7'); e('  s_add_u32 s26, s26, s27')
        e('  v_mbcnt_lo_u32_b32 v1, -1, 0')
        e('  v_lshlrev_b32 v1, 2, v1')
        e('  s_mov_b64 exec, 0xffffffff')
        e('  buffer_store_dword v0, v1, s[56:59], s26 offen')
    if AMP:
        e('  s_waitcnt vmcnt(0)')
        e('  s_memrealtime s[54:55]')
        e('  s_waitcnt lgkmcnt(0)')
        e(f'  s_cmp_lg_u32 s2, {int(opts.get("ampwg", 100))}')
        e('  s_cbranch_scc1 L_done')
        if AMP == 'c':
            e('  s_memtime s[98:99]')
            e('  s_waitcnt lgkmcnt(0)')
            e('  s_sub_u32 s27, s98, s96')
            e('  s_lshr_b32 s27, s27, 1')
        else:
            e(f'  s_sub_u32 s27, s{54 if AMP == "e" else 64 + 2*int(AMP)}, s64')
            e('  s_mul_i32 s27, s27, 10')
        e('L_spin:')
        e('  s_sleep 8')
        e('  s_memrealtime s[56:57]')
        e('  s_waitcnt lgkmcnt(0)')
        e('  s_sub_u32 s26, s56, s54')
        e('  s_cmp_lt_u32 s26, s27')
        e('  s_cbranch_scc1 L_spin')
    if NUMA:
        e('  s_endpgm')
        e('L_slow:')
        e(f'  v_mbcnt_lo_u32_b32 v253, -1, 0')
        e(f'  v_and_b32 v253, 3, v253')
        e(f'  v_lshl_add_u32 v{vTX}, v253, 2, s{sOf[0]}')
        e('  s_mov_b64 exec, 0xf0')
        e(f'  v_lshl_add_u32 v{vTX}, v253, 2, s{sOf[1]}')
        e('  s_mov_b64 exec, 0xf00')
        e(f'  v_lshl_add_u32 v{vTX}, v253, 2, s{sOf[2]}')
        e('  s_mov_b64 exec, -1')
        SP = ACC + 40 if DEC else (254 if DS <= 10 else FT)
        assert DS != 11
        e(f'  v_mov_b32 v{SP}, 1')
        e(f'  v_mov_b32 v{SP+1}, 0')
        e('  s_mov_b64 exec, 0xfff')
        e(f'  buffer_atomic_cmpswap v[{SP}:{SP+1}], v{vTX}, s[{sDS}:{sDS+3}], 0 offen sc0 sc1')
        e('  s_waitcnt vmcnt(0)')
        e(f'  v_max_u32 v{SP}, 1, v{SP}')
        e('  s_nop 0')
        for i in range(12): e(f'  v_readlane_b32 s{sEn[i // 4] + i % 4}, v{SP}, {i}')
        e('  s_nop 3')
        e('  s_mov_b64 exec, -1')
        if DBG: e('  s_mov_b32 s3, 1')
        e('  s_branch L_back')
    if DR and not unroll:
        e('; --- flow control: in the tiles selected by s37 let the queued loads/stores drain before issuing more')
        for p_ in range(2):
            e(f'L_dr{p_}:'); e(f'  s_waitcnt vmcnt({DR[0]})'); e(f'  s_branch L_drb{p_}')
    e('L_done:')
    e('  s_endpgm')
    e('.section .rodata,"a"')
    e('.p2align 6')
    e('.amdhsa_kernel standalone__depthwise_separable__vision_kernel')
    e('  .amdhsa_next_free_vgpr 512')
    e('  .amdhsa_next_free_sgpr 100')
    e('  .amdhsa_accum_offset 256')
    e('  .amdhsa_group_segment_fixed_size 0')
    e('  .amdhsa_kernarg_size 48')
    e('  .amdhsa_user_sgpr_count 2')
    e('  .amdhsa_user_sgpr_kernarg_segment_ptr 1')
    e('  .amdhsa_system_sgpr_workgroup_id_x 1')
    e('  .amdhsa_float_denorm_mode_32 3')
    e('.end_amdhsa_kernel')

if __name__ == '__main__':
    out = sys.argv[1]
    opts = dict(a.split('=', 1) for a in sys.argv[2:])
    opts.setdefault('dr', '1,0110000000000111,56,t'); opts.setdefault('liml', '8,8,8,8,8,8')
    for k in ('nt_ld', 'nt_st', 'nt_b'):
        if k in opts: opts[k] = (' ' + opts[k].replace('+', ' ')) if opts[k] != 'none' else ''
    open(out, 'w').write(gen(opts))
```
